```python
import torch

def _softmax(x, axis=-1):
    return torch.softmax(x, dim=axis)
def _gelu(x):
    return torch.nn.functional.gelu(x, approximate="tanh")
def _silu(x):
    return torch.nn.functional.silu(x)
def _sigmoid(x):
    return torch.sigmoid(x)
def _layernorm(x, axis=-1, eps=1e-5):
    m = x.mean(dim=axis, keepdim=True)
    v = x.var(dim=axis, keepdim=True, unbiased=False)
    return (x - m) / torch.sqrt(v + eps)
def _scatter_add(tgt, idx, src, axis=0):
    return tgt.clone().index_add_(axis, idx, src)
def _segment_sum(src, seg, n):
    out = torch.zeros((n,) + src.shape[1:], dtype=src.dtype)
    return out.index_add_(0, seg, src)
def _pad(x, pw):
    flat = tuple(v for pair in reversed(pw) for v in pair)
    return torch.nn.functional.pad(x, flat)

kernel_name = 'parallel_sum__ssm_conv_h3__glu_gated_reglu__prompt'

def setup_inputs():

    _w = (lambda a: (lambda t: t.to(torch.bfloat16) if t.is_floating_point() else t)(torch.as_tensor(a)))
    def _A_setup():
        B, S, D = 1, 2048, 448
        ks = 4
        return {
            "q": _w((lambda *s: torch.randn(*s, dtype=torch.bfloat16) * 0.05)(B, S, D)),
            "k": _w((lambda *s: torch.randn(*s, dtype=torch.bfloat16) * 0.2)(B, S, D)),
            "v": _w((lambda *s: torch.randn(*s, dtype=torch.bfloat16) * 0.2)(B, S, D)),
            "shift_k": _w((lambda *s: torch.randn(*s, dtype=torch.bfloat16) * 0.2)(D, ks) * 0.5),
            "ssm_k": _w((lambda *s: torch.randn(*s, dtype=torch.bfloat16) * 0.4)(D, S) * (1.0 / S ** 0.5)),
            "ssm_D": _w((lambda *s: torch.randn(*s, dtype=torch.bfloat16) * 0.2)(D)),
        }
    _A_in = _A_setup()

    def _B_setup():
        B, S, D, F = 1, 2048, 448, 1792
        return {
            "x": _w((lambda *s: torch.randn(*s, dtype=torch.bfloat16) * 0.05)(B, S, D)),
            "W_gate": _w((lambda *s: torch.randn(*s, dtype=torch.bfloat16) * 0.2)(D, F) * (2.0 / D) ** 0.5),
            "W_up": _w((lambda *s: torch.randn(*s, dtype=torch.bfloat16) * 0.2)(D, F) * (2.0 / D) ** 0.5),
            "W_down": _w((lambda *s: torch.randn(*s, dtype=torch.bfloat16) * 0.2)(F, D) * (1.0 / F) ** 0.5),
        }
    _B_in = _B_setup()

    return {
        "A_q": _A_in["q"],
        "A_k": _A_in["k"],
        "A_v": _A_in["v"],
        "A_shift_k": _A_in["shift_k"],
        "A_ssm_k": _A_in["ssm_k"],
        "A_ssm_D": _A_in["ssm_D"],
        "B_x": _B_in["x"],
        "B_W_gate": _B_in["W_gate"],
        "B_W_up": _B_in["W_up"],
        "B_W_down": _B_in["W_down"],
    }

def reference(A_q, A_k, A_v, A_shift_k, A_ssm_k, A_ssm_D, B_x, B_W_gate, B_W_up, B_W_down):
    def _A_ref(q, k, v, shift_k, ssm_k, ssm_D):
        B, S, D = q.shape
        ks = shift_k.shape[-1]
        k_pad = _pad(k, ((0, 0), (ks - 1, 0), (0, 0)))
        k_shift = torch.zeros_like(k)
        for t in range(ks):
            k_shift = k_shift + k_pad[:, t:t + S, :] * shift_k[:, ks - 1 - t][None, None, :]
        kv = k_shift * v
        L = 2 * S
        kv_pad = _pad(kv, ((0, 0), (0, S), (0, 0)))
        kf_pad = _pad(ssm_k, ((0, 0), (0, S)))
        kv_f = (lambda x, axes=(-2,-1): torch.fft.rfft2(x.float(), dim=axes))(kv_pad[:, None, :, :], axes=(1, 2))
        kf_f = (lambda x, axes=(-2,-1): torch.fft.rfft2(x.float(), dim=axes))(kf_pad[:, None, :], axes=(1, 2))
        kf_f = (lambda x, *d: x.permute(*d))(kf_f, 1, 2, 0)
        y_f = kv_f * kf_f[None, :, :, :]
        y = (lambda x, s, axes=(-2,-1): torch.fft.irfft2(x, s=s, dim=axes).to(torch.bfloat16))(y_f, (1, L), axes=(1, 2))[:, 0, :S, :]
        y = y + kv * ssm_D[None, None, :]
        return q * y

    def _B_ref(x, W_gate, W_up, W_down):
        gate = torch.einsum("bsd,df->bsf", x, W_gate)
        up = torch.einsum("bsd,df->bsf", x, W_up)
        gate = gate * (lambda x, dt: x.to(dt))(gate > 0, gate.dtype)
        h = gate * up
        return torch.einsum("bsf,fd->bsd", h, W_down)

    x = A_q
    xn = _layernorm(x, axis=-1)
    return x + _A_ref(xn, A_k, A_v, A_shift_k, A_ssm_k, A_ssm_D) + _B_ref(xn, B_W_gate, B_W_up, B_W_down)
```

```python
import sys, os
sys.path.insert(0, os.path.dirname(os.path.abspath(__file__)))
from asmlib import Asm

NAME = "parallel_sum__ssm_conv_h3__glu_gated_reglu__prompt_kernel"
S, D, F = 2048, 448, 1792
XB = S * D * 2
WB = D * F * 2

H_OFF  = 0x000000
UT_OFF = 0x700000
YT_OFF = 0x8C0000
F0_OFF = 0xA80000
F1_OFF = 0xA88000
F2_OFF = 0xAA4000
EP_OFF = 0xAB2000
CS_OFF = 0xAB8000
PROF_OFF = 0xB00000
WS_BYTES = 0x10000000

XR, GR, UR = 0, 49152, 98304
SLOT = 16384
CV = 122880
KCH = 8320
UB0 = CV + 2 * KCH
UCH = 4608
EXT = 149504
XEXT, WEXT = EXT, EXT + 4096
STATS_L = 161792
NONCE_L = 162816
RING = 30720
NSLOT = 15
PROW = 272
LDS_BYTES = 163840
HD = 12

S_X, S_K, S_V, S_SH, S_SK, S_SD, S_WG, S_WU, S_WD, S_OUT, S_DBG, S_WS = 4, 6, 8, 10, 12, 14, 18, 20, 22, 24, 26, 28
S_WAVE, S_NONCE = 30, 31
R_A, R_B, R_C, R_WS, R_E = 32, 36, 40, 44, 48
S_RT, S_FC, S_PAR, S_CT, S_RB, S_M = 52, 53, 54, 55, 56, 57
S_T0, S_T1, S_T2, S_T3 = 58, 59, 60, 61
S_A0, S_A1, S_A2, S_A3, S_A4, S_A5 = 62, 63, 64, 65, 66, 67
S_BND = 68
S_EX = 70
S_ST = 72

class VM:
    def __init__(self, a): self.a, self.q = a, []
    def issue(self, tag): self.q.append(tag)
    def wait(self, tag):
        idx = max(i for i, t in enumerate(self.q) if t == tag)
        n = len(self.q) - 1 - idx
        assert n <= 63, (tag, n)
        self.a(f"s_waitcnt vmcnt({n})")
        self.q = self.q[idx + 1:]
    def has(self, tag): return tag in self.q
    def drain(self):
        self.a("s_waitcnt vmcnt(0)"); self.q = []
    def reset(self): self.q = []

class Gen(Asm):
    def __init__(self, prof=False, spin=1 << 20, stop=None):
        super().__init__()
        self.prof, self.spin, self.stop = prof, spin, stop
        self.nst = 0
    def srd(self, dst, base, nbytes):
        self(f"s_mov_b32 s{dst}, s{base}")
        self(f"s_and_b32 s{dst+1}, s{base+1}, 0xffff")
        self(f"s_mov_b32 s{dst+2}, {nbytes}")
        self(f"s_mov_b32 s{dst+3}, 0x20000")
    def stamp(self, i):
        if self.prof:
            self(f"{'s_memtime' if self.prof == 'cyc' else 's_memrealtime'} s[{S_ST+2*i}:{S_ST+2*i+1}]")
            self("s_waitcnt lgkmcnt(0)")
    def stamps_out(self, n):
        if not self.prof: return
        self("s_waitcnt vmcnt(0) lgkmcnt(0)")
        self("s_mov_b64 exec, 1")
        self(f"s_lshl_b32 s{S_T0}, s2, 3")
        self(f"s_add_u32 s{S_T0}, s{S_T0}, s{S_WAVE}")
        self(f"s_lshl_b32 s{S_T0}, s{S_T0}, 6")
        self(f"s_add_u32 s{S_T0}, s{S_T0}, {PROF_OFF}")
        self("v_mov_b32 v1, 0")
        for i in range(n):
            self(f"v_mov_b32 v2, s{S_ST+2*i}")
            self(f"buffer_store_dword v2, v1, s[{R_WS}:{R_WS+3}], s{S_T0} offen offset:{4*i}")
            self("s_nop 0")
        self("s_waitcnt vmcnt(0)")
    def poll(self, vaddr, vtmp, nlanes, sleep=1):
        L, Dn = self.uid("L_poll"), self.uid("L_polled")
        if nlanes < 64: self(f"s_mov_b64 exec, {hex((1 << nlanes) - 1)}")
        self(f"s_mov_b32 s{S_BND}, {self.spin}")
        self.label(L)
        self(f"buffer_load_dword v{vtmp}, v{vaddr}, s[{R_WS}:{R_WS+3}], 0 offen sc1")
        self("s_waitcnt vmcnt(0)")
        self(f"v_cmp_ne_u32 vcc, s{S_NONCE}, v{vtmp}")
        self("s_nop 1")
        self(f"s_cbranch_vccz {Dn}")
        self(f"s_sleep {sleep}")
        self(f"s_sub_u32 s{S_BND}, s{S_BND}, 1")
        self(f"s_cmp_lg_u32 s{S_BND}, 0")
        self(f"s_cbranch_scc1 {L}")
        self.label(Dn)
        if nlanes < 64: self("s_mov_b64 exec, -1")
    def signal(self, soff_reg, vtmp, vzero):
        self(f"v_mov_b32 v{vtmp}, s{S_NONCE}")
        self(f"v_mov_b32 v{vzero}, 0")
        self("s_mov_b64 exec, 1")
        self(f"buffer_store_dword v{vtmp}, v{vzero}, s[{R_WS}:{R_WS+3}], s{soff_reg} offen sc1")
        self("s_mov_b64 exec, -1")
    def get_nonce_spin(self, vtmp, vzero):
        L, Dn = self.uid("L_non"), self.uid("L_nond")
        self(f"s_mov_b32 s{S_BND}, {self.spin}")
        self(f"v_mov_b32 v{vzero}, 0")
        self.label(L)
        self(f"global_load_dword v{vtmp}, v{vzero}, s[{S_DBG}:{S_DBG+1}] sc1")
        self("s_waitcnt vmcnt(0)")
        self(f"v_readfirstlane_b32 s{S_NONCE}, v{vtmp}")
        self("s_nop 3")
        self(f"s_cmp_lg_u32 s{S_NONCE}, 0")
        self(f"s_cbranch_scc1 {Dn}")
        self("s_sleep 1")
        self(f"s_sub_u32 s{S_BND}, s{S_BND}, 1")
        self(f"s_cmp_lg_u32 s{S_BND}, 0")
        self(f"s_cbranch_scc1 {L}")
        self.label(Dn)

def vr(b, n=4): return f"v[{b}:{b+n-1}]"

def entry(a):
    a("s_load_dwordx16 s[4:19], s[0:1], 0")
    a("s_load_dwordx8 s[20:27], s[0:1], 64")
    a("s_load_dwordx2 s[28:29], s[0:1], 96")
    a("s_cmp_ge_u32 s2, 256")
    a("s_cbranch_scc1 L_end")
    a("v_lshrrev_b32 v1, 6, v0")
    a("v_and_b32 v0, 63, v0")
    a(f"v_readfirstlane_b32 s{S_WAVE}, v1")
    a("s_cmp_lt_u32 s2, 32")
    a("s_cbranch_scc1 L_prep")
    a(f"s_sub_u32 s{S_M}, s2, 32")
    a(f"s_and_b32 s{S_T0}, s{S_M}, 7")
    a(f"s_lshr_b32 s{S_T1}, s{S_M}, 3")
    a(f"s_mul_i32 s{S_T2}, s{S_T1}, 37")
    a(f"s_lshr_b32 s{S_T2}, s{S_T2}, 8")
    a(f"s_mul_i32 s{S_T3}, s{S_T2}, 7")
    a(f"s_sub_u32 s{S_CT}, s{S_T1}, s{S_T3}")
    a(f"s_and_b32 s{S_PAR}, s{S_T0}, 1")
    a(f"s_lshr_b32 s{S_T0}, s{S_T0}, 1")
    a(f"s_lshl_b32 s{S_T0}, s{S_T0}, 2")
    a(f"s_add_u32 s{S_RT}, s{S_T0}, s{S_T2}")
    a(f"s_mul_i32 s{S_T0}, s{S_PAR}, 7")
    a(f"s_add_u32 s{S_FC}, s{S_T0}, s{S_CT}")
    a(f"s_lshl_b32 s{S_RB}, s{S_RT}, 1")
    a(f"s_add_u32 s{S_RB}, s{S_RB}, s{S_PAR}")
    a(f"s_cmp_lt_u32 s{S_WAVE}, 4")
    a("s_cbranch_scc1 L_cwave")

def w_tr_lane_consts(a, vbase, vt1, t0, t1):
    a(f"v_bfe_u32 v{t0}, v0, 2, 2")
    a(f"v_bfe_u32 v{t1}, v0, 1, 1")
    a(f"v_lshlrev_b32 v{vt1}, 1, v{t0}")
    a(f"v_xor_b32 v{vt1}, v{vt1}, v{t1}")
    a(f"v_bfe_u32 v{t1}, v0, 4, 1")
    a(f"v_lshlrev_b32 v{vbase}, 3, v{t1}")
    a(f"v_xor_b32 v{vt1}, v{vt1}, v{vbase}")
    a(f"v_mul_u32_u24 v{vbase}, {UR-GR}, v{t1}")
    a(f"v_lshrrev_b32 v{t1}, 5, v0")
    a(f"v_lshl_add_u32 v{t0}, v{t1}, 3, v{t0}")
    a(f"v_lshl_add_u32 v{vbase}, v{t0}, 8, v{vbase}")
    a(f"v_and_b32 v{t0}, 1, v0")
    a(f"v_lshl_add_u32 v{vbase}, v{t0}, 3, v{vbase}")
    a(f"v_add_u32 v{vbase}, {GR}, v{vbase}")

def x_frag_addrs(a, vdst, srowbase, t0, t1, t2):
    a(f"v_and_b32 v{t0}, 31, v0")
    a(f"v_bfe_u32 v{t1}, v0, 1, 3")
    a(f"v_add_u32 v{t0}, s{srowbase}, v{t0}")
    a(f"v_lshlrev_b32 v{t0}, 7, v{t0}")
    a(f"v_lshrrev_b32 v{t2}, 5, v0")
    a(f"v_xor_b32 v{t1}, v{t1}, v{t2}")
    for ks in range(4):
        a(f"v_xor_b32 v{t2}, {2*ks}, v{t1}")
        a(f"v_lshl_add_u32 v{vdst+ks}, v{t2}, 4, v{t0}")

def h_wave(a):
    vm = VM(a)
    vXe, vXo, vG, vU = 4, 5, 6, 7
    vXh = 8
    vxf = 96
    vKA_, vKB_ = 32, 48
    vnon = 19
    t0, t1, t2, t3 = 64, 65, 66, 67
    w = S_A0
    a(f"s_sub_u32 s{w}, s{S_WAVE}, 4")
    a(f"v_lshrrev_b32 v{t0}, 3, v0")
    a(f"v_mul_u32_u24 v{t0}, 896, v{t0}")
    a(f"v_lshrrev_b32 v{t1}, 4, v0")
    a(f"v_and_b32 v{t2}, 7, v0")
    a(f"v_xor_b32 v{t2}, v{t2}, v{t1}")
    a(f"v_lshl_add_u32 v{vXe}, v{t2}, 4, v{t0}")
    a(f"v_xor_b32 v{t2}, 4, v{t2}")
    a(f"v_lshl_add_u32 v{vXo}, v{t2}, 4, v{t0}")
    a(f"v_mul_u32_u24 v{t0}, 3584, v{t1}")
    a(f"v_and_b32 v{t2}, 15, v0")
    a(f"v_lshlrev_b32 v{t3}, 1, v{t1}")
    a(f"v_xor_b32 v{t2}, v{t2}, v{t3}")
    a(f"v_lshl_add_u32 v{vG}, v{t2}, 4, v{t0}")
    a(f"v_xor_b32 v{t2}, 8, v{t2}")
    a(f"v_lshl_add_u32 v{vU}, v{t2}, 4, v{t0}")
    sXs, sXd, sWs, sGd, sUd = S_A1, S_A2, S_A3, S_A4, S_A5
    a(f"s_lshl_b32 s{S_T0}, s{S_RT}, 7")
    a(f"s_lshl_b32 s{S_T1}, s{w}, 5")
    a(f"s_add_u32 s{S_T0}, s{S_T0}, s{S_T1}")
    a(f"s_mul_i32 s{sXs}, s{S_T0}, 896")
    a(f"s_lshl_b32 s{sXd}, s{w}, 12")
    a(f"s_mul_i32 s{S_T0}, s{w}, {16*3584}")
    a(f"s_lshl_b32 s{S_T1}, s{S_FC}, 8")
    a(f"s_add_u32 s{sWs}, s{S_T0}, s{S_T1}")
    a(f"s_add_u32 s{sGd}, s{sXd}, {GR}")
    a(f"s_add_u32 s{sUd}, s{sXd}, {UR}")
    a("s_waitcnt lgkmcnt(0)")
    a.srd(R_A, S_X, XB); a.srd(R_B, S_WG, WB); a.srd(R_C, S_WU, WB)
    def stage_groups(st):
        slot = st % 3; G = []
        for i in range(4):
            G.append([f"s_add_u32 m0, s{sXd}, {slot*SLOT + i*1024}",
                      f"s_add_u32 s{S_T0}, s{sXs}, {i*8*896 + st*128}",
                      f"buffer_load_dwordx4 v{vXe if i % 2 == 0 else vXo}, s[{R_A}:{R_A+3}], s{S_T0} offen lds"])
        for (dst, voff, srd) in ((sGd, vG, R_B), (sUd, vU, R_C)):
            for i in range(4):
                G.append([f"s_add_u32 m0, s{dst}, {slot*SLOT + i*1024}",
                          f"s_add_u32 s{S_T0}, s{sWs}, {(64*st + 4*i)*3584}",
                          f"buffer_load_dwordx4 v{voff}, s[{srd}:{srd+3}], s{S_T0} offen lds"])
        return G
    def issue_stage(st, fill=()):
        fill = list(fill); G = stage_groups(st)
        per = -(-len(fill) // len(G)) if fill else 0
        for g in G:
            for l in g: a(l)
            vm.issue(("st", st))
            for l in fill[:per]: a(l)
            fill = fill[per:]
        assert not fill
    for st in range(2): issue_stage(st)
    a.stamp(0)
    a.srd(R_WS, S_WS, WS_BYTES); a.srd(R_E, S_SK, XB)
    a(f"s_lshl_b32 s{S_T1}, s{w}, 5")
    x_frag_addrs(a, vXh, S_T1, t0, t1, t2)
    vs0, vs1, vq0, vq1 = 14, 15, 16, 17
    for r in (vs0, vs1, vq0, vq1): a(f"v_mov_b32 v{r}, 0")
    vCS = 24
    vCA = 28
    a(f"v_bfe_u32 v{t0}, v0, 4, 1")
    a(f"v_mul_u32_u24 v{t0}, 1792, v{t0}")
    a(f"v_and_b32 v{t1}, 15, v0")
    a(f"v_add_u32 v{t0}, v{t0}, v{t1}")
    a(f"s_lshl_b32 s{S_T1}, s{S_FC}, 7")
    a(f"s_lshl_b32 s{S_T2}, s{w}, 5")
    a(f"s_add_u32 s{S_T1}, s{S_T1}, s{S_T2}")
    a(f"v_add_u32 v{t0}, s{S_T1}, v{t0}")
    a(f"v_lshlrev_b32 v{t0}, 3, v{t0}")
    a(f"v_add_u32 v{vCA}, {CS_OFF}, v{t0}")
    a(f"v_add_u32 v{vCA+1}, 128, v{vCA}")
    def stats_reads(st):
        slot = st % 3
        for ks in range(4):
            a(f"ds_read_b128 {vr(vxf + 4*ks)}, v{vXh+ks} offset:{slot*SLOT}")
    def stats_valu():
        L = ["s_waitcnt lgkmcnt(0)"]
        for q in range(16):
            src = vxf + q
            L += [f"v_lshlrev_b32 v{t2}, 16, v{src}", f"v_and_b32 v{t3}, 0xffff0000, v{src}",
                  f"v_add_f32 v{vs0}, v{vs0}, v{t2}", f"v_add_f32 v{vs1}, v{vs1}, v{t3}",
                  f"v_fmac_f32 v{vq0}, v{t2}, v{t2}", f"v_fmac_f32 v{vq1}, v{t3}, v{t3}"]
        return L
    def cs_load():
        for e in range(2):
            a(f"buffer_load_dwordx2 {vr(vCS+2*e, 2)}, v{vCA+e}, s[{R_WS}:{R_WS+3}], 0 offen sc1"); vm.issue("cs")
    for st in range(7):
        vm.wait(("st", st))
        if a.stop == "p1": a.stamp(3 + st)
        a("s_barrier")
        if st == 3:
            a(f"v_mov_b32 v{t0}, 0")
            a(f"global_load_dword v{vnon}, v{t0}, s[{S_DBG}:{S_DBG+1}] sc1"); vm.issue("non")
        stats_reads(st)
        if st <= 4: issue_stage(st + 2, stats_valu())
        if st == 5:
            assert not vm.has("non")
            Lok = a.uid("L_nonok")
            a(f"v_readfirstlane_b32 s{S_NONCE}, v{vnon}")
            a("s_nop 3")
            a(f"s_cmp_lg_u32 s{S_NONCE}, 0")
            a(f"s_cbranch_scc1 {Lok}")
            a.get_nonce_spin(vnon, t0)
            a.label(Lok)
            a(f"v_mov_b32 v{t0}, s{S_NONCE}")
            a(f"v_mov_b32 v{t1}, {NONCE_L}")
            a(f"ds_write_b32 v{t1}, v{t0}")
            cs_load()
            a(f"s_and_b32 s{S_T1}, s{w}, 1")
            a(f"s_lshl_b32 s{S_T2}, s{S_M}, 1")
            a(f"s_add_u32 s{S_T1}, s{S_T1}, s{S_T2}")
            a(f"s_lshl_b32 s{S_T1}, s{S_T1}, 12")
            a(f"v_lshlrev_b32 v{t0}, 4, v0")
            a(f"v_add_u32 v{t1}, 4, v{t0}")
            for i in range(4):
                a(f"buffer_load_dwordx4 {vr(vKA_+4*i)}, v{t0}, s[{R_E}:{R_E+3}], s{S_T1} offen offset:{1024*i}"); vm.issue("K")
                a(f"buffer_load_dwordx4 {vr(vKB_+4*i)}, v{t1}, s[{R_E}:{R_E+3}], s{S_T1} offen offset:{1024*i}"); vm.issue("K")
        if st > 4:
            for l in stats_valu(): a(l)
    Lcs, Lcsd = a.uid("L_cs"), a.uid("L_csd")
    a(f"s_mov_b32 s{S_BND}, {a.spin}")
    vm.wait("cs")
    a.label(Lcs)
    a(f"v_cmp_ne_u32 vcc, s{S_NONCE}, v{vCS+1}")
    a(f"v_cmp_ne_u32 s[{S_EX}:{S_EX+1}], s{S_NONCE}, v{vCS+3}")
    a("s_nop 1")
    a(f"s_or_b64 vcc, vcc, s[{S_EX}:{S_EX+1}]")
    a(f"s_cbranch_vccz {Lcsd}")
    vm.reset(); cs_load()
    a("s_waitcnt vmcnt(0)")
    a(f"s_sub_u32 s{S_BND}, s{S_BND}, 1")
    a(f"s_cmp_lg_u32 s{S_BND}, 0")
    a(f"s_cbranch_scc1 {Lcs}")
    a.label(Lcsd)
    vm.reset()
    vsx, vsxx, vc0, vc1 = vs0, vq0, vCS, vCS + 2
    a(f"v_add_f32 v{vs0}, v{vs0}, v{vs1}")
    a(f"v_add_f32 v{vq0}, v{vq0}, v{vq1}")
    a.stamp(1)
    vm_, vr_, vh, vl = 68, 69, 70, 71
    for r in (vsx, vsxx):
        a(f"v_mov_b32 v{t0}, v{r}")
        a("s_nop 1")
        a(f"v_permlane32_swap_b32 v{r}, v{t0}")
        a(f"v_add_f32 v{r}, v{r}, v{t0}")
    a(f"v_mul_f32 v{vm_}, {1.0/448.0!r}, v{vsx}")
    a(f"v_mul_f32 v{t0}, {1.0/448.0!r}, v{vsxx}")
    a(f"v_fma_f32 v{t0}, -v{vm_}, v{vm_}, v{t0}")
    a(f"v_max_f32 v{t0}, 0, v{t0}")
    a(f"v_add_f32 v{t0}, 0x3727c5ac, v{t0}")
    a(f"v_rsq_f32 v{vr_}, v{t0}")
    a(f"v_and_b32 v{t1}, 31, v0")
    a(f"s_lshl_b32 s{S_T1}, s{w}, 8")
    a(f"v_lshl_add_u32 v{t1}, v{t1}, 3, s{S_T1}")
    a(f"v_add_u32 v{t1}, {STATS_L}, v{t1}")
    a(f"ds_write_b64 v{t1}, {vr(vm_, 2)}")
    a("v_cmp_gt_u32 vcc, 32, v0")
    e0 = 80
    def split(vsrc, neg):
        sg = "-" if neg else ""
        a(f"v_cvt_pk_bf16_f32 v{vh}, {sg}v{vsrc}, {sg}v{vsrc}")
        a(f"v_and_b32 v{t2}, 0xffff0000, v{vh}")
        a(f"v_sub_f32 v{t2}, {sg}v{vsrc}, v{t2}" if not neg else f"v_sub_f32_e64 v{t2}, -v{vsrc}, v{t2}")
        a(f"v_cvt_pk_bf16_f32 v{vl}, v{t2}, v{t2}")
    a(f"v_lshlrev_b32 v{t3}, 4, v0")
    split(vm_, True)
    a(f"v_and_b32 v{t2}, 0xffff, v{vh}")
    a(f"v_lshlrev_b32 v{t1}, 16, v{vl}")
    a(f"v_or_b32 v{t1}, v{t1}, v{t2}")
    a(f"v_cndmask_b32 v{e0}, 0, v{t1}, vcc")
    a(f"v_cndmask_b32 v{e0+1}, 0, v{t2}, vcc")
    a(f"v_mov_b32 v{e0+2}, 0")
    a(f"v_mov_b32 v{e0+3}, 0")
    a(f"s_lshl_b32 s{S_T1}, s{w}, 10")
    a(f"s_add_u32 s{S_T1}, s{S_T1}, {XEXT}")
    a(f"v_add_u32 v{t1}, s{S_T1}, v{t3}")
    a(f"ds_write_b128 v{t1}, {vr(e0)}")
    for e, vc in ((0, vc0), (1, vc1)):
        f0 = e0 + 4 + 4*e
        split(vc, False)
        a(f"v_and_b32 v{t2}, 0xffff, v{vl}")
        a(f"v_cndmask_b32 v{f0}, 0, v{vh}, vcc")
        a(f"v_cndmask_b32 v{f0+1}, 0, v{t2}, vcc")
        a(f"v_mov_b32 v{f0+2}, 0")
        a(f"v_mov_b32 v{f0+3}, 0")
        a(f"s_lshl_b32 s{S_T1}, s{w}, 11")
        a(f"s_add_u32 s{S_T1}, s{S_T1}, {WEXT}")
        a(f"v_add_u32 v{t1}, s{S_T1}, v{t3}")
        a(f"ds_write_b128 v{t1}, {vr(f0)} offset:{1024*e}")
    a("s_waitcnt lgkmcnt(0)")
    a("s_barrier")
    a.stamp(2)
    if a.stop == "p1":
        a("s_barrier"); a.stamps_out(10); a("s_endpgm"); return
    Lnc = a.uid("L_noconv")
    a(f"s_cmp_ge_u32 s{w}, 2")
    a(f"s_cbranch_scc1 {Lnc}")
    a("s_waitcnt vmcnt(0)")
    sKC = S_A1
    a(f"s_mul_i32 s{sKC}, s{w}, {KCH}")
    a(f"s_add_u32 s{sKC}, s{sKC}, {CV}")
    a(f"v_add_u32 v{t1}, s{sKC}, v{t3}")
    for i in range(4):
        a(f"ds_write_b128 v{t1}, {vr(vKA_+4*i)} offset:{32 + 1024*i}")
    a(f"v_lshlrev_b32 v{t2}, 16, v{vKA_}")
    for i in range(4):
        for j in range(4):
            a(f"v_alignbit_b32 v{vKB_+4*i+j}, v{vKB_+4*i+j}, v{vKA_+4*i+j}, 16")
    for i in range(4):
        a(f"ds_write_b128 v{t1}, {vr(vKB_+4*i)} offset:{4160 + 32 + 1024*i}")
    a(f"v_readfirstlane_b32 s{S_T1}, v{t2}")
    a(f"v_lshlrev_b32 v{t1}, 2, v0")
    a(f"v_add_u32 v{t1}, s{sKC}, v{t1}")
    a(f"v_mov_b32 v{t0}, 0")
    a(f"v_mov_b32 v{t2}, s{S_T1}")
    a("v_cmp_eq_u32 vcc, 7, v0")
    a("s_nop 1")
    a(f"v_cndmask_b32 v{t2}, 0, v{t2}, vcc")
    a("s_mov_b64 exec, 0xff")
    a(f"ds_write_b32 v{t1}, v{t0}")
    a(f"ds_write_b32 v{t1}, v{t2} offset:4160")
    a("s_mov_b64 exec, -1")
    a(f"s_mul_i32 s{S_T1}, s{w}, {UCH}")
    a(f"s_add_u32 s{S_T1}, s{S_T1}, {UB0}")
    a(f"v_lshlrev_b32 v{t1}, 3, v0")
    a(f"v_add_u32 v{t1}, s{S_T1}, v{t1}")
    a(f"v_mov_b32 v{e0}, 0")
    a(f"v_mov_b32 v{e0+1}, 0")
    a(f"ds_write_b64 v{t1}, {vr(e0, 2)}")
    conv(a, w)
    a.label(Lnc)
    a("s_waitcnt vmcnt(0)")
    a.stamp(5)
    final_h(a, w)

def conv(a, w):
    t0, t1, t2, t3 = 64, 65, 66, 67
    sCH, sUB, sKC = S_A2, S_A3, S_A1
    a(f"s_lshl_b32 s{sCH}, s{S_M}, 1")
    a(f"s_add_u32 s{sCH}, s{sCH}, s{w}")
    a(f"s_lshl_b32 s{S_T0}, s{S_M}, 2")
    a(f"s_load_dword s{S_A4}, s[{S_SD}:{S_SD+1}], s{S_T0}")
    a(f"s_mul_i32 s{S_T1}, s{sCH}, 1171")
    a(f"s_lshr_b32 s{S_T1}, s{S_T1}, 16")
    a(f"s_lshl_b32 s{S_T1}, s{S_T1}, 7")
    a(f"s_add_u32 s{S_T1}, s{S_T1}, {F0_OFF}")
    a(f"v_lshlrev_b32 v{t0}, 10, v0")
    a(f"v_add_u32 v{t0}, s{S_T1}, v{t0}")
    a.poll(t0, t1, 32)
    a.stamp(3)
    a(f"s_mul_i32 s{sUB}, s{w}, {UCH}")
    a(f"s_add_u32 s{sUB}, s{sUB}, {UB0}")
    a(f"s_lshl_b32 s{S_T1}, s{sCH}, 12")
    a(f"s_add_u32 s{S_T1}, s{S_T1}, {UT_OFF}")
    a(f"v_lshlrev_b32 v{t0}, 4, v0")
    for i in range(4):
        a(f"s_add_u32 m0, s{sUB}, {512 + 1024*i}")
        a(f"s_add_u32 s{S_T2}, s{S_T1}, {1024*i}")
        a(f"buffer_load_dwordx4 v{t0}, s[{R_WS}:{R_WS+3}], s{S_T2} offen sc1 lds")
    vKA, vUB = 8, 12
    a(f"v_and_b32 v{t0}, 15, v0")
    a(f"v_lshrrev_b32 v{t1}, 5, v0")
    a(f"v_bfe_u32 v{t2}, v0, 4, 1")
    a(f"v_lshlrev_b32 v{t3}, 4, v{t1}")
    a(f"v_add_u32 v{t3}, v{t3}, v{t0}")
    a(f"v_add_u32 v{t3}, 9, v{t3}")
    a(f"v_lshlrev_b32 v{vUB}, 3, v{t2}")
    a(f"v_sub_u32 v{t3}, v{t3}, v{vUB}")
    a(f"v_and_b32 v{vUB}, 1, v{t3}")
    a(f"v_mul_u32_u24 v{vUB}, 4158, v{vUB}")
    a(f"v_lshl_add_u32 v{t3}, v{t3}, 1, v{vUB}")
    a(f"v_add_u32 v{vKA}, s{sKC}, v{t3}")
    for i in range(1, 4): a(f"v_add_u32 v{vKA+i}, {1024*i}, v{vKA}")
    a(f"v_sub_u32 v{t3}, v{t0}, v{t1}")
    a(f"v_lshlrev_b32 v{t3}, 5, v{t3}")
    a(f"v_lshl_add_u32 v{t3}, v{t2}, 4, v{t3}")
    a(f"v_add_u32 v{t3}, 64, v{t3}")
    a(f"v_add_u32 v{vUB}, s{sUB}, v{t3}")
    vUE, vYO = 13, 14
    a(f"v_lshlrev_b32 v{t3}, 5, v{t0}")
    a(f"v_lshl_add_u32 v{t3}, v{t1}, 4, v{t3}")
    a(f"v_lshlrev_b32 v{vUE}, 3, v{t2}")
    a(f"v_sub_u32 v{t3}, v{t3}, v{vUE}")
    a(f"v_add_u32 v{t3}, 520, v{t3}")
    a(f"v_add_u32 v{vUE}, s{sUB}, v{t3}")
    a(f"v_lshrrev_b32 v{t3}, 4, v0")
    a(f"v_lshlrev_b32 v{t3}, 3, v{t3}")
    a(f"v_lshl_add_u32 v{vYO}, v{t0}, 5, v{t3}")
    a("s_waitcnt vmcnt(0) lgkmcnt(0)")
    a.stamp(4)
    ACC = 224
    AS, BS = (96, 160), (128, 192)
    def loads(r):
        s = r & 1; L = []
        for x in range(8):
            L.append(f"ds_read_b128 {vr(BS[s]+4*x)}, v{vUB} offset:{512*x + 64*(7-r)}")
            o = 128*(x & 1) + 16*r
            L.append(f"ds_read2_b32 {vr(AS[s]+4*x, 2)}, v{vKA+(x>>1)} offset0:{o} offset1:{o+1}")
            L.append(f"ds_read2_b32 {vr(AS[s]+4*x+2, 2)}, v{vKA+(x>>1)} offset0:{o+2} offset1:{o+3}")
        return L
    for l in loads(0): a(l)
    for r in range(8):
        a("s_waitcnt lgkmcnt(0)")
        nxt = loads(r + 1) if r < 7 else []
        s = r & 1; k = 0
        for x in range(8):
            for c in range(x, 8):
                cin = "0" if (r == 0 and x == 0) else vr(ACC+4*c)
                a(f"v_mfma_f32_16x16x32_bf16 {vr(ACC+4*c)}, {vr(AS[s]+4*x)}, {vr(BS[s]+4*(c-x))}, {cin}")
                if nxt and k < len(nxt): a(nxt[k]); k += 1
        while nxt and k < len(nxt): a(nxt[k]); k += 1
    for c in range(8): a(f"ds_read_b64 {vr(96+2*c, 2)}, v{vUE} offset:{512*c}")
    a(f"s_and_b32 s{S_T1}, s{w}, 1")
    a(f"s_lshl_b32 s{S_T1}, s{S_T1}, 4")
    a(f"s_lshr_b32 s{S_A4}, s{S_A4}, s{S_T1}")
    a(f"s_lshl_b32 s{S_A4}, s{S_A4}, 16")
    a(f"s_lshl_b32 s{S_T1}, s{sCH}, 12")
    a(f"s_add_u32 s{S_T1}, s{S_T1}, {YT_OFF}")
    a("s_waitcnt lgkmcnt(0)")
    a("s_nop 4")
    for c in range(8):
        d0, d1 = 96 + 2*c, 97 + 2*c
        u = 128
        a(f"v_and_b32 v{u}, 0xffff0000, v{d1}")
        a(f"v_lshlrev_b32 v{u+1}, 16, v{d1}")
        a(f"v_and_b32 v{u+2}, 0xffff0000, v{d0}")
        a(f"v_lshlrev_b32 v{u+3}, 16, v{d0}")
        for i in range(4): a(f"v_fmac_f32 v{ACC+4*c+i}, s{S_A4}, v{u+i}")
        o = 136 + 2*(c & 3)
        a(f"v_cvt_pk_bf16_f32 v{o}, v{ACC+4*c}, v{ACC+4*c+1}")
        a(f"v_cvt_pk_bf16_f32 v{o+1}, v{ACC+4*c+2}, v{ACC+4*c+3}")
        a(f"buffer_store_dwordx2 {vr(o, 2)}, v{vYO}, s[{R_WS}:{R_WS+3}], s{S_T1} offen offset:{512*c} sc1")
    a(f"s_lshl_b32 s{S_T1}, s{sCH}, 7")
    a(f"s_add_u32 s{S_T1}, s{S_T1}, {F2_OFF}")
    a("s_waitcnt vmcnt(0)")
    a.signal(S_T1, t0, t1)

def final_h(a, w):
    t0, t1, t2, t3 = 64, 65, 66, 67
    vXo, vYa, vS = 8, 9, 10
    BASE = 16
    RS2 = 32
    XD = 36
    YD = 44
    ST = 52
    a(f"v_lshrrev_b32 v{t0}, 3, v0")
    a(f"v_mul_u32_u24 v{t0}, 896, v{t0}")
    a(f"v_and_b32 v{t1}, 7, v0")
    a(f"v_lshl_add_u32 v{vXo}, v{t1}, 4, v{t0}")
    sXO = S_A1
    a(f"s_lshl_b32 s{S_T0}, s{S_RB}, 6")
    a(f"s_lshl_b32 s{S_T1}, s{w}, 4")
    a(f"s_add_u32 s{S_T0}, s{S_T0}, s{S_T1}")
    a(f"s_mul_i32 s{sXO}, s{S_T0}, 896")
    a(f"s_lshl_b32 s{S_T1}, s{S_CT}, 7")
    a(f"s_add_u32 s{sXO}, s{sXO}, s{S_T1}")
    a(f"s_add_u32 s{S_T2}, s{sXO}, {8*896}")
    a(f"buffer_load_dwordx4 {vr(XD)}, v{vXo}, s[{R_A}:{R_A+3}], s{sXO} offen")
    a(f"buffer_load_dwordx4 {vr(XD+4)}, v{vXo}, s[{R_A}:{R_A+3}], s{S_T2} offen")
    a(f"s_lshl_b32 s{S_T1}, s{S_PAR}, 6")
    a(f"s_lshl_b32 s{S_T2}, s{w}, 4")
    a(f"s_add_u32 s{S_T1}, s{S_T1}, s{S_T2}")
    a(f"v_lshrrev_b32 v{t0}, 3, v0")
    a(f"v_add_u32 v{t0}, s{S_T1}, v{t0}")
    a(f"v_lshlrev_b32 v{t0}, 3, v{t0}")
    a(f"v_add_u32 v{t0}, {STATS_L}, v{t0}")
    a(f"ds_read_b64 {vr(ST, 2)}, v{t0}")
    a(f"ds_read_b64 {vr(ST+2, 2)}, v{t0} offset:64")
    a(f"s_lshl_b32 s{S_T1}, s{S_CT}, 13")
    a(f"s_add_u32 s{S_T1}, s{S_T1}, {F2_OFF}")
    a(f"v_lshlrev_b32 v{t0}, 7, v0")
    a(f"v_add_u32 v{t0}, s{S_T1}, v{t0}")
    a.poll(t0, t1, 64, sleep=16)
    a.stamp(6)
    a(f"s_lshl_b32 s{S_T1}, s{S_CT}, 18")
    a(f"s_add_u32 s{S_T1}, s{S_T1}, {YT_OFF}")
    a(f"s_lshl_b32 s{S_T2}, s{S_T0}, 1")
    a(f"s_add_u32 s{S_T1}, s{S_T1}, s{S_T2}")
    a(f"v_lshlrev_b32 v{t0}, 12, v0")
    a(f"buffer_load_dwordx4 {vr(YD)}, v{t0}, s[{R_WS}:{R_WS+3}], s{S_T1} offen sc1")
    a(f"buffer_load_dwordx4 {vr(YD+4)}, v{t0}, s[{R_WS}:{R_WS+3}], s{S_T1} offen offset:16 sc1")
    a(f"s_mul_i32 s{S_T1}, s{w}, 3072")
    a(f"s_add_u32 s{S_T1}, s{S_T1}, {EXT}")
    a(f"v_mul_u32_u24 v{t0}, 48, v0")
    a(f"v_add_u32 v{t0}, s{S_T1}, v{t0}")
    a("s_waitcnt vmcnt(0)")
    a(f"ds_write_b128 v{t0}, {vr(YD)}")
    a(f"ds_write_b128 v{t0}, {vr(YD+4)} offset:16")
    a(f"v_and_b32 v{t1}, 7, v0")
    a(f"v_mul_u32_u24 v{t1}, 384, v{t1}")
    a(f"v_lshrrev_b32 v{t2}, 3, v0")
    a(f"v_lshl_add_u32 v{t1}, v{t2}, 1, v{t1}")
    a(f"v_add_u32 v{t1}, s{S_T1}, v{t1}")
    a("s_waitcnt lgkmcnt(0)")
    YG = 96
    for q in range(2):
        for e in range(8):
            a(f"ds_read_u16 v{YG+8*q+e}, v{t1} offset:{48*e + 16*q}")
    a("s_waitcnt lgkmcnt(0)")
    for q in range(2):
        mean, rstd = ST + 2*q, ST + 2*q + 1
        a(f"v_mul_f32 v{RS2+q}, v{rstd}, v{rstd}")
        for e in range(8):
            xs = XD + 4*q + (e >> 1)
            if e & 1: a(f"v_and_b32 v{t0}, 0xffff0000, v{xs}")
            else:     a(f"v_lshlrev_b32 v{t0}, 16, v{xs}")
            a(f"v_lshlrev_b32 v{t2}, 16, v{YG+8*q+e}")
            a(f"v_sub_f32 v{t3}, v{t0}, v{mean}")
            a(f"v_mul_f32 v{t3}, v{t3}, v{rstd}")
            a(f"v_fma_f32 v{BASE+8*q+e}, v{t3}, v{t2}, v{t0}")
    vF0, vF1 = 12, 13
    a(f"v_lshrrev_b32 v{t0}, 3, v0")
    a(f"s_lshl_b32 s{S_T1}, s{w}, 4")
    a(f"v_add_u32 v{t0}, s{S_T1}, v{t0}")
    a(f"v_mul_u32_u24 v{t0}, {PROW}, v{t0}")
    a(f"v_and_b32 v{t1}, 7, v0")
    a(f"v_lshl_add_u32 v{vF0}, v{t1}, 5, v{t0}")
    a(f"v_add_u32 v{vF1}, {2*RING}, v{vF0}")
    a.srd(R_B, S_OUT, XB)
    a.stamp(7)
    a("s_barrier")
    P = 128
    for q in range(2):
        for kq in range(4):
            base = vF0 if kq < 2 else vF1
            for hh in range(2):
                a(f"ds_read_b128 {vr(P+32*q+8*kq+4*hh)}, v{base} offset:{(kq & 1)*RING + q*8*PROW + 16*hh}")
    for q in range(2):
        a(f"s_waitcnt lgkmcnt({8 if q == 0 else 0})")
        p = P + 32*q
        for e in range(8):
            a(f"v_add_f32 v{p+e}, v{p+e}, v{p+8+e}")
            a(f"v_add_f32 v{p+16+e}, v{p+16+e}, v{p+24+e}")
        for e in range(8):
            a(f"v_add_f32 v{p+e}, v{p+e}, v{p+16+e}")
        for e in range(8):
            a(f"v_fmac_f32 v{BASE+8*q+e}, v{RS2+q}, v{p+e}")
        for e in range(4):
            a(f"v_cvt_pk_bf16_f32 v{XD+4*q+e}, v{BASE+8*q+2*e}, v{BASE+8*q+2*e+1}")
        so = sXO
        if q == 1:
            a(f"s_add_u32 s{S_T2}, s{sXO}, {8*896}"); so = S_T2
        a(f"buffer_store_dwordx4 {vr(XD+4*q)}, v{vXo}, s[{R_B}:{R_B+3}], s{so} offen")
    a.stamp(8)
    a.label("L_hout")
    a.stamps_out(9)
    a("s_endpgm")

def c_wave(a):
    a.label("L_cwave")
    vX, vW = 8, 12
    t0, t1, t2, t3 = 4, 5, 6, 7
    AS, BS, ACC = (64, 80), (96, 104), 128
    sWR, sWF = S_A0, S_A1
    a(f"s_lshr_b32 s{sWR}, s{S_WAVE}, 1")
    a(f"s_and_b32 s{sWF}, s{S_WAVE}, 1")
    a(f"s_lshl_b32 s{S_T1}, s{sWR}, 6")
    x_frag_addrs(a, vX, S_T1, t0, t1, t2)
    w_tr_lane_consts(a, t3, 16, t0, t1)
    a(f"s_lshl_b32 s{S_T1}, s{sWF}, 3")
    a(f"v_xor_b32 v16, s{S_T1}, v16")
    for m in range(4):
        a(f"v_xor_b32 v{t0}, {2*m}, v16")
        a(f"v_lshl_add_u32 v{vW+m}, v{t0}, 4, v{t3}")
    a(f"v_lshlrev_b32 v17, 4, v0")
    a("s_waitcnt lgkmcnt(0)")
    a.srd(R_WS, S_WS, WS_BYTES); a.srd(R_A, S_WD, WB)
    a.stamp(0)
    def reads(t):
        s = t & 1
        if t == 28:
            return [f"ds_read_b128 {vr(BS[s])}, v18",
                    f"ds_read_b128 {vr(AS[s])}, v19",
                    f"ds_read_b128 {vr(BS[s]+4)}, v18 offset:1024",
                    f"ds_read_b128 {vr(AS[s]+4)}, v19 offset:1024",
                    f"ds_read_b128 {vr(AS[s]+8)}, v19 offset:2048",
                    f"ds_read_b128 {vr(AS[s]+12)}, v19 offset:3072"]
        st, ks = t >> 2, t & 3
        so = (st % 3) * SLOT
        def wr(m): return [f"ds_read_b64_tr_b16 {vr(AS[s]+4*m+2*h, 2)}, v{vW+m} offset:{so + (16*ks + 4*h)*256}" for h in range(2)]
        return ([f"ds_read_b128 {vr(BS[s])}, v{vX+ks} offset:{so}"] + wr(0) +
                [f"ds_read_b128 {vr(BS[s]+4)}, v{vX+ks} offset:{so + 4096}"] + wr(1) + wr(2) + wr(3))
    a(f"s_lshl_b32 s{S_T1}, s{sWR}, 11")
    a(f"s_add_u32 s{S_T1}, s{S_T1}, {XEXT}")
    a(f"v_add_u32 v18, s{S_T1}, v17")
    a(f"s_lshl_b32 s{S_T1}, s{sWF}, 12")
    a(f"s_add_u32 s{S_T1}, s{S_T1}, {WEXT}")
    a(f"v_add_u32 v19, s{S_T1}, v17")
    a("s_barrier")
    a.stamp(1)
    for l in reads(0): a(l)
    for t in range(29):
        s = t & 1
        a("s_waitcnt lgkmcnt(0)")
        if t < 28 and (t & 3) == 3:
            if a.stop == "p1": a.stamp(5 + (t >> 2))
            a("s_barrier")
        nxt = reads(t + 1) if t < 28 else []
        k = 0
        for m in range(4):
            for n in range(2):
                d = ACC + (2*m + n)*16
                cin = "0" if t == 0 else vr(d, 16)
                a(f"v_mfma_f32_32x32x16_bf16 {vr(d,16)}, {vr(AS[s]+4*m)}, {vr(BS[s]+4*n)}, {cin}")
                for _ in range(2):
                    if k < len(nxt): a(nxt[k]); k += 1
    a.stamp(2)
    a(f"v_mov_b32 v{t0}, {NONCE_L}")
    a(f"ds_read_b32 v20, v{t0}")
    vm = VM(a)
    sH = S_A2
    a(f"s_lshl_b32 s{S_T0}, s{S_RT}, 2")
    a(f"s_lshl_b32 s{S_T1}, s{sWR}, 1")
    a(f"s_add_u32 s{S_T0}, s{S_T0}, s{S_T1}")
    a(f"s_mul_i32 s{S_T0}, s{S_T0}, 112")
    a(f"s_lshl_b32 s{S_T1}, s{S_FC}, 3")
    a(f"s_add_u32 s{S_T0}, s{S_T0}, s{S_T1}")
    a(f"s_lshl_b32 s{S_T1}, s{sWF}, 2")
    a(f"s_add_u32 s{S_T0}, s{S_T0}, s{S_T1}")
    a(f"s_lshl_b32 s{sH}, s{S_T0}, 10")
    if H_OFF: a(f"s_add_u32 s{sH}, s{sH}, {H_OFF}")
    a("s_nop 1")
    for m in range(4):
        for n in range(2):
            d = ACC + (2*m + n)*16
            o = 24 + 4*((2*m + n) & 3)
            for i in range(8): a(f"v_max_f32 v{d+i}, 0, v{d+i}")
            for i in range(8): a(f"v_mul_f32 v{d+i}, v{d+i}, v{d+8+i}")
            for i in range(4): a(f"v_cvt_pk_bf16_f32 v{o+i}, v{d+2*i}, v{d+2*i+1}")
            a(f"s_add_u32 s{S_T0}, s{sH}, {(n*112 + m)*1024}")
            a(f"buffer_store_dwordx4 {vr(o)}, v17, s[{R_WS}:{R_WS+3}], s{S_T0} offen sc1")
            vm.issue("h")
    a.stamp(3)
    a("s_waitcnt lgkmcnt(0)")
    a(f"v_readfirstlane_b32 s{S_NONCE}, v20")
    sKQ = S_WAVE
    vWd, vA0, vA1, vFl = 21, 22, 23, 40
    a(f"v_lshrrev_b32 v{t0}, 3, v0")
    a(f"v_and_b32 v{t1}, 7, v0")
    a(f"v_bfe_u32 v{t2}, v0, 4, 1")
    a(f"v_lshlrev_b32 v{t2}, 2, v{t2}")
    a(f"v_xor_b32 v{t1}, v{t1}, v{t2}")
    a(f"v_mul_u32_u24 v{t0}, 896, v{t0}")
    a(f"v_lshl_add_u32 v{vWd}, v{t1}, 4, v{t0}")
    sWdS, sRing = S_A3, S_A4
    a(f"s_mul_i32 s{sWdS}, s{sKQ}, {448*896}")
    a(f"s_lshl_b32 s{S_T0}, s{S_CT}, 7")
    a(f"s_add_u32 s{sWdS}, s{sWdS}, s{S_T0}")
    a(f"s_mul_i32 s{sRing}, s{sKQ}, {RING}")
    def wd_dma(ks):
        for hh in range(2):
            a(f"s_add_u32 m0, s{sRing}, {(ks % NSLOT)*2048 + hh*1024}")
            a(f"s_add_u32 s{S_T0}, s{sWdS}, {(16*ks + 8*hh)*896}")
            a(f"buffer_load_dwordx4 v{vWd}, s[{R_A}:{R_A+3}], s{S_T0} offen lds")
            vm.issue(("wd", ks))
    if a.stop != "p1":
        for ks in range(NSLOT): wd_dma(ks)
    a(f"s_lshl_b32 s{S_T0}, s{S_RT}, 1")
    a(f"s_add_u32 s{S_T0}, s{S_T0}, s{sWR}")
    a(f"s_mul_i32 s{S_T0}, s{S_T0}, 28")
    a(f"s_lshl_b32 s{S_T1}, s{S_FC}, 1")
    a(f"s_add_u32 s{S_T0}, s{S_T0}, s{S_T1}")
    a(f"s_add_u32 s{S_T0}, s{S_T0}, s{sWF}")
    a(f"s_lshl_b32 s{S_T0}, s{S_T0}, 7")
    a(f"s_add_u32 s{S_T1}, s{S_T0}, {F1_OFF}")
    vm.wait("h")
    a.signal(S_T1, t0, t1)
    a.stamp(4)
    if a.stop == "p1":
        a("s_barrier"); a.stamps_out(12); a("s_endpgm"); return
    a(f"v_bfe_u32 v{t0}, v0, 2, 2")
    a(f"v_lshrrev_b32 v{t1}, 5, v0")
    a(f"v_lshl_add_u32 v{t1}, v{t1}, 2, v{t0}")
    a(f"v_lshlrev_b32 v{t1}, 7, v{t1}")
    a(f"v_and_b32 v{t2}, 1, v0")
    a(f"v_lshl_add_u32 v{t1}, v{t2}, 3, v{t1}")
    a(f"v_add_u32 v{t1}, s{sRing}, v{t1}")
    a(f"v_bfe_u32 v{t2}, v0, 4, 1")
    a(f"v_bfe_u32 v{t3}, v0, 1, 1")
    a(f"v_lshl_add_u32 v{t2}, v{t2}, 1, v{t3}")
    a(f"v_bfe_u32 v{t3}, v0, 3, 1")
    a(f"v_lshl_add_u32 v{t2}, v{t3}, 2, v{t2}")
    a(f"v_lshl_add_u32 v{vA0}, v{t2}, 4, v{t1}")
    a(f"v_xor_b32 v{t2}, 4, v{t2}")
    a(f"v_lshl_add_u32 v{vA1}, v{t2}, 4, v{t1}")
    a(f"s_mul_i32 s{S_T0}, s{S_RB}, 28")
    a(f"s_mul_i32 s{S_T1}, s{sKQ}, 7")
    a(f"s_add_u32 s{S_T0}, s{S_T0}, s{S_T1}")
    a(f"s_lshl_b32 s{S_T0}, s{S_T0}, 7")
    a(f"s_add_u32 s{S_T0}, s{S_T0}, {F1_OFF}")
    a(f"v_lshlrev_b32 v{vFl}, 7, v0")
    a(f"v_add_u32 v{vFl}, s{S_T0}, v{vFl}")
    a.poll(vFl, t0, 7)
    vm.reset()
    a.stamp(5)
    sHr = S_A2
    a(f"s_mul_i32 s{sHr}, s{S_RB}, {2*112}")
    a(f"s_mul_i32 s{S_T0}, s{sKQ}, 28")
    a(f"s_add_u32 s{sHr}, s{sHr}, s{S_T0}")
    a(f"s_lshl_b32 s{sHr}, s{sHr}, 10")
    if H_OFF: a(f"s_add_u32 s{sHr}, s{sHr}, {H_OFF}")
    HB, A3, ACC3 = 96, (80, 88), 192
    def h_load(ks):
        for n in range(2):
            a(f"s_add_u32 s{S_T0}, s{sHr}, {(n*112 + ks)*1024}")
            a(f"buffer_load_dwordx4 {vr(HB + 8*(ks % HD) + 4*n)}, v17, s[{R_WS}:{R_WS+3}], s{S_T0} offen sc1")
            vm.issue(("h", ks))
    def tr3(ks):
        s = ks & 1; so = (ks % NSLOT)*2048
        return [f"ds_read_b64_tr_b16 {vr(A3[s]+4*m+2*h, 2)}, v{(vA0, vA1)[m]} offset:{so + 1024*h}" for m in range(2) for h in range(2)]
    for ks in range(HD): h_load(ks)
    for l in tr3(0): a(l)
    for t in range(28):
        s = t & 1
        if vm.has(("h", t)): vm.wait(("h", t))
        if t + 1 < 28 and vm.has(("wd", t + 1)): vm.wait(("wd", t + 1))
        a("s_waitcnt lgkmcnt(0)")
        nxt = tr3(t + 1) if t + 1 < 28 else []
        k = 0
        for m in range(2):
            for n in range(2):
                d = ACC3 + (2*m + n)*16
                cin = "0" if t == 0 else vr(d, 16)
                a(f"v_mfma_f32_32x32x16_bf16 {vr(d,16)}, {vr(A3[s]+4*m)}, {vr(HB + 8*(t % HD) + 4*n)}, {cin}")
                if k < len(nxt): a(nxt[k]); k += 1
        if t + NSLOT < 28: wd_dma(t + NSLOT)
        if t + HD < 28: h_load(t + HD)
    a.stamp(6)
    a(f"v_and_b32 v{t0}, 31, v0")
    a(f"v_mul_u32_u24 v{t0}, {PROW}, v{t0}")
    a(f"v_lshrrev_b32 v{t1}, 5, v0")
    a(f"v_lshl_add_u32 v{t0}, v{t1}, 4, v{t0}")
    a(f"v_add_u32 v{t0}, s{sRing}, v{t0}")
    a("s_nop 7")
    for m in range(2):
        for n in range(2):
            d = ACC3 + (2*m + n)*16
            for j in range(4):
                a(f"ds_write_b128 v{t0}, {vr(d+4*j)} offset:{n*32*PROW + m*128 + j*32}")
    a("s_waitcnt lgkmcnt(0)")
    a("s_barrier")
    a.stamp(7)
    a.label("L_cout")
    a.stamps_out(8)
    a("s_endpgm")

def prep(a):
    a.label("L_prep")
    t0, t1, t2, t3 = 4, 5, 6, 7
    sP = 2
    CSL = 57344
    a(f"s_lshl_b32 s{S_T0}, s{S_WAVE}, 6")
    a(f"v_add_u32 v1, s{S_T0}, v0")
    vO, vC = 8, 9
    a(f"v_mul_u32_u24 v{vO}, 1171, v1")
    a(f"v_lshrrev_b32 v{vO}, 16, v{vO}")
    a(f"v_mul_u32_u24 v{t0}, 56, v{vO}")
    a(f"v_sub_u32 v{vC}, v1, v{t0}")
    vK3, vK8, vKm, vL, vCo = 10, 11, 12, 13, 14
    a(f"s_lshl_b32 s{S_T0}, s{sP}, 6")
    a(f"v_lshlrev_b32 v{t0}, 3, v{vO}")
    a(f"v_add_u32 v{t0}, s{S_T0}, v{t0}")
    a(f"v_mul_u32_u24 v{t0}, 896, v{t0}")
    a(f"v_lshl_add_u32 v{vK3}, v{vC}, 4, v{t0}")
    a(f"v_add_u32 v{vK8}, {5*896}, v{vK3}")
    a(f"v_subrev_u32 v{vKm}, {3*896}, v{vK3}")
    a(f"v_max_i32 v{vKm}, 0, v{vKm}")
    a(f"v_and_b32 v{t0}, 7, v{vC}")
    a(f"v_xor_b32 v{t0}, v{t0}, v{vO}")
    a(f"v_lshlrev_b32 v{t0}, 4, v{t0}")
    a(f"v_lshl_add_u32 v{vL}, v{vC}, 10, v{t0}")
    a(f"v_lshrrev_b32 v{t0}, 4, v0")
    a(f"v_mul_u32_u24 v{t0}, 3584, v{t0}")
    a(f"v_and_b32 v{t1}, 15, v0")
    a(f"v_lshl_add_u32 v{vCo}, v{t1}, 4, v{t0}")
    a("s_waitcnt lgkmcnt(0)")
    a.srd(R_A, S_K, XB); a.srd(R_B, S_V, XB); a.srd(R_C, S_SH, D*4*2); a.srd(R_WS, S_WS, WS_BYTES)
    a.stamp(0)
    CD, CA = 192, 248
    sC = S_A1
    Lnocs = "L_prep_nocs"
    a(f"s_cmp_ge_u32 s{sP}, 28")
    a(f"s_cbranch_scc1 {Lnocs}")
    a(f"s_cmp_ge_u32 s{sP}, 14")
    a("s_cbranch_scc1 L_prep_up")
    a.srd(R_E, S_WG, WB)
    a(f"s_mov_b32 s{sC}, s{sP}")
    a("s_branch L_prep_cs")
    a.label("L_prep_up")
    a.srd(R_E, S_WU, WB)
    a(f"s_sub_u32 s{sC}, s{sP}, 14")
    a.label("L_prep_cs")
    a(f"s_mul_i32 s{S_T0}, s{S_WAVE}, {56*3584}")
    a(f"s_lshl_b32 s{S_T1}, s{sC}, 8")
    a(f"s_add_u32 s{S_T0}, s{S_T0}, s{S_T1}")
    for i in range(14):
        a(f"buffer_load_dwordx4 {vr(CD+4*i)}, v{vCo}, s[{R_E}:{R_E+3}], s{S_T0} offen")
        if i < 13: a(f"s_add_u32 s{S_T0}, s{S_T0}, {4*3584}")
    a.label(Lnocs)
    KR, VR, WR = 16, 60, 92
    kvl = []
    for i in range(4): kvl.append(f"buffer_load_dwordx4 {vr(WR+4*i)}, v{t1}, s[{R_C}:{R_C+3}], 0 offen offset:{16*i}")
    for i in range(3): kvl.append(f"buffer_load_dwordx4 {vr(KR+4*i)}, v{vKm}, s[{R_A}:{R_A+3}], 0 offen offset:{896*i}")
    for i in range(5): kvl.append(f"buffer_load_dwordx4 {vr(KR+12+4*i)}, v{vK3}, s[{R_A}:{R_A+3}], 0 offen offset:{896*i}")
    for i in range(3): kvl.append(f"buffer_load_dwordx4 {vr(KR+32+4*i)}, v{vK8}, s[{R_A}:{R_A+3}], 0 offen offset:{896*i}")
    for i in range(5): kvl.append(f"buffer_load_dwordx4 {vr(VR+4*i)}, v{vK3}, s[{R_B}:{R_B+3}], 0 offen offset:{896*i}")
    for i in range(3): kvl.append(f"buffer_load_dwordx4 {vr(VR+20+4*i)}, v{vK8}, s[{R_B}:{R_B+3}], 0 offen offset:{896*i}")
    sLo, sHi = S_A2, S_A3
    a(f"s_mov_b32 s{sLo}, 0x00003f80")
    a(f"s_mov_b32 s{sHi}, 0x3f800000")
    def cs_dots(i):
        for q in range(4):
            c0 = "0" if i == 0 else f"v{CA+2*q}"; c1 = "0" if i == 0 else f"v{CA+2*q+1}"
            a(f"v_dot2_f32_bf16 v{CA+2*q}, v{CD+4*i+q}, s{sLo}, {c0}")
            a(f"v_dot2_f32_bf16 v{CA+2*q+1}, v{CD+4*i+q}, s{sHi}, {c1}")
    a(f"v_lshlrev_b32 v{t1}, 6, v{vC}")
    a(f"s_cmp_eq_u32 s{S_WAVE}, 7")
    a("s_cbranch_scc1 L_prep_w7a")
    a(f"s_cmp_ge_u32 s{sP}, 28")
    a("s_cbranch_scc1 L_prep_kvonly")
    k = 0
    for i in range(14):
        n = 2 if i < 9 else 1
        for l in kvl[k:k+n]: a(l)
        k += n
        a(f"s_waitcnt vmcnt({13 - i + k})")
        cs_dots(i)
    assert k == 23
    a("s_branch L_prep_csw")
    a.label("L_prep_kvonly")
    for l in kvl: a(l)
    a("s_branch L_prep_kv")
    a.label("L_prep_w7a")
    a(f"s_cmp_lg_u32 s{sP}, 28")
    a("s_cbranch_scc1 L_prep_w7b")
    a(f"v_mov_b32 v{t1}, {EP_OFF}")
    a(f"buffer_load_dword v{t0}, v{t1}, s[{R_WS}:{R_WS+3}], 0 offen sc1")
    a("s_waitcnt vmcnt(0)")
    a(f"v_add_u32 v{t0}, 1, v{t0}")
    a(f"v_max_u32 v{t0}, 1, v{t0}")
    a(f"v_mov_b32 v{t2}, 0")
    a("s_mov_b64 exec, 1")
    a(f"global_store_dword v{t2}, v{t0}, s[{S_DBG}:{S_DBG+1}] sc1")
    a(f"buffer_store_dword v{t0}, v{t1}, s[{R_WS}:{R_WS+3}], 0 offen sc1")
    a("s_mov_b64 exec, -1")
    a.label("L_prep_w7b")
    a("s_waitcnt vmcnt(0)")
    a(f"s_cmp_ge_u32 s{sP}, 28")
    a("s_cbranch_scc1 L_prep_kv")
    for i in range(14): cs_dots(i)
    a.label("L_prep_csw")
    a(f"v_lshrrev_b32 v{t0}, 4, v0")
    a(f"s_lshl_b32 s{S_T0}, s{S_WAVE}, 2")
    a(f"v_add_u32 v{t0}, s{S_T0}, v{t0}")
    a(f"v_lshlrev_b32 v{t0}, 9, v{t0}")
    a(f"v_and_b32 v{t1}, 15, v0")
    a(f"v_lshl_add_u32 v{t0}, v{t1}, 5, v{t0}")
    a(f"v_add_u32 v{t0}, {CSL}, v{t0}")
    a(f"ds_write_b128 v{t0}, {vr(CA)}")
    a(f"ds_write_b128 v{t0}, {vr(CA+4)} offset:16")
    a("s_waitcnt lgkmcnt(0)")
    a("s_barrier")
    a(f"s_cmp_lg_u32 s{S_WAVE}, 7")
    a("s_cbranch_scc1 L_prep_kv")
    a(f"v_lshlrev_b32 v{t0}, 2, v0")
    a(f"v_add_u32 v{t0}, {CSL}, v{t0}")
    for hh in range(2):
        for i in range(32):
            a(f"ds_read_b32 v{CD-64+32*hh+i}, v{t0} offset:{512*i + 256*hh}")
            if i % 8 == 7: a("s_waitcnt lgkmcnt(7)")
    a.get_nonce_spin(t1, t2)
    a("s_waitcnt lgkmcnt(0)")
    for hh in range(2):
        b = CD - 64 + 32*hh
        for st in (16, 8, 4, 2, 1):
            for i in range(st): a(f"v_add_f32 v{b+i}, v{b+i}, v{b+i+st}")
        a(f"v_mov_b32 v{b+1}, s{S_NONCE}")
    a(f"s_cmp_ge_u32 s{sP}, 14")
    a(f"s_cselect_b32 s{S_T0}, 1792, 0")
    a(f"s_lshl_b32 s{S_T1}, s{sC}, 7")
    a(f"s_add_u32 s{S_T0}, s{S_T0}, s{S_T1}")
    a(f"s_lshl_b32 s{S_T0}, s{S_T0}, 3")
    a(f"s_add_u32 s{S_T0}, s{S_T0}, {CS_OFF}")
    a(f"v_lshlrev_b32 v{t0}, 3, v0")
    a(f"buffer_store_dwordx2 {vr(CD-64, 2)}, v{t0}, s[{R_WS}:{R_WS+3}], s{S_T0} offen sc1")
    a(f"buffer_store_dwordx2 {vr(CD-32, 2)}, v{t0}, s[{R_WS}:{R_WS+3}], s{S_T0} offen offset:512 sc1")
    a.label("L_prep_kv")
    a.stamp(1)
    a(f"s_cmp_eq_u32 s{S_WAVE}, 7")
    a("s_cbranch_scc1 L_prep_join")
    a("s_waitcnt vmcnt(0)")
    Lz = a.uid("L_noz")
    a(f"s_cmp_lg_u32 s{sP}, 0")
    a(f"s_cbranch_scc1 {Lz}")
    a(f"v_cmp_eq_u32 vcc, 0, v{vO}")
    a("s_nop 1")
    for r in range(12): a(f"v_cndmask_b32_e64 v{KR+r}, v{KR+r}, 0, vcc")
    a.label(Lz)
    PP, AC, OUT = 108, 120, 128
    sSelL, sSelH = S_A2, S_A3
    a(f"s_mov_b32 s{sSelL}, 0x05040100")
    a(f"s_mov_b32 s{sSelH}, 0x07060302")
    for j in range(4):
        for c in range(2):
            ch = 2*j + c
            sel = sSelL if c == 0 else sSelH
            for i in range(1, 11):
                a(f"v_perm_b32 v{PP+i}, v{KR+4*(i-1)+j}, v{KR+4*i+j}, s{sel}")
            for t in range(8):
                a(f"v_dot2_f32_bf16 v{AC+t}, v{PP+t+3}, v{WR+2*ch}, 0")
            for t in range(8):
                a(f"v_dot2_f32_bf16 v{AC+t}, v{PP+t+1}, v{WR+2*ch+1}, v{AC+t}")
            for t in range(8):
                if c == 0: a(f"v_lshlrev_b32 v{PP+t}, 16, v{VR+4*t+j}")
                else:      a(f"v_and_b32 v{PP+t}, 0xffff0000, v{VR+4*t+j}")
            for t in range(8):
                a(f"v_mul_f32 v{AC+t}, v{AC+t}, v{PP+t}")
            o = OUT + 4*(ch & 1)
            for d in range(4):
                a(f"v_cvt_pk_bf16_f32 v{o+d}, v{AC+7-2*d}, v{AC+6-2*d}")
            a(f"ds_write_b128 v{vL}, {vr(o)} offset:{128*ch}")
    a.label("L_prep_join")
    a("s_waitcnt lgkmcnt(0)")
    a("s_barrier")
    a.stamp(2)
    a(f"s_mul_i32 s{S_A0}, s{S_WAVE}, 7")
    a(f"v_lshlrev_b32 v{t0}, 4, v0")
    a(f"s_lshl_b32 s{S_T0}, s{S_A0}, 10")
    a(f"v_add_u32 v{t0}, s{S_T0}, v{t0}")
    for i in range(7):
        a(f"ds_read_b128 {vr(16+4*i)}, v{t0} offset:{1024*i}")
    a(f"v_lshrrev_b32 v{t1}, 3, v0")
    a(f"v_lshlrev_b32 v{t1}, 12, v{t1}")
    a(f"v_and_b32 v{t2}, 7, v0")
    a(f"s_lshl_b32 s{S_T1}, s{sP}, 7")
    a(f"s_add_u32 s{S_T1}, s{S_T1}, {UT_OFF}")
    for i in range(7):
        a(f"s_add_u32 s{S_T2}, s{S_A0}, {i}")
        a(f"s_and_b32 s{S_T3}, s{S_T2}, 7")
        a(f"s_lshl_b32 s{S_T2}, s{S_T2}, 15")
        a(f"s_add_u32 s{S_T2}, s{S_T2}, s{S_T1}")
        a(f"v_xor_b32 v{t3}, s{S_T3}, v{t2}")
        a(f"v_lshl_add_u32 v{48+i}, v{t3}, 4, v{t1}")
        a(f"s_waitcnt lgkmcnt({6-i})")
        a(f"buffer_store_dwordx4 {vr(16+4*i)}, v{48+i}, s[{R_WS}:{R_WS+3}], s{S_T2} offen sc1")
    a.get_nonce_spin(t0, t1)
    a(f"s_lshl_b32 s{S_T0}, s{sP}, 3")
    a(f"s_add_u32 s{S_T0}, s{S_T0}, s{S_WAVE}")
    a(f"s_lshl_b32 s{S_T0}, s{S_T0}, 7")
    a(f"s_add_u32 s{S_T1}, s{S_T0}, {F0_OFF}")
    a.signal(S_T1, t0, t1)
    a.stamp(3)
    a.stamps_out(4)
    a("s_endpgm")

HEADER = open(os.path.join(os.path.dirname(os.path.abspath(__file__)), "header.txt")).read()

def build(prof=False, spin=1 << 20, stop=None):
    a = Gen(prof=prof, spin=spin, stop=stop)
    entry(a)
    h_wave(a)
    c_wave(a)
    prep(a)
    a.label("L_end")
    a("s_endpgm")
    txt = HEADER + f"; @launch grid=(256,1,1) block=(512,1,1) lds={LDS_BYTES}\n"
    txt += f'.amdgcn_target "amdgcn-amd-amdhsa--gfx950"\n.text\n.globl {NAME}\n.p2align 8\n.type {NAME},@function\n{NAME}:\n'
    body = [l for l in a.lines if l is not None]
    txt += "\n".join(("    " + l) if not l.endswith(":") else l for l in body) + "\n"
    txt += (f'.section .rodata,"a"\n.p2align 6\n.amdhsa_kernel {NAME}\n'
            "  .amdhsa_next_free_vgpr 256\n  .amdhsa_next_free_sgpr 102\n  .amdhsa_accum_offset 256\n"
            "  .amdhsa_group_segment_fixed_size 0\n  .amdhsa_kernarg_size 104\n  .amdhsa_user_sgpr_count 2\n"
            "  .amdhsa_user_sgpr_kernarg_segment_ptr 1\n  .amdhsa_system_sgpr_workgroup_id_x 1\n"
            "  .amdhsa_float_denorm_mode_32 3\n"
            ".end_amdhsa_kernel\n")
    return txt

if __name__ == "__main__":
    import argparse
    ap = argparse.ArgumentParser()
    ap.add_argument("-o", default="parallel_sum__ssm_conv_h3__glu_gated_reglu__prompt.s")
    ap.add_argument("--prof", nargs="?", const="rt", default=None)
    ap.add_argument("--spin", type=int, default=1 << 20)
    ap.add_argument("--stop", default=None)
    x = ap.parse_args()
    open(x.o, "w").write(build(x.prof, x.spin, x.stop))
    print("wrote", x.o)
```

```python
import sys, os
sys.path.insert(0, os.path.dirname(os.path.abspath(__file__)))
from asmlib import Asm

NAME = "parallel_sum__ssm_conv_h3__glu_gated_reglu__prompt_kernel"
S, D, F = 2048, 448, 1792
XB = S * D * 2
WB = D * F * 2

H_OFF  = 0x000000
UT_OFF = 0x700000
YT_OFF = 0x8C0000
F0_OFF = 0xA80000
F1_OFF = 0xAA0000
F2_OFF = 0xAC0000
EP_OFF = 0xAE0000
SG_OFF = 0xAE8000
CS_OFF = 0xAF0000
PROF_OFF = 0xB00000
WS_BYTES = 0x10000000

XR, GR, UR = 0, 49152, 98304
SLOT = 16384
CV = 122880
KCH = 8320
UB0 = CV + 2 * KCH
UCH = 4608
EXT = 149504
XEXT, WEXT = EXT, EXT + 4096
STATS_L = 161792
NONCE_L = 162816
STG_L = 162832
CNT_L = 162944
RING = 30720
NSLOT = 15
PROW = 272
LDS_BYTES = 163840
HD = 12

S_X, S_K, S_V, S_SH, S_SK, S_SD, S_WG, S_WU, S_WD, S_OUT, S_DBG, S_WS = 4, 6, 8, 10, 12, 14, 18, 20, 22, 24, 26, 28
S_WAVE, S_NONCE = 30, 31
R_A, R_B, R_C, R_WS, R_E = 32, 36, 40, 44, 48
S_RT, S_FC, S_PAR, S_CT, S_RB, S_M = 52, 53, 54, 55, 56, 57
S_T0, S_T1, S_T2, S_T3 = 58, 59, 60, 61
S_A0, S_A1, S_A2, S_A3, S_A4, S_A5 = 62, 63, 64, 65, 66, 67
S_BND = 68
S_EX = 70
S_ST = 72

class VM:
    def __init__(self, a): self.a, self.q = a, []
    def issue(self, tag): self.q.append(tag)
    def wait(self, tag):
        idx = max(i for i, t in enumerate(self.q) if t == tag)
        n = len(self.q) - 1 - idx
        assert n <= 63, (tag, n)
        self.a(f"s_waitcnt vmcnt({n})")
        self.q = self.q[idx + 1:]
    def has(self, tag): return tag in self.q
    def drain(self):
        self.a("s_waitcnt vmcnt(0)"); self.q = []
    def reset(self): self.q = []

class Gen(Asm):
    def __init__(self, prof=False, spin=1 << 20, stop=None, exp=()):
        super().__init__()
        self.exp = set(exp)
        self.prof, self.spin, self.stop = prof, spin, stop
        self.nst = 0
    def srd(self, dst, base, nbytes):
        self(f"s_mov_b32 s{dst}, s{base}")
        self(f"s_and_b32 s{dst+1}, s{base+1}, 0xffff")
        self(f"s_mov_b32 s{dst+2}, {nbytes}")
        self(f"s_mov_b32 s{dst+3}, 0x20000")
    def stamp(self, i):
        if self.prof:
            self(f"{'s_memtime' if self.prof == 'cyc' else 's_memrealtime'} s[{S_ST+2*i}:{S_ST+2*i+1}]")
            self("s_waitcnt lgkmcnt(0)")
    def stamps_out(self, n):
        if not self.prof: return
        self("s_waitcnt vmcnt(0) lgkmcnt(0)")
        self("s_mov_b64 exec, 1")
        self(f"s_lshl_b32 s{S_T0}, s2, 3")
        self(f"s_add_u32 s{S_T0}, s{S_T0}, s{S_WAVE}")
        self(f"s_lshl_b32 s{S_T0}, s{S_T0}, 6")
        self(f"s_add_u32 s{S_T0}, s{S_T0}, {PROF_OFF}")
        self("v_mov_b32 v1, 0")
        for i in range(n):
            self(f"v_mov_b32 v2, s{S_ST+2*i}")
            self(f"buffer_store_dword v2, v1, s[{R_WS}:{R_WS+3}], s{S_T0} offen offset:{4*i}")
            self("s_nop 0")
        self("s_waitcnt vmcnt(0)")
    def poll(self, vaddr, vtmp, nlanes, sleep=1):
        L, Dn = self.uid("L_poll"), self.uid("L_polled")
        if nlanes < 64: self(f"s_mov_b64 exec, {hex((1 << nlanes) - 1)}")
        self(f"s_mov_b32 s{S_BND}, {self.spin}")
        self.label(L)
        self(f"buffer_load_dword v{vtmp}, v{vaddr}, s[{R_WS}:{R_WS+3}], 0 offen sc1")
        self("s_waitcnt vmcnt(0)")
        self(f"v_cmp_ne_u32 vcc, s{S_NONCE}, v{vtmp}")
        self("s_nop 1")
        self(f"s_cbranch_vccz {Dn}")
        self(f"s_sleep {sleep}")
        self(f"s_sub_u32 s{S_BND}, s{S_BND}, 1")
        self(f"s_cmp_lg_u32 s{S_BND}, 0")
        self(f"s_cbranch_scc1 {L}")
        self.label(Dn)
        if nlanes < 64: self("s_mov_b64 exec, -1")
    def signal(self, soff_reg, vtmp, vzero):
        self(f"v_mov_b32 v{vtmp}, s{S_NONCE}")
        self(f"v_mov_b32 v{vzero}, 0")
        self("s_mov_b64 exec, 1")
        self(f"buffer_store_dword v{vtmp}, v{vzero}, s[{R_WS}:{R_WS+3}], s{soff_reg} offen sc1")
        self("s_mov_b64 exec, -1")
    def get_nonce_spin(self, vtmp, vzero):
        L, Dn = self.uid("L_non"), self.uid("L_nond")
        self(f"s_mov_b32 s{S_BND}, {self.spin}")
        self(f"v_mov_b32 v{vzero}, 0")
        self.label(L)
        self(f"global_load_dword v{vtmp}, v{vzero}, s[{S_DBG}:{S_DBG+1}] sc1")
        self("s_waitcnt vmcnt(0)")
        self(f"v_readfirstlane_b32 s{S_NONCE}, v{vtmp}")
        self("s_nop 3")
        self(f"s_cmp_lg_u32 s{S_NONCE}, 0")
        self(f"s_cbranch_scc1 {Dn}")
        self("s_sleep 1")
        self(f"s_sub_u32 s{S_BND}, s{S_BND}, 1")
        self(f"s_cmp_lg_u32 s{S_BND}, 0")
        self(f"s_cbranch_scc1 {L}")
        self.label(Dn)

def vr(b, n=4): return f"v[{b}:{b+n-1}]"

def entry(a):
    a("s_load_dwordx16 s[4:19], s[0:1], 0")
    a("s_load_dwordx8 s[20:27], s[0:1], 64")
    a("s_load_dwordx2 s[28:29], s[0:1], 96")
    a("s_cmp_ge_u32 s2, 256")
    a("s_cbranch_scc1 L_end")
    a("v_lshrrev_b32 v1, 6, v0")
    a("v_and_b32 v0, 63, v0")
    a(f"v_readfirstlane_b32 s{S_WAVE}, v1")
    a("s_cmp_lt_u32 s2, 32")
    a("s_cbranch_scc1 L_prep")
    a(f"s_sub_u32 s{S_M}, s2, 32")
    a(f"s_and_b32 s{S_T0}, s{S_M}, 7")
    a(f"s_lshr_b32 s{S_T1}, s{S_M}, 3")
    a(f"s_mul_i32 s{S_T2}, s{S_T1}, 37")
    a(f"s_lshr_b32 s{S_T2}, s{S_T2}, 8")
    a(f"s_mul_i32 s{S_T3}, s{S_T2}, 7")
    a(f"s_sub_u32 s{S_CT}, s{S_T1}, s{S_T3}")
    a(f"s_and_b32 s{S_PAR}, s{S_T0}, 1")
    a(f"s_lshr_b32 s{S_T0}, s{S_T0}, 1")
    a(f"s_lshl_b32 s{S_T0}, s{S_T0}, 2")
    a(f"s_add_u32 s{S_RT}, s{S_T0}, s{S_T2}")
    a(f"s_mul_i32 s{S_T0}, s{S_PAR}, 7")
    a(f"s_add_u32 s{S_FC}, s{S_T0}, s{S_CT}")
    a(f"s_lshl_b32 s{S_RB}, s{S_RT}, 1")
    a(f"s_add_u32 s{S_RB}, s{S_RB}, s{S_PAR}")
    a(f"s_cmp_lt_u32 s{S_WAVE}, 4")
    a("s_cbranch_scc1 L_cwave")

def w_tr_lane_consts(a, vbase, vt1, t0, t1):
    a(f"v_bfe_u32 v{t0}, v0, 2, 2")
    a(f"v_bfe_u32 v{t1}, v0, 1, 1")
    a(f"v_lshlrev_b32 v{vt1}, 1, v{t0}")
    a(f"v_xor_b32 v{vt1}, v{vt1}, v{t1}")
    a(f"v_bfe_u32 v{t1}, v0, 4, 1")
    a(f"v_lshlrev_b32 v{vbase}, 3, v{t1}")
    a(f"v_xor_b32 v{vt1}, v{vt1}, v{vbase}")
    a(f"v_mul_u32_u24 v{vbase}, {UR-GR}, v{t1}")
    a(f"v_lshrrev_b32 v{t1}, 5, v0")
    a(f"v_lshl_add_u32 v{t0}, v{t1}, 3, v{t0}")
    a(f"v_lshl_add_u32 v{vbase}, v{t0}, 8, v{vbase}")
    a(f"v_and_b32 v{t0}, 1, v0")
    a(f"v_lshl_add_u32 v{vbase}, v{t0}, 3, v{vbase}")
    a(f"v_add_u32 v{vbase}, {GR}, v{vbase}")

def x_frag_addrs(a, vdst, srowbase, t0, t1, t2):
    a(f"v_and_b32 v{t0}, 31, v0")
    a(f"v_bfe_u32 v{t1}, v0, 1, 3")
    a(f"v_add_u32 v{t0}, s{srowbase}, v{t0}")
    a(f"v_lshlrev_b32 v{t0}, 7, v{t0}")
    a(f"v_lshrrev_b32 v{t2}, 5, v0")
    a(f"v_xor_b32 v{t1}, v{t1}, v{t2}")
    for ks in range(4):
        a(f"v_xor_b32 v{t2}, {2*ks}, v{t1}")
        a(f"v_lshl_add_u32 v{vdst+ks}, v{t2}, 4, v{t0}")

def h_wave(a):
    vm = VM(a)
    vXi, vGi, vUi = 4, 8, 12
    vnon, vCA, vSA, vUo, vF0a, vF0d = 16, 17, 19, 20, 22, 23
    vCS, vST = 24, 28
    vKA_, vKB_ = 32, 48
    t0, t1, t2, t3 = 64, 65, 66, 67
    vh, vl, e0 = 68, 69, 72
    w = S_A0
    a(f"s_sub_u32 s{w}, s{S_WAVE}, 4")
    if "noprio" not in a.exp: a("s_setprio 2")
    a(f"v_lshrrev_b32 v{t0}, 3, v0")
    a(f"v_mul_u32_u24 v{t0}, 896, v{t0}")
    a(f"v_lshrrev_b32 v{t1}, 4, v0")
    a(f"v_and_b32 v{t2}, 7, v0")
    a(f"v_xor_b32 v{t2}, v{t2}, v{t1}")
    a(f"v_lshl_add_u32 v{vXi}, v{t2}, 4, v{t0}")
    a(f"v_xor_b32 v{t2}, 4, v{t2}")
    a(f"v_lshl_add_u32 v{vXi+1}, v{t2}, 4, v{t0}")
    a(f"v_add_u32 v{vXi+1}, {8*896}, v{vXi+1}")
    a(f"v_add_u32 v{vXi+2}, {16*896}, v{vXi}")
    a(f"v_add_u32 v{vXi+3}, {16*896}, v{vXi+1}")
    a(f"v_mul_u32_u24 v{t0}, 3584, v{t1}")
    a(f"v_and_b32 v{t2}, 15, v0")
    a(f"v_lshlrev_b32 v{t3}, 1, v{t1}")
    a(f"v_xor_b32 v{t2}, v{t2}, v{t3}")
    a(f"v_lshl_add_u32 v{vGi}, v{t2}, 4, v{t0}")
    a(f"v_xor_b32 v{t2}, 8, v{t2}")
    a(f"v_lshl_add_u32 v{vUi}, v{t2}, 4, v{t0}")
    for i in range(1, 4):
        a(f"v_add_u32 v{vGi+i}, {i*4*3584}, v{vGi}")
        a(f"v_add_u32 v{vUi+i}, {i*4*3584}, v{vUi}")
    sXs, sXd, sWs, sGd, sUd = S_A1, S_A2, S_A3, S_A4, S_A5
    a(f"s_lshl_b32 s{S_T0}, s{S_RT}, 7")
    a(f"s_lshl_b32 s{S_T1}, s{w}, 5")
    a(f"s_add_u32 s{S_T0}, s{S_T0}, s{S_T1}")
    a(f"s_mul_i32 s{sXs}, s{S_T0}, 896")
    a(f"s_lshl_b32 s{sXd}, s{w}, 12")
    a(f"s_mul_i32 s{S_T0}, s{w}, {16*3584}")
    a(f"s_lshl_b32 s{S_T1}, s{S_FC}, 8")
    a(f"s_add_u32 s{sWs}, s{S_T0}, s{S_T1}")
    a(f"s_add_u32 s{sGd}, s{sXd}, {GR}")
    a(f"s_add_u32 s{sUd}, s{sXd}, {UR}")
    a("s_waitcnt lgkmcnt(0)")
    a.srd(R_A, S_X, XB); a.srd(R_B, S_WG, WB); a.srd(R_C, S_WU, WB)
    def issue_stage(st, fill=()):
        slot = st % 3
        fill = list(fill)
        G = [(sXd, vXi + i, R_A, S_T0, i) for i in range(4)] + [(sGd, vGi + i, R_B, S_T1, i) for i in range(4)] + [(sUd, vUi + i, R_C, S_T1, i) for i in range(4)]
        a(f"s_add_u32 s{S_T0}, s{sXs}, {st*128}")
        a(f"s_add_u32 s{S_T1}, s{sWs}, {64*st*3584}")
        per = -(-len(fill) // len(G)) if fill else 0
        def emit(l):
            if callable(l): l()
            else: a(l)
        for (dst, voff, srd, so, i) in G:
            a(f"s_add_u32 m0, s{dst}, {slot*SLOT + i*1024}")
            chunk = fill[:per]; fill = fill[per:]
            if chunk and not callable(chunk[0]) and chunk[0].startswith("v_"):
                emit(chunk[0]); chunk = chunk[1:]
            else: a("s_nop 0")
            a(f"buffer_load_dwordx4 v{voff}, s[{srd}:{srd+3}], s{so} offen lds")
            vm.issue(("st", st))
            for l in chunk: emit(l)
        assert not fill
    for st in range(2): issue_stage(st)
    a.stamp(0)
    a.srd(R_WS, S_WS, WS_BYTES)
    a(f"v_mov_b32 v{t0}, {CNT_L}")
    a(f"v_mov_b32 v{t2}, 0")
    a(f"v_mov_b32 v{t3}, 0")
    a(f"ds_write_b64 v{t0}, {vr(t2, 2)}")
    a(f"v_bfe_u32 v{t0}, v0, 4, 1")
    a(f"v_mul_u32_u24 v{t0}, 1792, v{t0}")
    a(f"v_and_b32 v{t1}, 15, v0")
    a(f"v_add_u32 v{t0}, v{t0}, v{t1}")
    a(f"s_lshl_b32 s{S_T1}, s{S_FC}, 7")
    a(f"s_lshl_b32 s{S_T2}, s{w}, 5")
    a(f"s_add_u32 s{S_T1}, s{S_T1}, s{S_T2}")
    a(f"v_add_u32 v{t0}, s{S_T1}, v{t0}")
    a(f"v_lshlrev_b32 v{t0}, 3, v{t0}")
    a(f"v_add_u32 v{vCA}, {CS_OFF}, v{t0}")
    a(f"v_add_u32 v{vCA+1}, 128, v{vCA}")
    a(f"s_lshl_b32 s{S_T1}, s{S_RT}, 7")
    a(f"s_add_u32 s{S_T1}, s{S_T1}, s{S_T2}")
    a(f"v_and_b32 v{t0}, 31, v0")
    a(f"v_add_u32 v{t0}, s{S_T1}, v{t0}")
    a(f"v_lshlrev_b32 v{t0}, 4, v{t0}")
    a(f"v_add_u32 v{vSA}, {SG_OFF}, v{t0}")
    sTB, sCG = S_T2, S_T3
    a(f"s_mul_i32 s{sTB}, s{S_M}, 9363")
    a(f"s_lshr_b32 s{sTB}, s{sTB}, 16")
    a(f"s_mul_i32 s{S_T1}, s{sTB}, 7")
    a(f"s_sub_u32 s{sCG}, s{S_M}, s{S_T1}")
    sF0 = 69
    a(f"s_lshl_b32 s{S_T1}, s{sCG}, 2")
    a(f"s_add_u32 s{S_T1}, s{S_T1}, s{w}")
    a(f"s_lshl_b32 s{S_T1}, s{S_T1}, 5")
    a(f"s_add_u32 s{S_T1}, s{S_T1}, s{sTB}")
    a(f"s_lshl_b32 s{S_T1}, s{S_T1}, 2")
    a(f"s_add_u32 s{sF0}, s{S_T1}, {F0_OFF}")
    a(f"s_lshl_b32 s{S_T1}, s{sCG}, 6")
    a(f"s_lshl_b32 s{S_T0}, s{w}, 4")
    a(f"s_add_u32 s{S_T1}, s{S_T1}, s{S_T0}")
    a(f"v_lshrrev_b32 v{t0}, 3, v0")
    a(f"v_add_u32 v{t0}, s{S_T1}, v{t0}")
    a(f"v_lshlrev_b32 v{t0}, 12, v{t0}")
    a(f"s_lshl_b32 s{S_T1}, s{sTB}, 7")
    a(f"s_add_u32 s{S_T1}, s{S_T1}, {UT_OFF}")
    a(f"v_add_u32 v{t0}, s{S_T1}, v{t0}")
    a(f"v_and_b32 v{t1}, 7, v0")
    a(f"s_lshl_b32 s{S_T1}, s{w}, 1")
    a(f"v_xor_b32 v{t1}, s{S_T1}, v{t1}")
    a(f"v_lshl_add_u32 v{vUo}, v{t1}, 4, v{t0}")
    a(f"v_xor_b32 v{t1}, 1, v{t1}")
    a(f"v_lshl_add_u32 v{vUo+1}, v{t1}, 4, v{t0}")
    a(f"v_add_u32 v{vUo+1}, {8*4096}, v{vUo+1}")
    KR, VR, WR, KF, WF, AC = 120, 140, 148, 164, 174, 182
    vKo, vKv, vKw, vT = 184, 187, 188, 189
    a(f"s_lshl_b32 s{S_T0}, s{sTB}, 6")
    a(f"s_lshl_b32 s{S_T1}, s{w}, 4")
    a(f"s_add_u32 s{S_T0}, s{S_T0}, s{S_T1}")
    a(f"v_lshrrev_b32 v{t0}, 3, v0")
    a(f"v_lshl_add_u32 v{t1}, v{t0}, 1, s{S_T0}")
    a(f"v_and_b32 v{t2}, 7, v0")
    a(f"s_lshl_b32 s{S_T1}, s{sCG}, 7")
    a(f"v_lshl_add_u32 v{t3}, v{t2}, 4, s{S_T1}")
    a(f"v_mov_b32 v{vT}, 896")
    a(f"v_mad_u32_u24 v{vKv}, v{t1}, v{vT}, v{t3}")
    for i in range(3):
        a(f"v_cmp_gt_u32 vcc, {3-i}, v{t1}")
        a(f"v_subrev_u32 v{vKo+i}, {(3-i)*896}, v{vKv}")
        a(f"v_mov_b32 v{vT}, 0x40000000")
        a(f"v_cndmask_b32 v{vKo+i}, v{vKo+i}, v{vT}, vcc")
    a(f"s_lshl_b32 s{S_T1}, s{sCG}, 9")
    a(f"v_lshl_add_u32 v{vKw}, v{t2}, 6, s{S_T1}")
    a(f"v_lshrrev_b32 v{t1}, 2, v{t0}")
    a(f"s_lshl_b32 s{S_T1}, s{w}, 1")
    a(f"v_add_u32 v{t1}, s{S_T1}, v{t1}")
    a(f"v_xor_b32 v{t1}, v{t1}, v{t2}")
    a(f"v_lshlrev_b32 v{t1}, 4, v{t1}")
    a(f"v_lshl_add_u32 v{t1}, v{t2}, 10, v{t1}")
    a(f"v_and_b32 v{t0}, 3, v{t0}")
    a(f"v_sub_u32 v{t0}, 3, v{t0}")
    a(f"v_lshl_add_u32 v{t1}, v{t0}, 2, v{t1}")
    a(f"v_add_u32 v{vT}, {EXT}, v{t1}")
    a.srd(92, S_K, XB); a.srd(96, S_V, XB); a.srd(R_E, S_SH, D*4*2)
    sCH, sRH = 100, 101
    a(f"s_lshr_b32 s{S_T1}, s{w}, 1")
    a(f"s_lshl_b32 s{sCH}, s{S_M}, 1")
    a(f"s_add_u32 s{sCH}, s{sCH}, s{S_T1}")
    a(f"s_and_b32 s{sRH}, s{w}, 1")
    a(f"s_lshr_b32 s{S_T1}, s{sCH}, 4")
    a(f"s_lshl_b32 s{S_T1}, s{S_T1}, 7")
    a(f"s_add_u32 s{S_T1}, s{S_T1}, {F0_OFF}")
    a(f"v_and_b32 v{t0}, 31, v0")
    a(f"v_lshlrev_b32 v{t0}, 2, v{t0}")
    a(f"v_add_u32 v{vF0a}, s{S_T1}, v{t0}")
    def kv_loads():
        for i in range(3):
            a(f"buffer_load_dwordx4 {vr(KR+4*i)}, v{vKo+i}, s[92:95], 0 offen"); vm.issue("kvl")
        for i in range(2):
            a(f"buffer_load_dwordx4 {vr(KR+12+4*i)}, v{vKv}, s[92:95], 0 offen offset:{896*i}"); vm.issue("kvl")
        for i in range(2):
            a(f"buffer_load_dwordx4 {vr(VR+4*i)}, v{vKv}, s[96:99], 0 offen offset:{896*i}"); vm.issue("kvl")
        for i in range(4):
            a(f"buffer_load_dwordx4 {vr(WR+4*i)}, v{vKw}, s[{R_E}:{R_E+3}], 0 offen offset:{16*i}"); vm.issue("kvl")
        a.srd(R_E, S_SK, XB)
    def kv_valu(j):
        L = []
        for c in range(2):
            ch = 2*j + c
            L += [f"v_lshlrev_b32 v{WF+4*c}, 16, v{WR+2*ch}", f"v_and_b32 v{WF+4*c+1}, 0xffff0000, v{WR+2*ch}",
                  f"v_lshlrev_b32 v{WF+4*c+2}, 16, v{WR+2*ch+1}", f"v_and_b32 v{WF+4*c+3}, 0xffff0000, v{WR+2*ch+1}"]
        for i in range(5):
            L += [f"v_lshlrev_b32 v{KF+i}, 16, v{KR+4*i+j}", f"v_and_b32 v{KF+5+i}, 0xffff0000, v{KR+4*i+j}"]
        for c in range(2):
            kf, wf = KF + 5*c, WF + 4*c
            L += [f"v_mul_f32 v{AC+t}, v{wf}, v{kf+3+t}" for t in range(2)]
            for tap in range(1, 4):
                L += [f"v_fmac_f32 v{AC+t}, v{wf+tap}, v{kf+3+t-tap}" for t in range(2)]
            for t in range(2):
                L.append(f"v_and_b32 v{kf+t}, 0xffff0000, v{VR+4*t+j}" if c else f"v_lshlrev_b32 v{kf+t}, 16, v{VR+4*t+j}")
            L += [f"v_mul_f32 v{AC+t}, v{AC+t}, v{kf+t}" for t in range(2)]
            L += [f"v_cvt_pk_bf16_f32 v{kf+2}, v{AC+1}, v{AC}", f"ds_write_b32 v{vT}, v{kf+2} offset:{128*(2*j+c)}"]
        return L
    def cs_load():
        for e in range(2):
            a(f"buffer_load_dwordx2 {vr(vCS+2*e, 2)}, v{vCA+e}, s[{R_WS}:{R_WS+3}], 0 offen sc1"); vm.issue("cs")
    def sg_load():
        a(f"buffer_load_dwordx4 {vr(vST)}, v{vSA}, s[{R_WS}:{R_WS+3}], 0 offen sc1"); vm.issue("sg")
    def tag_check(regs, reload):
        L, Dn = a.uid("L_tag"), a.uid("L_tagd")
        a(f"s_mov_b32 s{S_BND}, {a.spin}")
        a.label(L)
        a(f"v_cmp_ne_u32 vcc, s{S_NONCE}, v{regs[0]}")
        a(f"v_cmp_ne_u32 s[{S_EX}:{S_EX+1}], s{S_NONCE}, v{regs[1]}")
        a("s_nop 1")
        a(f"s_or_b64 vcc, vcc, s[{S_EX}:{S_EX+1}]")
        a(f"s_cbranch_vccz {Dn}")
        keep = list(vm.q); reload()
        a("s_waitcnt vmcnt(0)")
        vm.q = keep
        a(f"s_sub_u32 s{S_BND}, s{S_BND}, 1")
        a(f"s_cmp_lg_u32 s{S_BND}, 0")
        a(f"s_cbranch_scc1 {L}")
        a.label(Dn)
    def split(vsrc, neg):
        sg = "-" if neg else ""
        a(f"v_cvt_pk_bf16_f32 v{vh}, {sg}v{vsrc}, {sg}v{vsrc}")
        a(f"v_and_b32 v{t2}, 0xffff0000, v{vh}")
        a(f"v_sub_f32_e64 v{t2}, {sg}v{vsrc}, v{t2}")
        a(f"v_cvt_pk_bf16_f32 v{vl}, v{t2}, v{t2}")
    for st in range(7):
        vm.wait(("st", st))
        if a.stop == "p1": a.stamp(3 + st)
        a("s_barrier")
        fill = []
        if st == 1:
            a(f"v_mov_b32 v{t0}, 0")
            a(f"global_load_dword v{vnon}, v{t0}, s[{S_DBG}:{S_DBG+1}] sc1"); vm.issue("non")
        if st == 2: fill = [lambda: vm.wait("kvl")] + kv_valu(0) + kv_valu(1)
        if st == 3:
            assert not vm.has("non")
            Lok = a.uid("L_nonok")
            a(f"v_readfirstlane_b32 s{S_NONCE}, v{vnon}")
            a("s_nop 3")
            a(f"s_cmp_lg_u32 s{S_NONCE}, 0")
            a(f"s_cbranch_scc1 {Lok}")
            a.get_nonce_spin(vnon, t0)
            a.label(Lok)
            a(f"v_mov_b32 v{t0}, s{S_NONCE}")
            a(f"v_mov_b32 v{t1}, {NONCE_L}")
            a(f"ds_write_b32 v{t1}, v{t0}")
            Lns = a.uid("L_nosg")
            a(f"s_cmp_lg_u32 s{w}, 0")
            a(f"s_cbranch_scc1 {Lns}")
            a(f"v_lshlrev_b32 v{t0}, 3, v0")
            a(f"v_add_u32 v{t0}, {STG_L}, v{t0}")
            a(f"ds_read_b64 {vr(t2, 2)}, v{t0}")
            a(f"v_and_b32 v{t0}, 3, v0")
            a(f"v_lshrrev_b32 v{t1}, 2, v0")
            a(f"v_mul_u32_u24 v{t1}, 56, v{t1}")
            a(f"v_add_u32 v{t0}, v{t0}, v{t1}")
            a(f"s_lshl_b32 s{S_T1}, s{S_FC}, 2")
            a(f"v_add_u32 v{t0}, s{S_T1}, v{t0}")
            a(f"v_cmp_gt_u32 vcc, 128, v{t0}")
            a(f"s_lshl_b32 s{S_T1}, s{S_RT}, 7")
            a(f"v_add_u32 v{t0}, s{S_T1}, v{t0}")
            a(f"v_lshlrev_b32 v{t0}, 4, v{t0}")
            a(f"v_add_u32 v{t0}, {SG_OFF}, v{t0}")
            a("s_and_b64 vcc, vcc, 0xfff")
            a("s_waitcnt lgkmcnt(0)")
            a(f"v_mov_b32 v{vST}, v{t2}")
            a(f"v_mov_b32 v{vST+1}, s{S_NONCE}")
            a(f"v_mov_b32 v{vST+2}, v{t3}")
            a(f"v_mov_b32 v{vST+3}, s{S_NONCE}")
            a("s_mov_b64 exec, vcc")
            a(f"buffer_store_dwordx4 {vr(vST)}, v{t0}, s[{R_WS}:{R_WS+3}], 0 offen sc1")
            a("s_mov_b64 exec, -1")
            a.label(Lns)
            fill = kv_valu(2) + kv_valu(3) + ["s_waitcnt lgkmcnt(0)"]
        if st == 4:
            a(f"s_lshl_b32 s{S_T1}, s{w}, 11")
            a(f"s_add_u32 s{S_T1}, s{S_T1}, {EXT}")
            a(f"v_lshlrev_b32 v{t0}, 4, v0")
            a(f"v_add_u32 v{t0}, s{S_T1}, v{t0}")
            a(f"ds_read_b128 {vr(84)}, v{t0}")
            a(f"ds_read_b128 {vr(88)}, v{t0} offset:1024")
            a("s_waitcnt lgkmcnt(0)")
            for i in range(2):
                a(f"buffer_store_dwordx4 {vr(84+4*i)}, v{vUo+i}, s[{R_WS}:{R_WS+3}], 0 offen sc1"); vm.issue("ut")
            cs_load()
        if st <= 4: issue_stage(st + 2, fill)
        if st == 0: kv_loads()
        if st == 5:
            vm.wait("cs")
            a.signal(sF0, t0, t1); vm.issue("sig")
            sg_load()
            a(f"s_lshl_b32 s{S_T1}, s{sCH}, 12")
            a(f"v_lshlrev_b32 v{t0}, 4, v0")
            a(f"v_add_u32 v{t1}, 4, v{t0}")
            for i in range(4):
                a(f"buffer_load_dwordx4 {vr(vKA_+4*i)}, v{t0}, s[{R_E}:{R_E+3}], s{S_T1} offen offset:{1024*i}"); vm.issue("K")
                a(f"buffer_load_dwordx4 {vr(vKB_+4*i)}, v{t1}, s[{R_E}:{R_E+3}], s{S_T1} offen offset:{1024*i}"); vm.issue("K")
            tag_check((vCS + 1, vCS + 3), cs_load)
            a("v_cmp_gt_u32 vcc, 32, v0")
            a(f"v_lshlrev_b32 v{t3}, 4, v0")
            a(f"s_lshl_b32 s{S_T1}, s{w}, 11")
            a(f"s_add_u32 s{S_T1}, s{S_T1}, {WEXT}")
            a(f"v_add_u32 v{t1}, s{S_T1}, v{t3}")
            for e in range(2):
                f0 = e0 + 4*e
                split(vCS + 2*e, False)
                a(f"v_and_b32 v{t2}, 0xffff, v{vl}")
                a(f"v_cndmask_b32 v{f0}, 0, v{vh}, vcc")
                a(f"v_cndmask_b32 v{f0+1}, 0, v{t2}, vcc")
                a(f"v_mov_b32 v{f0+2}, 0")
                a(f"v_mov_b32 v{f0+3}, 0")
                a(f"ds_write_b128 v{t1}, {vr(f0)} offset:{1024*e}")
            a(f"buffer_load_dword v{vF0d}, v{vF0a}, s[{R_WS}:{R_WS+3}], 0 offen sc1"); vm.issue("f0")
    a.stamp(1)
    vm.wait("sg")
    tag_check((vST + 1, vST + 3), sg_load)
    a(f"v_mov_b32 v{vST+1}, v{vST+2}")
    a(f"v_and_b32 v{t1}, 31, v0")
    a(f"s_lshl_b32 s{S_T1}, s{w}, 8")
    a(f"v_lshl_add_u32 v{t1}, v{t1}, 3, s{S_T1}")
    a(f"v_add_u32 v{t1}, {STATS_L}, v{t1}")
    a(f"ds_write_b64 v{t1}, {vr(vST, 2)}")
    a("v_cmp_gt_u32 vcc, 32, v0")
    split(vST, True)
    a(f"v_and_b32 v{t2}, 0xffff, v{vh}")
    a(f"v_lshlrev_b32 v{t1}, 16, v{vl}")
    a(f"v_or_b32 v{t1}, v{t1}, v{t2}")
    a(f"v_cndmask_b32 v{e0+8}, 0, v{t1}, vcc")
    a(f"v_cndmask_b32 v{e0+9}, 0, v{t2}, vcc")
    a(f"v_mov_b32 v{e0+10}, 0")
    a(f"v_mov_b32 v{e0+11}, 0")
    a(f"v_lshlrev_b32 v{t3}, 4, v0")
    a(f"s_lshl_b32 s{S_T1}, s{w}, 10")
    a(f"s_add_u32 s{S_T1}, s{S_T1}, {XEXT}")
    a(f"v_add_u32 v{t1}, s{S_T1}, v{t3}")
    a(f"ds_write_b128 v{t1}, {vr(e0+8)}")
    sUB, sKC, sUok = S_A2, S_A1, S_A3
    a(f"s_lshr_b32 s{S_T0}, s{w}, 1")
    a(f"s_mul_i32 s{sUB}, s{S_T0}, {UCH}")
    a(f"s_add_u32 s{sUB}, s{sUB}, {UB0}")
    a(f"s_mul_i32 s{sKC}, s{S_T0}, {KCH}")
    a(f"s_add_u32 s{sKC}, s{sKC}, {CV}")
    def u_dma():
        a(f"s_lshl_b32 s{S_T1}, s{sCH}, 12")
        a(f"s_add_u32 s{S_T1}, s{S_T1}, {UT_OFF}")
        a(f"v_lshlrev_b32 v{t0}, 4, v0")
        for i in range(4):
            a(f"s_add_u32 m0, s{sUB}, {512 + 1024*i}")
            a(f"s_add_u32 s{S_T2}, s{S_T1}, {1024*i}")
            a(f"buffer_load_dwordx4 v{t0}, s[{R_WS}:{R_WS+3}], s{S_T2} offen sc1 lds")
    vm.wait("f0")
    a(f"v_cmp_ne_u32 vcc, s{S_NONCE}, v{vF0d}")
    a(f"s_mov_b32 s{sUok}, 0")
    a("s_nop 0")
    Lnu = a.uid("L_nou")
    a(f"s_cbranch_vccnz {Lnu}")
    a(f"s_mov_b32 s{sUok}, 1")
    u_dma()
    a.label(Lnu)
    vm.reset()
    a(f"v_add_u32 v{t1}, s{sKC}, v{t3}")
    Lc1, Lcd = a.uid("L_copy1"), a.uid("L_copyd")
    a(f"s_cmp_eq_u32 s{sRH}, 1")
    a(f"s_cbranch_scc1 {Lc1}")
    for i in range(4):
        a(f"ds_write_b128 v{t1}, {vr(vKA_+4*i)} offset:{32 + 1024*i}")
    a(f"v_mov_b32 v{e0}, 0")
    a(f"v_mov_b32 v{e0+1}, 0")
    a(f"v_lshlrev_b32 v{t1}, 3, v0")
    a(f"v_add_u32 v{t2}, s{sUB}, v{t1}")
    a(f"ds_write_b64 v{t2}, {vr(e0, 2)}")
    a(f"v_add_u32 v{t2}, s{sKC}, v{t1}")
    a("s_mov_b64 exec, 0xf")
    a(f"ds_write_b64 v{t2}, {vr(e0, 2)}")
    a("s_mov_b64 exec, -1")
    a(f"s_branch {Lcd}")
    a.label(Lc1)
    a(f"v_lshlrev_b32 v{t2}, 16, v{vKA_}")
    for i in range(4):
        for j in range(4):
            a(f"v_alignbit_b32 v{vKB_+4*i+j}, v{vKB_+4*i+j}, v{vKA_+4*i+j}, 16")
    for i in range(4):
        a(f"ds_write_b128 v{t1}, {vr(vKB_+4*i)} offset:{4160 + 32 + 1024*i}")
    a(f"v_readfirstlane_b32 s{S_T1}, v{t2}")
    a(f"v_lshlrev_b32 v{t1}, 2, v0")
    a(f"v_add_u32 v{t1}, s{sKC}, v{t1}")
    a("v_cmp_eq_u32 vcc, 7, v0")
    a(f"v_mov_b32 v{t2}, s{S_T1}")
    a("s_nop 0")
    a(f"v_cndmask_b32 v{t2}, 0, v{t2}, vcc")
    a("s_mov_b64 exec, 0xff")
    a(f"ds_write_b32 v{t1}, v{t2} offset:4160")
    a("s_mov_b64 exec, -1")
    a.label(Lcd)
    a("s_waitcnt lgkmcnt(0)")
    a("s_barrier")
    a.stamp(2)
    if a.stop == "p1":
        a("s_waitcnt vmcnt(0)"); a("s_barrier"); a.stamps_out(10); a("s_endpgm"); return
    Lgo = a.uid("L_ugo")
    a(f"s_cmp_eq_u32 s{sUok}, 1")
    a(f"s_cbranch_scc1 {Lgo}")
    a.poll(vF0a, t1, 64)
    u_dma()
    a.label(Lgo)
    a.stamp(3)
    if "noconv" not in a.exp: conv(a, w, sCH, sRH, sUB, sKC)
    a.stamp(5)
    final_h(a, w)

def lds_pair_sync(a, vaddr, vone, vtmp, target):
    L, Dn = a.uid("L_ps"), a.uid("L_psd")
    a("s_mov_b64 exec, 1")
    a(f"ds_add_u32 v{vaddr}, v{vone}")
    a("s_mov_b64 exec, -1")
    a(f"s_mov_b32 s{S_BND}, {a.spin}")
    a.label(L)
    a(f"ds_read_b32 v{vtmp}, v{vaddr}")
    a("s_waitcnt lgkmcnt(0)")
    a(f"v_readfirstlane_b32 s{S_T0}, v{vtmp}")
    a("s_nop 0")
    a(f"s_cmp_ge_u32 s{S_T0}, {target}")
    a(f"s_cbranch_scc1 {Dn}")
    a(f"s_sub_u32 s{S_BND}, s{S_BND}, 1")
    a(f"s_cmp_lg_u32 s{S_BND}, 0")
    a(f"s_cbranch_scc1 {L}")
    a.label(Dn)

def conv(a, w, sCH, sRH, sUB, sKC):
    t0, t1, t2, t3 = 64, 65, 66, 67
    a(f"s_lshl_b32 s{S_T0}, s{S_M}, 2")
    a(f"s_load_dword s{S_A4}, s[{S_SD}:{S_SD+1}], s{S_T0}")
    vKA, vUB = 8, 12
    a(f"v_and_b32 v{t0}, 15, v0")
    a(f"v_lshrrev_b32 v{t1}, 5, v0")
    a(f"v_bfe_u32 v{t2}, v0, 4, 1")
    a(f"v_lshlrev_b32 v{t3}, 4, v{t1}")
    a(f"v_add_u32 v{t3}, v{t3}, v{t0}")
    a(f"v_add_u32 v{t3}, 9, v{t3}")
    a(f"v_lshlrev_b32 v{vUB}, 3, v{t2}")
    a(f"v_sub_u32 v{t3}, v{t3}, v{vUB}")
    a(f"v_and_b32 v{vUB}, 1, v{t3}")
    a(f"v_mul_u32_u24 v{vUB}, 4158, v{vUB}")
    a(f"v_lshl_add_u32 v{t3}, v{t3}, 1, v{vUB}")
    a(f"s_lshl_b32 s{S_T1}, s{sRH}, 8")
    a(f"s_add_u32 s{S_T2}, s{sKC}, s{S_T1}")
    a(f"v_add_u32 v{vKA}, s{S_T2}, v{t3}")
    for i in range(1, 4): a(f"v_add_u32 v{vKA+i}, {1024*i}, v{vKA}")
    a(f"v_sub_u32 v{t3}, v{t0}, v{t1}")
    a(f"v_lshlrev_b32 v{t3}, 5, v{t3}")
    a(f"v_lshl_add_u32 v{t3}, v{t2}, 4, v{t3}")
    a(f"v_add_u32 v{t3}, {64 + 256}, v{t3}")
    a(f"s_sub_u32 s{S_T2}, s{sUB}, s{S_T1}")
    a(f"v_add_u32 v{vUB}, s{S_T2}, v{t3}")
    vUE, vYO, vXA, vCN, vOne = 13, 14, 15, 16, 17
    a(f"v_lshlrev_b32 v{t3}, 5, v{t0}")
    a(f"v_lshl_add_u32 v{t3}, v{t1}, 4, v{t3}")
    a(f"v_lshlrev_b32 v{vUE}, 3, v{t2}")
    a(f"v_sub_u32 v{t3}, v{t3}, v{vUE}")
    a(f"v_add_u32 v{t3}, 520, v{t3}")
    a(f"s_lshl_b32 s{S_T1}, s{sRH}, 11")
    a(f"s_add_u32 s{S_T2}, s{sUB}, s{S_T1}")
    a(f"v_add_u32 v{vUE}, s{S_T2}, v{t3}")
    a(f"v_lshrrev_b32 v{t3}, 4, v0")
    a(f"v_lshlrev_b32 v{t3}, 3, v{t3}")
    a(f"v_lshl_add_u32 v{vYO}, v{t0}, 5, v{t3}")
    a(f"v_lshlrev_b32 v{t3}, 4, v0")
    a(f"v_add_u32 v{vXA}, s{sKC}, v{t3}")
    a(f"s_lshr_b32 s{S_T1}, s{w}, 1")
    a(f"s_lshl_b32 s{S_T1}, s{S_T1}, 2")
    a(f"s_add_u32 s{S_T1}, s{S_T1}, {CNT_L}")
    a(f"v_mov_b32 v{vCN}, s{S_T1}")
    a(f"v_mov_b32 v{vOne}, 1")
    a("s_waitcnt vmcnt(0) lgkmcnt(0)")
    a.stamp(4)
    ACC = 224
    AS, BS = (96, 160), (128, 192)
    def loads(rr):
        s = rr & 1; L = []
        for x in range(8):
            L.append(f"ds_read_b128 {vr(BS[s]+4*x)}, v{vUB} offset:{512*x + 64*(3-rr)}")
            o = 128*(x & 1) + 16*rr
            L.append(f"ds_read2_b32 {vr(AS[s]+4*x, 2)}, v{vKA+(x>>1)} offset0:{o} offset1:{o+1}")
            L.append(f"ds_read2_b32 {vr(AS[s]+4*x+2, 2)}, v{vKA+(x>>1)} offset0:{o+2} offset1:{o+3}")
        return L
    for l in loads(0): a(l)
    for rr in range(4):
        a("s_waitcnt lgkmcnt(0)")
        nxt = loads(rr + 1) if rr < 3 else []
        s = rr & 1; k = 0
        for x in range(8):
            for c in range(x, 8):
                cin = "0" if (rr == 0 and x == 0) else vr(ACC+4*c)
                a(f"v_mfma_f32_16x16x32_bf16 {vr(ACC+4*c)}, {vr(AS[s]+4*x)}, {vr(BS[s]+4*(c-x))}, {cin}")
                if nxt and k < len(nxt): a(nxt[k]); k += 1
        while nxt and k < len(nxt): a(nxt[k]); k += 1
    a.stamp(9)
    lds_pair_sync(a, vCN, vOne, t0, 2)
    Lr1, Lrd = a.uid("L_r1"), a.uid("L_rd")
    a(f"s_cmp_eq_u32 s{sRH}, 1")
    a(f"s_cbranch_scc1 {Lr1}")
    for c in range(4): a(f"ds_write_b128 v{vXA}, {vr(ACC+16+4*c)} offset:{1024*c}")
    a(f"s_branch {Lrd}")
    a.label(Lr1)
    for c in range(4):
        a(f"ds_write_b128 v{vXA}, {vr(ACC+4*c)} offset:{4096 + 1024*c}")
    a("s_waitcnt lgkmcnt(0)")
    for c in range(16): a(f"v_mov_b32 v{ACC+c}, v{ACC+16+c}")
    a.label(Lrd)
    a("s_waitcnt lgkmcnt(0)")
    lds_pair_sync(a, vCN, vOne, t0, 4)
    a(f"s_xor_b32 s{S_T1}, s{sRH}, 1")
    a(f"s_lshl_b32 s{S_T1}, s{S_T1}, 12")
    a(f"v_add_u32 v{vXA}, s{S_T1}, v{vXA}")
    for c in range(4): a(f"ds_read_b128 {vr(128+4*c)}, v{vXA} offset:{1024*c}")
    for c in range(4): a(f"ds_read_b64 {vr(96+2*c, 2)}, v{vUE} offset:{512*c}")
    a(f"s_lshr_b32 s{S_T1}, s{w}, 1")
    a(f"s_lshl_b32 s{S_T1}, s{S_T1}, 4")
    a(f"s_lshr_b32 s{S_A4}, s{S_A4}, s{S_T1}")
    a(f"s_lshl_b32 s{S_A4}, s{S_A4}, 16")
    a(f"s_lshl_b32 s{S_T1}, s{sCH}, 12")
    a(f"s_lshl_b32 s{S_T2}, s{sRH}, 11")
    a(f"s_add_u32 s{S_T1}, s{S_T1}, s{S_T2}")
    a(f"s_add_u32 s{S_T1}, s{S_T1}, {YT_OFF}")
    a("s_waitcnt lgkmcnt(0)")
    for c in range(4):
        d0, d1 = 96 + 2*c, 97 + 2*c
        u = 144
        a(f"v_and_b32 v{u}, 0xffff0000, v{d1}")
        a(f"v_lshlrev_b32 v{u+1}, 16, v{d1}")
        a(f"v_and_b32 v{u+2}, 0xffff0000, v{d0}")
        a(f"v_lshlrev_b32 v{u+3}, 16, v{d0}")
        for i in range(4): a(f"v_add_f32 v{ACC+4*c+i}, v{ACC+4*c+i}, v{128+4*c+i}")
        for i in range(4): a(f"v_fmac_f32 v{ACC+4*c+i}, s{S_A4}, v{u+i}")
        o = 148 + 2*c
        a(f"v_cvt_pk_bf16_f32 v{o}, v{ACC+4*c}, v{ACC+4*c+1}")
        a(f"v_cvt_pk_bf16_f32 v{o+1}, v{ACC+4*c+2}, v{ACC+4*c+3}")
        a(f"buffer_store_dwordx2 {vr(o, 2)}, v{vYO}, s[{R_WS}:{R_WS+3}], s{S_T1} offen offset:{512*c} sc1")
    a(f"s_lshr_b32 s{S_T1}, s{sCH}, 6")
    a(f"s_lshl_b32 s{S_T1}, s{S_T1}, 1")
    a(f"s_add_u32 s{S_T1}, s{S_T1}, s{sRH}")
    a(f"s_lshl_b32 s{S_T1}, s{S_T1}, 6")
    a(f"s_and_b32 s{S_T2}, s{sCH}, 63")
    a(f"s_add_u32 s{S_T1}, s{S_T1}, s{S_T2}")
    a(f"s_lshl_b32 s{S_T1}, s{S_T1}, 2")
    a(f"s_add_u32 s{S_T1}, s{S_T1}, {F2_OFF}")
    if a.prof: a(f"s_mov_b32 s{S_A5}, s{S_T1}"); a.stamp(1); a(f"s_mov_b32 s{S_T1}, s{S_A5}")
    a("s_waitcnt vmcnt(0)")
    a.signal(S_T1, t0, t1)

def final_h(a, w):
    t0, t1, t2, t3 = 64, 65, 66, 67
    vXo, vYa, vS = 8, 9, 10
    BASE = 16
    RS2 = 32
    XD = 36
    YD = 44
    ST = 52
    a(f"v_lshrrev_b32 v{t0}, 3, v0")
    a(f"v_mul_u32_u24 v{t0}, 896, v{t0}")
    a(f"v_and_b32 v{t1}, 7, v0")
    a(f"v_lshl_add_u32 v{vXo}, v{t1}, 4, v{t0}")
    sXO = S_A1
    a(f"s_lshl_b32 s{S_T0}, s{S_RB}, 6")
    a(f"s_lshl_b32 s{S_T1}, s{w}, 4")
    a(f"s_add_u32 s{S_T0}, s{S_T0}, s{S_T1}")
    a(f"s_mul_i32 s{sXO}, s{S_T0}, 896")
    a(f"s_lshl_b32 s{S_T1}, s{S_CT}, 7")
    a(f"s_add_u32 s{sXO}, s{sXO}, s{S_T1}")
    a(f"s_add_u32 s{S_T2}, s{sXO}, {8*896}")
    a(f"buffer_load_dwordx4 {vr(XD)}, v{vXo}, s[{R_A}:{R_A+3}], s{sXO} offen")
    a(f"buffer_load_dwordx4 {vr(XD+4)}, v{vXo}, s[{R_A}:{R_A+3}], s{S_T2} offen")
    a(f"s_lshl_b32 s{S_T1}, s{S_PAR}, 6")
    a(f"s_lshl_b32 s{S_T2}, s{w}, 4")
    a(f"s_add_u32 s{S_T1}, s{S_T1}, s{S_T2}")
    a(f"v_lshrrev_b32 v{t0}, 3, v0")
    a(f"v_add_u32 v{t0}, s{S_T1}, v{t0}")
    a(f"v_lshlrev_b32 v{t0}, 3, v{t0}")
    a(f"v_add_u32 v{t0}, {STATS_L}, v{t0}")
    a(f"ds_read_b64 {vr(ST, 2)}, v{t0}")
    a(f"ds_read_b64 {vr(ST+2, 2)}, v{t0} offset:64")
    a(f"s_lshl_b32 s{S_T1}, s{S_CT}, 9")
    a(f"s_lshr_b32 s{S_T2}, s{S_RB}, 4")
    a(f"s_lshl_b32 s{S_T2}, s{S_T2}, 8")
    a(f"s_add_u32 s{S_T1}, s{S_T1}, s{S_T2}")
    a(f"s_add_u32 s{S_T1}, s{S_T1}, {F2_OFF}")
    a(f"v_lshlrev_b32 v{t0}, 2, v0")
    a(f"v_add_u32 v{t0}, s{S_T1}, v{t0}")
    if "noconv" not in a.exp and "nopoll2" not in a.exp: a.poll(t0, t1, 64, sleep=(64 if "slowpoll" in a.exp else 8))
    a.stamp(6)
    a(f"s_lshl_b32 s{S_T1}, s{S_CT}, 18")
    a(f"s_add_u32 s{S_T1}, s{S_T1}, {YT_OFF}")
    a(f"s_lshl_b32 s{S_T2}, s{S_T0}, 1")
    a(f"s_add_u32 s{S_T1}, s{S_T1}, s{S_T2}")
    a(f"v_lshlrev_b32 v{t0}, 12, v0")
    a(f"buffer_load_dwordx4 {vr(YD)}, v{t0}, s[{R_WS}:{R_WS+3}], s{S_T1} offen sc1")
    a(f"buffer_load_dwordx4 {vr(YD+4)}, v{t0}, s[{R_WS}:{R_WS+3}], s{S_T1} offen offset:16 sc1")
    a(f"s_mul_i32 s{S_T1}, s{w}, 3072")
    a(f"s_add_u32 s{S_T1}, s{S_T1}, {EXT}")
    a(f"v_mul_u32_u24 v{t0}, 48, v0")
    a(f"v_add_u32 v{t0}, s{S_T1}, v{t0}")
    a("s_waitcnt vmcnt(0)")
    a(f"ds_write_b128 v{t0}, {vr(YD)}")
    a(f"ds_write_b128 v{t0}, {vr(YD+4)} offset:16")
    a(f"v_and_b32 v{t1}, 7, v0")
    a(f"v_mul_u32_u24 v{t1}, 384, v{t1}")
    a(f"v_lshrrev_b32 v{t2}, 3, v0")
    a(f"v_lshl_add_u32 v{t1}, v{t2}, 1, v{t1}")
    a(f"v_add_u32 v{t1}, s{S_T1}, v{t1}")
    a("s_waitcnt lgkmcnt(0)")
    YG = 96
    for q in range(2):
        for e in range(8):
            a(f"ds_read_u16 v{YG+8*q+e}, v{t1} offset:{48*e + 16*q}")
    a("s_waitcnt lgkmcnt(0)")
    for q in range(2):
        mean, rstd = ST + 2*q, ST + 2*q + 1
        a(f"v_mul_f32 v{RS2+q}, v{rstd}, v{rstd}")
        for e in range(8):
            xs = XD + 4*q + (e >> 1)
            if e & 1: a(f"v_and_b32 v{t0}, 0xffff0000, v{xs}")
            else:     a(f"v_lshlrev_b32 v{t0}, 16, v{xs}")
            a(f"v_lshlrev_b32 v{t2}, 16, v{YG+8*q+e}")
            a(f"v_sub_f32 v{t3}, v{t0}, v{mean}")
            a(f"v_mul_f32 v{t3}, v{t3}, v{rstd}")
            a(f"v_fma_f32 v{BASE+8*q+e}, v{t3}, v{t2}, v{t0}")
    vF0, vF1 = 12, 13
    a(f"v_lshrrev_b32 v{t0}, 3, v0")
    a(f"s_lshl_b32 s{S_T1}, s{w}, 4")
    a(f"v_add_u32 v{t0}, s{S_T1}, v{t0}")
    a(f"v_mul_u32_u24 v{t0}, {PROW}, v{t0}")
    a(f"v_and_b32 v{t1}, 7, v0")
    a(f"v_lshl_add_u32 v{vF0}, v{t1}, 5, v{t0}")
    a(f"v_add_u32 v{vF1}, {2*RING}, v{vF0}")
    a.srd(R_B, S_OUT, XB)
    a.stamp(7)
    a("s_barrier")
    P = 128
    for q in range(2):
        for kq in range(4):
            base = vF0 if kq < 2 else vF1
            for hh in range(2):
                a(f"ds_read_b128 {vr(P+32*q+8*kq+4*hh)}, v{base} offset:{(kq & 1)*RING + q*8*PROW + 16*hh}")
    for q in range(2):
        a(f"s_waitcnt lgkmcnt({8 if q == 0 else 0})")
        p = P + 32*q
        for e in range(8):
            a(f"v_add_f32 v{p+e}, v{p+e}, v{p+8+e}")
            a(f"v_add_f32 v{p+16+e}, v{p+16+e}, v{p+24+e}")
        for e in range(8):
            a(f"v_add_f32 v{p+e}, v{p+e}, v{p+16+e}")
        for e in range(8):
            a(f"v_fmac_f32 v{BASE+8*q+e}, v{RS2+q}, v{p+e}")
        for e in range(4):
            a(f"v_cvt_pk_bf16_f32 v{XD+4*q+e}, v{BASE+8*q+2*e}, v{BASE+8*q+2*e+1}")
        so = sXO
        if q == 1:
            a(f"s_add_u32 s{S_T2}, s{sXO}, {8*896}"); so = S_T2
        a(f"buffer_store_dwordx4 {vr(XD+4*q)}, v{vXo}, s[{R_B}:{R_B+3}], s{so} offen")
    a.stamp(8)
    a.label("L_hout")
    a.stamps_out(10)
    a("s_endpgm")

def row_stats(a):
    t0, t1 = 4, 5
    XD, SS = 64, 76
    a.srd(R_B, S_X, XB)
    a(f"s_lshl_b32 s{S_T0}, s{S_FC}, 2")
    a(f"s_add_u32 s{S_T0}, s{S_T0}, s{S_WAVE}")
    a(f"s_lshl_b32 s{S_T1}, s{S_RT}, 7")
    a(f"s_add_u32 s{S_T1}, s{S_T1}, s{S_T0}")
    a(f"s_mul_i32 s{S_T1}, s{S_T1}, 896")
    a(f"v_mov_b32 v{t1}, 0x40000000")
    a("v_cmp_gt_u32 vcc, 56, v0")
    a(f"s_add_u32 s{S_T2}, s{S_T1}, {56*896}")
    a(f"s_add_u32 s{S_T3}, s{S_T1}, {112*896}")
    a(f"v_cndmask_b32 v{t0}, v{t1}, v17, vcc")
    a(f"buffer_load_dwordx4 {vr(XD)}, v{t0}, s[{R_B}:{R_B+3}], s{S_T1} offen")
    a(f"buffer_load_dwordx4 {vr(XD+4)}, v{t0}, s[{R_B}:{R_B+3}], s{S_T2} offen")
    a(f"s_cmp_lt_u32 s{S_T0}, 16")
    a(f"s_cselect_b32 s{S_T3}, s{S_T3}, s{S_T2}")
    a(f"buffer_load_dwordx4 {vr(XD+8)}, v{t0}, s[{R_B}:{R_B+3}], s{S_T3} offen")
    a(f"v_mov_b32 v{t1}, 0x3f803f80")
    for j in range(3):
        a(f"s_waitcnt vmcnt({2-j})")
        for q in range(4):
            c0 = "0" if q == 0 else f"v{SS+j}"; c1 = "0" if q == 0 else f"v{SS+3+j}"
            a(f"v_dot2_f32_bf16 v{SS+j}, v{XD+4*j+q}, v{t1}, {c0}")
            a(f"v_dot2_f32_bf16 v{SS+3+j}, v{XD+4*j+q}, v{XD+4*j+q}, {c1}")
    a("s_nop 2")
    for mod in ("row_shr:1 row_mask:0xf", "row_shr:2 row_mask:0xf", "row_shr:4 row_mask:0xf", "row_shr:8 row_mask:0xf",
                "row_bcast:15 row_mask:0xa", "row_bcast:31 row_mask:0xc"):
        for r in range(6): a(f"v_add_f32_dpp v{SS+r}, v{SS+r}, v{SS+r} {mod} bank_mask:0xf")
    for j in range(3):
        m, q = 82 + 2*j, SS + 3 + j
        a(f"v_mul_f32 v{m}, {1.0/448.0!r}, v{SS+j}")
        a(f"v_mul_f32 v{q}, {1.0/448.0!r}, v{q}")
        a(f"v_fma_f32 v{q}, -v{m}, v{m}, v{q}")
        a(f"v_max_f32 v{q}, 0, v{q}")
        a(f"v_add_f32 v{q}, 0x3727c5ac, v{q}")
        a(f"v_rsq_f32 v{m+1}, v{q}")
    a(f"s_lshl_b32 s{S_T0}, s{S_WAVE}, 3")
    a(f"s_add_u32 s{S_T0}, s{S_T0}, {STG_L}")
    a(f"v_mov_b32 v{t0}, s{S_T0}")
    a("s_mov_b32 exec_lo, 0")
    a("s_mov_b32 exec_hi, 0x80000000")
    for j in range(3): a(f"ds_write_b64 v{t0}, {vr(82+2*j, 2)} offset:{32*j}")
    a("s_mov_b64 exec, -1")
    a("s_waitcnt lgkmcnt(0)")

def c_wave(a):
    a.label("L_cwave")
    vX, vW = 8, 12
    t0, t1, t2, t3 = 4, 5, 6, 7
    AS, BS, ACC = (64, 80), (96, 104), 128
    sWR, sWF = S_A0, S_A1
    a(f"s_lshr_b32 s{sWR}, s{S_WAVE}, 1")
    a(f"s_and_b32 s{sWF}, s{S_WAVE}, 1")
    a(f"s_lshl_b32 s{S_T1}, s{sWR}, 6")
    x_frag_addrs(a, vX, S_T1, t0, t1, t2)
    w_tr_lane_consts(a, t3, 16, t0, t1)
    a(f"s_lshl_b32 s{S_T1}, s{sWF}, 3")
    a(f"v_xor_b32 v16, s{S_T1}, v16")
    for m in range(4):
        a(f"v_xor_b32 v{t0}, {2*m}, v16")
        a(f"v_lshl_add_u32 v{vW+m}, v{t0}, 4, v{t3}")
    a(f"v_lshlrev_b32 v17, 4, v0")
    a("s_waitcnt lgkmcnt(0)")
    a.srd(R_WS, S_WS, WS_BYTES); a.srd(R_A, S_WD, WB)
    a.stamp(0)
    def reads(t):
        s = t & 1
        if t == 28:
            return [f"ds_read_b128 {vr(BS[s])}, v18",
                    f"ds_read_b128 {vr(AS[s])}, v19",
                    f"ds_read_b128 {vr(BS[s]+4)}, v18 offset:1024",
                    f"ds_read_b128 {vr(AS[s]+4)}, v19 offset:1024",
                    f"ds_read_b128 {vr(AS[s]+8)}, v19 offset:2048",
                    f"ds_read_b128 {vr(AS[s]+12)}, v19 offset:3072"]
        st, ks = t >> 2, t & 3
        so = (st % 3) * SLOT
        def wr(m): return [f"ds_read_b64_tr_b16 {vr(AS[s]+4*m+2*h, 2)}, v{vW+m} offset:{so + (16*ks + 4*h)*256}" for h in range(2)]
        return ([f"ds_read_b128 {vr(BS[s])}, v{vX+ks} offset:{so}"] + wr(0) +
                [f"ds_read_b128 {vr(BS[s]+4)}, v{vX+ks} offset:{so + 4096}"] + wr(1) + wr(2) + wr(3))
    a(f"s_lshl_b32 s{S_T1}, s{sWR}, 11")
    a(f"s_add_u32 s{S_T1}, s{S_T1}, {XEXT}")
    a(f"v_add_u32 v18, s{S_T1}, v17")
    a(f"s_lshl_b32 s{S_T1}, s{sWF}, 12")
    a(f"s_add_u32 s{S_T1}, s{S_T1}, {WEXT}")
    a(f"v_add_u32 v19, s{S_T1}, v17")
    row_stats(a)
    a("s_barrier")
    a.stamp(1)
    for l in reads(0): a(l)
    for t in range(29):
        s = t & 1
        a("s_waitcnt lgkmcnt(0)")
        if t < 28 and (t & 3) == 3:
            if a.stop == "p1": a.stamp(5 + (t >> 2))
            a("s_barrier")
        nxt = reads(t + 1) if t < 28 else []
        k = 0
        for m in range(4):
            for n in range(2):
                d = ACC + (2*m + n)*16
                cin = "0" if t == 0 else vr(d, 16)
                a(f"v_mfma_f32_32x32x16_bf16 {vr(d,16)}, {vr(AS[s]+4*m)}, {vr(BS[s]+4*n)}, {cin}")
                for _ in range(2):
                    if k < len(nxt): a(nxt[k]); k += 1
    a.stamp(2)
    a(f"v_mov_b32 v{t0}, {NONCE_L}")
    a(f"ds_read_b32 v20, v{t0}")
    vm = VM(a)
    sH = S_A2
    a(f"s_lshl_b32 s{S_T0}, s{S_RT}, 2")
    a(f"s_lshl_b32 s{S_T1}, s{sWR}, 1")
    a(f"s_add_u32 s{S_T0}, s{S_T0}, s{S_T1}")
    a(f"s_mul_i32 s{S_T0}, s{S_T0}, 112")
    a(f"s_lshl_b32 s{S_T1}, s{S_FC}, 3")
    a(f"s_add_u32 s{S_T0}, s{S_T0}, s{S_T1}")
    a(f"s_lshl_b32 s{S_T1}, s{sWF}, 2")
    a(f"s_add_u32 s{S_T0}, s{S_T0}, s{S_T1}")
    a(f"s_lshl_b32 s{sH}, s{S_T0}, 10")
    if H_OFF: a(f"s_add_u32 s{sH}, s{sH}, {H_OFF}")
    a("s_nop 1")
    for m in range(4):
        for n in range(2):
            d = ACC + (2*m + n)*16
            o = 24 + 4*((2*m + n) & 3)
            for i in range(8): a(f"v_max_f32 v{d+i}, 0, v{d+i}")
            for i in range(8): a(f"v_mul_f32 v{d+i}, v{d+i}, v{d+8+i}")
            for i in range(4): a(f"v_cvt_pk_bf16_f32 v{o+i}, v{d+2*i}, v{d+2*i+1}")
            a(f"s_add_u32 s{S_T0}, s{sH}, {(n*112 + m)*1024}")
            a(f"buffer_store_dwordx4 {vr(o)}, v17, s[{R_WS}:{R_WS+3}], s{S_T0} offen sc1")
            vm.issue("h")
    a.stamp(3)
    a("s_waitcnt lgkmcnt(0)")
    a(f"v_readfirstlane_b32 s{S_NONCE}, v20")
    sKQ = S_WAVE
    vWd, vA0, vA1, vFl = 21, 22, 23, 40
    a(f"v_lshrrev_b32 v{t0}, 3, v0")
    a(f"v_and_b32 v{t1}, 7, v0")
    a(f"v_bfe_u32 v{t2}, v0, 4, 1")
    a(f"v_lshlrev_b32 v{t2}, 2, v{t2}")
    a(f"v_xor_b32 v{t1}, v{t1}, v{t2}")
    a(f"v_mul_u32_u24 v{t0}, 896, v{t0}")
    a(f"v_lshl_add_u32 v{vWd}, v{t1}, 4, v{t0}")
    sWdS, sRing = S_A3, S_A4
    a(f"s_mul_i32 s{sWdS}, s{sKQ}, {448*896}")
    a(f"s_lshl_b32 s{S_T0}, s{S_CT}, 7")
    a(f"s_add_u32 s{sWdS}, s{sWdS}, s{S_T0}")
    a(f"s_mul_i32 s{sRing}, s{sKQ}, {RING}")
    sRot, sKW, sKH = 96, 97, 98
    a(f"s_mov_b32 s{sRot}, 0")
    a(f"s_mul_i32 s{sKW}, s{sRot}, {16*896}")
    a(f"s_lshl_b32 s{sKH}, s{sRot}, 10")
    def wd_dma(ks):
        for hh in range(2):
            a(f"s_add_u32 m0, s{sRing}, {(ks % NSLOT)*2048 + hh*1024}")
            a(f"s_add_u32 s{S_T0}, s{sWdS}, s{sKW}")
            if hh: a(f"s_add_u32 s{S_T0}, s{S_T0}, {8*896}")
            a(f"buffer_load_dwordx4 v{vWd}, s[{R_A}:{R_A+3}], s{S_T0} offen lds")
            vm.issue(("wd", ks))
        a(f"s_add_u32 s{sKW}, s{sKW}, {16*896}")
        a(f"s_cmp_eq_u32 s{sKW}, {28*16*896}")
        a(f"s_cselect_b32 s{sKW}, 0, s{sKW}")
    NPRE = 9
    if a.stop != "p1":
        for ks in range(NPRE): wd_dma(ks)
    a(f"s_lshl_b32 s{S_T0}, s{S_RT}, 1")
    a(f"s_add_u32 s{S_T0}, s{S_T0}, s{sWR}")
    a(f"s_mul_i32 s{S_T0}, s{S_T0}, 28")
    a(f"s_lshl_b32 s{S_T1}, s{S_FC}, 1")
    a(f"s_add_u32 s{S_T0}, s{S_T0}, s{S_T1}")
    a(f"s_add_u32 s{S_T0}, s{S_T0}, s{sWF}")
    a(f"s_lshl_b32 s{S_T0}, s{S_T0}, 7")
    a(f"s_add_u32 s{S_T1}, s{S_T0}, {F1_OFF}")
    vm.wait("h")
    a.signal(S_T1, t0, t1)
    a.stamp(4)
    if a.stop == "p1":
        a("s_barrier"); a.stamps_out(12); a("s_endpgm"); return
    for ks in range(NPRE, NSLOT): wd_dma(ks)
    a(f"v_bfe_u32 v{t0}, v0, 2, 2")
    a(f"v_lshrrev_b32 v{t1}, 5, v0")
    a(f"v_lshl_add_u32 v{t1}, v{t1}, 2, v{t0}")
    a(f"v_lshlrev_b32 v{t1}, 7, v{t1}")
    a(f"v_and_b32 v{t2}, 1, v0")
    a(f"v_lshl_add_u32 v{t1}, v{t2}, 3, v{t1}")
    a(f"v_add_u32 v{t1}, s{sRing}, v{t1}")
    a(f"v_bfe_u32 v{t2}, v0, 4, 1")
    a(f"v_bfe_u32 v{t3}, v0, 1, 1")
    a(f"v_lshl_add_u32 v{t2}, v{t2}, 1, v{t3}")
    a(f"v_bfe_u32 v{t3}, v0, 3, 1")
    a(f"v_lshl_add_u32 v{t2}, v{t3}, 2, v{t2}")
    a(f"v_lshl_add_u32 v{vA0}, v{t2}, 4, v{t1}")
    a(f"v_xor_b32 v{t2}, 4, v{t2}")
    a(f"v_lshl_add_u32 v{vA1}, v{t2}, 4, v{t1}")
    a(f"s_mul_i32 s{S_T0}, s{S_RB}, 28")
    a(f"s_mul_i32 s{S_T1}, s{sKQ}, 7")
    a(f"s_add_u32 s{S_T0}, s{S_T0}, s{S_T1}")
    a(f"s_lshl_b32 s{S_T0}, s{S_T0}, 7")
    a(f"s_add_u32 s{S_T0}, s{S_T0}, {F1_OFF}")
    a(f"v_lshlrev_b32 v{vFl}, 7, v0")
    a(f"v_add_u32 v{vFl}, s{S_T0}, v{vFl}")
    a.poll(vFl, t0, 7)
    vm.reset()
    a.stamp(5)
    sHr = S_A2
    a(f"s_mul_i32 s{sHr}, s{S_RB}, {2*112}")
    a(f"s_mul_i32 s{S_T0}, s{sKQ}, 28")
    a(f"s_add_u32 s{sHr}, s{sHr}, s{S_T0}")
    a(f"s_lshl_b32 s{sHr}, s{sHr}, 10")
    if H_OFF: a(f"s_add_u32 s{sHr}, s{sHr}, {H_OFF}")
    HB, A3, ACC3 = 96, (80, 88), 192
    def h_load(ks):
        for n in range(2):
            a(f"s_add_u32 s{S_T0}, s{sHr}, s{sKH}")
            if n: a(f"s_add_u32 s{S_T0}, s{S_T0}, {112*1024}")
            a(f"buffer_load_dwordx4 {vr(HB + 8*(ks % HD) + 4*n)}, v17, s[{R_WS}:{R_WS+3}], s{S_T0} offen sc1")
            vm.issue(("h", ks))
        a(f"s_add_u32 s{sKH}, s{sKH}, 1024")
        a(f"s_cmp_eq_u32 s{sKH}, {28*1024}")
        a(f"s_cselect_b32 s{sKH}, 0, s{sKH}")
    def tr3(ks):
        s = ks & 1; so = (ks % NSLOT)*2048
        return [f"ds_read_b64_tr_b16 {vr(A3[s]+4*m+2*h, 2)}, v{(vA0, vA1)[m]} offset:{so + 1024*h}" for m in range(2) for h in range(2)]
    for ks in range(HD): h_load(ks)
    for l in tr3(0): a(l)
    for t in range(28):
        s = t & 1
        if vm.has(("h", t)): vm.wait(("h", t))
        if t + 1 < 28 and vm.has(("wd", t + 1)): vm.wait(("wd", t + 1))
        a("s_waitcnt lgkmcnt(0)")
        nxt = tr3(t + 1) if t + 1 < 28 else []
        k = 0
        for m in range(2):
            for n in range(2):
                d = ACC3 + (2*m + n)*16
                cin = "0" if t == 0 else vr(d, 16)
                a(f"v_mfma_f32_32x32x16_bf16 {vr(d,16)}, {vr(A3[s]+4*m)}, {vr(HB + 8*(t % HD) + 4*n)}, {cin}")
                if k < len(nxt): a(nxt[k]); k += 1
        if t + NSLOT < 28 and "nowd" not in a.exp: wd_dma(t + NSLOT)
        if t + HD < 28: h_load(t + HD)
        if "p3st" in a.exp and t in (0, 6, 13, 20): a.stamp(8 + (0, 6, 13, 20).index(t))
    a.stamp(6)
    a(f"v_and_b32 v{t0}, 31, v0")
    a(f"v_mul_u32_u24 v{t0}, {PROW}, v{t0}")
    a(f"v_lshrrev_b32 v{t1}, 5, v0")
    a(f"v_lshl_add_u32 v{t0}, v{t1}, 4, v{t0}")
    a(f"v_add_u32 v{t0}, s{sRing}, v{t0}")
    a("s_nop 7")
    for m in range(2):
        for n in range(2):
            d = ACC3 + (2*m + n)*16
            for j in range(4):
                a(f"ds_write_b128 v{t0}, {vr(d+4*j)} offset:{n*32*PROW + m*128 + j*32}")
    a("s_waitcnt lgkmcnt(0)")
    a("s_barrier")
    a.stamp(7)
    a.label("L_cout")
    a.stamps_out(12 if "p3st" in a.exp else 8)
    a("s_endpgm")

def aux(a):
    a.label("L_prep")
    t0, t1, t2, t3 = 4, 5, 6, 7
    sP = 2
    CSL = 0
    vCo = 14
    a(f"v_lshrrev_b32 v{t0}, 4, v0")
    a(f"v_mul_u32_u24 v{t0}, 3584, v{t0}")
    a(f"v_and_b32 v{t1}, 15, v0")
    a(f"v_lshl_add_u32 v{vCo}, v{t1}, 4, v{t0}")
    a(f"v_lshlrev_b32 v15, 4, v0")
    a("s_waitcnt lgkmcnt(0)")
    a.srd(R_WS, S_WS, WS_BYTES); a.srd(R_A, S_SK, XB); a.srd(R_B, S_WD, WB)
    a.stamp(0)
    CD, CA = 192, 248
    sC = S_A1
    a(f"s_cmp_ge_u32 s{sP}, 28")
    a("s_cbranch_scc1 L_aux_nocs")
    a(f"s_cmp_ge_u32 s{sP}, 14")
    a("s_cbranch_scc1 L_aux_up")
    a.srd(R_E, S_WG, WB)
    a(f"s_mov_b32 s{sC}, s{sP}")
    a("s_branch L_aux_cs")
    a.label("L_aux_up")
    a.srd(R_E, S_WU, WB)
    a(f"s_sub_u32 s{sC}, s{sP}, 14")
    a.label("L_aux_cs")
    a(f"s_mul_i32 s{S_T0}, s{S_WAVE}, {4*3584}")
    a(f"s_lshl_b32 s{S_T1}, s{sC}, 8")
    a(f"s_add_u32 s{S_T0}, s{S_T0}, s{S_T1}")
    for i in range(14):
        a(f"buffer_load_dwordx4 {vr(CD+4*i)}, v{vCo}, s[{R_E}:{R_E+3}], s{S_T0} offen")
        if i < 13: a(f"s_add_u32 s{S_T0}, s{S_T0}, {32*3584}")
    sLo, sHi = S_A2, S_A3
    a(f"s_mov_b32 s{sLo}, 0x00003f80")
    a(f"s_mov_b32 s{sHi}, 0x3f800000")
    for i in range(14):
        a(f"s_waitcnt vmcnt({13 - i})")
        for q in range(4):
            c0 = "0" if i == 0 else f"v{CA+2*q}"; c1 = "0" if i == 0 else f"v{CA+2*q+1}"
            a(f"v_dot2_f32_bf16 v{CA+2*q}, v{CD+4*i+q}, s{sLo}, {c0}")
            a(f"v_dot2_f32_bf16 v{CA+2*q+1}, v{CD+4*i+q}, s{sHi}, {c1}")
    a(f"v_lshrrev_b32 v{t0}, 4, v0")
    a(f"s_lshl_b32 s{S_T0}, s{S_WAVE}, 2")
    a(f"v_add_u32 v{t0}, s{S_T0}, v{t0}")
    a(f"v_lshlrev_b32 v{t0}, 9, v{t0}")
    a(f"v_and_b32 v{t1}, 15, v0")
    a(f"v_lshl_add_u32 v{t0}, v{t1}, 5, v{t0}")
    if CSL: a(f"v_add_u32 v{t0}, {CSL}, v{t0}")
    a(f"ds_write_b128 v{t0}, {vr(CA)}")
    a(f"ds_write_b128 v{t0}, {vr(CA+4)} offset:16")
    a("s_waitcnt lgkmcnt(0)")
    a("s_barrier")
    a(f"s_cmp_lg_u32 s{S_WAVE}, 7")
    a("s_cbranch_scc1 L_aux_touch")
    a(f"v_lshlrev_b32 v{t0}, 2, v0")
    if CSL: a(f"v_add_u32 v{t0}, {CSL}, v{t0}")
    for hh in range(2):
        for i in range(32):
            a(f"ds_read_b32 v{CD-64+32*hh+i}, v{t0} offset:{512*i + 256*hh}")
            if i % 8 == 7: a("s_waitcnt lgkmcnt(7)")
    a.get_nonce_spin(t1, t2)
    a("s_waitcnt lgkmcnt(0)")
    for hh in range(2):
        b = CD - 64 + 32*hh
        for st in (16, 8, 4, 2, 1):
            for i in range(st): a(f"v_add_f32 v{b+i}, v{b+i}, v{b+i+st}")
        a(f"v_mov_b32 v{b+1}, s{S_NONCE}")
    a(f"s_cmp_ge_u32 s{sP}, 14")
    a(f"s_cselect_b32 s{S_T0}, 1792, 0")
    a(f"s_lshl_b32 s{S_T1}, s{sC}, 7")
    a(f"s_add_u32 s{S_T0}, s{S_T0}, s{S_T1}")
    a(f"s_lshl_b32 s{S_T0}, s{S_T0}, 3")
    a(f"s_add_u32 s{S_T0}, s{S_T0}, {CS_OFF}")
    a(f"v_lshlrev_b32 v{t0}, 3, v0")
    a(f"buffer_store_dwordx2 {vr(CD-64, 2)}, v{t0}, s[{R_WS}:{R_WS+3}], s{S_T0} offen sc1")
    a(f"buffer_store_dwordx2 {vr(CD-32, 2)}, v{t0}, s[{R_WS}:{R_WS+3}], s{S_T0} offen offset:512 sc1")
    a("s_branch L_aux_touch")
    a.label("L_aux_nocs")
    a(f"s_cmp_lg_u32 s{sP}, 28")
    a("s_cbranch_scc1 L_aux_touch")
    a(f"s_cmp_lg_u32 s{S_WAVE}, 7")
    a("s_cbranch_scc1 L_aux_touch")
    a(f"v_mov_b32 v{t1}, {EP_OFF}")
    a(f"buffer_load_dword v{t0}, v{t1}, s[{R_WS}:{R_WS+3}], 0 offen sc1")
    a("s_waitcnt vmcnt(0)")
    a(f"v_add_u32 v{t0}, 1, v{t0}")
    a(f"v_max_u32 v{t0}, 1, v{t0}")
    a(f"v_mov_b32 v{t2}, 0")
    a("s_mov_b64 exec, 1")
    a(f"global_store_dword v{t2}, v{t0}, s[{S_DBG}:{S_DBG+1}] sc1")
    a(f"buffer_store_dword v{t0}, v{t1}, s[{R_WS}:{R_WS+3}], 0 offen sc1")
    a("s_mov_b64 exec, -1")
    a.label("L_aux_touch")
    a.stamp(1)
    a(f"s_mul_i32 s{S_T0}, s{sP}, 57344")
    a(f"s_lshl_b32 s{S_T1}, s{S_WAVE}, 10")
    a(f"s_add_u32 s{S_T0}, s{S_T0}, s{S_T1}")
    for i in range(7):
        a(f"buffer_load_dwordx4 {vr(16+4*i)}, v15, s[{R_A}:{R_A+3}], s{S_T0} offen")
        a(f"s_add_u32 s{S_T0}, s{S_T0}, 8192")
    a(f"s_mul_i32 s{S_T0}, s{sP}, 50176")
    a(f"s_add_u32 s{S_T0}, s{S_T0}, s{S_T1}")
    for i in range(7):
        a(f"buffer_load_dwordx4 {vr(48+4*i)}, v15, s[{R_B}:{R_B+3}], s{S_T0} offen")
        a(f"s_add_u32 s{S_T0}, s{S_T0}, 8192")
    a.stamp(2)
    a("s_waitcnt vmcnt(0)")
    a.stamp(3)
    a.stamps_out(4)
    a("s_endpgm")

HEADER = open(os.path.join(os.path.dirname(os.path.abspath(__file__)), "header.txt")).read()

def build(prof=False, spin=1 << 20, stop=None, exp=()):
    a = Gen(prof=prof, spin=spin, stop=stop, exp=exp)
    entry(a)
    h_wave(a)
    c_wave(a)
    aux(a)
    a.label("L_end")
    a("s_endpgm")
    txt = HEADER + f"; @launch grid=(256,1,1) block=(512,1,1) lds={LDS_BYTES}\n"
    txt += f'.amdgcn_target "amdgcn-amd-amdhsa--gfx950"\n.text\n.globl {NAME}\n.p2align 8\n.type {NAME},@function\n{NAME}:\n'
    body = [l for l in a.lines if l is not None]
    txt += "\n".join(("    " + l) if not l.endswith(":") else l for l in body) + "\n"
    txt += (f'.section .rodata,"a"\n.p2align 6\n.amdhsa_kernel {NAME}\n'
            "  .amdhsa_next_free_vgpr 256\n  .amdhsa_next_free_sgpr 102\n  .amdhsa_accum_offset 256\n"
            "  .amdhsa_group_segment_fixed_size 0\n  .amdhsa_kernarg_size 104\n  .amdhsa_user_sgpr_count 2\n"
            "  .amdhsa_user_sgpr_kernarg_segment_ptr 1\n  .amdhsa_system_sgpr_workgroup_id_x 1\n"
            "  .amdhsa_float_denorm_mode_32 3\n"
            ".end_amdhsa_kernel\n")
    return txt

if __name__ == "__main__":
    import argparse
    ap = argparse.ArgumentParser()
    ap.add_argument("-o", default="parallel_sum__ssm_conv_h3__glu_gated_reglu__prompt.s")
    ap.add_argument("--prof", nargs="?", const="rt", default=None)
    ap.add_argument("--spin", type=int, default=1 << 20)
    ap.add_argument("--stop", default=None)
    ap.add_argument("--exp", default="")
    x = ap.parse_args()
    open(x.o, "w").write(build(x.prof, x.spin, x.stop, [e for e in x.exp.split(',') if e]))
    print("wrote", x.o)
```

```python
import sys, os
sys.path.insert(0, os.path.dirname(os.path.abspath(__file__)))
from asmlib import Asm

NAME = "parallel_sum__ssm_conv_h3__glu_gated_reglu__prompt_kernel"
S, D, F = 2048, 448, 1792
XB = S * D * 2
WB = D * F * 2

H_OFF  = 0x000000
UT_OFF = 0x700000
YT_OFF = 0x8C0000
F0_OFF = 0xA80000
F1_OFF = 0xAA0000
F2_OFF = 0xAC0000
EP_OFF = 0xAE0000
SG_OFF = 0xAE8000
CS_OFF = 0xAF0000
PROF_OFF = 0xB00000
WS_BYTES = 0x10000000

XR, GR, UR = 0, 49152, 98304
SLOT = 16384
CV = 122880
KCH = 8320
UB0 = CV + 2 * KCH
UCH = 4608
EXT = 149504
XEXT, WEXT = EXT, EXT + 4096
STATS_L = 161792
NONCE_L = 162816
STG_L = 162832
CNT_L = 162944
RING = 30720
NSLOT = 15
PROW = 272
LDS_BYTES = 163840
HD = 12

S_X, S_K, S_V, S_SH, S_SK, S_SD, S_WG, S_WU, S_WD, S_OUT, S_DBG, S_WS = 4, 6, 8, 10, 12, 14, 18, 20, 22, 24, 26, 28
S_WAVE, S_NONCE = 30, 31
R_A, R_B, R_C, R_WS, R_E = 32, 36, 40, 44, 48
S_RT, S_FC, S_PAR, S_CT, S_RB, S_M = 52, 53, 54, 55, 56, 57
S_T0, S_T1, S_T2, S_T3 = 58, 59, 60, 61
S_A0, S_A1, S_A2, S_A3, S_A4, S_A5 = 62, 63, 64, 65, 66, 67
S_BND = 68
S_EX = 70
S_ST = 72

class VM:
    def __init__(self, a): self.a, self.q = a, []
    def issue(self, tag): self.q.append(tag)
    def wait(self, tag):
        idx = max(i for i, t in enumerate(self.q) if t == tag)
        n = len(self.q) - 1 - idx
        assert n <= 63, (tag, n)
        self.a(f"s_waitcnt vmcnt({n})")
        self.q = self.q[idx + 1:]
    def has(self, tag): return tag in self.q
    def drain(self):
        self.a("s_waitcnt vmcnt(0)"); self.q = []
    def reset(self): self.q = []

class Gen(Asm):
    def __init__(self, prof=False, spin=1 << 20, stop=None, exp=()):
        super().__init__()
        self.exp = set(exp)
        self.prof, self.spin, self.stop = prof, spin, stop
        self.nst = 0
    def srd(self, dst, base, nbytes):
        self(f"s_mov_b32 s{dst}, s{base}")
        self(f"s_and_b32 s{dst+1}, s{base+1}, 0xffff")
        self(f"s_mov_b32 s{dst+2}, {nbytes}")
        self(f"s_mov_b32 s{dst+3}, 0x20000")
    def stamp(self, i):
        if self.prof:
            self(f"{'s_memtime' if self.prof == 'cyc' else 's_memrealtime'} s[{S_ST+2*i}:{S_ST+2*i+1}]")
            self("s_waitcnt lgkmcnt(0)")
    def stamps_out(self, n):
        if not self.prof: return
        self("s_waitcnt vmcnt(0) lgkmcnt(0)")
        self("s_mov_b64 exec, 1")
        self(f"s_lshl_b32 s{S_T0}, s2, 3")
        self(f"s_add_u32 s{S_T0}, s{S_T0}, s{S_WAVE}")
        self(f"s_lshl_b32 s{S_T0}, s{S_T0}, 6")
        self(f"s_add_u32 s{S_T0}, s{S_T0}, {PROF_OFF}")
        self("v_mov_b32 v1, 0")
        for i in range(n):
            self(f"v_mov_b32 v2, s{S_ST+2*i}")
            self(f"buffer_store_dword v2, v1, s[{R_WS}:{R_WS+3}], s{S_T0} offen offset:{4*i}")
            self("s_nop 0")
        self("s_waitcnt vmcnt(0)")
    def poll(self, vaddr, vtmp, nlanes, sleep=1):
        L, Dn = self.uid("L_poll"), self.uid("L_polled")
        if nlanes < 64: self(f"s_mov_b64 exec, {hex((1 << nlanes) - 1)}")
        self(f"s_mov_b32 s{S_BND}, {self.spin}")
        self.label(L)
        self(f"buffer_load_dword v{vtmp}, v{vaddr}, s[{R_WS}:{R_WS+3}], 0 offen sc1")
        self("s_waitcnt vmcnt(0)")
        self(f"v_cmp_ne_u32 vcc, s{S_NONCE}, v{vtmp}")
        self("s_nop 1")
        self(f"s_cbranch_vccz {Dn}")
        self(f"s_sleep {sleep}")
        self(f"s_sub_u32 s{S_BND}, s{S_BND}, 1")
        self(f"s_cmp_lg_u32 s{S_BND}, 0")
        self(f"s_cbranch_scc1 {L}")
        self.label(Dn)
        if nlanes < 64: self("s_mov_b64 exec, -1")
    def signal(self, soff_reg, vtmp, vzero):
        self(f"v_mov_b32 v{vtmp}, s{S_NONCE}")
        self(f"v_mov_b32 v{vzero}, 0")
        self("s_mov_b64 exec, 1")
        self(f"buffer_store_dword v{vtmp}, v{vzero}, s[{R_WS}:{R_WS+3}], s{soff_reg} offen sc1")
        self("s_mov_b64 exec, -1")
    def get_nonce_spin(self, vtmp, vzero):
        L, Dn = self.uid("L_non"), self.uid("L_nond")
        self(f"s_mov_b32 s{S_BND}, {self.spin}")
        self(f"v_mov_b32 v{vzero}, 0")
        self.label(L)
        self(f"global_load_dword v{vtmp}, v{vzero}, s[{S_DBG}:{S_DBG+1}] sc1")
        self("s_waitcnt vmcnt(0)")
        self(f"v_readfirstlane_b32 s{S_NONCE}, v{vtmp}")
        self("s_nop 3")
        self(f"s_cmp_lg_u32 s{S_NONCE}, 0")
        self(f"s_cbranch_scc1 {Dn}")
        self("s_sleep 1")
        self(f"s_sub_u32 s{S_BND}, s{S_BND}, 1")
        self(f"s_cmp_lg_u32 s{S_BND}, 0")
        self(f"s_cbranch_scc1 {L}")
        self.label(Dn)

def vr(b, n=4): return f"v[{b}:{b+n-1}]"

def entry(a):
    a("s_load_dwordx16 s[4:19], s[0:1], 0")
    a("s_load_dwordx8 s[20:27], s[0:1], 64")
    a("s_load_dwordx2 s[28:29], s[0:1], 96")
    a("s_cmp_ge_u32 s2, 256")
    a("s_cbranch_scc1 L_end")
    a("v_lshrrev_b32 v1, 6, v0")
    a("v_and_b32 v0, 63, v0")
    a(f"v_readfirstlane_b32 s{S_WAVE}, v1")
    if "span" in a.exp:
        a("s_memrealtime s[88:89]")
        a("s_waitcnt lgkmcnt(0)")
        a("s_not_b32 s88, s88")
        a("v_mov_b32 v2, s88"); a("v_mov_b32 v3, 8")
        a("s_mov_b64 exec, 1")
        a(f"global_atomic_umax v3, v2, s[{S_DBG}:{S_DBG+1}]")
        a("s_mov_b64 exec, -1")
        a("s_waitcnt vmcnt(0)")
    a("s_cmp_lt_u32 s2, 32")
    a("s_cbranch_scc1 L_prep")
    a(f"s_sub_u32 s{S_M}, s2, 32")
    a(f"s_and_b32 s{S_T0}, s{S_M}, 7")
    a(f"s_lshr_b32 s{S_T1}, s{S_M}, 3")
    a(f"s_mul_i32 s{S_T2}, s{S_T1}, 37")
    a(f"s_lshr_b32 s{S_T2}, s{S_T2}, 8")
    a(f"s_mul_i32 s{S_T3}, s{S_T2}, 7")
    a(f"s_sub_u32 s{S_CT}, s{S_T1}, s{S_T3}")
    a(f"s_and_b32 s{S_PAR}, s{S_T0}, 1")
    a(f"s_lshr_b32 s{S_T0}, s{S_T0}, 1")
    a(f"s_lshl_b32 s{S_T0}, s{S_T0}, 2")
    a(f"s_add_u32 s{S_RT}, s{S_T0}, s{S_T2}")
    a(f"s_mul_i32 s{S_T0}, s{S_PAR}, 7")
    a(f"s_add_u32 s{S_FC}, s{S_T0}, s{S_CT}")
    a(f"s_lshl_b32 s{S_RB}, s{S_RT}, 1")
    a(f"s_add_u32 s{S_RB}, s{S_RB}, s{S_PAR}")
    a(f"s_cmp_lt_u32 s{S_WAVE}, 4")
    a("s_cbranch_scc1 L_cwave")

def w_tr_lane_consts(a, vbase, vt1, t0, t1):
    a(f"v_bfe_u32 v{t0}, v0, 2, 2")
    a(f"v_bfe_u32 v{t1}, v0, 1, 1")
    a(f"v_lshlrev_b32 v{vt1}, 1, v{t0}")
    a(f"v_xor_b32 v{vt1}, v{vt1}, v{t1}")
    a(f"v_bfe_u32 v{t1}, v0, 4, 1")
    a(f"v_lshlrev_b32 v{vbase}, 3, v{t1}")
    a(f"v_xor_b32 v{vt1}, v{vt1}, v{vbase}")
    a(f"v_mul_u32_u24 v{vbase}, {UR-GR}, v{t1}")
    a(f"v_lshrrev_b32 v{t1}, 5, v0")
    a(f"v_lshl_add_u32 v{t0}, v{t1}, 3, v{t0}")
    a(f"v_lshl_add_u32 v{vbase}, v{t0}, 8, v{vbase}")
    a(f"v_and_b32 v{t0}, 1, v0")
    a(f"v_lshl_add_u32 v{vbase}, v{t0}, 3, v{vbase}")
    a(f"v_add_u32 v{vbase}, {GR}, v{vbase}")

def x_frag_addrs(a, vdst, srowbase, t0, t1, t2):
    a(f"v_and_b32 v{t0}, 31, v0")
    a(f"v_bfe_u32 v{t1}, v0, 1, 3")
    a(f"v_add_u32 v{t0}, s{srowbase}, v{t0}")
    a(f"v_lshlrev_b32 v{t0}, 7, v{t0}")
    a(f"v_lshrrev_b32 v{t2}, 5, v0")
    a(f"v_xor_b32 v{t1}, v{t1}, v{t2}")
    for ks in range(4):
        a(f"v_xor_b32 v{t2}, {2*ks}, v{t1}")
        a(f"v_lshl_add_u32 v{vdst+ks}, v{t2}, 4, v{t0}")

def h_wave(a):
    vm = VM(a)
    vXi, vGi, vUi = 4, 8, 12
    vnon, vCA, vSA, vUo, vF0a, vF0d = 16, 17, 19, 20, 22, 23
    vCS, vST = 24, 28
    vKA_, vKB_ = 32, 48
    t0, t1, t2, t3 = 64, 65, 66, 67
    vh, vl, e0 = 68, 69, 72
    w = S_A0
    a(f"s_sub_u32 s{w}, s{S_WAVE}, 4")
    if "noprio" not in a.exp: a("s_setprio 2")
    a(f"v_lshrrev_b32 v{t0}, 3, v0")
    a(f"v_mul_u32_u24 v{t0}, 896, v{t0}")
    a(f"v_lshrrev_b32 v{t1}, 4, v0")
    a(f"v_and_b32 v{t2}, 7, v0")
    a(f"v_xor_b32 v{t2}, v{t2}, v{t1}")
    a(f"v_lshl_add_u32 v{vXi}, v{t2}, 4, v{t0}")
    a(f"v_xor_b32 v{t2}, 4, v{t2}")
    a(f"v_lshl_add_u32 v{vXi+1}, v{t2}, 4, v{t0}")
    a(f"v_add_u32 v{vXi+1}, {8*896}, v{vXi+1}")
    a(f"v_add_u32 v{vXi+2}, {16*896}, v{vXi}")
    a(f"v_add_u32 v{vXi+3}, {16*896}, v{vXi+1}")
    a(f"v_mul_u32_u24 v{t0}, 3584, v{t1}")
    a(f"v_and_b32 v{t2}, 15, v0")
    a(f"v_lshlrev_b32 v{t3}, 1, v{t1}")
    a(f"v_xor_b32 v{t2}, v{t2}, v{t3}")
    a(f"v_lshl_add_u32 v{vGi}, v{t2}, 4, v{t0}")
    a(f"v_xor_b32 v{t2}, 8, v{t2}")
    a(f"v_lshl_add_u32 v{vUi}, v{t2}, 4, v{t0}")
    for i in range(1, 4):
        a(f"v_add_u32 v{vGi+i}, {i*4*3584}, v{vGi}")
        a(f"v_add_u32 v{vUi+i}, {i*4*3584}, v{vUi}")
    sXs, sXd, sWs, sGd, sUd = S_A1, S_A2, S_A3, S_A4, S_A5
    a(f"s_lshl_b32 s{S_T0}, s{S_RT}, 7")
    a(f"s_lshl_b32 s{S_T1}, s{w}, 5")
    a(f"s_add_u32 s{S_T0}, s{S_T0}, s{S_T1}")
    a(f"s_mul_i32 s{sXs}, s{S_T0}, 896")
    a(f"s_lshl_b32 s{sXd}, s{w}, 12")
    a(f"s_mul_i32 s{S_T0}, s{w}, {16*3584}")
    a(f"s_lshl_b32 s{S_T1}, s{S_FC}, 8")
    a(f"s_add_u32 s{sWs}, s{S_T0}, s{S_T1}")
    a(f"s_add_u32 s{sGd}, s{sXd}, {GR}")
    a(f"s_add_u32 s{sUd}, s{sXd}, {UR}")
    a("s_waitcnt lgkmcnt(0)")
    a.srd(R_A, S_X, XB); a.srd(R_B, S_WG, WB); a.srd(R_C, S_WU, WB)
    def issue_stage(st, fill=()):
        slot = st % 3
        fill = list(fill)
        G = [(sXd, vXi + i, R_A, S_T0, i) for i in range(4)] + [(sGd, vGi + i, R_B, S_T1, i) for i in range(4)] + [(sUd, vUi + i, R_C, S_T1, i) for i in range(4)]
        a(f"s_add_u32 s{S_T0}, s{sXs}, {st*128}")
        a(f"s_add_u32 s{S_T1}, s{sWs}, {64*st*3584}")
        per = -(-len(fill) // len(G)) if fill else 0
        def emit(l):
            if callable(l): l()
            else: a(l)
        for (dst, voff, srd, so, i) in G:
            a(f"s_add_u32 m0, s{dst}, {slot*SLOT + i*1024}")
            chunk = fill[:per]; fill = fill[per:]
            if chunk and not callable(chunk[0]) and chunk[0].startswith("v_"):
                emit(chunk[0]); chunk = chunk[1:]
            else: a("s_nop 0")
            a(f"buffer_load_dwordx4 v{voff}, s[{srd}:{srd+3}], s{so} offen lds")
            vm.issue(("st", st))
            for l in chunk: emit(l)
        assert not fill
    for st in range(2): issue_stage(st)
    a.stamp(0)
    a.srd(R_WS, S_WS, WS_BYTES)
    a(f"v_mov_b32 v{t0}, {CNT_L}")
    a(f"v_mov_b32 v{t2}, 0")
    a(f"v_mov_b32 v{t3}, 0")
    a(f"ds_write_b64 v{t0}, {vr(t2, 2)}")
    a(f"v_bfe_u32 v{t0}, v0, 4, 1")
    a(f"v_mul_u32_u24 v{t0}, 1792, v{t0}")
    a(f"v_and_b32 v{t1}, 15, v0")
    a(f"v_add_u32 v{t0}, v{t0}, v{t1}")
    a(f"s_lshl_b32 s{S_T1}, s{S_FC}, 7")
    a(f"s_lshl_b32 s{S_T2}, s{w}, 5")
    a(f"s_add_u32 s{S_T1}, s{S_T1}, s{S_T2}")
    a(f"v_add_u32 v{t0}, s{S_T1}, v{t0}")
    a(f"v_lshlrev_b32 v{t0}, 3, v{t0}")
    a(f"v_add_u32 v{vCA}, {CS_OFF}, v{t0}")
    a(f"v_add_u32 v{vCA+1}, 128, v{vCA}")
    a(f"s_lshl_b32 s{S_T1}, s{S_RT}, 7")
    a(f"s_add_u32 s{S_T1}, s{S_T1}, s{S_T2}")
    a(f"v_and_b32 v{t0}, 31, v0")
    a(f"v_add_u32 v{t0}, s{S_T1}, v{t0}")
    a(f"v_lshlrev_b32 v{t0}, 4, v{t0}")
    a(f"v_add_u32 v{vSA}, {SG_OFF}, v{t0}")
    sTB, sCG = S_T2, S_T3
    a(f"s_mul_i32 s{sTB}, s{S_M}, 9363")
    a(f"s_lshr_b32 s{sTB}, s{sTB}, 16")
    a(f"s_mul_i32 s{S_T1}, s{sTB}, 7")
    a(f"s_sub_u32 s{sCG}, s{S_M}, s{S_T1}")
    sF0 = 69
    a(f"s_lshl_b32 s{S_T1}, s{sCG}, 2")
    a(f"s_add_u32 s{S_T1}, s{S_T1}, s{w}")
    a(f"s_lshl_b32 s{S_T1}, s{S_T1}, 5")
    a(f"s_add_u32 s{S_T1}, s{S_T1}, s{sTB}")
    a(f"s_lshl_b32 s{S_T1}, s{S_T1}, 2")
    a(f"s_add_u32 s{sF0}, s{S_T1}, {F0_OFF}")
    a(f"s_lshl_b32 s{S_T1}, s{sCG}, 6")
    a(f"s_lshl_b32 s{S_T0}, s{w}, 4")
    a(f"s_add_u32 s{S_T1}, s{S_T1}, s{S_T0}")
    a(f"v_lshrrev_b32 v{t0}, 3, v0")
    a(f"v_add_u32 v{t0}, s{S_T1}, v{t0}")
    a(f"v_lshlrev_b32 v{t0}, 12, v{t0}")
    a(f"s_lshl_b32 s{S_T1}, s{sTB}, 7")
    a(f"s_add_u32 s{S_T1}, s{S_T1}, {UT_OFF}")
    a(f"v_add_u32 v{t0}, s{S_T1}, v{t0}")
    a(f"v_and_b32 v{t1}, 7, v0")
    a(f"s_lshl_b32 s{S_T1}, s{w}, 1")
    a(f"v_xor_b32 v{t1}, s{S_T1}, v{t1}")
    a(f"v_lshl_add_u32 v{vUo}, v{t1}, 4, v{t0}")
    a(f"v_xor_b32 v{t1}, 1, v{t1}")
    a(f"v_lshl_add_u32 v{vUo+1}, v{t1}, 4, v{t0}")
    a(f"v_add_u32 v{vUo+1}, {8*4096}, v{vUo+1}")
    KR, VR, WR, KF, WF, AC = 120, 140, 148, 164, 174, 182
    vKo, vKv, vKw, vT = 184, 187, 188, 189
    a(f"s_lshl_b32 s{S_T0}, s{sTB}, 6")
    a(f"s_lshl_b32 s{S_T1}, s{w}, 4")
    a(f"s_add_u32 s{S_T0}, s{S_T0}, s{S_T1}")
    a(f"v_lshrrev_b32 v{t0}, 3, v0")
    a(f"v_lshl_add_u32 v{t1}, v{t0}, 1, s{S_T0}")
    a(f"v_and_b32 v{t2}, 7, v0")
    a(f"s_lshl_b32 s{S_T1}, s{sCG}, 7")
    a(f"v_lshl_add_u32 v{t3}, v{t2}, 4, s{S_T1}")
    a(f"v_mov_b32 v{vT}, 896")
    a(f"v_mad_u32_u24 v{vKv}, v{t1}, v{vT}, v{t3}")
    for i in range(3):
        a(f"v_cmp_gt_u32 vcc, {3-i}, v{t1}")
        a(f"v_subrev_u32 v{vKo+i}, {(3-i)*896}, v{vKv}")
        a(f"v_mov_b32 v{vT}, 0x40000000")
        a(f"v_cndmask_b32 v{vKo+i}, v{vKo+i}, v{vT}, vcc")
    a(f"s_lshl_b32 s{S_T1}, s{sCG}, 9")
    a(f"v_lshl_add_u32 v{vKw}, v{t2}, 6, s{S_T1}")
    a(f"v_lshrrev_b32 v{t1}, 2, v{t0}")
    a(f"s_lshl_b32 s{S_T1}, s{w}, 1")
    a(f"v_add_u32 v{t1}, s{S_T1}, v{t1}")
    a(f"v_xor_b32 v{t1}, v{t1}, v{t2}")
    a(f"v_lshlrev_b32 v{t1}, 4, v{t1}")
    a(f"v_lshl_add_u32 v{t1}, v{t2}, 10, v{t1}")
    a(f"v_and_b32 v{t0}, 3, v{t0}")
    a(f"v_sub_u32 v{t0}, 3, v{t0}")
    a(f"v_lshl_add_u32 v{t1}, v{t0}, 2, v{t1}")
    a(f"v_add_u32 v{vT}, {EXT}, v{t1}")
    a.srd(92, S_K, XB); a.srd(96, S_V, XB); a.srd(R_E, S_SH, D*4*2)
    sCH, sRH = 100, 101
    a(f"s_lshr_b32 s{S_T1}, s{w}, 1")
    a(f"s_lshl_b32 s{sCH}, s{S_M}, 1")
    a(f"s_add_u32 s{sCH}, s{sCH}, s{S_T1}")
    a(f"s_and_b32 s{sRH}, s{w}, 1")
    a(f"s_lshr_b32 s{S_T1}, s{sCH}, 4")
    a(f"s_lshl_b32 s{S_T1}, s{S_T1}, 7")
    a(f"s_add_u32 s{S_T1}, s{S_T1}, {F0_OFF}")
    a(f"v_and_b32 v{t0}, 31, v0")
    a(f"v_lshlrev_b32 v{t0}, 2, v{t0}")
    a(f"v_add_u32 v{vF0a}, s{S_T1}, v{t0}")
    def kv_loads():
        for i in range(3):
            a(f"buffer_load_dwordx4 {vr(KR+4*i)}, v{vKo+i}, s[92:95], 0 offen"); vm.issue("kvl")
        for i in range(2):
            a(f"buffer_load_dwordx4 {vr(KR+12+4*i)}, v{vKv}, s[92:95], 0 offen offset:{896*i}"); vm.issue("kvl")
        for i in range(2):
            a(f"buffer_load_dwordx4 {vr(VR+4*i)}, v{vKv}, s[96:99], 0 offen offset:{896*i}"); vm.issue("kvl")
        for i in range(4):
            a(f"buffer_load_dwordx4 {vr(WR+4*i)}, v{vKw}, s[{R_E}:{R_E+3}], 0 offen offset:{16*i}"); vm.issue("kvl")
        a.srd(R_E, S_SK, XB)
    def kv_valu(j):
        L = []
        for c in range(2):
            ch = 2*j + c
            L += [f"v_lshlrev_b32 v{WF+4*c}, 16, v{WR+2*ch}", f"v_and_b32 v{WF+4*c+1}, 0xffff0000, v{WR+2*ch}",
                  f"v_lshlrev_b32 v{WF+4*c+2}, 16, v{WR+2*ch+1}", f"v_and_b32 v{WF+4*c+3}, 0xffff0000, v{WR+2*ch+1}"]
        for i in range(5):
            L += [f"v_lshlrev_b32 v{KF+i}, 16, v{KR+4*i+j}", f"v_and_b32 v{KF+5+i}, 0xffff0000, v{KR+4*i+j}"]
        for c in range(2):
            kf, wf = KF + 5*c, WF + 4*c
            L += [f"v_mul_f32 v{AC+t}, v{wf}, v{kf+3+t}" for t in range(2)]
            for tap in range(1, 4):
                L += [f"v_fmac_f32 v{AC+t}, v{wf+tap}, v{kf+3+t-tap}" for t in range(2)]
            for t in range(2):
                L.append(f"v_and_b32 v{kf+t}, 0xffff0000, v{VR+4*t+j}" if c else f"v_lshlrev_b32 v{kf+t}, 16, v{VR+4*t+j}")
            L += [f"v_mul_f32 v{AC+t}, v{AC+t}, v{kf+t}" for t in range(2)]
            L += [f"v_cvt_pk_bf16_f32 v{kf+2}, v{AC+1}, v{AC}", f"ds_write_b32 v{vT}, v{kf+2} offset:{128*(2*j+c)}"]
        return L
    def cs_load():
        for e in range(2):
            a(f"buffer_load_dwordx2 {vr(vCS+2*e, 2)}, v{vCA+e}, s[{R_WS}:{R_WS+3}], 0 offen sc1"); vm.issue("cs")
    def sg_load():
        a(f"buffer_load_dwordx4 {vr(vST)}, v{vSA}, s[{R_WS}:{R_WS+3}], 0 offen sc1"); vm.issue("sg")
    def tag_check(regs, reload):
        L, Dn = a.uid("L_tag"), a.uid("L_tagd")
        a(f"s_mov_b32 s{S_BND}, {a.spin}")
        a.label(L)
        a(f"v_cmp_ne_u32 vcc, s{S_NONCE}, v{regs[0]}")
        a(f"v_cmp_ne_u32 s[{S_EX}:{S_EX+1}], s{S_NONCE}, v{regs[1]}")
        a("s_nop 1")
        a(f"s_or_b64 vcc, vcc, s[{S_EX}:{S_EX+1}]")
        a(f"s_cbranch_vccz {Dn}")
        keep = list(vm.q); reload()
        a("s_waitcnt vmcnt(0)")
        vm.q = keep
        a(f"s_sub_u32 s{S_BND}, s{S_BND}, 1")
        a(f"s_cmp_lg_u32 s{S_BND}, 0")
        a(f"s_cbranch_scc1 {L}")
        a.label(Dn)
    def split(vsrc, neg):
        sg = "-" if neg else ""
        a(f"v_cvt_pk_bf16_f32 v{vh}, {sg}v{vsrc}, {sg}v{vsrc}")
        a(f"v_and_b32 v{t2}, 0xffff0000, v{vh}")
        a(f"v_sub_f32_e64 v{t2}, {sg}v{vsrc}, v{t2}")
        a(f"v_cvt_pk_bf16_f32 v{vl}, v{t2}, v{t2}")
    for st in range(7):
        vm.wait(("st", st))
        if a.stop == "p1": a.stamp(3 + st)
        a("s_barrier")
        fill = []
        if st == 1:
            a(f"v_mov_b32 v{t0}, 0")
            a(f"global_load_dword v{vnon}, v{t0}, s[{S_DBG}:{S_DBG+1}] sc1"); vm.issue("non")
        if st == 2: fill = [lambda: vm.wait("kvl")] + kv_valu(0) + kv_valu(1)
        if st == 3:
            assert not vm.has("non")
            Lok = a.uid("L_nonok")
            a(f"v_readfirstlane_b32 s{S_NONCE}, v{vnon}")
            a("s_nop 3")
            a(f"s_cmp_lg_u32 s{S_NONCE}, 0")
            a(f"s_cbranch_scc1 {Lok}")
            a.get_nonce_spin(vnon, t0)
            a.label(Lok)
            a(f"v_mov_b32 v{t0}, s{S_NONCE}")
            a(f"v_mov_b32 v{t1}, {NONCE_L}")
            a(f"ds_write_b32 v{t1}, v{t0}")
            Lns = a.uid("L_nosg")
            a(f"s_cmp_lg_u32 s{w}, 0")
            a(f"s_cbranch_scc1 {Lns}")
            a(f"v_lshlrev_b32 v{t0}, 3, v0")
            a(f"v_add_u32 v{t0}, {STG_L}, v{t0}")
            a(f"ds_read_b64 {vr(t2, 2)}, v{t0}")
            a(f"v_and_b32 v{t0}, 3, v0")
            a(f"v_lshrrev_b32 v{t1}, 2, v0")
            a(f"v_mul_u32_u24 v{t1}, 56, v{t1}")
            a(f"v_add_u32 v{t0}, v{t0}, v{t1}")
            a(f"s_lshl_b32 s{S_T1}, s{S_FC}, 2")
            a(f"v_add_u32 v{t0}, s{S_T1}, v{t0}")
            a(f"v_cmp_gt_u32 vcc, 128, v{t0}")
            a(f"s_lshl_b32 s{S_T1}, s{S_RT}, 7")
            a(f"v_add_u32 v{t0}, s{S_T1}, v{t0}")
            a(f"v_lshlrev_b32 v{t0}, 4, v{t0}")
            a(f"v_add_u32 v{t0}, {SG_OFF}, v{t0}")
            a("s_and_b64 vcc, vcc, 0xfff")
            a("s_waitcnt lgkmcnt(0)")
            a(f"v_mov_b32 v{vST}, v{t2}")
            a(f"v_mov_b32 v{vST+1}, s{S_NONCE}")
            a(f"v_mov_b32 v{vST+2}, v{t3}")
            a(f"v_mov_b32 v{vST+3}, s{S_NONCE}")
            a("s_mov_b64 exec, vcc")
            a(f"buffer_store_dwordx4 {vr(vST)}, v{t0}, s[{R_WS}:{R_WS+3}], 0 offen sc1")
            a("s_mov_b64 exec, -1")
            a.label(Lns)
            fill = kv_valu(2) + kv_valu(3) + ["s_waitcnt lgkmcnt(0)"]
        if st == 4:
            a(f"s_lshl_b32 s{S_T1}, s{w}, 11")
            a(f"s_add_u32 s{S_T1}, s{S_T1}, {EXT}")
            a(f"v_lshlrev_b32 v{t0}, 4, v0")
            a(f"v_add_u32 v{t0}, s{S_T1}, v{t0}")
            a(f"ds_read_b128 {vr(84)}, v{t0}")
            a(f"ds_read_b128 {vr(88)}, v{t0} offset:1024")
            a("s_waitcnt lgkmcnt(0)")
            for i in range(2):
                a(f"buffer_store_dwordx4 {vr(84+4*i)}, v{vUo+i}, s[{R_WS}:{R_WS+3}], 0 offen sc1"); vm.issue("ut")
            cs_load()
        if st <= 4: issue_stage(st + 2, fill)
        if st == 0: kv_loads()
        if st == 5:
            vm.wait("cs")
            a.signal(sF0, t0, t1); vm.issue("sig")
            sg_load()
            a(f"s_lshl_b32 s{S_T1}, s{sCH}, 12")
            a(f"v_lshlrev_b32 v{t0}, 4, v0")
            a(f"v_add_u32 v{t1}, 4, v{t0}")
            for i in range(4):
                a(f"buffer_load_dwordx4 {vr(vKA_+4*i)}, v{t0}, s[{R_E}:{R_E+3}], s{S_T1} offen offset:{1024*i}"); vm.issue("K")
                a(f"buffer_load_dwordx4 {vr(vKB_+4*i)}, v{t1}, s[{R_E}:{R_E+3}], s{S_T1} offen offset:{1024*i}"); vm.issue("K")
            tag_check((vCS + 1, vCS + 3), cs_load)
            a("v_cmp_gt_u32 vcc, 32, v0")
            a(f"v_lshlrev_b32 v{t3}, 4, v0")
            a(f"s_lshl_b32 s{S_T1}, s{w}, 11")
            a(f"s_add_u32 s{S_T1}, s{S_T1}, {WEXT}")
            a(f"v_add_u32 v{t1}, s{S_T1}, v{t3}")
            for e in range(2):
                f0 = e0 + 4*e
                split(vCS + 2*e, False)
                a(f"v_and_b32 v{t2}, 0xffff, v{vl}")
                a(f"v_cndmask_b32 v{f0}, 0, v{vh}, vcc")
                a(f"v_cndmask_b32 v{f0+1}, 0, v{t2}, vcc")
                a(f"v_mov_b32 v{f0+2}, 0")
                a(f"v_mov_b32 v{f0+3}, 0")
                a(f"ds_write_b128 v{t1}, {vr(f0)} offset:{1024*e}")
            a(f"buffer_load_dword v{vF0d}, v{vF0a}, s[{R_WS}:{R_WS+3}], 0 offen sc1"); vm.issue("f0")
    a.stamp(1)
    vm.wait("sg")
    tag_check((vST + 1, vST + 3), sg_load)
    a(f"v_mov_b32 v{vST+1}, v{vST+2}")
    a(f"v_and_b32 v{t1}, 31, v0")
    a(f"s_lshl_b32 s{S_T1}, s{w}, 8")
    a(f"v_lshl_add_u32 v{t1}, v{t1}, 3, s{S_T1}")
    a(f"v_add_u32 v{t1}, {STATS_L}, v{t1}")
    a(f"ds_write_b64 v{t1}, {vr(vST, 2)}")
    a("v_cmp_gt_u32 vcc, 32, v0")
    split(vST, True)
    a(f"v_and_b32 v{t2}, 0xffff, v{vh}")
    a(f"v_lshlrev_b32 v{t1}, 16, v{vl}")
    a(f"v_or_b32 v{t1}, v{t1}, v{t2}")
    a(f"v_cndmask_b32 v{e0+8}, 0, v{t1}, vcc")
    a(f"v_cndmask_b32 v{e0+9}, 0, v{t2}, vcc")
    a(f"v_mov_b32 v{e0+10}, 0")
    a(f"v_mov_b32 v{e0+11}, 0")
    a(f"v_lshlrev_b32 v{t3}, 4, v0")
    a(f"s_lshl_b32 s{S_T1}, s{w}, 10")
    a(f"s_add_u32 s{S_T1}, s{S_T1}, {XEXT}")
    a(f"v_add_u32 v{t1}, s{S_T1}, v{t3}")
    a(f"ds_write_b128 v{t1}, {vr(e0+8)}")
    sUB, sKC, sUok = S_A2, S_A1, S_A3
    a(f"s_lshr_b32 s{S_T0}, s{w}, 1")
    a(f"s_mul_i32 s{sUB}, s{S_T0}, {UCH}")
    a(f"s_add_u32 s{sUB}, s{sUB}, {UB0}")
    a(f"s_mul_i32 s{sKC}, s{S_T0}, {KCH}")
    a(f"s_add_u32 s{sKC}, s{sKC}, {CV}")
    def u_dma():
        a(f"s_lshl_b32 s{S_T1}, s{sCH}, 12")
        a(f"s_add_u32 s{S_T1}, s{S_T1}, {UT_OFF}")
        a(f"v_lshlrev_b32 v{t0}, 4, v0")
        for i in range(4):
            a(f"s_add_u32 m0, s{sUB}, {512 + 1024*i}")
            a(f"s_add_u32 s{S_T2}, s{S_T1}, {1024*i}")
            a(f"buffer_load_dwordx4 v{t0}, s[{R_WS}:{R_WS+3}], s{S_T2} offen sc1 lds")
    vm.wait("f0")
    a(f"v_cmp_ne_u32 vcc, s{S_NONCE}, v{vF0d}")
    a(f"s_mov_b32 s{sUok}, 0")
    a("s_nop 0")
    Lnu = a.uid("L_nou")
    a(f"s_cbranch_vccnz {Lnu}")
    a(f"s_mov_b32 s{sUok}, 1")
    u_dma()
    a.label(Lnu)
    vm.reset()
    a(f"v_add_u32 v{t1}, s{sKC}, v{t3}")
    Lc1, Lcd = a.uid("L_copy1"), a.uid("L_copyd")
    a(f"s_cmp_eq_u32 s{sRH}, 1")
    a(f"s_cbranch_scc1 {Lc1}")
    for i in range(4):
        a(f"ds_write_b128 v{t1}, {vr(vKA_+4*i)} offset:{32 + 1024*i}")
    a(f"v_mov_b32 v{e0}, 0")
    a(f"v_mov_b32 v{e0+1}, 0")
    a(f"v_lshlrev_b32 v{t1}, 3, v0")
    a(f"v_add_u32 v{t2}, s{sUB}, v{t1}")
    a(f"ds_write_b64 v{t2}, {vr(e0, 2)}")
    a(f"v_add_u32 v{t2}, s{sKC}, v{t1}")
    a("s_mov_b64 exec, 0xf")
    a(f"ds_write_b64 v{t2}, {vr(e0, 2)}")
    a("s_mov_b64 exec, -1")
    a(f"s_branch {Lcd}")
    a.label(Lc1)
    a(f"v_lshlrev_b32 v{t2}, 16, v{vKA_}")
    for i in range(4):
        for j in range(4):
            a(f"v_alignbit_b32 v{vKB_+4*i+j}, v{vKB_+4*i+j}, v{vKA_+4*i+j}, 16")
    for i in range(4):
        a(f"ds_write_b128 v{t1}, {vr(vKB_+4*i)} offset:{4160 + 32 + 1024*i}")
    a(f"v_readfirstlane_b32 s{S_T1}, v{t2}")
    a(f"v_lshlrev_b32 v{t1}, 2, v0")
    a(f"v_add_u32 v{t1}, s{sKC}, v{t1}")
    a("v_cmp_eq_u32 vcc, 7, v0")
    a(f"v_mov_b32 v{t2}, s{S_T1}")
    a("s_nop 0")
    a(f"v_cndmask_b32 v{t2}, 0, v{t2}, vcc")
    a("s_mov_b64 exec, 0xff")
    a(f"ds_write_b32 v{t1}, v{t2} offset:4160")
    a("s_mov_b64 exec, -1")
    a.label(Lcd)
    a("s_waitcnt lgkmcnt(0)")
    a("s_barrier")
    a.stamp(2)
    if a.stop == "p1":
        a("s_waitcnt vmcnt(0)"); a("s_barrier"); a.stamps_out(10); a("s_endpgm"); return
    Lgo = a.uid("L_ugo")
    a(f"s_cmp_eq_u32 s{sUok}, 1")
    a(f"s_cbranch_scc1 {Lgo}")
    a.poll(vF0a, t1, 64)
    u_dma()
    a.label(Lgo)
    a.stamp(3)
    if "noconv" not in a.exp: conv(a, w, sCH, sRH, sUB, sKC)
    a.stamp(5)
    final_h(a, w)

def lds_pair_sync(a, vaddr, vone, vtmp, target):
    L, Dn = a.uid("L_ps"), a.uid("L_psd")
    a("s_mov_b64 exec, 1")
    a(f"ds_add_u32 v{vaddr}, v{vone}")
    a("s_mov_b64 exec, -1")
    a(f"s_mov_b32 s{S_BND}, {a.spin}")
    a.label(L)
    a(f"ds_read_b32 v{vtmp}, v{vaddr}")
    a("s_waitcnt lgkmcnt(0)")
    a(f"v_readfirstlane_b32 s{S_T0}, v{vtmp}")
    a("s_nop 0")
    a(f"s_cmp_ge_u32 s{S_T0}, {target}")
    a(f"s_cbranch_scc1 {Dn}")
    a(f"s_sub_u32 s{S_BND}, s{S_BND}, 1")
    a(f"s_cmp_lg_u32 s{S_BND}, 0")
    a(f"s_cbranch_scc1 {L}")
    a.label(Dn)

def conv(a, w, sCH, sRH, sUB, sKC):
    t0, t1, t2, t3 = 64, 65, 66, 67
    a(f"s_lshl_b32 s{S_T0}, s{S_M}, 2")
    a(f"s_load_dword s{S_A4}, s[{S_SD}:{S_SD+1}], s{S_T0}")
    vKA, vUB = 8, 12
    a(f"v_and_b32 v{t0}, 15, v0")
    a(f"v_lshrrev_b32 v{t1}, 5, v0")
    a(f"v_bfe_u32 v{t2}, v0, 4, 1")
    a(f"v_lshlrev_b32 v{t3}, 4, v{t1}")
    a(f"v_add_u32 v{t3}, v{t3}, v{t0}")
    a(f"v_add_u32 v{t3}, 9, v{t3}")
    a(f"v_lshlrev_b32 v{vUB}, 3, v{t2}")
    a(f"v_sub_u32 v{t3}, v{t3}, v{vUB}")
    a(f"v_and_b32 v{vUB}, 1, v{t3}")
    a(f"v_mul_u32_u24 v{vUB}, 4158, v{vUB}")
    a(f"v_lshl_add_u32 v{t3}, v{t3}, 1, v{vUB}")
    a(f"s_lshl_b32 s{S_T1}, s{sRH}, 8")
    a(f"s_add_u32 s{S_T2}, s{sKC}, s{S_T1}")
    a(f"v_add_u32 v{vKA}, s{S_T2}, v{t3}")
    for i in range(1, 4): a(f"v_add_u32 v{vKA+i}, {1024*i}, v{vKA}")
    a(f"v_sub_u32 v{t3}, v{t0}, v{t1}")
    a(f"v_lshlrev_b32 v{t3}, 5, v{t3}")
    a(f"v_lshl_add_u32 v{t3}, v{t2}, 4, v{t3}")
    a(f"v_add_u32 v{t3}, {64 + 256}, v{t3}")
    a(f"s_sub_u32 s{S_T2}, s{sUB}, s{S_T1}")
    a(f"v_add_u32 v{vUB}, s{S_T2}, v{t3}")
    vUE, vYO, vXA, vCN, vOne = 13, 14, 15, 16, 17
    a(f"v_lshlrev_b32 v{t3}, 5, v{t0}")
    a(f"v_lshl_add_u32 v{t3}, v{t1}, 4, v{t3}")
    a(f"v_lshlrev_b32 v{vUE}, 3, v{t2}")
    a(f"v_sub_u32 v{t3}, v{t3}, v{vUE}")
    a(f"v_add_u32 v{t3}, 520, v{t3}")
    a(f"s_lshl_b32 s{S_T1}, s{sRH}, 11")
    a(f"s_add_u32 s{S_T2}, s{sUB}, s{S_T1}")
    a(f"v_add_u32 v{vUE}, s{S_T2}, v{t3}")
    a(f"v_lshrrev_b32 v{t3}, 4, v0")
    a(f"v_lshlrev_b32 v{t3}, 3, v{t3}")
    a(f"v_lshl_add_u32 v{vYO}, v{t0}, 5, v{t3}")
    a(f"v_lshlrev_b32 v{t3}, 4, v0")
    a(f"v_add_u32 v{vXA}, s{sKC}, v{t3}")
    a(f"s_lshr_b32 s{S_T1}, s{w}, 1")
    a(f"s_lshl_b32 s{S_T1}, s{S_T1}, 2")
    a(f"s_add_u32 s{S_T1}, s{S_T1}, {CNT_L}")
    a(f"v_mov_b32 v{vCN}, s{S_T1}")
    a(f"v_mov_b32 v{vOne}, 1")
    a("s_waitcnt vmcnt(0) lgkmcnt(0)")
    a.stamp(4)
    ACC = 224
    AS, BS = (96, 160), (128, 192)
    def loads(rr):
        s = rr & 1; L = []
        for x in range(8):
            L.append(f"ds_read_b128 {vr(BS[s]+4*x)}, v{vUB} offset:{512*x + 64*(3-rr)}")
            o = 128*(x & 1) + 16*rr
            L.append(f"ds_read2_b32 {vr(AS[s]+4*x, 2)}, v{vKA+(x>>1)} offset0:{o} offset1:{o+1}")
            L.append(f"ds_read2_b32 {vr(AS[s]+4*x+2, 2)}, v{vKA+(x>>1)} offset0:{o+2} offset1:{o+3}")
        return L
    for l in loads(0): a(l)
    for rr in range(4):
        a("s_waitcnt lgkmcnt(0)")
        nxt = loads(rr + 1) if rr < 3 else []
        s = rr & 1; k = 0
        for x in range(8):
            for c in range(x, 8):
                cin = "0" if (rr == 0 and x == 0) else vr(ACC+4*c)
                a(f"v_mfma_f32_16x16x32_bf16 {vr(ACC+4*c)}, {vr(AS[s]+4*x)}, {vr(BS[s]+4*(c-x))}, {cin}")
                if nxt and k < len(nxt): a(nxt[k]); k += 1
        while nxt and k < len(nxt): a(nxt[k]); k += 1
    a.stamp(9)
    lds_pair_sync(a, vCN, vOne, t0, 2)
    Lr1, Lrd = a.uid("L_r1"), a.uid("L_rd")
    a(f"s_cmp_eq_u32 s{sRH}, 1")
    a(f"s_cbranch_scc1 {Lr1}")
    for c in range(4): a(f"ds_write_b128 v{vXA}, {vr(ACC+16+4*c)} offset:{1024*c}")
    a(f"s_branch {Lrd}")
    a.label(Lr1)
    for c in range(4):
        a(f"ds_write_b128 v{vXA}, {vr(ACC+4*c)} offset:{4096 + 1024*c}")
    a("s_waitcnt lgkmcnt(0)")
    for c in range(16): a(f"v_mov_b32 v{ACC+c}, v{ACC+16+c}")
    a.label(Lrd)
    a("s_waitcnt lgkmcnt(0)")
    lds_pair_sync(a, vCN, vOne, t0, 4)
    a(f"s_xor_b32 s{S_T1}, s{sRH}, 1")
    a(f"s_lshl_b32 s{S_T1}, s{S_T1}, 12")
    a(f"v_add_u32 v{vXA}, s{S_T1}, v{vXA}")
    for c in range(4): a(f"ds_read_b128 {vr(128+4*c)}, v{vXA} offset:{1024*c}")
    for c in range(4): a(f"ds_read_b64 {vr(96+2*c, 2)}, v{vUE} offset:{512*c}")
    a(f"s_lshr_b32 s{S_T1}, s{w}, 1")
    a(f"s_lshl_b32 s{S_T1}, s{S_T1}, 4")
    a(f"s_lshr_b32 s{S_A4}, s{S_A4}, s{S_T1}")
    a(f"s_lshl_b32 s{S_A4}, s{S_A4}, 16")
    a(f"s_lshl_b32 s{S_T1}, s{sCH}, 12")
    a(f"s_lshl_b32 s{S_T2}, s{sRH}, 11")
    a(f"s_add_u32 s{S_T1}, s{S_T1}, s{S_T2}")
    a(f"s_add_u32 s{S_T1}, s{S_T1}, {YT_OFF}")
    a("s_waitcnt lgkmcnt(0)")
    for c in range(4):
        d0, d1 = 96 + 2*c, 97 + 2*c
        u = 144
        a(f"v_and_b32 v{u}, 0xffff0000, v{d1}")
        a(f"v_lshlrev_b32 v{u+1}, 16, v{d1}")
        a(f"v_and_b32 v{u+2}, 0xffff0000, v{d0}")
        a(f"v_lshlrev_b32 v{u+3}, 16, v{d0}")
        for i in range(4): a(f"v_add_f32 v{ACC+4*c+i}, v{ACC+4*c+i}, v{128+4*c+i}")
        for i in range(4): a(f"v_fmac_f32 v{ACC+4*c+i}, s{S_A4}, v{u+i}")
        o = 148 + 2*c
        a(f"v_cvt_pk_bf16_f32 v{o}, v{ACC+4*c}, v{ACC+4*c+1}")
        a(f"v_cvt_pk_bf16_f32 v{o+1}, v{ACC+4*c+2}, v{ACC+4*c+3}")
        a(f"buffer_store_dwordx2 {vr(o, 2)}, v{vYO}, s[{R_WS}:{R_WS+3}], s{S_T1} offen offset:{512*c} sc1")
    a(f"s_lshr_b32 s{S_T1}, s{sCH}, 6")
    a(f"s_lshl_b32 s{S_T1}, s{S_T1}, 1")
    a(f"s_add_u32 s{S_T1}, s{S_T1}, s{sRH}")
    a(f"s_lshl_b32 s{S_T1}, s{S_T1}, 6")
    a(f"s_and_b32 s{S_T2}, s{sCH}, 63")
    a(f"s_add_u32 s{S_T1}, s{S_T1}, s{S_T2}")
    a(f"s_lshl_b32 s{S_T1}, s{S_T1}, 2")
    a(f"s_add_u32 s{S_T1}, s{S_T1}, {F2_OFF}")
    if a.prof: a(f"s_mov_b32 s{S_A5}, s{S_T1}"); a.stamp(1); a(f"s_mov_b32 s{S_T1}, s{S_A5}")
    a("s_waitcnt vmcnt(0)")
    a.signal(S_T1, t0, t1)

def final_h(a, w):
    t0, t1, t2, t3 = 64, 65, 66, 67
    vXo, vYa, vS = 8, 9, 10
    BASE = 16
    RS2 = 32
    XD = 36
    YD = 44
    ST = 52
    a(f"v_lshrrev_b32 v{t0}, 3, v0")
    a(f"v_mul_u32_u24 v{t0}, 896, v{t0}")
    a(f"v_and_b32 v{t1}, 7, v0")
    a(f"v_lshl_add_u32 v{vXo}, v{t1}, 4, v{t0}")
    sXO = S_A1
    a(f"s_lshl_b32 s{S_T0}, s{S_RB}, 6")
    a(f"s_lshl_b32 s{S_T1}, s{w}, 4")
    a(f"s_add_u32 s{S_T0}, s{S_T0}, s{S_T1}")
    a(f"s_mul_i32 s{sXO}, s{S_T0}, 896")
    a(f"s_lshl_b32 s{S_T1}, s{S_CT}, 7")
    a(f"s_add_u32 s{sXO}, s{sXO}, s{S_T1}")
    a(f"s_add_u32 s{S_T2}, s{sXO}, {8*896}")
    a(f"buffer_load_dwordx4 {vr(XD)}, v{vXo}, s[{R_A}:{R_A+3}], s{sXO} offen")
    a(f"buffer_load_dwordx4 {vr(XD+4)}, v{vXo}, s[{R_A}:{R_A+3}], s{S_T2} offen")
    a(f"s_lshl_b32 s{S_T1}, s{S_PAR}, 6")
    a(f"s_lshl_b32 s{S_T2}, s{w}, 4")
    a(f"s_add_u32 s{S_T1}, s{S_T1}, s{S_T2}")
    a(f"v_lshrrev_b32 v{t0}, 3, v0")
    a(f"v_add_u32 v{t0}, s{S_T1}, v{t0}")
    a(f"v_lshlrev_b32 v{t0}, 3, v{t0}")
    a(f"v_add_u32 v{t0}, {STATS_L}, v{t0}")
    a(f"ds_read_b64 {vr(ST, 2)}, v{t0}")
    a(f"ds_read_b64 {vr(ST+2, 2)}, v{t0} offset:64")
    a(f"s_lshl_b32 s{S_T1}, s{S_CT}, 9")
    a(f"s_lshr_b32 s{S_T2}, s{S_RB}, 4")
    a(f"s_lshl_b32 s{S_T2}, s{S_T2}, 8")
    a(f"s_add_u32 s{S_T1}, s{S_T1}, s{S_T2}")
    a(f"s_add_u32 s{S_T1}, s{S_T1}, {F2_OFF}")
    a(f"v_lshlrev_b32 v{t0}, 2, v0")
    a(f"v_add_u32 v{t0}, s{S_T1}, v{t0}")
    if "noconv" not in a.exp and "nopoll2" not in a.exp: a.poll(t0, t1, 64, sleep=(64 if "slowpoll" in a.exp else 8))
    a.stamp(6)
    a(f"s_lshl_b32 s{S_T1}, s{S_CT}, 18")
    a(f"s_add_u32 s{S_T1}, s{S_T1}, {YT_OFF}")
    a(f"s_lshl_b32 s{S_T2}, s{S_T0}, 1")
    a(f"s_add_u32 s{S_T1}, s{S_T1}, s{S_T2}")
    a(f"v_lshlrev_b32 v{t0}, 12, v0")
    a(f"buffer_load_dwordx4 {vr(YD)}, v{t0}, s[{R_WS}:{R_WS+3}], s{S_T1} offen sc1")
    a(f"buffer_load_dwordx4 {vr(YD+4)}, v{t0}, s[{R_WS}:{R_WS+3}], s{S_T1} offen offset:16 sc1")
    a(f"s_mul_i32 s{S_T1}, s{w}, 3072")
    a(f"s_add_u32 s{S_T1}, s{S_T1}, {EXT}")
    a(f"v_mul_u32_u24 v{t0}, 48, v0")
    a(f"v_add_u32 v{t0}, s{S_T1}, v{t0}")
    a("s_waitcnt vmcnt(0)")
    a(f"ds_write_b128 v{t0}, {vr(YD)}")
    a(f"ds_write_b128 v{t0}, {vr(YD+4)} offset:16")
    a(f"v_and_b32 v{t1}, 7, v0")
    a(f"v_mul_u32_u24 v{t1}, 384, v{t1}")
    a(f"v_lshrrev_b32 v{t2}, 3, v0")
    a(f"v_lshl_add_u32 v{t1}, v{t2}, 1, v{t1}")
    a(f"v_add_u32 v{t1}, s{S_T1}, v{t1}")
    a("s_waitcnt lgkmcnt(0)")
    YG = 96
    for q in range(2):
        for e in range(8):
            a(f"ds_read_u16 v{YG+8*q+e}, v{t1} offset:{48*e + 16*q}")
    a("s_waitcnt lgkmcnt(0)")
    for q in range(2):
        mean, rstd = ST + 2*q, ST + 2*q + 1
        a(f"v_mul_f32 v{RS2+q}, v{rstd}, v{rstd}")
        for e in range(8):
            xs = XD + 4*q + (e >> 1)
            if e & 1: a(f"v_and_b32 v{t0}, 0xffff0000, v{xs}")
            else:     a(f"v_lshlrev_b32 v{t0}, 16, v{xs}")
            a(f"v_lshlrev_b32 v{t2}, 16, v{YG+8*q+e}")
            a(f"v_sub_f32 v{t3}, v{t0}, v{mean}")
            a(f"v_mul_f32 v{t3}, v{t3}, v{rstd}")
            a(f"v_fma_f32 v{BASE+8*q+e}, v{t3}, v{t2}, v{t0}")
    vF0, vF1 = 12, 13
    a(f"v_lshrrev_b32 v{t0}, 3, v0")
    a(f"s_lshl_b32 s{S_T1}, s{w}, 4")
    a(f"v_add_u32 v{t0}, s{S_T1}, v{t0}")
    a(f"v_mul_u32_u24 v{t0}, {PROW}, v{t0}")
    a(f"v_and_b32 v{t1}, 7, v0")
    a(f"v_lshl_add_u32 v{vF0}, v{t1}, 5, v{t0}")
    a(f"v_add_u32 v{vF1}, {2*RING}, v{vF0}")
    a.srd(R_B, S_OUT, XB)
    a.stamp(7)
    a("s_barrier")
    P = 128
    for q in range(2):
        for kq in range(4):
            base = vF0 if kq < 2 else vF1
            for hh in range(2):
                a(f"ds_read_b128 {vr(P+32*q+8*kq+4*hh)}, v{base} offset:{(kq & 1)*RING + q*8*PROW + 16*hh}")
    for q in range(2):
        a(f"s_waitcnt lgkmcnt({8 if q == 0 else 0})")
        p = P + 32*q
        for e in range(8):
            a(f"v_add_f32 v{p+e}, v{p+e}, v{p+8+e}")
            a(f"v_add_f32 v{p+16+e}, v{p+16+e}, v{p+24+e}")
        for e in range(8):
            a(f"v_add_f32 v{p+e}, v{p+e}, v{p+16+e}")
        for e in range(8):
            a(f"v_fmac_f32 v{BASE+8*q+e}, v{RS2+q}, v{p+e}")
        for e in range(4):
            a(f"v_cvt_pk_bf16_f32 v{XD+4*q+e}, v{BASE+8*q+2*e}, v{BASE+8*q+2*e+1}")
        so = sXO
        if q == 1:
            a(f"s_add_u32 s{S_T2}, s{sXO}, {8*896}"); so = S_T2
        a(f"buffer_store_dwordx4 {vr(XD+4*q)}, v{vXo}, s[{R_B}:{R_B+3}], s{so} offen")
    a.stamp(8)
    if "span" in a.exp:
        a("s_waitcnt vmcnt(0)")
        a("s_memrealtime s[88:89]")
        a("s_waitcnt lgkmcnt(0)")
        a("v_mov_b32 v2, s88"); a("v_mov_b32 v3, 12")
        a("s_mov_b64 exec, 1")
        a(f"global_atomic_umax v3, v2, s[{S_DBG}:{S_DBG+1}]")
        a("s_mov_b64 exec, -1")
    a.label("L_hout")
    a.stamps_out(10)
    a("s_endpgm")

def row_stats(a):
    t0, t1 = 4, 5
    XD, SS = 64, 76
    a.srd(R_B, S_X, XB)
    a(f"s_lshl_b32 s{S_T0}, s{S_FC}, 2")
    a(f"s_add_u32 s{S_T0}, s{S_T0}, s{S_WAVE}")
    a(f"s_lshl_b32 s{S_T1}, s{S_RT}, 7")
    a(f"s_add_u32 s{S_T1}, s{S_T1}, s{S_T0}")
    a(f"s_mul_i32 s{S_T1}, s{S_T1}, 896")
    a(f"v_mov_b32 v{t1}, 0x40000000")
    a("v_cmp_gt_u32 vcc, 56, v0")
    a(f"s_add_u32 s{S_T2}, s{S_T1}, {56*896}")
    a(f"s_add_u32 s{S_T3}, s{S_T1}, {112*896}")
    a(f"v_cndmask_b32 v{t0}, v{t1}, v17, vcc")
    a(f"buffer_load_dwordx4 {vr(XD)}, v{t0}, s[{R_B}:{R_B+3}], s{S_T1} offen")
    a(f"buffer_load_dwordx4 {vr(XD+4)}, v{t0}, s[{R_B}:{R_B+3}], s{S_T2} offen")
    a(f"s_cmp_lt_u32 s{S_T0}, 16")
    a(f"s_cselect_b32 s{S_T3}, s{S_T3}, s{S_T2}")
    a(f"buffer_load_dwordx4 {vr(XD+8)}, v{t0}, s[{R_B}:{R_B+3}], s{S_T3} offen")
    a(f"v_mov_b32 v{t1}, 0x3f803f80")
    for j in range(3):
        a(f"s_waitcnt vmcnt({2-j})")
        for q in range(4):
            c0 = "0" if q == 0 else f"v{SS+j}"; c1 = "0" if q == 0 else f"v{SS+3+j}"
            a(f"v_dot2_f32_bf16 v{SS+j}, v{XD+4*j+q}, v{t1}, {c0}")
            a(f"v_dot2_f32_bf16 v{SS+3+j}, v{XD+4*j+q}, v{XD+4*j+q}, {c1}")
    a("s_nop 2")
    for mod in ("row_shr:1 row_mask:0xf", "row_shr:2 row_mask:0xf", "row_shr:4 row_mask:0xf", "row_shr:8 row_mask:0xf",
                "row_bcast:15 row_mask:0xa", "row_bcast:31 row_mask:0xc"):
        for r in range(6): a(f"v_add_f32_dpp v{SS+r}, v{SS+r}, v{SS+r} {mod} bank_mask:0xf")
    for j in range(3):
        m, q = 82 + 2*j, SS + 3 + j
        a(f"v_mul_f32 v{m}, {1.0/448.0!r}, v{SS+j}")
        a(f"v_mul_f32 v{q}, {1.0/448.0!r}, v{q}")
        a(f"v_fma_f32 v{q}, -v{m}, v{m}, v{q}")
        a(f"v_max_f32 v{q}, 0, v{q}")
        a(f"v_add_f32 v{q}, 0x3727c5ac, v{q}")
        a(f"v_rsq_f32 v{m+1}, v{q}")
    a(f"s_lshl_b32 s{S_T0}, s{S_WAVE}, 3")
    a(f"s_add_u32 s{S_T0}, s{S_T0}, {STG_L}")
    a(f"v_mov_b32 v{t0}, s{S_T0}")
    a("s_mov_b32 exec_lo, 0")
    a("s_mov_b32 exec_hi, 0x80000000")
    for j in range(3): a(f"ds_write_b64 v{t0}, {vr(82+2*j, 2)} offset:{32*j}")
    a("s_mov_b64 exec, -1")
    a("s_waitcnt lgkmcnt(0)")

def c_wave(a):
    a.label("L_cwave")
    vX, vW = 8, 12
    t0, t1, t2, t3 = 4, 5, 6, 7
    AS, BS, ACC = (64, 80), (96, 104), 128
    sWR, sWF = S_A0, S_A1
    a(f"s_lshr_b32 s{sWR}, s{S_WAVE}, 1")
    a(f"s_and_b32 s{sWF}, s{S_WAVE}, 1")
    a(f"s_lshl_b32 s{S_T1}, s{sWR}, 6")
    x_frag_addrs(a, vX, S_T1, t0, t1, t2)
    w_tr_lane_consts(a, t3, 16, t0, t1)
    a(f"s_lshl_b32 s{S_T1}, s{sWF}, 3")
    a(f"v_xor_b32 v16, s{S_T1}, v16")
    for m in range(4):
        a(f"v_xor_b32 v{t0}, {2*m}, v16")
        a(f"v_lshl_add_u32 v{vW+m}, v{t0}, 4, v{t3}")
    a(f"v_lshlrev_b32 v17, 4, v0")
    a("s_waitcnt lgkmcnt(0)")
    a.srd(R_WS, S_WS, WS_BYTES); a.srd(R_A, S_WD, WB)
    a.stamp(0)
    def reads(t):
        s = t & 1
        if t == 28:
            return [f"ds_read_b128 {vr(BS[s])}, v18",
                    f"ds_read_b128 {vr(AS[s])}, v19",
                    f"ds_read_b128 {vr(BS[s]+4)}, v18 offset:1024",
                    f"ds_read_b128 {vr(AS[s]+4)}, v19 offset:1024",
                    f"ds_read_b128 {vr(AS[s]+8)}, v19 offset:2048",
                    f"ds_read_b128 {vr(AS[s]+12)}, v19 offset:3072"]
        st, ks = t >> 2, t & 3
        so = (st % 3) * SLOT
        def wr(m): return [f"ds_read_b64_tr_b16 {vr(AS[s]+4*m+2*h, 2)}, v{vW+m} offset:{so + (16*ks + 4*h)*256}" for h in range(2)]
        return ([f"ds_read_b128 {vr(BS[s])}, v{vX+ks} offset:{so}"] + wr(0) +
                [f"ds_read_b128 {vr(BS[s]+4)}, v{vX+ks} offset:{so + 4096}"] + wr(1) + wr(2) + wr(3))
    a(f"s_lshl_b32 s{S_T1}, s{sWR}, 11")
    a(f"s_add_u32 s{S_T1}, s{S_T1}, {XEXT}")
    a(f"v_add_u32 v18, s{S_T1}, v17")
    a(f"s_lshl_b32 s{S_T1}, s{sWF}, 12")
    a(f"s_add_u32 s{S_T1}, s{S_T1}, {WEXT}")
    a(f"v_add_u32 v19, s{S_T1}, v17")
    row_stats(a)
    a("s_barrier")
    a.stamp(1)
    for l in reads(0): a(l)
    for t in range(29):
        s = t & 1
        a("s_waitcnt lgkmcnt(0)")
        if t < 28 and (t & 3) == 3:
            if a.stop == "p1": a.stamp(5 + (t >> 2))
            a("s_barrier")
        nxt = reads(t + 1) if t < 28 else []
        k = 0
        for m in range(4):
            for n in range(2):
                d = ACC + (2*m + n)*16
                cin = "0" if t == 0 else vr(d, 16)
                a(f"v_mfma_f32_32x32x16_bf16 {vr(d,16)}, {vr(AS[s]+4*m)}, {vr(BS[s]+4*n)}, {cin}")
                for _ in range(2):
                    if k < len(nxt): a(nxt[k]); k += 1
    a.stamp(2)
    a(f"v_mov_b32 v{t0}, {NONCE_L}")
    a(f"ds_read_b32 v20, v{t0}")
    vm = VM(a)
    sH = S_A2
    a(f"s_lshl_b32 s{S_T0}, s{S_RT}, 2")
    a(f"s_lshl_b32 s{S_T1}, s{sWR}, 1")
    a(f"s_add_u32 s{S_T0}, s{S_T0}, s{S_T1}")
    a(f"s_mul_i32 s{S_T0}, s{S_T0}, 112")
    a(f"s_lshl_b32 s{S_T1}, s{S_FC}, 3")
    a(f"s_add_u32 s{S_T0}, s{S_T0}, s{S_T1}")
    a(f"s_lshl_b32 s{S_T1}, s{sWF}, 2")
    a(f"s_add_u32 s{S_T0}, s{S_T0}, s{S_T1}")
    a(f"s_lshl_b32 s{sH}, s{S_T0}, 10")
    if H_OFF: a(f"s_add_u32 s{sH}, s{sH}, {H_OFF}")
    a("s_nop 1")
    for m in range(4):
        for n in range(2):
            d = ACC + (2*m + n)*16
            o = 24 + 4*((2*m + n) & 3)
            for i in range(8): a(f"v_max_f32 v{d+i}, 0, v{d+i}")
            for i in range(8): a(f"v_mul_f32 v{d+i}, v{d+i}, v{d+8+i}")
            for i in range(4): a(f"v_cvt_pk_bf16_f32 v{o+i}, v{d+2*i}, v{d+2*i+1}")
            a(f"s_add_u32 s{S_T0}, s{sH}, {(n*112 + m)*1024}")
            a(f"buffer_store_dwordx4 {vr(o)}, v17, s[{R_WS}:{R_WS+3}], s{S_T0} offen sc1")
            vm.issue("h")
    a.stamp(3)
    a("s_waitcnt lgkmcnt(0)")
    a(f"v_readfirstlane_b32 s{S_NONCE}, v20")
    sKQ = S_WAVE
    vWd, vA0, vA1, vFl = 21, 22, 23, 40
    a(f"v_lshrrev_b32 v{t0}, 3, v0")
    a(f"v_and_b32 v{t1}, 7, v0")
    a(f"v_bfe_u32 v{t2}, v0, 4, 1")
    a(f"v_lshlrev_b32 v{t2}, 2, v{t2}")
    a(f"v_xor_b32 v{t1}, v{t1}, v{t2}")
    a(f"v_mul_u32_u24 v{t0}, 896, v{t0}")
    a(f"v_lshl_add_u32 v{vWd}, v{t1}, 4, v{t0}")
    sWdS, sRing = S_A3, S_A4
    a(f"s_mul_i32 s{sWdS}, s{sKQ}, {448*896}")
    a(f"s_lshl_b32 s{S_T0}, s{S_CT}, 7")
    a(f"s_add_u32 s{sWdS}, s{sWdS}, s{S_T0}")
    a(f"s_mul_i32 s{sRing}, s{sKQ}, {RING}")
    sRot, sKW, sKH = 96, 97, 98
    a(f"s_mov_b32 s{sRot}, 0")
    a(f"s_mul_i32 s{sKW}, s{sRot}, {16*896}")
    a(f"s_lshl_b32 s{sKH}, s{sRot}, 10")
    def wd_dma(ks):
        for hh in range(2):
            a(f"s_add_u32 m0, s{sRing}, {(ks % NSLOT)*2048 + hh*1024}")
            a(f"s_add_u32 s{S_T0}, s{sWdS}, s{sKW}")
            if hh: a(f"s_add_u32 s{S_T0}, s{S_T0}, {8*896}")
            a(f"buffer_load_dwordx4 v{vWd}, s[{R_A}:{R_A+3}], s{S_T0} offen lds")
            vm.issue(("wd", ks))
        a(f"s_add_u32 s{sKW}, s{sKW}, {16*896}")
        a(f"s_cmp_eq_u32 s{sKW}, {28*16*896}")
        a(f"s_cselect_b32 s{sKW}, 0, s{sKW}")
    NPRE = 9
    if a.stop != "p1":
        for ks in range(NPRE): wd_dma(ks)
    a(f"s_lshl_b32 s{S_T0}, s{S_RT}, 1")
    a(f"s_add_u32 s{S_T0}, s{S_T0}, s{sWR}")
    a(f"s_mul_i32 s{S_T0}, s{S_T0}, 28")
    a(f"s_lshl_b32 s{S_T1}, s{S_FC}, 1")
    a(f"s_add_u32 s{S_T0}, s{S_T0}, s{S_T1}")
    a(f"s_add_u32 s{S_T0}, s{S_T0}, s{sWF}")
    a(f"s_lshl_b32 s{S_T0}, s{S_T0}, 7")
    a(f"s_add_u32 s{S_T1}, s{S_T0}, {F1_OFF}")
    vm.wait("h")
    a.signal(S_T1, t0, t1)
    a.stamp(4)
    if a.stop == "p1":
        a("s_barrier"); a.stamps_out(12); a("s_endpgm"); return
    for ks in range(NPRE, NSLOT): wd_dma(ks)
    a(f"v_bfe_u32 v{t0}, v0, 2, 2")
    a(f"v_lshrrev_b32 v{t1}, 5, v0")
    a(f"v_lshl_add_u32 v{t1}, v{t1}, 2, v{t0}")
    a(f"v_lshlrev_b32 v{t1}, 7, v{t1}")
    a(f"v_and_b32 v{t2}, 1, v0")
    a(f"v_lshl_add_u32 v{t1}, v{t2}, 3, v{t1}")
    a(f"v_add_u32 v{t1}, s{sRing}, v{t1}")
    a(f"v_bfe_u32 v{t2}, v0, 4, 1")
    a(f"v_bfe_u32 v{t3}, v0, 1, 1")
    a(f"v_lshl_add_u32 v{t2}, v{t2}, 1, v{t3}")
    a(f"v_bfe_u32 v{t3}, v0, 3, 1")
    a(f"v_lshl_add_u32 v{t2}, v{t3}, 2, v{t2}")
    a(f"v_lshl_add_u32 v{vA0}, v{t2}, 4, v{t1}")
    a(f"v_xor_b32 v{t2}, 4, v{t2}")
    a(f"v_lshl_add_u32 v{vA1}, v{t2}, 4, v{t1}")
    a(f"s_mul_i32 s{S_T0}, s{S_RB}, 28")
    a(f"s_mul_i32 s{S_T1}, s{sKQ}, 7")
    a(f"s_add_u32 s{S_T0}, s{S_T0}, s{S_T1}")
    a(f"s_lshl_b32 s{S_T0}, s{S_T0}, 7")
    a(f"s_add_u32 s{S_T0}, s{S_T0}, {F1_OFF}")
    a(f"v_lshlrev_b32 v{vFl}, 7, v0")
    a(f"v_add_u32 v{vFl}, s{S_T0}, v{vFl}")
    a.poll(vFl, t0, 7)
    vm.reset()
    a.stamp(5)
    sHr = S_A2
    a(f"s_mul_i32 s{sHr}, s{S_RB}, {2*112}")
    a(f"s_mul_i32 s{S_T0}, s{sKQ}, 28")
    a(f"s_add_u32 s{sHr}, s{sHr}, s{S_T0}")
    a(f"s_lshl_b32 s{sHr}, s{sHr}, 10")
    if H_OFF: a(f"s_add_u32 s{sHr}, s{sHr}, {H_OFF}")
    HB, A3, ACC3 = 96, (80, 88), 192
    def h_load(ks):
        for n in range(2):
            a(f"s_add_u32 s{S_T0}, s{sHr}, s{sKH}")
            if n: a(f"s_add_u32 s{S_T0}, s{S_T0}, {112*1024}")
            a(f"buffer_load_dwordx4 {vr(HB + 8*(ks % HD) + 4*n)}, v17, s[{R_WS}:{R_WS+3}], s{S_T0} offen sc1")
            vm.issue(("h", ks))
        a(f"s_add_u32 s{sKH}, s{sKH}, 1024")
        a(f"s_cmp_eq_u32 s{sKH}, {28*1024}")
        a(f"s_cselect_b32 s{sKH}, 0, s{sKH}")
    def tr3(ks):
        s = ks & 1; so = (ks % NSLOT)*2048
        return [f"ds_read_b64_tr_b16 {vr(A3[s]+4*m+2*h, 2)}, v{(vA0, vA1)[m]} offset:{so + 1024*h}" for m in range(2) for h in range(2)]
    for ks in range(HD): h_load(ks)
    for l in tr3(0): a(l)
    for t in range(28):
        s = t & 1
        if vm.has(("h", t)): vm.wait(("h", t))
        if t + 1 < 28 and vm.has(("wd", t + 1)): vm.wait(("wd", t + 1))
        a("s_waitcnt lgkmcnt(0)")
        nxt = tr3(t + 1) if t + 1 < 28 else []
        k = 0
        for m in range(2):
            for n in range(2):
                d = ACC3 + (2*m + n)*16
                cin = "0" if t == 0 else vr(d, 16)
                a(f"v_mfma_f32_32x32x16_bf16 {vr(d,16)}, {vr(A3[s]+4*m)}, {vr(HB + 8*(t % HD) + 4*n)}, {cin}")
                if k < len(nxt): a(nxt[k]); k += 1
        if t + NSLOT < 28 and "nowd" not in a.exp: wd_dma(t + NSLOT)
        if t + HD < 28: h_load(t + HD)
        if "p3st" in a.exp and t in (0, 6, 13, 20): a.stamp(8 + (0, 6, 13, 20).index(t))
    a.stamp(6)
    a(f"v_and_b32 v{t0}, 31, v0")
    a(f"v_mul_u32_u24 v{t0}, {PROW}, v{t0}")
    a(f"v_lshrrev_b32 v{t1}, 5, v0")
    a(f"v_lshl_add_u32 v{t0}, v{t1}, 4, v{t0}")
    a(f"v_add_u32 v{t0}, s{sRing}, v{t0}")
    a("s_nop 7")
    for m in range(2):
        for n in range(2):
            d = ACC3 + (2*m + n)*16
            for j in range(4):
                a(f"ds_write_b128 v{t0}, {vr(d+4*j)} offset:{n*32*PROW + m*128 + j*32}")
    a("s_waitcnt lgkmcnt(0)")
    a("s_barrier")
    a.stamp(7)
    a.label("L_cout")
    a.stamps_out(12 if "p3st" in a.exp else 8)
    a("s_endpgm")

def aux(a):
    a.label("L_prep")
    t0, t1, t2, t3 = 4, 5, 6, 7
    sP = 2
    CSL = 0
    vCo = 14
    a(f"v_lshrrev_b32 v{t0}, 4, v0")
    a(f"v_mul_u32_u24 v{t0}, 3584, v{t0}")
    a(f"v_and_b32 v{t1}, 15, v0")
    a(f"v_lshl_add_u32 v{vCo}, v{t1}, 4, v{t0}")
    a(f"v_lshlrev_b32 v15, 4, v0")
    a("s_waitcnt lgkmcnt(0)")
    a.srd(R_WS, S_WS, WS_BYTES); a.srd(R_A, S_SK, XB); a.srd(R_B, S_WD, WB)
    a.stamp(0)
    CD, CA = 192, 248
    sC = S_A1
    a(f"s_cmp_ge_u32 s{sP}, 28")
    a("s_cbranch_scc1 L_aux_nocs")
    a(f"s_cmp_ge_u32 s{sP}, 14")
    a("s_cbranch_scc1 L_aux_up")
    a.srd(R_E, S_WG, WB)
    a(f"s_mov_b32 s{sC}, s{sP}")
    a("s_branch L_aux_cs")
    a.label("L_aux_up")
    a.srd(R_E, S_WU, WB)
    a(f"s_sub_u32 s{sC}, s{sP}, 14")
    a.label("L_aux_cs")
    a(f"s_mul_i32 s{S_T0}, s{S_WAVE}, {4*3584}")
    a(f"s_lshl_b32 s{S_T1}, s{sC}, 8")
    a(f"s_add_u32 s{S_T0}, s{S_T0}, s{S_T1}")
    for i in range(14):
        a(f"buffer_load_dwordx4 {vr(CD+4*i)}, v{vCo}, s[{R_E}:{R_E+3}], s{S_T0} offen")
        if i < 13: a(f"s_add_u32 s{S_T0}, s{S_T0}, {32*3584}")
    sLo, sHi = S_A2, S_A3
    a(f"s_mov_b32 s{sLo}, 0x00003f80")
    a(f"s_mov_b32 s{sHi}, 0x3f800000")
    for i in range(14):
        a(f"s_waitcnt vmcnt({13 - i})")
        for q in range(4):
            c0 = "0" if i == 0 else f"v{CA+2*q}"; c1 = "0" if i == 0 else f"v{CA+2*q+1}"
            a(f"v_dot2_f32_bf16 v{CA+2*q}, v{CD+4*i+q}, s{sLo}, {c0}")
            a(f"v_dot2_f32_bf16 v{CA+2*q+1}, v{CD+4*i+q}, s{sHi}, {c1}")
    a(f"v_lshrrev_b32 v{t0}, 4, v0")
    a(f"s_lshl_b32 s{S_T0}, s{S_WAVE}, 2")
    a(f"v_add_u32 v{t0}, s{S_T0}, v{t0}")
    a(f"v_lshlrev_b32 v{t0}, 9, v{t0}")
    a(f"v_and_b32 v{t1}, 15, v0")
    a(f"v_lshl_add_u32 v{t0}, v{t1}, 5, v{t0}")
    if CSL: a(f"v_add_u32 v{t0}, {CSL}, v{t0}")
    a(f"ds_write_b128 v{t0}, {vr(CA)}")
    a(f"ds_write_b128 v{t0}, {vr(CA+4)} offset:16")
    a("s_waitcnt lgkmcnt(0)")
    a("s_barrier")
    a(f"s_cmp_lg_u32 s{S_WAVE}, 7")
    a("s_cbranch_scc1 L_aux_touch")
    a(f"v_lshlrev_b32 v{t0}, 2, v0")
    if CSL: a(f"v_add_u32 v{t0}, {CSL}, v{t0}")
    for hh in range(2):
        for i in range(32):
            a(f"ds_read_b32 v{CD-64+32*hh+i}, v{t0} offset:{512*i + 256*hh}")
            if i % 8 == 7: a("s_waitcnt lgkmcnt(7)")
    a.get_nonce_spin(t1, t2)
    a("s_waitcnt lgkmcnt(0)")
    for hh in range(2):
        b = CD - 64 + 32*hh
        for st in (16, 8, 4, 2, 1):
            for i in range(st): a(f"v_add_f32 v{b+i}, v{b+i}, v{b+i+st}")
        a(f"v_mov_b32 v{b+1}, s{S_NONCE}")
    a(f"s_cmp_ge_u32 s{sP}, 14")
    a(f"s_cselect_b32 s{S_T0}, 1792, 0")
    a(f"s_lshl_b32 s{S_T1}, s{sC}, 7")
    a(f"s_add_u32 s{S_T0}, s{S_T0}, s{S_T1}")
    a(f"s_lshl_b32 s{S_T0}, s{S_T0}, 3")
    a(f"s_add_u32 s{S_T0}, s{S_T0}, {CS_OFF}")
    a(f"v_lshlrev_b32 v{t0}, 3, v0")
    a(f"buffer_store_dwordx2 {vr(CD-64, 2)}, v{t0}, s[{R_WS}:{R_WS+3}], s{S_T0} offen sc1")
    a(f"buffer_store_dwordx2 {vr(CD-32, 2)}, v{t0}, s[{R_WS}:{R_WS+3}], s{S_T0} offen offset:512 sc1")
    a("s_branch L_aux_touch")
    a.label("L_aux_nocs")
    a(f"s_cmp_lg_u32 s{sP}, 28")
    a("s_cbranch_scc1 L_aux_touch")
    a(f"s_cmp_lg_u32 s{S_WAVE}, 7")
    a("s_cbranch_scc1 L_aux_touch")
    a(f"v_mov_b32 v{t1}, {EP_OFF}")
    a(f"buffer_load_dword v{t0}, v{t1}, s[{R_WS}:{R_WS+3}], 0 offen sc1")
    a("s_waitcnt vmcnt(0)")
    a(f"v_add_u32 v{t0}, 1, v{t0}")
    a(f"v_max_u32 v{t0}, 1, v{t0}")
    a(f"v_mov_b32 v{t2}, 0")
    a("s_mov_b64 exec, 1")
    a(f"global_store_dword v{t2}, v{t0}, s[{S_DBG}:{S_DBG+1}] sc1")
    a(f"buffer_store_dword v{t0}, v{t1}, s[{R_WS}:{R_WS+3}], 0 offen sc1")
    a("s_mov_b64 exec, -1")
    a.label("L_aux_touch")
    a.stamp(1)
    a(f"s_mul_i32 s{S_T0}, s{sP}, 57344")
    a(f"s_lshl_b32 s{S_T1}, s{S_WAVE}, 10")
    a(f"s_add_u32 s{S_T0}, s{S_T0}, s{S_T1}")
    for i in range(7):
        a(f"buffer_load_dwordx4 {vr(16+4*i)}, v15, s[{R_A}:{R_A+3}], s{S_T0} offen")
        a(f"s_add_u32 s{S_T0}, s{S_T0}, 8192")
    a(f"s_mul_i32 s{S_T0}, s{sP}, 50176")
    a(f"s_add_u32 s{S_T0}, s{S_T0}, s{S_T1}")
    for i in range(7):
        a(f"buffer_load_dwordx4 {vr(48+4*i)}, v15, s[{R_B}:{R_B+3}], s{S_T0} offen")
        a(f"s_add_u32 s{S_T0}, s{S_T0}, 8192")
    a.stamp(2)
    a("s_waitcnt vmcnt(0)")
    a.stamp(3)
    a.stamps_out(4)
    a("s_endpgm")

HEADER = open(os.path.join(os.path.dirname(os.path.abspath(__file__)), "header.txt")).read()

def build(prof=False, spin=1 << 20, stop=None, exp=()):
    a = Gen(prof=prof, spin=spin, stop=stop, exp=exp)
    entry(a)
    h_wave(a)
    c_wave(a)
    aux(a)
    a.label("L_end")
    a("s_endpgm")
    txt = HEADER + f"; @launch grid=(256,1,1) block=(512,1,1) lds={LDS_BYTES}\n"
    txt += f'.amdgcn_target "amdgcn-amd-amdhsa--gfx950"\n.text\n.globl {NAME}\n.p2align 8\n.type {NAME},@function\n{NAME}:\n'
    body = [l for l in a.lines if l is not None]
    txt += "\n".join(("    " + l) if not l.endswith(":") else l for l in body) + "\n"
    txt += (f'.section .rodata,"a"\n.p2align 6\n.amdhsa_kernel {NAME}\n'
            "  .amdhsa_next_free_vgpr 256\n  .amdhsa_next_free_sgpr 102\n  .amdhsa_accum_offset 256\n"
            "  .amdhsa_group_segment_fixed_size 0\n  .amdhsa_kernarg_size 104\n  .amdhsa_user_sgpr_count 2\n"
            "  .amdhsa_user_sgpr_kernarg_segment_ptr 1\n  .amdhsa_system_sgpr_workgroup_id_x 1\n"
            "  .amdhsa_float_denorm_mode_32 3\n"
            ".end_amdhsa_kernel\n")
    return txt

if __name__ == "__main__":
    import argparse
    ap = argparse.ArgumentParser()
    ap.add_argument("-o", default="parallel_sum__ssm_conv_h3__glu_gated_reglu__prompt.s")
    ap.add_argument("--prof", nargs="?", const="rt", default=None)
    ap.add_argument("--spin", type=int, default=1 << 20)
    ap.add_argument("--stop", default=None)
    ap.add_argument("--exp", default="")
    x = ap.parse_args()
    open(x.o, "w").write(build(x.prof, x.spin, x.stop, [e for e in x.exp.split(',') if e]))
    print("wrote", x.o)
```

```python
import sys, os
sys.path.insert(0, os.path.dirname(os.path.abspath(__file__)))
from asmlib import Asm

NAME = "parallel_sum__ssm_conv_h3__glu_gated_reglu__prompt_kernel"
S, D, F = 2048, 448, 1792
XB = S * D * 2
WB = D * F * 2

H_OFF  = 0x000000
UT_OFF = 0x700000
YT_OFF = 0x8C0000
F0_OFF = 0xA80000
F1_OFF = 0xAA0000
F2_OFF = 0xAC0000
EP_OFF = 0xAE0000
SG_OFF = 0xAE8000
CS_OFF = 0xAF0000
PROF_OFF = 0xB00000
WS_BYTES = 0x10000000

XR, GR, UR = 0, 49152, 98304
SLOT = 16384
CV = 122880
KCH = 8320
UB0 = CV + 2 * KCH
UCH = 4608
EXT = 149504
XEXT, WEXT = EXT, EXT + 4096
STATS_L = 161792
NONCE_L = 162816
STG_L = 162832
CNT_L = 162944
RING = 30720
NSLOT = 15
PROW = 272
LDS_BYTES = 163840
HD = 12

S_X, S_K, S_V, S_SH, S_SK, S_SD, S_WG, S_WU, S_WD, S_OUT, S_DBG, S_WS = 4, 6, 8, 10, 12, 14, 18, 20, 22, 24, 26, 28
S_WAVE, S_NONCE = 30, 31
R_A, R_B, R_C, R_WS, R_E = 32, 36, 40, 44, 48
S_RT, S_FC, S_PAR, S_CT, S_RB, S_M = 52, 53, 54, 55, 56, 57
S_T0, S_T1, S_T2, S_T3 = 58, 59, 60, 61
S_A0, S_A1, S_A2, S_A3, S_A4, S_A5 = 62, 63, 64, 65, 66, 67
S_BND = 68
S_EX = 70
S_ST = 72

class VM:
    def __init__(self, a): self.a, self.q = a, []
    def issue(self, tag): self.q.append(tag)
    def wait(self, tag):
        idx = max(i for i, t in enumerate(self.q) if t == tag)
        n = len(self.q) - 1 - idx
        assert n <= 63, (tag, n)
        self.a(f"s_waitcnt vmcnt({n})")
        self.q = self.q[idx + 1:]
    def has(self, tag): return tag in self.q
    def drain(self):
        self.a("s_waitcnt vmcnt(0)"); self.q = []
    def reset(self): self.q = []

class Gen(Asm):
    def __init__(self, prof=False, spin=1 << 20, stop=None, exp=()):
        super().__init__()
        self.exp = set(exp)
        self.prof, self.spin, self.stop = prof, spin, stop
        self.nst = 0
    def srd(self, dst, base, nbytes):
        self(f"s_mov_b32 s{dst}, s{base}")
        self(f"s_and_b32 s{dst+1}, s{base+1}, 0xffff")
        self(f"s_mov_b32 s{dst+2}, {nbytes}")
        self(f"s_mov_b32 s{dst+3}, 0x20000")
    def stamp(self, i):
        if self.prof:
            self(f"{'s_memtime' if self.prof == 'cyc' else 's_memrealtime'} s[{S_ST+2*i}:{S_ST+2*i+1}]")
            self("s_waitcnt lgkmcnt(0)")
    def stamps_out(self, n):
        if not self.prof: return
        self("s_waitcnt vmcnt(0) lgkmcnt(0)")
        self("s_mov_b64 exec, 1")
        self(f"s_lshl_b32 s{S_T0}, s2, 3")
        self(f"s_add_u32 s{S_T0}, s{S_T0}, s{S_WAVE}")
        self(f"s_lshl_b32 s{S_T0}, s{S_T0}, 6")
        self(f"s_add_u32 s{S_T0}, s{S_T0}, {PROF_OFF}")
        self("v_mov_b32 v1, 0")
        for i in range(n):
            self(f"v_mov_b32 v2, s{S_ST+2*i}")
            self(f"buffer_store_dword v2, v1, s[{R_WS}:{R_WS+3}], s{S_T0} offen offset:{4*i}")
            self("s_nop 0")
        self("s_waitcnt vmcnt(0)")
    def poll(self, vaddr, vtmp, nlanes, sleep=1):
        L, Dn = self.uid("L_poll"), self.uid("L_polled")
        if nlanes < 64: self(f"s_mov_b64 exec, {hex((1 << nlanes) - 1)}")
        self(f"s_mov_b32 s{S_BND}, {self.spin}")
        self.label(L)
        self(f"buffer_load_dword v{vtmp}, v{vaddr}, s[{R_WS}:{R_WS+3}], 0 offen sc1")
        self("s_waitcnt vmcnt(0)")
        self(f"v_cmp_ne_u32 vcc, s{S_NONCE}, v{vtmp}")
        self("s_nop 1")
        self(f"s_cbranch_vccz {Dn}")
        self(f"s_sleep {sleep}")
        self(f"s_sub_u32 s{S_BND}, s{S_BND}, 1")
        self(f"s_cmp_lg_u32 s{S_BND}, 0")
        self(f"s_cbranch_scc1 {L}")
        self.label(Dn)
        if nlanes < 64: self("s_mov_b64 exec, -1")
    def signal(self, soff_reg, vtmp, vzero):
        self(f"v_mov_b32 v{vtmp}, s{S_NONCE}")
        self(f"v_mov_b32 v{vzero}, 0")
        self("s_mov_b64 exec, 1")
        self(f"buffer_store_dword v{vtmp}, v{vzero}, s[{R_WS}:{R_WS+3}], s{soff_reg} offen sc1")
        self("s_mov_b64 exec, -1")
    def get_nonce_spin(self, vtmp, vzero):
        L, Dn = self.uid("L_non"), self.uid("L_nond")
        self(f"s_mov_b32 s{S_BND}, {self.spin}")
        self(f"v_mov_b32 v{vzero}, 0")
        self.label(L)
        self(f"global_load_dword v{vtmp}, v{vzero}, s[{S_DBG}:{S_DBG+1}] sc1")
        self("s_waitcnt vmcnt(0)")
        self(f"v_readfirstlane_b32 s{S_NONCE}, v{vtmp}")
        self("s_nop 3")
        self(f"s_cmp_lg_u32 s{S_NONCE}, 0")
        self(f"s_cbranch_scc1 {Dn}")
        self("s_sleep 1")
        self(f"s_sub_u32 s{S_BND}, s{S_BND}, 1")
        self(f"s_cmp_lg_u32 s{S_BND}, 0")
        self(f"s_cbranch_scc1 {L}")
        self.label(Dn)

def vr(b, n=4): return f"v[{b}:{b+n-1}]"

def entry(a):
    a("s_load_dwordx16 s[4:19], s[0:1], 0")
    a("s_load_dwordx8 s[20:27], s[0:1], 64")
    a("s_load_dwordx2 s[28:29], s[0:1], 96")
    a("s_cmp_ge_u32 s2, 256")
    a("s_cbranch_scc1 L_end")
    a("v_lshrrev_b32 v1, 6, v0")
    a("v_and_b32 v0, 63, v0")
    a(f"v_readfirstlane_b32 s{S_WAVE}, v1")
    if "span" in a.exp:
        a("s_memrealtime s[88:89]")
        a(f"s_cmp_lg_u32 s{S_WAVE}, 3")
        a("s_cbranch_scc1 L_nospan")
        a("s_waitcnt lgkmcnt(0)")
        a("s_not_b32 s88, s88")
        a("v_mov_b32 v2, s88"); a("v_mov_b32 v3, 8")
        a("s_mov_b64 exec, 1")
        a(f"global_atomic_umax v3, v2, s[{S_DBG}:{S_DBG+1}]")
        a("s_mov_b64 exec, -1")
        a.label("L_nospan")
    a("s_cmp_lt_u32 s2, 32")
    a("s_cbranch_scc1 L_prep")
    a(f"s_sub_u32 s{S_M}, s2, 32")
    a(f"s_and_b32 s{S_T0}, s{S_M}, 7")
    a(f"s_lshr_b32 s{S_T1}, s{S_M}, 3")
    a(f"s_mul_i32 s{S_T2}, s{S_T1}, 37")
    a(f"s_lshr_b32 s{S_T2}, s{S_T2}, 8")
    a(f"s_mul_i32 s{S_T3}, s{S_T2}, 7")
    a(f"s_sub_u32 s{S_CT}, s{S_T1}, s{S_T3}")
    a(f"s_and_b32 s{S_PAR}, s{S_T0}, 1")
    a(f"s_lshr_b32 s{S_T0}, s{S_T0}, 1")
    a(f"s_lshl_b32 s{S_T0}, s{S_T0}, 2")
    a(f"s_add_u32 s{S_RT}, s{S_T0}, s{S_T2}")
    a(f"s_mul_i32 s{S_T0}, s{S_PAR}, 7")
    a(f"s_add_u32 s{S_FC}, s{S_T0}, s{S_CT}")
    a(f"s_lshl_b32 s{S_RB}, s{S_RT}, 1")
    a(f"s_add_u32 s{S_RB}, s{S_RB}, s{S_PAR}")
    a(f"s_cmp_lt_u32 s{S_WAVE}, 4")
    a("s_cbranch_scc1 L_cwave")

def w_tr_lane_consts(a, vbase, vt1, t0, t1):
    a(f"v_bfe_u32 v{t0}, v0, 2, 2")
    a(f"v_bfe_u32 v{t1}, v0, 1, 1")
    a(f"v_lshlrev_b32 v{vt1}, 1, v{t0}")
    a(f"v_xor_b32 v{vt1}, v{vt1}, v{t1}")
    a(f"v_bfe_u32 v{t1}, v0, 4, 1")
    a(f"v_lshlrev_b32 v{vbase}, 3, v{t1}")
    a(f"v_xor_b32 v{vt1}, v{vt1}, v{vbase}")
    a(f"v_mul_u32_u24 v{vbase}, {UR-GR}, v{t1}")
    a(f"v_lshrrev_b32 v{t1}, 5, v0")
    a(f"v_lshl_add_u32 v{t0}, v{t1}, 3, v{t0}")
    a(f"v_lshl_add_u32 v{vbase}, v{t0}, 8, v{vbase}")
    a(f"v_and_b32 v{t0}, 1, v0")
    a(f"v_lshl_add_u32 v{vbase}, v{t0}, 3, v{vbase}")
    a(f"v_add_u32 v{vbase}, {GR}, v{vbase}")

def x_frag_addrs(a, vdst, srowbase, t0, t1, t2):
    a(f"v_and_b32 v{t0}, 31, v0")
    a(f"v_bfe_u32 v{t1}, v0, 1, 3")
    a(f"v_add_u32 v{t0}, s{srowbase}, v{t0}")
    a(f"v_lshlrev_b32 v{t0}, 7, v{t0}")
    a(f"v_lshrrev_b32 v{t2}, 5, v0")
    a(f"v_xor_b32 v{t1}, v{t1}, v{t2}")
    for ks in range(4):
        a(f"v_xor_b32 v{t2}, {2*ks}, v{t1}")
        a(f"v_lshl_add_u32 v{vdst+ks}, v{t2}, 4, v{t0}")

def h_wave(a):
    vm = VM(a)
    vXi, vGi, vUi = 4, 8, 12
    vnon, vCA, vSA, vUo, vF0a, vF0d = 16, 17, 19, 20, 22, 23
    vCS, vST = 24, 28
    vKA_, vKB_ = 32, 48
    t0, t1, t2, t3 = 64, 65, 66, 67
    vh, vl, e0 = 68, 69, 72
    w = S_A0
    a(f"s_sub_u32 s{w}, s{S_WAVE}, 4")
    if "noprio" not in a.exp: a("s_setprio 2")
    a(f"v_lshrrev_b32 v{t0}, 3, v0")
    a(f"v_mul_u32_u24 v{t0}, 896, v{t0}")
    a(f"v_lshrrev_b32 v{t1}, 4, v0")
    a(f"v_and_b32 v{t2}, 7, v0")
    a(f"v_xor_b32 v{t2}, v{t2}, v{t1}")
    a(f"v_lshl_add_u32 v{vXi}, v{t2}, 4, v{t0}")
    a(f"v_xor_b32 v{t2}, 4, v{t2}")
    a(f"v_lshl_add_u32 v{vXi+1}, v{t2}, 4, v{t0}")
    a(f"v_add_u32 v{vXi+1}, {8*896}, v{vXi+1}")
    a(f"v_add_u32 v{vXi+2}, {16*896}, v{vXi}")
    a(f"v_add_u32 v{vXi+3}, {16*896}, v{vXi+1}")
    a(f"v_mul_u32_u24 v{t0}, 3584, v{t1}")
    a(f"v_and_b32 v{t2}, 15, v0")
    a(f"v_lshlrev_b32 v{t3}, 1, v{t1}")
    a(f"v_xor_b32 v{t2}, v{t2}, v{t3}")
    a(f"v_lshl_add_u32 v{vGi}, v{t2}, 4, v{t0}")
    a(f"v_xor_b32 v{t2}, 8, v{t2}")
    a(f"v_lshl_add_u32 v{vUi}, v{t2}, 4, v{t0}")
    for i in range(1, 4):
        a(f"v_add_u32 v{vGi+i}, {i*4*3584}, v{vGi}")
        a(f"v_add_u32 v{vUi+i}, {i*4*3584}, v{vUi}")
    sXs, sXd, sWs, sGd, sUd = S_A1, S_A2, S_A3, S_A4, S_A5
    a(f"s_lshl_b32 s{S_T0}, s{S_RT}, 7")
    a(f"s_lshl_b32 s{S_T1}, s{w}, 5")
    a(f"s_add_u32 s{S_T0}, s{S_T0}, s{S_T1}")
    a(f"s_mul_i32 s{sXs}, s{S_T0}, 896")
    a(f"s_lshl_b32 s{sXd}, s{w}, 12")
    a(f"s_mul_i32 s{S_T0}, s{w}, {16*3584}")
    a(f"s_lshl_b32 s{S_T1}, s{S_FC}, 8")
    a(f"s_add_u32 s{sWs}, s{S_T0}, s{S_T1}")
    a(f"s_add_u32 s{sGd}, s{sXd}, {GR}")
    a(f"s_add_u32 s{sUd}, s{sXd}, {UR}")
    a("s_waitcnt lgkmcnt(0)")
    a.srd(R_A, S_X, XB); a.srd(R_B, S_WG, WB); a.srd(R_C, S_WU, WB)
    def issue_stage(st, fill=()):
        slot = st % 3
        fill = list(fill)
        G = [(sXd, vXi + i, R_A, S_T0, i) for i in range(4)] + [(sGd, vGi + i, R_B, S_T1, i) for i in range(4)] + [(sUd, vUi + i, R_C, S_T1, i) for i in range(4)]
        a(f"s_add_u32 s{S_T0}, s{sXs}, {st*128}")
        a(f"s_add_u32 s{S_T1}, s{sWs}, {64*st*3584}")
        per = -(-len(fill) // len(G)) if fill else 0
        def emit(l):
            if callable(l): l()
            else: a(l)
        for (dst, voff, srd, so, i) in G:
            a(f"s_add_u32 m0, s{dst}, {slot*SLOT + i*1024}")
            chunk = fill[:per]; fill = fill[per:]
            if chunk and not callable(chunk[0]) and chunk[0].startswith("v_"):
                emit(chunk[0]); chunk = chunk[1:]
            else: a("s_nop 0")
            a(f"buffer_load_dwordx4 v{voff}, s[{srd}:{srd+3}], s{so} offen lds")
            vm.issue(("st", st))
            for l in chunk: emit(l)
        assert not fill
    for st in range(2): issue_stage(st)
    a.stamp(0)
    a.srd(R_WS, S_WS, WS_BYTES)
    a(f"v_mov_b32 v{t0}, {CNT_L}")
    a(f"v_mov_b32 v{t2}, 0")
    a(f"v_mov_b32 v{t3}, 0")
    a(f"ds_write_b64 v{t0}, {vr(t2, 2)}")
    a(f"v_bfe_u32 v{t0}, v0, 4, 1")
    a(f"v_mul_u32_u24 v{t0}, 1792, v{t0}")
    a(f"v_and_b32 v{t1}, 15, v0")
    a(f"v_add_u32 v{t0}, v{t0}, v{t1}")
    a(f"s_lshl_b32 s{S_T1}, s{S_FC}, 7")
    a(f"s_lshl_b32 s{S_T2}, s{w}, 5")
    a(f"s_add_u32 s{S_T1}, s{S_T1}, s{S_T2}")
    a(f"v_add_u32 v{t0}, s{S_T1}, v{t0}")
    a(f"v_lshlrev_b32 v{t0}, 3, v{t0}")
    a(f"v_add_u32 v{vCA}, {CS_OFF}, v{t0}")
    a(f"v_add_u32 v{vCA+1}, 128, v{vCA}")
    a(f"s_lshl_b32 s{S_T1}, s{S_RT}, 7")
    a(f"s_add_u32 s{S_T1}, s{S_T1}, s{S_T2}")
    a(f"v_and_b32 v{t0}, 31, v0")
    a(f"v_add_u32 v{t0}, s{S_T1}, v{t0}")
    a(f"v_lshlrev_b32 v{t0}, 4, v{t0}")
    a(f"v_add_u32 v{vSA}, {SG_OFF}, v{t0}")
    sTB, sCG = S_T2, S_T3
    a(f"s_mul_i32 s{sTB}, s{S_M}, 9363")
    a(f"s_lshr_b32 s{sTB}, s{sTB}, 16")
    a(f"s_mul_i32 s{S_T1}, s{sTB}, 7")
    a(f"s_sub_u32 s{sCG}, s{S_M}, s{S_T1}")
    sF0 = 69
    a(f"s_lshl_b32 s{S_T1}, s{sCG}, 2")
    a(f"s_add_u32 s{S_T1}, s{S_T1}, s{w}")
    a(f"s_lshl_b32 s{S_T1}, s{S_T1}, 5")
    a(f"s_add_u32 s{S_T1}, s{S_T1}, s{sTB}")
    a(f"s_lshl_b32 s{S_T1}, s{S_T1}, 2")
    a(f"s_add_u32 s{sF0}, s{S_T1}, {F0_OFF}")
    a(f"s_lshl_b32 s{S_T1}, s{sCG}, 6")
    a(f"s_lshl_b32 s{S_T0}, s{w}, 4")
    a(f"s_add_u32 s{S_T1}, s{S_T1}, s{S_T0}")
    a(f"v_lshrrev_b32 v{t0}, 3, v0")
    a(f"v_add_u32 v{t0}, s{S_T1}, v{t0}")
    a(f"v_lshlrev_b32 v{t0}, 12, v{t0}")
    a(f"s_lshl_b32 s{S_T1}, s{sTB}, 7")
    a(f"s_add_u32 s{S_T1}, s{S_T1}, {UT_OFF}")
    a(f"v_add_u32 v{t0}, s{S_T1}, v{t0}")
    a(f"v_and_b32 v{t1}, 7, v0")
    a(f"s_lshl_b32 s{S_T1}, s{w}, 1")
    a(f"v_xor_b32 v{t1}, s{S_T1}, v{t1}")
    a(f"v_lshl_add_u32 v{vUo}, v{t1}, 4, v{t0}")
    a(f"v_xor_b32 v{t1}, 1, v{t1}")
    a(f"v_lshl_add_u32 v{vUo+1}, v{t1}, 4, v{t0}")
    a(f"v_add_u32 v{vUo+1}, {8*4096}, v{vUo+1}")
    KR, VR, WR, KF, WF, AC = 120, 140, 148, 164, 174, 182
    vKo, vKv, vKw, vT = 184, 187, 188, 189
    a(f"s_lshl_b32 s{S_T0}, s{sTB}, 6")
    a(f"s_lshl_b32 s{S_T1}, s{w}, 4")
    a(f"s_add_u32 s{S_T0}, s{S_T0}, s{S_T1}")
    a(f"v_lshrrev_b32 v{t0}, 3, v0")
    a(f"v_lshl_add_u32 v{t1}, v{t0}, 1, s{S_T0}")
    a(f"v_and_b32 v{t2}, 7, v0")
    a(f"s_lshl_b32 s{S_T1}, s{sCG}, 7")
    a(f"v_lshl_add_u32 v{t3}, v{t2}, 4, s{S_T1}")
    a(f"v_mov_b32 v{vT}, 896")
    a(f"v_mad_u32_u24 v{vKv}, v{t1}, v{vT}, v{t3}")
    for i in range(3):
        a(f"v_cmp_gt_u32 vcc, {3-i}, v{t1}")
        a(f"v_subrev_u32 v{vKo+i}, {(3-i)*896}, v{vKv}")
        a(f"v_mov_b32 v{vT}, 0x40000000")
        a(f"v_cndmask_b32 v{vKo+i}, v{vKo+i}, v{vT}, vcc")
    a(f"s_lshl_b32 s{S_T1}, s{sCG}, 9")
    a(f"v_lshl_add_u32 v{vKw}, v{t2}, 6, s{S_T1}")
    a(f"v_lshrrev_b32 v{t1}, 2, v{t0}")
    a(f"s_lshl_b32 s{S_T1}, s{w}, 1")
    a(f"v_add_u32 v{t1}, s{S_T1}, v{t1}")
    a(f"v_xor_b32 v{t1}, v{t1}, v{t2}")
    a(f"v_lshlrev_b32 v{t1}, 4, v{t1}")
    a(f"v_lshl_add_u32 v{t1}, v{t2}, 10, v{t1}")
    a(f"v_and_b32 v{t0}, 3, v{t0}")
    a(f"v_sub_u32 v{t0}, 3, v{t0}")
    a(f"v_lshl_add_u32 v{t1}, v{t0}, 2, v{t1}")
    a(f"v_add_u32 v{vT}, {EXT}, v{t1}")
    a.srd(92, S_K, XB); a.srd(96, S_V, XB); a.srd(R_E, S_SH, D*4*2)
    sCH, sRH = 100, 101
    a(f"s_lshr_b32 s{S_T1}, s{w}, 1")
    a(f"s_lshl_b32 s{sCH}, s{S_M}, 1")
    a(f"s_add_u32 s{sCH}, s{sCH}, s{S_T1}")
    a(f"s_and_b32 s{sRH}, s{w}, 1")
    a(f"s_lshr_b32 s{S_T1}, s{sCH}, 4")
    a(f"s_lshl_b32 s{S_T1}, s{S_T1}, 7")
    a(f"s_add_u32 s{S_T1}, s{S_T1}, {F0_OFF}")
    a(f"v_and_b32 v{t0}, 31, v0")
    a(f"v_lshlrev_b32 v{t0}, 2, v{t0}")
    a(f"v_add_u32 v{vF0a}, s{S_T1}, v{t0}")
    def kv_loads():
        for i in range(3):
            a(f"buffer_load_dwordx4 {vr(KR+4*i)}, v{vKo+i}, s[92:95], 0 offen"); vm.issue("kvl")
        for i in range(2):
            a(f"buffer_load_dwordx4 {vr(KR+12+4*i)}, v{vKv}, s[92:95], 0 offen offset:{896*i}"); vm.issue("kvl")
        for i in range(2):
            a(f"buffer_load_dwordx4 {vr(VR+4*i)}, v{vKv}, s[96:99], 0 offen offset:{896*i}"); vm.issue("kvl")
        for i in range(4):
            a(f"buffer_load_dwordx4 {vr(WR+4*i)}, v{vKw}, s[{R_E}:{R_E+3}], 0 offen offset:{16*i}"); vm.issue("kvl")
        a.srd(R_E, S_SK, XB)
    def kv_valu(j):
        L = []
        for c in range(2):
            ch = 2*j + c
            L += [f"v_lshlrev_b32 v{WF+4*c}, 16, v{WR+2*ch}", f"v_and_b32 v{WF+4*c+1}, 0xffff0000, v{WR+2*ch}",
                  f"v_lshlrev_b32 v{WF+4*c+2}, 16, v{WR+2*ch+1}", f"v_and_b32 v{WF+4*c+3}, 0xffff0000, v{WR+2*ch+1}"]
        for i in range(5):
            L += [f"v_lshlrev_b32 v{KF+i}, 16, v{KR+4*i+j}", f"v_and_b32 v{KF+5+i}, 0xffff0000, v{KR+4*i+j}"]
        for c in range(2):
            kf, wf = KF + 5*c, WF + 4*c
            L += [f"v_mul_f32 v{AC+t}, v{wf}, v{kf+3+t}" for t in range(2)]
            for tap in range(1, 4):
                L += [f"v_fmac_f32 v{AC+t}, v{wf+tap}, v{kf+3+t-tap}" for t in range(2)]
            for t in range(2):
                L.append(f"v_and_b32 v{kf+t}, 0xffff0000, v{VR+4*t+j}" if c else f"v_lshlrev_b32 v{kf+t}, 16, v{VR+4*t+j}")
            L += [f"v_mul_f32 v{AC+t}, v{AC+t}, v{kf+t}" for t in range(2)]
            L += [f"v_cvt_pk_bf16_f32 v{kf+2}, v{AC+1}, v{AC}", f"ds_write_b32 v{vT}, v{kf+2} offset:{128*(2*j+c)}"]
        return L
    def cs_load():
        for e in range(2):
            a(f"buffer_load_dwordx2 {vr(vCS+2*e, 2)}, v{vCA+e}, s[{R_WS}:{R_WS+3}], 0 offen sc1"); vm.issue("cs")
    def sg_load():
        a(f"buffer_load_dwordx4 {vr(vST)}, v{vSA}, s[{R_WS}:{R_WS+3}], 0 offen sc1"); vm.issue("sg")
    def tag_check(regs, reload):
        L, Dn = a.uid("L_tag"), a.uid("L_tagd")
        a(f"s_mov_b32 s{S_BND}, {a.spin}")
        a.label(L)
        a(f"v_cmp_ne_u32 vcc, s{S_NONCE}, v{regs[0]}")
        a(f"v_cmp_ne_u32 s[{S_EX}:{S_EX+1}], s{S_NONCE}, v{regs[1]}")
        a("s_nop 1")
        a(f"s_or_b64 vcc, vcc, s[{S_EX}:{S_EX+1}]")
        a(f"s_cbranch_vccz {Dn}")
        keep = list(vm.q); reload()
        a("s_waitcnt vmcnt(0)")
        vm.q = keep
        a(f"s_sub_u32 s{S_BND}, s{S_BND}, 1")
        a(f"s_cmp_lg_u32 s{S_BND}, 0")
        a(f"s_cbranch_scc1 {L}")
        a.label(Dn)
    def split(vsrc, neg):
        sg = "-" if neg else ""
        a(f"v_cvt_pk_bf16_f32 v{vh}, {sg}v{vsrc}, {sg}v{vsrc}")
        a(f"v_and_b32 v{t2}, 0xffff0000, v{vh}")
        a(f"v_sub_f32_e64 v{t2}, {sg}v{vsrc}, v{t2}")
        a(f"v_cvt_pk_bf16_f32 v{vl}, v{t2}, v{t2}")
    for st in range(7):
        vm.wait(("st", st))
        if a.stop == "p1": a.stamp(3 + st)
        a("s_barrier")
        fill = []
        if st == 1:
            a(f"v_mov_b32 v{t0}, 0")
            a(f"global_load_dword v{vnon}, v{t0}, s[{S_DBG}:{S_DBG+1}] sc1"); vm.issue("non")
        if st == 2: fill = [lambda: vm.wait("kvl")] + kv_valu(0) + kv_valu(1)
        if st == 3:
            assert not vm.has("non")
            Lok = a.uid("L_nonok")
            a(f"v_readfirstlane_b32 s{S_NONCE}, v{vnon}")
            a("s_nop 3")
            a(f"s_cmp_lg_u32 s{S_NONCE}, 0")
            a(f"s_cbranch_scc1 {Lok}")
            a.get_nonce_spin(vnon, t0)
            a.label(Lok)
            a(f"v_mov_b32 v{t0}, s{S_NONCE}")
            a(f"v_mov_b32 v{t1}, {NONCE_L}")
            a(f"ds_write_b32 v{t1}, v{t0}")
            Lns = a.uid("L_nosg")
            a(f"s_cmp_lg_u32 s{w}, 0")
            a(f"s_cbranch_scc1 {Lns}")
            a(f"v_lshlrev_b32 v{t0}, 3, v0")
            a(f"v_add_u32 v{t0}, {STG_L}, v{t0}")
            a(f"ds_read_b64 {vr(t2, 2)}, v{t0}")
            a(f"v_and_b32 v{t0}, 3, v0")
            a(f"v_lshrrev_b32 v{t1}, 2, v0")
            a(f"v_mul_u32_u24 v{t1}, 56, v{t1}")
            a(f"v_add_u32 v{t0}, v{t0}, v{t1}")
            a(f"s_lshl_b32 s{S_T1}, s{S_FC}, 2")
            a(f"v_add_u32 v{t0}, s{S_T1}, v{t0}")
            a(f"v_cmp_gt_u32 vcc, 128, v{t0}")
            a(f"s_lshl_b32 s{S_T1}, s{S_RT}, 7")
            a(f"v_add_u32 v{t0}, s{S_T1}, v{t0}")
            a(f"v_lshlrev_b32 v{t0}, 4, v{t0}")
            a(f"v_add_u32 v{t0}, {SG_OFF}, v{t0}")
            a("s_and_b64 vcc, vcc, 0xfff")
            a("s_waitcnt lgkmcnt(0)")
            a(f"v_mov_b32 v{vST}, v{t2}")
            a(f"v_mov_b32 v{vST+1}, s{S_NONCE}")
            a(f"v_mov_b32 v{vST+2}, v{t3}")
            a(f"v_mov_b32 v{vST+3}, s{S_NONCE}")
            a("s_mov_b64 exec, vcc")
            a(f"buffer_store_dwordx4 {vr(vST)}, v{t0}, s[{R_WS}:{R_WS+3}], 0 offen sc1")
            a("s_mov_b64 exec, -1")
            a.label(Lns)
            fill = kv_valu(2) + kv_valu(3) + ["s_waitcnt lgkmcnt(0)"]
        if st == 4:
            a(f"s_lshl_b32 s{S_T1}, s{w}, 11")
            a(f"s_add_u32 s{S_T1}, s{S_T1}, {EXT}")
            a(f"v_lshlrev_b32 v{t0}, 4, v0")
            a(f"v_add_u32 v{t0}, s{S_T1}, v{t0}")
            a(f"ds_read_b128 {vr(84)}, v{t0}")
            a(f"ds_read_b128 {vr(88)}, v{t0} offset:1024")
            a("s_waitcnt lgkmcnt(0)")
            for i in range(2):
                a(f"buffer_store_dwordx4 {vr(84+4*i)}, v{vUo+i}, s[{R_WS}:{R_WS+3}], 0 offen sc1"); vm.issue("ut")
            cs_load()
        if st <= 4: issue_stage(st + 2, fill)
        if st == 0: kv_loads()
        if st == 5:
            vm.wait("cs")
            a.signal(sF0, t0, t1); vm.issue("sig")
            sg_load()
            a(f"s_lshl_b32 s{S_T1}, s{sCH}, 12")
            a(f"v_lshlrev_b32 v{t0}, 4, v0")
            a(f"v_add_u32 v{t1}, 4, v{t0}")
            for i in range(4):
                a(f"buffer_load_dwordx4 {vr(vKA_+4*i)}, v{t0}, s[{R_E}:{R_E+3}], s{S_T1} offen offset:{1024*i}"); vm.issue("K")
                a(f"buffer_load_dwordx4 {vr(vKB_+4*i)}, v{t1}, s[{R_E}:{R_E+3}], s{S_T1} offen offset:{1024*i}"); vm.issue("K")
            tag_check((vCS + 1, vCS + 3), cs_load)
            a("v_cmp_gt_u32 vcc, 32, v0")
            a(f"v_lshlrev_b32 v{t3}, 4, v0")
            a(f"s_lshl_b32 s{S_T1}, s{w}, 11")
            a(f"s_add_u32 s{S_T1}, s{S_T1}, {WEXT}")
            a(f"v_add_u32 v{t1}, s{S_T1}, v{t3}")
            for e in range(2):
                f0 = e0 + 4*e
                split(vCS + 2*e, False)
                a(f"v_and_b32 v{t2}, 0xffff, v{vl}")
                a(f"v_cndmask_b32 v{f0}, 0, v{vh}, vcc")
                a(f"v_cndmask_b32 v{f0+1}, 0, v{t2}, vcc")
                a(f"v_mov_b32 v{f0+2}, 0")
                a(f"v_mov_b32 v{f0+3}, 0")
                a(f"ds_write_b128 v{t1}, {vr(f0)} offset:{1024*e}")
            a(f"buffer_load_dword v{vF0d}, v{vF0a}, s[{R_WS}:{R_WS+3}], 0 offen sc1"); vm.issue("f0")
    a.stamp(1)
    vm.wait("sg")
    tag_check((vST + 1, vST + 3), sg_load)
    a(f"v_mov_b32 v{vST+1}, v{vST+2}")
    a(f"v_and_b32 v{t1}, 31, v0")
    a(f"s_lshl_b32 s{S_T1}, s{w}, 8")
    a(f"v_lshl_add_u32 v{t1}, v{t1}, 3, s{S_T1}")
    a(f"v_add_u32 v{t1}, {STATS_L}, v{t1}")
    a(f"ds_write_b64 v{t1}, {vr(vST, 2)}")
    a("v_cmp_gt_u32 vcc, 32, v0")
    split(vST, True)
    a(f"v_and_b32 v{t2}, 0xffff, v{vh}")
    a(f"v_lshlrev_b32 v{t1}, 16, v{vl}")
    a(f"v_or_b32 v{t1}, v{t1}, v{t2}")
    a(f"v_cndmask_b32 v{e0+8}, 0, v{t1}, vcc")
    a(f"v_cndmask_b32 v{e0+9}, 0, v{t2}, vcc")
    a(f"v_mov_b32 v{e0+10}, 0")
    a(f"v_mov_b32 v{e0+11}, 0")
    a(f"v_lshlrev_b32 v{t3}, 4, v0")
    a(f"s_lshl_b32 s{S_T1}, s{w}, 10")
    a(f"s_add_u32 s{S_T1}, s{S_T1}, {XEXT}")
    a(f"v_add_u32 v{t1}, s{S_T1}, v{t3}")
    a(f"ds_write_b128 v{t1}, {vr(e0+8)}")
    sUB, sKC, sUok = S_A2, S_A1, S_A3
    a(f"s_lshr_b32 s{S_T0}, s{w}, 1")
    a(f"s_mul_i32 s{sUB}, s{S_T0}, {UCH}")
    a(f"s_add_u32 s{sUB}, s{sUB}, {UB0}")
    a(f"s_mul_i32 s{sKC}, s{S_T0}, {KCH}")
    a(f"s_add_u32 s{sKC}, s{sKC}, {CV}")
    def u_dma():
        a(f"s_lshl_b32 s{S_T1}, s{sCH}, 12")
        a(f"s_add_u32 s{S_T1}, s{S_T1}, {UT_OFF}")
        a(f"v_lshlrev_b32 v{t0}, 4, v0")
        for i in range(4):
            a(f"s_add_u32 m0, s{sUB}, {512 + 1024*i}")
            a(f"s_add_u32 s{S_T2}, s{S_T1}, {1024*i}")
            a(f"buffer_load_dwordx4 v{t0}, s[{R_WS}:{R_WS+3}], s{S_T2} offen sc1 lds")
    vm.wait("f0")
    a(f"v_cmp_ne_u32 vcc, s{S_NONCE}, v{vF0d}")
    a(f"s_mov_b32 s{sUok}, 0")
    a("s_nop 0")
    Lnu = a.uid("L_nou")
    a(f"s_cbranch_vccnz {Lnu}")
    a(f"s_mov_b32 s{sUok}, 1")
    u_dma()
    a.label(Lnu)
    vm.reset()
    a(f"v_add_u32 v{t1}, s{sKC}, v{t3}")
    Lc1, Lcd = a.uid("L_copy1"), a.uid("L_copyd")
    a(f"s_cmp_eq_u32 s{sRH}, 1")
    a(f"s_cbranch_scc1 {Lc1}")
    for i in range(4):
        a(f"ds_write_b128 v{t1}, {vr(vKA_+4*i)} offset:{32 + 1024*i}")
    a(f"v_mov_b32 v{e0}, 0")
    a(f"v_mov_b32 v{e0+1}, 0")
    a(f"v_lshlrev_b32 v{t1}, 3, v0")
    a(f"v_add_u32 v{t2}, s{sUB}, v{t1}")
    a(f"ds_write_b64 v{t2}, {vr(e0, 2)}")
    a(f"v_add_u32 v{t2}, s{sKC}, v{t1}")
    a("s_mov_b64 exec, 0xf")
    a(f"ds_write_b64 v{t2}, {vr(e0, 2)}")
    a("s_mov_b64 exec, -1")
    a(f"s_branch {Lcd}")
    a.label(Lc1)
    a(f"v_lshlrev_b32 v{t2}, 16, v{vKA_}")
    for i in range(4):
        for j in range(4):
            a(f"v_alignbit_b32 v{vKB_+4*i+j}, v{vKB_+4*i+j}, v{vKA_+4*i+j}, 16")
    for i in range(4):
        a(f"ds_write_b128 v{t1}, {vr(vKB_+4*i)} offset:{4160 + 32 + 1024*i}")
    a(f"v_readfirstlane_b32 s{S_T1}, v{t2}")
    a(f"v_lshlrev_b32 v{t1}, 2, v0")
    a(f"v_add_u32 v{t1}, s{sKC}, v{t1}")
    a("v_cmp_eq_u32 vcc, 7, v0")
    a(f"v_mov_b32 v{t2}, s{S_T1}")
    a("s_nop 0")
    a(f"v_cndmask_b32 v{t2}, 0, v{t2}, vcc")
    a("s_mov_b64 exec, 0xff")
    a(f"ds_write_b32 v{t1}, v{t2} offset:4160")
    a("s_mov_b64 exec, -1")
    a.label(Lcd)
    a("s_waitcnt lgkmcnt(0)")
    a("s_barrier")
    a.stamp(2)
    if a.stop == "p1":
        a("s_waitcnt vmcnt(0)"); a("s_barrier"); a.stamps_out(10); a("s_endpgm"); return
    Lgo = a.uid("L_ugo")
    a(f"s_cmp_eq_u32 s{sUok}, 1")
    a(f"s_cbranch_scc1 {Lgo}")
    a.poll(vF0a, t1, 64)
    u_dma()
    a.label(Lgo)
    a.stamp(3)
    if "noconv" not in a.exp: conv(a, w, sCH, sRH, sUB, sKC)
    a.stamp(5)
    final_h(a, w)

def lds_pair_sync(a, vaddr, vone, vtmp, target):
    L, Dn = a.uid("L_ps"), a.uid("L_psd")
    a("s_mov_b64 exec, 1")
    a(f"ds_add_u32 v{vaddr}, v{vone}")
    a("s_mov_b64 exec, -1")
    a(f"s_mov_b32 s{S_BND}, {a.spin}")
    a.label(L)
    a(f"ds_read_b32 v{vtmp}, v{vaddr}")
    a("s_waitcnt lgkmcnt(0)")
    a(f"v_readfirstlane_b32 s{S_T0}, v{vtmp}")
    a("s_nop 0")
    a(f"s_cmp_ge_u32 s{S_T0}, {target}")
    a(f"s_cbranch_scc1 {Dn}")
    a(f"s_sub_u32 s{S_BND}, s{S_BND}, 1")
    a(f"s_cmp_lg_u32 s{S_BND}, 0")
    a(f"s_cbranch_scc1 {L}")
    a.label(Dn)

def conv(a, w, sCH, sRH, sUB, sKC):
    t0, t1, t2, t3 = 64, 65, 66, 67
    a(f"s_lshl_b32 s{S_T0}, s{S_M}, 2")
    a(f"s_load_dword s{S_A4}, s[{S_SD}:{S_SD+1}], s{S_T0}")
    vKA, vUB = 8, 12
    a(f"v_and_b32 v{t0}, 15, v0")
    a(f"v_lshrrev_b32 v{t1}, 5, v0")
    a(f"v_bfe_u32 v{t2}, v0, 4, 1")
    a(f"v_lshlrev_b32 v{t3}, 4, v{t1}")
    a(f"v_add_u32 v{t3}, v{t3}, v{t0}")
    a(f"v_add_u32 v{t3}, 9, v{t3}")
    a(f"v_lshlrev_b32 v{vUB}, 3, v{t2}")
    a(f"v_sub_u32 v{t3}, v{t3}, v{vUB}")
    a(f"v_and_b32 v{vUB}, 1, v{t3}")
    a(f"v_mul_u32_u24 v{vUB}, 4158, v{vUB}")
    a(f"v_lshl_add_u32 v{t3}, v{t3}, 1, v{vUB}")
    a(f"s_lshl_b32 s{S_T1}, s{sRH}, 8")
    a(f"s_add_u32 s{S_T2}, s{sKC}, s{S_T1}")
    a(f"v_add_u32 v{vKA}, s{S_T2}, v{t3}")
    for i in range(1, 4): a(f"v_add_u32 v{vKA+i}, {1024*i}, v{vKA}")
    a(f"v_sub_u32 v{t3}, v{t0}, v{t1}")
    a(f"v_lshlrev_b32 v{t3}, 5, v{t3}")
    a(f"v_lshl_add_u32 v{t3}, v{t2}, 4, v{t3}")
    a(f"v_add_u32 v{t3}, {64 + 256}, v{t3}")
    a(f"s_sub_u32 s{S_T2}, s{sUB}, s{S_T1}")
    a(f"v_add_u32 v{vUB}, s{S_T2}, v{t3}")
    vUE, vYO, vXA, vCN, vOne = 13, 14, 15, 16, 17
    a(f"v_lshlrev_b32 v{t3}, 5, v{t0}")
    a(f"v_lshl_add_u32 v{t3}, v{t1}, 4, v{t3}")
    a(f"v_lshlrev_b32 v{vUE}, 3, v{t2}")
    a(f"v_sub_u32 v{t3}, v{t3}, v{vUE}")
    a(f"v_add_u32 v{t3}, 520, v{t3}")
    a(f"s_lshl_b32 s{S_T1}, s{sRH}, 11")
    a(f"s_add_u32 s{S_T2}, s{sUB}, s{S_T1}")
    a(f"v_add_u32 v{vUE}, s{S_T2}, v{t3}")
    a(f"v_lshrrev_b32 v{t3}, 4, v0")
    a(f"v_lshlrev_b32 v{t3}, 3, v{t3}")
    a(f"v_lshl_add_u32 v{vYO}, v{t0}, 5, v{t3}")
    a(f"v_lshlrev_b32 v{t3}, 4, v0")
    a(f"v_add_u32 v{vXA}, s{sKC}, v{t3}")
    a(f"s_lshr_b32 s{S_T1}, s{w}, 1")
    a(f"s_lshl_b32 s{S_T1}, s{S_T1}, 2")
    a(f"s_add_u32 s{S_T1}, s{S_T1}, {CNT_L}")
    a(f"v_mov_b32 v{vCN}, s{S_T1}")
    a(f"v_mov_b32 v{vOne}, 1")
    a("s_waitcnt vmcnt(0) lgkmcnt(0)")
    a.stamp(4)
    ACC = 224
    AS, BS = (96, 160), (128, 192)
    def loads(rr):
        s = rr & 1; L = []
        for x in range(8):
            L.append(f"ds_read_b128 {vr(BS[s]+4*x)}, v{vUB} offset:{512*x + 64*(3-rr)}")
            o = 128*(x & 1) + 16*rr
            L.append(f"ds_read2_b32 {vr(AS[s]+4*x, 2)}, v{vKA+(x>>1)} offset0:{o} offset1:{o+1}")
            L.append(f"ds_read2_b32 {vr(AS[s]+4*x+2, 2)}, v{vKA+(x>>1)} offset0:{o+2} offset1:{o+3}")
        return L
    for l in loads(0): a(l)
    for rr in range(4):
        a("s_waitcnt lgkmcnt(0)")
        nxt = loads(rr + 1) if rr < 3 else []
        s = rr & 1; k = 0
        for x in range(8):
            for c in range(x, 8):
                cin = "0" if (rr == 0 and x == 0) else vr(ACC+4*c)
                a(f"v_mfma_f32_16x16x32_bf16 {vr(ACC+4*c)}, {vr(AS[s]+4*x)}, {vr(BS[s]+4*(c-x))}, {cin}")
                if nxt and k < len(nxt): a(nxt[k]); k += 1
        while nxt and k < len(nxt): a(nxt[k]); k += 1
    a.stamp(9)
    lds_pair_sync(a, vCN, vOne, t0, 2)
    Lr1, Lrd = a.uid("L_r1"), a.uid("L_rd")
    a(f"s_cmp_eq_u32 s{sRH}, 1")
    a(f"s_cbranch_scc1 {Lr1}")
    for c in range(4): a(f"ds_write_b128 v{vXA}, {vr(ACC+16+4*c)} offset:{1024*c}")
    a(f"s_branch {Lrd}")
    a.label(Lr1)
    for c in range(4):
        a(f"ds_write_b128 v{vXA}, {vr(ACC+4*c)} offset:{4096 + 1024*c}")
    a("s_waitcnt lgkmcnt(0)")
    for c in range(16): a(f"v_mov_b32 v{ACC+c}, v{ACC+16+c}")
    a.label(Lrd)
    a("s_waitcnt lgkmcnt(0)")
    lds_pair_sync(a, vCN, vOne, t0, 4)
    a(f"s_xor_b32 s{S_T1}, s{sRH}, 1")
    a(f"s_lshl_b32 s{S_T1}, s{S_T1}, 12")
    a(f"v_add_u32 v{vXA}, s{S_T1}, v{vXA}")
    for c in range(4): a(f"ds_read_b128 {vr(128+4*c)}, v{vXA} offset:{1024*c}")
    for c in range(4): a(f"ds_read_b64 {vr(96+2*c, 2)}, v{vUE} offset:{512*c}")
    a(f"s_lshr_b32 s{S_T1}, s{w}, 1")
    a(f"s_lshl_b32 s{S_T1}, s{S_T1}, 4")
    a(f"s_lshr_b32 s{S_A4}, s{S_A4}, s{S_T1}")
    a(f"s_lshl_b32 s{S_A4}, s{S_A4}, 16")
    a(f"s_lshl_b32 s{S_T1}, s{sCH}, 12")
    a(f"s_lshl_b32 s{S_T2}, s{sRH}, 11")
    a(f"s_add_u32 s{S_T1}, s{S_T1}, s{S_T2}")
    a(f"s_add_u32 s{S_T1}, s{S_T1}, {YT_OFF}")
    a("s_waitcnt lgkmcnt(0)")
    for c in range(4):
        d0, d1 = 96 + 2*c, 97 + 2*c
        u = 144
        a(f"v_and_b32 v{u}, 0xffff0000, v{d1}")
        a(f"v_lshlrev_b32 v{u+1}, 16, v{d1}")
        a(f"v_and_b32 v{u+2}, 0xffff0000, v{d0}")
        a(f"v_lshlrev_b32 v{u+3}, 16, v{d0}")
        for i in range(4): a(f"v_add_f32 v{ACC+4*c+i}, v{ACC+4*c+i}, v{128+4*c+i}")
        for i in range(4): a(f"v_fmac_f32 v{ACC+4*c+i}, s{S_A4}, v{u+i}")
        o = 148 + 2*c
        a(f"v_cvt_pk_bf16_f32 v{o}, v{ACC+4*c}, v{ACC+4*c+1}")
        a(f"v_cvt_pk_bf16_f32 v{o+1}, v{ACC+4*c+2}, v{ACC+4*c+3}")
        a(f"buffer_store_dwordx2 {vr(o, 2)}, v{vYO}, s[{R_WS}:{R_WS+3}], s{S_T1} offen offset:{512*c} sc1")
    a(f"s_lshr_b32 s{S_T1}, s{sCH}, 6")
    a(f"s_lshl_b32 s{S_T1}, s{S_T1}, 1")
    a(f"s_add_u32 s{S_T1}, s{S_T1}, s{sRH}")
    a(f"s_lshl_b32 s{S_T1}, s{S_T1}, 6")
    a(f"s_and_b32 s{S_T2}, s{sCH}, 63")
    a(f"s_add_u32 s{S_T1}, s{S_T1}, s{S_T2}")
    a(f"s_lshl_b32 s{S_T1}, s{S_T1}, 2")
    a(f"s_add_u32 s{S_T1}, s{S_T1}, {F2_OFF}")
    if a.prof: a(f"s_mov_b32 s{S_A5}, s{S_T1}"); a.stamp(1); a(f"s_mov_b32 s{S_T1}, s{S_A5}")
    a("s_waitcnt vmcnt(0)")
    a.signal(S_T1, t0, t1)

def final_h(a, w):
    t0, t1, t2, t3 = 64, 65, 66, 67
    vXo, vYa, vS = 8, 9, 10
    BASE = 16
    RS2 = 32
    XD = 36
    YD = 44
    ST = 52
    a(f"v_lshrrev_b32 v{t0}, 3, v0")
    a(f"v_mul_u32_u24 v{t0}, 896, v{t0}")
    a(f"v_and_b32 v{t1}, 7, v0")
    a(f"v_lshl_add_u32 v{vXo}, v{t1}, 4, v{t0}")
    sXO = S_A1
    a(f"s_lshl_b32 s{S_T0}, s{S_RB}, 6")
    a(f"s_lshl_b32 s{S_T1}, s{w}, 4")
    a(f"s_add_u32 s{S_T0}, s{S_T0}, s{S_T1}")
    a(f"s_mul_i32 s{sXO}, s{S_T0}, 896")
    a(f"s_lshl_b32 s{S_T1}, s{S_CT}, 7")
    a(f"s_add_u32 s{sXO}, s{sXO}, s{S_T1}")
    a(f"s_add_u32 s{S_T2}, s{sXO}, {8*896}")
    a(f"buffer_load_dwordx4 {vr(XD)}, v{vXo}, s[{R_A}:{R_A+3}], s{sXO} offen")
    a(f"buffer_load_dwordx4 {vr(XD+4)}, v{vXo}, s[{R_A}:{R_A+3}], s{S_T2} offen")
    a(f"s_lshl_b32 s{S_T1}, s{S_PAR}, 6")
    a(f"s_lshl_b32 s{S_T2}, s{w}, 4")
    a(f"s_add_u32 s{S_T1}, s{S_T1}, s{S_T2}")
    a(f"v_lshrrev_b32 v{t0}, 3, v0")
    a(f"v_add_u32 v{t0}, s{S_T1}, v{t0}")
    a(f"v_lshlrev_b32 v{t0}, 3, v{t0}")
    a(f"v_add_u32 v{t0}, {STATS_L}, v{t0}")
    a(f"ds_read_b64 {vr(ST, 2)}, v{t0}")
    a(f"ds_read_b64 {vr(ST+2, 2)}, v{t0} offset:64")
    a(f"s_lshl_b32 s{S_T1}, s{S_CT}, 9")
    a(f"s_lshr_b32 s{S_T2}, s{S_RB}, 4")
    a(f"s_lshl_b32 s{S_T2}, s{S_T2}, 8")
    a(f"s_add_u32 s{S_T1}, s{S_T1}, s{S_T2}")
    a(f"s_add_u32 s{S_T1}, s{S_T1}, {F2_OFF}")
    a(f"v_lshlrev_b32 v{t0}, 2, v0")
    a(f"v_add_u32 v{t0}, s{S_T1}, v{t0}")
    if "noconv" not in a.exp and "nopoll2" not in a.exp: a.poll(t0, t1, 64, sleep=(64 if "slowpoll" in a.exp else 8))
    a.stamp(6)
    a(f"s_lshl_b32 s{S_T1}, s{S_CT}, 18")
    a(f"s_add_u32 s{S_T1}, s{S_T1}, {YT_OFF}")
    a(f"s_lshl_b32 s{S_T2}, s{S_T0}, 1")
    a(f"s_add_u32 s{S_T1}, s{S_T1}, s{S_T2}")
    a(f"v_lshlrev_b32 v{t0}, 12, v0")
    a(f"buffer_load_dwordx4 {vr(YD)}, v{t0}, s[{R_WS}:{R_WS+3}], s{S_T1} offen sc1")
    a(f"buffer_load_dwordx4 {vr(YD+4)}, v{t0}, s[{R_WS}:{R_WS+3}], s{S_T1} offen offset:16 sc1")
    a(f"s_mul_i32 s{S_T1}, s{w}, 3072")
    a(f"s_add_u32 s{S_T1}, s{S_T1}, {EXT}")
    a(f"v_mul_u32_u24 v{t0}, 48, v0")
    a(f"v_add_u32 v{t0}, s{S_T1}, v{t0}")
    a("s_waitcnt vmcnt(0)")
    a(f"ds_write_b128 v{t0}, {vr(YD)}")
    a(f"ds_write_b128 v{t0}, {vr(YD+4)} offset:16")
    a(f"v_and_b32 v{t1}, 7, v0")
    a(f"v_mul_u32_u24 v{t1}, 384, v{t1}")
    a(f"v_lshrrev_b32 v{t2}, 3, v0")
    a(f"v_lshl_add_u32 v{t1}, v{t2}, 1, v{t1}")
    a(f"v_add_u32 v{t1}, s{S_T1}, v{t1}")
    a("s_waitcnt lgkmcnt(0)")
    YG = 96
    for q in range(2):
        for e in range(8):
            a(f"ds_read_u16 v{YG+8*q+e}, v{t1} offset:{48*e + 16*q}")
    a("s_waitcnt lgkmcnt(0)")
    for q in range(2):
        mean, rstd = ST + 2*q, ST + 2*q + 1
        a(f"v_mul_f32 v{RS2+q}, v{rstd}, v{rstd}")
        for e in range(8):
            xs = XD + 4*q + (e >> 1)
            if e & 1: a(f"v_and_b32 v{t0}, 0xffff0000, v{xs}")
            else:     a(f"v_lshlrev_b32 v{t0}, 16, v{xs}")
            a(f"v_lshlrev_b32 v{t2}, 16, v{YG+8*q+e}")
            a(f"v_sub_f32 v{t3}, v{t0}, v{mean}")
            a(f"v_mul_f32 v{t3}, v{t3}, v{rstd}")
            a(f"v_fma_f32 v{BASE+8*q+e}, v{t3}, v{t2}, v{t0}")
    vF0, vF1 = 12, 13
    a(f"v_lshrrev_b32 v{t0}, 3, v0")
    a(f"s_lshl_b32 s{S_T1}, s{w}, 4")
    a(f"v_add_u32 v{t0}, s{S_T1}, v{t0}")
    a(f"v_mul_u32_u24 v{t0}, {PROW}, v{t0}")
    a(f"v_and_b32 v{t1}, 7, v0")
    a(f"v_lshl_add_u32 v{vF0}, v{t1}, 5, v{t0}")
    a(f"v_add_u32 v{vF1}, {2*RING}, v{vF0}")
    a.srd(R_B, S_OUT, XB)
    a.stamp(7)
    a("s_barrier")
    P = 128
    for q in range(2):
        for kq in range(4):
            base = vF0 if kq < 2 else vF1
            for hh in range(2):
                a(f"ds_read_b128 {vr(P+32*q+8*kq+4*hh)}, v{base} offset:{(kq & 1)*RING + q*8*PROW + 16*hh}")
    for q in range(2):
        a(f"s_waitcnt lgkmcnt({8 if q == 0 else 0})")
        p = P + 32*q
        for e in range(8):
            a(f"v_add_f32 v{p+e}, v{p+e}, v{p+8+e}")
            a(f"v_add_f32 v{p+16+e}, v{p+16+e}, v{p+24+e}")
        for e in range(8):
            a(f"v_add_f32 v{p+e}, v{p+e}, v{p+16+e}")
        for e in range(8):
            a(f"v_fmac_f32 v{BASE+8*q+e}, v{RS2+q}, v{p+e}")
        for e in range(4):
            a(f"v_cvt_pk_bf16_f32 v{XD+4*q+e}, v{BASE+8*q+2*e}, v{BASE+8*q+2*e+1}")
        so = sXO
        if q == 1:
            a(f"s_add_u32 s{S_T2}, s{sXO}, {8*896}"); so = S_T2
        a(f"buffer_store_dwordx4 {vr(XD+4*q)}, v{vXo}, s[{R_B}:{R_B+3}], s{so} offen")
    a.stamp(8)
    if "span" in a.exp:
        a("s_waitcnt vmcnt(0)")
        a(f"s_cmp_lg_u32 s{S_WAVE}, 4")
        a("s_cbranch_scc1 L_hout")
        a("s_memrealtime s[88:89]")
        a("s_waitcnt lgkmcnt(0)")
        a("v_mov_b32 v2, s88"); a("v_mov_b32 v3, 12")
        a("s_mov_b64 exec, 1")
        a(f"global_atomic_umax v3, v2, s[{S_DBG}:{S_DBG+1}]")
        a("s_mov_b64 exec, -1")
    a.label("L_hout")
    a.stamps_out(10)
    a("s_endpgm")

def row_stats(a):
    t0, t1 = 4, 5
    XD, SS = 64, 76
    a.srd(R_B, S_X, XB)
    a(f"s_lshl_b32 s{S_T0}, s{S_FC}, 2")
    a(f"s_add_u32 s{S_T0}, s{S_T0}, s{S_WAVE}")
    a(f"s_lshl_b32 s{S_T1}, s{S_RT}, 7")
    a(f"s_add_u32 s{S_T1}, s{S_T1}, s{S_T0}")
    a(f"s_mul_i32 s{S_T1}, s{S_T1}, 896")
    a(f"v_mov_b32 v{t1}, 0x40000000")
    a("v_cmp_gt_u32 vcc, 56, v0")
    a(f"s_add_u32 s{S_T2}, s{S_T1}, {56*896}")
    a(f"s_add_u32 s{S_T3}, s{S_T1}, {112*896}")
    a(f"v_cndmask_b32 v{t0}, v{t1}, v17, vcc")
    a(f"buffer_load_dwordx4 {vr(XD)}, v{t0}, s[{R_B}:{R_B+3}], s{S_T1} offen")
    a(f"buffer_load_dwordx4 {vr(XD+4)}, v{t0}, s[{R_B}:{R_B+3}], s{S_T2} offen")
    a(f"s_cmp_lt_u32 s{S_T0}, 16")
    a(f"s_cselect_b32 s{S_T3}, s{S_T3}, s{S_T2}")
    a(f"buffer_load_dwordx4 {vr(XD+8)}, v{t0}, s[{R_B}:{R_B+3}], s{S_T3} offen")
    a(f"v_mov_b32 v{t1}, 0x3f803f80")
    for j in range(3):
        a(f"s_waitcnt vmcnt({2-j})")
        for q in range(4):
            c0 = "0" if q == 0 else f"v{SS+j}"; c1 = "0" if q == 0 else f"v{SS+3+j}"
            a(f"v_dot2_f32_bf16 v{SS+j}, v{XD+4*j+q}, v{t1}, {c0}")
            a(f"v_dot2_f32_bf16 v{SS+3+j}, v{XD+4*j+q}, v{XD+4*j+q}, {c1}")
    a("s_nop 2")
    for mod in ("row_shr:1 row_mask:0xf", "row_shr:2 row_mask:0xf", "row_shr:4 row_mask:0xf", "row_shr:8 row_mask:0xf",
                "row_bcast:15 row_mask:0xa", "row_bcast:31 row_mask:0xc"):
        for r in range(6): a(f"v_add_f32_dpp v{SS+r}, v{SS+r}, v{SS+r} {mod} bank_mask:0xf")
    for j in range(3):
        m, q = 82 + 2*j, SS + 3 + j
        a(f"v_mul_f32 v{m}, {1.0/448.0!r}, v{SS+j}")
        a(f"v_mul_f32 v{q}, {1.0/448.0!r}, v{q}")
        a(f"v_fma_f32 v{q}, -v{m}, v{m}, v{q}")
        a(f"v_max_f32 v{q}, 0, v{q}")
        a(f"v_add_f32 v{q}, 0x3727c5ac, v{q}")
        a(f"v_rsq_f32 v{m+1}, v{q}")
    a(f"s_lshl_b32 s{S_T0}, s{S_WAVE}, 3")
    a(f"s_add_u32 s{S_T0}, s{S_T0}, {STG_L}")
    a(f"v_mov_b32 v{t0}, s{S_T0}")
    a("s_mov_b32 exec_lo, 0")
    a("s_mov_b32 exec_hi, 0x80000000")
    for j in range(3): a(f"ds_write_b64 v{t0}, {vr(82+2*j, 2)} offset:{32*j}")
    a("s_mov_b64 exec, -1")
    a("s_waitcnt lgkmcnt(0)")

def c_wave(a):
    a.label("L_cwave")
    vX, vW = 8, 12
    t0, t1, t2, t3 = 4, 5, 6, 7
    AS, BS, ACC = (64, 80), (96, 104), 128
    sWR, sWF = S_A0, S_A1
    a(f"s_lshr_b32 s{sWR}, s{S_WAVE}, 1")
    a(f"s_and_b32 s{sWF}, s{S_WAVE}, 1")
    a(f"s_lshl_b32 s{S_T1}, s{sWR}, 6")
    x_frag_addrs(a, vX, S_T1, t0, t1, t2)
    w_tr_lane_consts(a, t3, 16, t0, t1)
    a(f"s_lshl_b32 s{S_T1}, s{sWF}, 3")
    a(f"v_xor_b32 v16, s{S_T1}, v16")
    for m in range(4):
        a(f"v_xor_b32 v{t0}, {2*m}, v16")
        a(f"v_lshl_add_u32 v{vW+m}, v{t0}, 4, v{t3}")
    a(f"v_lshlrev_b32 v17, 4, v0")
    a("s_waitcnt lgkmcnt(0)")
    a.srd(R_WS, S_WS, WS_BYTES); a.srd(R_A, S_WD, WB)
    a.stamp(0)
    def reads(t):
        s = t & 1
        if t == 28:
            return [f"ds_read_b128 {vr(BS[s])}, v18",
                    f"ds_read_b128 {vr(AS[s])}, v19",
                    f"ds_read_b128 {vr(BS[s]+4)}, v18 offset:1024",
                    f"ds_read_b128 {vr(AS[s]+4)}, v19 offset:1024",
                    f"ds_read_b128 {vr(AS[s]+8)}, v19 offset:2048",
                    f"ds_read_b128 {vr(AS[s]+12)}, v19 offset:3072"]
        st, ks = t >> 2, t & 3
        so = (st % 3) * SLOT
        def wr(m): return [f"ds_read_b64_tr_b16 {vr(AS[s]+4*m+2*h, 2)}, v{vW+m} offset:{so + (16*ks + 4*h)*256}" for h in range(2)]
        return ([f"ds_read_b128 {vr(BS[s])}, v{vX+ks} offset:{so}"] + wr(0) +
                [f"ds_read_b128 {vr(BS[s]+4)}, v{vX+ks} offset:{so + 4096}"] + wr(1) + wr(2) + wr(3))
    a(f"s_lshl_b32 s{S_T1}, s{sWR}, 11")
    a(f"s_add_u32 s{S_T1}, s{S_T1}, {XEXT}")
    a(f"v_add_u32 v18, s{S_T1}, v17")
    a(f"s_lshl_b32 s{S_T1}, s{sWF}, 12")
    a(f"s_add_u32 s{S_T1}, s{S_T1}, {WEXT}")
    a(f"v_add_u32 v19, s{S_T1}, v17")
    row_stats(a)
    a("s_barrier")
    a.stamp(1)
    for l in reads(0): a(l)
    for t in range(29):
        s = t & 1
        a("s_waitcnt lgkmcnt(0)")
        if t < 28 and (t & 3) == 3:
            if a.stop == "p1": a.stamp(5 + (t >> 2))
            a("s_barrier")
        nxt = reads(t + 1) if t < 28 else []
        k = 0
        for m in range(4):
            for n in range(2):
                d = ACC + (2*m + n)*16
                cin = "0" if t == 0 else vr(d, 16)
                a(f"v_mfma_f32_32x32x16_bf16 {vr(d,16)}, {vr(AS[s]+4*m)}, {vr(BS[s]+4*n)}, {cin}")
                for _ in range(2):
                    if k < len(nxt): a(nxt[k]); k += 1
    a.stamp(2)
    a(f"v_mov_b32 v{t0}, {NONCE_L}")
    a(f"ds_read_b32 v20, v{t0}")
    vm = VM(a)
    sH = S_A2
    a(f"s_lshl_b32 s{S_T0}, s{S_RT}, 2")
    a(f"s_lshl_b32 s{S_T1}, s{sWR}, 1")
    a(f"s_add_u32 s{S_T0}, s{S_T0}, s{S_T1}")
    a(f"s_mul_i32 s{S_T0}, s{S_T0}, 112")
    a(f"s_lshl_b32 s{S_T1}, s{S_FC}, 3")
    a(f"s_add_u32 s{S_T0}, s{S_T0}, s{S_T1}")
    a(f"s_lshl_b32 s{S_T1}, s{sWF}, 2")
    a(f"s_add_u32 s{S_T0}, s{S_T0}, s{S_T1}")
    a(f"s_lshl_b32 s{sH}, s{S_T0}, 10")
    if H_OFF: a(f"s_add_u32 s{sH}, s{sH}, {H_OFF}")
    a("s_nop 1")
    for m in range(4):
        for n in range(2):
            d = ACC + (2*m + n)*16
            o = 24 + 4*((2*m + n) & 3)
            for i in range(8): a(f"v_max_f32 v{d+i}, 0, v{d+i}")
            for i in range(8): a(f"v_mul_f32 v{d+i}, v{d+i}, v{d+8+i}")
            for i in range(4): a(f"v_cvt_pk_bf16_f32 v{o+i}, v{d+2*i}, v{d+2*i+1}")
            a(f"s_add_u32 s{S_T0}, s{sH}, {(n*112 + m)*1024}")
            a(f"buffer_store_dwordx4 {vr(o)}, v17, s[{R_WS}:{R_WS+3}], s{S_T0} offen sc1")
            vm.issue("h")
    a.stamp(3)
    a("s_waitcnt lgkmcnt(0)")
    a(f"v_readfirstlane_b32 s{S_NONCE}, v20")
    sKQ = S_WAVE
    vWd, vA0, vA1, vFl = 21, 22, 23, 40
    a(f"v_lshrrev_b32 v{t0}, 3, v0")
    a(f"v_and_b32 v{t1}, 7, v0")
    a(f"v_bfe_u32 v{t2}, v0, 4, 1")
    a(f"v_lshlrev_b32 v{t2}, 2, v{t2}")
    a(f"v_xor_b32 v{t1}, v{t1}, v{t2}")
    a(f"v_mul_u32_u24 v{t0}, 896, v{t0}")
    a(f"v_lshl_add_u32 v{vWd}, v{t1}, 4, v{t0}")
    sWdS, sRing = S_A3, S_A4
    a(f"s_mul_i32 s{sWdS}, s{sKQ}, {448*896}")
    a(f"s_lshl_b32 s{S_T0}, s{S_CT}, 7")
    a(f"s_add_u32 s{sWdS}, s{sWdS}, s{S_T0}")
    a(f"s_mul_i32 s{sRing}, s{sKQ}, {RING}")
    sRot, sKW, sKH = 96, 97, 98
    a(f"s_mov_b32 s{sRot}, 0")
    a(f"s_mul_i32 s{sKW}, s{sRot}, {16*896}")
    a(f"s_lshl_b32 s{sKH}, s{sRot}, 10")
    def wd_dma(ks):
        for hh in range(2):
            a(f"s_add_u32 m0, s{sRing}, {(ks % NSLOT)*2048 + hh*1024}")
            a(f"s_add_u32 s{S_T0}, s{sWdS}, s{sKW}")
            if hh: a(f"s_add_u32 s{S_T0}, s{S_T0}, {8*896}")
            a(f"buffer_load_dwordx4 v{vWd}, s[{R_A}:{R_A+3}], s{S_T0} offen lds")
            vm.issue(("wd", ks))
        a(f"s_add_u32 s{sKW}, s{sKW}, {16*896}")
        a(f"s_cmp_eq_u32 s{sKW}, {28*16*896}")
        a(f"s_cselect_b32 s{sKW}, 0, s{sKW}")
    NPRE = 9
    if a.stop != "p1":
        for ks in range(NPRE): wd_dma(ks)
    a(f"s_lshl_b32 s{S_T0}, s{S_RT}, 1")
    a(f"s_add_u32 s{S_T0}, s{S_T0}, s{sWR}")
    a(f"s_mul_i32 s{S_T0}, s{S_T0}, 28")
    a(f"s_lshl_b32 s{S_T1}, s{S_FC}, 1")
    a(f"s_add_u32 s{S_T0}, s{S_T0}, s{S_T1}")
    a(f"s_add_u32 s{S_T0}, s{S_T0}, s{sWF}")
    a(f"s_lshl_b32 s{S_T0}, s{S_T0}, 7")
    a(f"s_add_u32 s{S_T1}, s{S_T0}, {F1_OFF}")
    vm.wait("h")
    a.signal(S_T1, t0, t1)
    a.stamp(4)
    if a.stop == "p1":
        a("s_barrier"); a.stamps_out(12); a("s_endpgm"); return
    for ks in range(NPRE, NSLOT): wd_dma(ks)
    a(f"v_bfe_u32 v{t0}, v0, 2, 2")
    a(f"v_lshrrev_b32 v{t1}, 5, v0")
    a(f"v_lshl_add_u32 v{t1}, v{t1}, 2, v{t0}")
    a(f"v_lshlrev_b32 v{t1}, 7, v{t1}")
    a(f"v_and_b32 v{t2}, 1, v0")
    a(f"v_lshl_add_u32 v{t1}, v{t2}, 3, v{t1}")
    a(f"v_add_u32 v{t1}, s{sRing}, v{t1}")
    a(f"v_bfe_u32 v{t2}, v0, 4, 1")
    a(f"v_bfe_u32 v{t3}, v0, 1, 1")
    a(f"v_lshl_add_u32 v{t2}, v{t2}, 1, v{t3}")
    a(f"v_bfe_u32 v{t3}, v0, 3, 1")
    a(f"v_lshl_add_u32 v{t2}, v{t3}, 2, v{t2}")
    a(f"v_lshl_add_u32 v{vA0}, v{t2}, 4, v{t1}")
    a(f"v_xor_b32 v{t2}, 4, v{t2}")
    a(f"v_lshl_add_u32 v{vA1}, v{t2}, 4, v{t1}")
    a(f"s_mul_i32 s{S_T0}, s{S_RB}, 28")
    a(f"s_mul_i32 s{S_T1}, s{sKQ}, 7")
    a(f"s_add_u32 s{S_T0}, s{S_T0}, s{S_T1}")
    a(f"s_lshl_b32 s{S_T0}, s{S_T0}, 7")
    a(f"s_add_u32 s{S_T0}, s{S_T0}, {F1_OFF}")
    a(f"v_lshlrev_b32 v{vFl}, 7, v0")
    a(f"v_add_u32 v{vFl}, s{S_T0}, v{vFl}")
    a.poll(vFl, t0, 7)
    vm.reset()
    a.stamp(5)
    sHr = S_A2
    a(f"s_mul_i32 s{sHr}, s{S_RB}, {2*112}")
    a(f"s_mul_i32 s{S_T0}, s{sKQ}, 28")
    a(f"s_add_u32 s{sHr}, s{sHr}, s{S_T0}")
    a(f"s_lshl_b32 s{sHr}, s{sHr}, 10")
    if H_OFF: a(f"s_add_u32 s{sHr}, s{sHr}, {H_OFF}")
    HB, A3, ACC3 = 96, (80, 88), 192
    def h_load(ks):
        for n in range(2):
            a(f"s_add_u32 s{S_T0}, s{sHr}, s{sKH}")
            if n: a(f"s_add_u32 s{S_T0}, s{S_T0}, {112*1024}")
            a(f"buffer_load_dwordx4 {vr(HB + 8*(ks % HD) + 4*n)}, v17, s[{R_WS}:{R_WS+3}], s{S_T0} offen sc1")
            vm.issue(("h", ks))
        a(f"s_add_u32 s{sKH}, s{sKH}, 1024")
        a(f"s_cmp_eq_u32 s{sKH}, {28*1024}")
        a(f"s_cselect_b32 s{sKH}, 0, s{sKH}")
    def tr3(ks):
        s = ks & 1; so = (ks % NSLOT)*2048
        return [f"ds_read_b64_tr_b16 {vr(A3[s]+4*m+2*h, 2)}, v{(vA0, vA1)[m]} offset:{so + 1024*h}" for m in range(2) for h in range(2)]
    for ks in range(HD): h_load(ks)
    for l in tr3(0): a(l)
    for t in range(28):
        s = t & 1
        if vm.has(("h", t)): vm.wait(("h", t))
        if t + 1 < 28 and vm.has(("wd", t + 1)): vm.wait(("wd", t + 1))
        a("s_waitcnt lgkmcnt(0)")
        nxt = tr3(t + 1) if t + 1 < 28 else []
        k = 0
        for m in range(2):
            for n in range(2):
                d = ACC3 + (2*m + n)*16
                cin = "0" if t == 0 else vr(d, 16)
                a(f"v_mfma_f32_32x32x16_bf16 {vr(d,16)}, {vr(A3[s]+4*m)}, {vr(HB + 8*(t % HD) + 4*n)}, {cin}")
                if k < len(nxt): a(nxt[k]); k += 1
        if t + NSLOT < 28 and "nowd" not in a.exp: wd_dma(t + NSLOT)
        if t + HD < 28: h_load(t + HD)
        if "p3st" in a.exp and t in (0, 6, 13, 20): a.stamp(8 + (0, 6, 13, 20).index(t))
    a.stamp(6)
    a(f"v_and_b32 v{t0}, 31, v0")
    a(f"v_mul_u32_u24 v{t0}, {PROW}, v{t0}")
    a(f"v_lshrrev_b32 v{t1}, 5, v0")
    a(f"v_lshl_add_u32 v{t0}, v{t1}, 4, v{t0}")
    a(f"v_add_u32 v{t0}, s{sRing}, v{t0}")
    a("s_nop 7")
    for m in range(2):
        for n in range(2):
            d = ACC3 + (2*m + n)*16
            for j in range(4):
                a(f"ds_write_b128 v{t0}, {vr(d+4*j)} offset:{n*32*PROW + m*128 + j*32}")
    a("s_waitcnt lgkmcnt(0)")
    a("s_barrier")
    a.stamp(7)
    a.label("L_cout")
    a.stamps_out(12 if "p3st" in a.exp else 8)
    a("s_endpgm")

def aux(a):
    a.label("L_prep")
    t0, t1, t2, t3 = 4, 5, 6, 7
    sP = 2
    CSL = 0
    vCo = 14
    a(f"v_lshrrev_b32 v{t0}, 4, v0")
    a(f"v_mul_u32_u24 v{t0}, 3584, v{t0}")
    a(f"v_and_b32 v{t1}, 15, v0")
    a(f"v_lshl_add_u32 v{vCo}, v{t1}, 4, v{t0}")
    a(f"v_lshlrev_b32 v15, 4, v0")
    a("s_waitcnt lgkmcnt(0)")
    a.srd(R_WS, S_WS, WS_BYTES); a.srd(R_A, S_SK, XB); a.srd(R_B, S_WD, WB)
    a.stamp(0)
    CD, CA = 192, 248
    sC = S_A1
    a(f"s_cmp_ge_u32 s{sP}, 28")
    a("s_cbranch_scc1 L_aux_nocs")
    a(f"s_cmp_ge_u32 s{sP}, 14")
    a("s_cbranch_scc1 L_aux_up")
    a.srd(R_E, S_WG, WB)
    a(f"s_mov_b32 s{sC}, s{sP}")
    a("s_branch L_aux_cs")
    a.label("L_aux_up")
    a.srd(R_E, S_WU, WB)
    a(f"s_sub_u32 s{sC}, s{sP}, 14")
    a.label("L_aux_cs")
    a(f"s_mul_i32 s{S_T0}, s{S_WAVE}, {4*3584}")
    a(f"s_lshl_b32 s{S_T1}, s{sC}, 8")
    a(f"s_add_u32 s{S_T0}, s{S_T0}, s{S_T1}")
    for i in range(14):
        a(f"buffer_load_dwordx4 {vr(CD+4*i)}, v{vCo}, s[{R_E}:{R_E+3}], s{S_T0} offen")
        if i < 13: a(f"s_add_u32 s{S_T0}, s{S_T0}, {32*3584}")
    sLo, sHi = S_A2, S_A3
    a(f"s_mov_b32 s{sLo}, 0x00003f80")
    a(f"s_mov_b32 s{sHi}, 0x3f800000")
    for i in range(14):
        a(f"s_waitcnt vmcnt({13 - i})")
        for q in range(4):
            c0 = "0" if i == 0 else f"v{CA+2*q}"; c1 = "0" if i == 0 else f"v{CA+2*q+1}"
            a(f"v_dot2_f32_bf16 v{CA+2*q}, v{CD+4*i+q}, s{sLo}, {c0}")
            a(f"v_dot2_f32_bf16 v{CA+2*q+1}, v{CD+4*i+q}, s{sHi}, {c1}")
    a(f"v_lshrrev_b32 v{t0}, 4, v0")
    a(f"s_lshl_b32 s{S_T0}, s{S_WAVE}, 2")
    a(f"v_add_u32 v{t0}, s{S_T0}, v{t0}")
    a(f"v_lshlrev_b32 v{t0}, 9, v{t0}")
    a(f"v_and_b32 v{t1}, 15, v0")
    a(f"v_lshl_add_u32 v{t0}, v{t1}, 5, v{t0}")
    if CSL: a(f"v_add_u32 v{t0}, {CSL}, v{t0}")
    a(f"ds_write_b128 v{t0}, {vr(CA)}")
    a(f"ds_write_b128 v{t0}, {vr(CA+4)} offset:16")
    a("s_waitcnt lgkmcnt(0)")
    a("s_barrier")
    a(f"s_cmp_lg_u32 s{S_WAVE}, 7")
    a("s_cbranch_scc1 L_aux_touch")
    a(f"v_lshlrev_b32 v{t0}, 2, v0")
    if CSL: a(f"v_add_u32 v{t0}, {CSL}, v{t0}")
    for hh in range(2):
        for i in range(32):
            a(f"ds_read_b32 v{CD-64+32*hh+i}, v{t0} offset:{512*i + 256*hh}")
            if i % 8 == 7: a("s_waitcnt lgkmcnt(7)")
    a.get_nonce_spin(t1, t2)
    a("s_waitcnt lgkmcnt(0)")
    for hh in range(2):
        b = CD - 64 + 32*hh
        for st in (16, 8, 4, 2, 1):
            for i in range(st): a(f"v_add_f32 v{b+i}, v{b+i}, v{b+i+st}")
        a(f"v_mov_b32 v{b+1}, s{S_NONCE}")
    a(f"s_cmp_ge_u32 s{sP}, 14")
    a(f"s_cselect_b32 s{S_T0}, 1792, 0")
    a(f"s_lshl_b32 s{S_T1}, s{sC}, 7")
    a(f"s_add_u32 s{S_T0}, s{S_T0}, s{S_T1}")
    a(f"s_lshl_b32 s{S_T0}, s{S_T0}, 3")
    a(f"s_add_u32 s{S_T0}, s{S_T0}, {CS_OFF}")
    a(f"v_lshlrev_b32 v{t0}, 3, v0")
    a(f"buffer_store_dwordx2 {vr(CD-64, 2)}, v{t0}, s[{R_WS}:{R_WS+3}], s{S_T0} offen sc1")
    a(f"buffer_store_dwordx2 {vr(CD-32, 2)}, v{t0}, s[{R_WS}:{R_WS+3}], s{S_T0} offen offset:512 sc1")
    a("s_branch L_aux_touch")
    a.label("L_aux_nocs")
    a(f"s_cmp_lg_u32 s{sP}, 28")
    a("s_cbranch_scc1 L_aux_touch")
    a(f"s_cmp_lg_u32 s{S_WAVE}, 7")
    a("s_cbranch_scc1 L_aux_touch")
    a(f"v_mov_b32 v{t1}, {EP_OFF}")
    a(f"buffer_load_dword v{t0}, v{t1}, s[{R_WS}:{R_WS+3}], 0 offen sc1")
    a("s_waitcnt vmcnt(0)")
    a(f"v_add_u32 v{t0}, 1, v{t0}")
    a(f"v_max_u32 v{t0}, 1, v{t0}")
    a(f"v_mov_b32 v{t2}, 0")
    a("s_mov_b64 exec, 1")
    a(f"global_store_dword v{t2}, v{t0}, s[{S_DBG}:{S_DBG+1}] sc1")
    a(f"buffer_store_dword v{t0}, v{t1}, s[{R_WS}:{R_WS+3}], 0 offen sc1")
    a("s_mov_b64 exec, -1")
    a.label("L_aux_touch")
    a.stamp(1)
    a(f"s_mul_i32 s{S_T0}, s{sP}, 57344")
    a(f"s_lshl_b32 s{S_T1}, s{S_WAVE}, 10")
    a(f"s_add_u32 s{S_T0}, s{S_T0}, s{S_T1}")
    for i in range(7):
        a(f"buffer_load_dwordx4 {vr(16+4*i)}, v15, s[{R_A}:{R_A+3}], s{S_T0} offen")
        a(f"s_add_u32 s{S_T0}, s{S_T0}, 8192")
    a(f"s_mul_i32 s{S_T0}, s{sP}, 50176")
    a(f"s_add_u32 s{S_T0}, s{S_T0}, s{S_T1}")
    for i in range(7):
        a(f"buffer_load_dwordx4 {vr(48+4*i)}, v15, s[{R_B}:{R_B+3}], s{S_T0} offen")
        a(f"s_add_u32 s{S_T0}, s{S_T0}, 8192")
    a.stamp(2)
    a("s_waitcnt vmcnt(0)")
    a.stamp(3)
    a.stamps_out(4)
    a("s_endpgm")

HEADER = open(os.path.join(os.path.dirname(os.path.abspath(__file__)), "header.txt")).read()

def build(prof=False, spin=1 << 20, stop=None, exp=()):
    a = Gen(prof=prof, spin=spin, stop=stop, exp=exp)
    entry(a)
    h_wave(a)
    c_wave(a)
    aux(a)
    a.label("L_end")
    a("s_endpgm")
    txt = HEADER + f"; @launch grid=(256,1,1) block=(512,1,1) lds={LDS_BYTES}\n"
    txt += f'.amdgcn_target "amdgcn-amd-amdhsa--gfx950"\n.text\n.globl {NAME}\n.p2align 8\n.type {NAME},@function\n{NAME}:\n'
    body = [l for l in a.lines if l is not None]
    txt += "\n".join(("    " + l) if not l.endswith(":") else l for l in body) + "\n"
    txt += (f'.section .rodata,"a"\n.p2align 6\n.amdhsa_kernel {NAME}\n'
            "  .amdhsa_next_free_vgpr 256\n  .amdhsa_next_free_sgpr 102\n  .amdhsa_accum_offset 256\n"
            "  .amdhsa_group_segment_fixed_size 0\n  .amdhsa_kernarg_size 104\n  .amdhsa_user_sgpr_count 2\n"
            "  .amdhsa_user_sgpr_kernarg_segment_ptr 1\n  .amdhsa_system_sgpr_workgroup_id_x 1\n"
            "  .amdhsa_float_denorm_mode_32 3\n"
            ".end_amdhsa_kernel\n")
    return txt

if __name__ == "__main__":
    import argparse
    ap = argparse.ArgumentParser()
    ap.add_argument("-o", default="parallel_sum__ssm_conv_h3__glu_gated_reglu__prompt.s")
    ap.add_argument("--prof", nargs="?", const="rt", default=None)
    ap.add_argument("--spin", type=int, default=1 << 20)
    ap.add_argument("--stop", default=None)
    ap.add_argument("--exp", default="")
    x = ap.parse_args()
    open(x.o, "w").write(build(x.prof, x.spin, x.stop, [e for e in x.exp.split(',') if e]))
    print("wrote", x.o)
```

```python
import sys, os
sys.path.insert(0, os.path.dirname(os.path.abspath(__file__)))
from asmlib import Asm

NAME = "parallel_sum__ssm_conv_h3__glu_gated_reglu__prompt_kernel"
S, D, F = 2048, 448, 1792
XB = S * D * 2
WB = D * F * 2

H_OFF  = 0x000000
UT_OFF = 0x700000
YT_OFF = 0x8C0000
F0_OFF = 0xA80000
F1_OFF = 0xAA0000
F2_OFF = 0xAC0000
EP_OFF = 0xAE0000
SG_OFF = 0xAE8000
XG_OFF = 0xAE0100
CS_OFF = 0xAF0000
PROF_OFF = 0xB00000
WS_BYTES = 0x10000000

XR, GR, UR = 0, 49152, 98304
SLOT = 16384
CV = 122880
KCH = 8320
UB0 = CV + 2 * KCH
UCH = 4608
EXT = 149504
XEXT, WEXT = EXT, EXT + 4096
STATS_L = 161792
NONCE_L = 162816
FAST_L = 162820
STG_L = 162832
CNT_L = 162944
RING = 30720
NSLOT = 15
PROW = 272
LDS_BYTES = 163840
HD = 12

S_X, S_K, S_V, S_SH, S_SK, S_SD, S_WG, S_WU, S_WD, S_OUT, S_DBG, S_WS = 4, 6, 8, 10, 12, 14, 18, 20, 22, 24, 26, 28
S_WAVE, S_NONCE = 30, 31
R_A, R_B, R_C, R_WS, R_E = 32, 36, 40, 44, 48
S_RT, S_FC, S_PAR, S_CT, S_RB, S_M = 52, 53, 54, 55, 56, 57
S_T0, S_T1, S_T2, S_T3 = 58, 59, 60, 61
S_A0, S_A1, S_A2, S_A3, S_A4, S_A5 = 62, 63, 64, 65, 66, 67
S_BND = 68
S_EX = 70
S_ST = 72

class VM:
    def __init__(self, a): self.a, self.q = a, []
    def issue(self, tag): self.q.append(tag)
    def wait(self, tag):
        idx = max(i for i, t in enumerate(self.q) if t == tag)
        n = len(self.q) - 1 - idx
        assert n <= 63, (tag, n)
        self.a(f"s_waitcnt vmcnt({n})")
        self.q = self.q[idx + 1:]
    def has(self, tag): return tag in self.q
    def drain(self):
        self.a("s_waitcnt vmcnt(0)"); self.q = []
    def reset(self): self.q = []

class Gen(Asm):
    def __init__(self, prof=False, spin=1 << 20, stop=None, exp=()):
        super().__init__()
        self.exp = set(exp)
        self.prof, self.spin, self.stop = prof, spin, stop
        self.nst = 0
    def srd(self, dst, base, nbytes):
        self(f"s_mov_b32 s{dst}, s{base}")
        self(f"s_and_b32 s{dst+1}, s{base+1}, 0xffff")
        self(f"s_mov_b32 s{dst+2}, {nbytes}")
        self(f"s_mov_b32 s{dst+3}, 0x20000")
    def stamp(self, i):
        if self.prof:
            self(f"{'s_memtime' if self.prof == 'cyc' else 's_memrealtime'} s[{S_ST+2*i}:{S_ST+2*i+1}]")
            self("s_waitcnt lgkmcnt(0)")
    def stamps_out(self, n):
        if not self.prof: return
        self("s_waitcnt vmcnt(0) lgkmcnt(0)")
        self("s_mov_b64 exec, 1")
        self(f"s_lshl_b32 s{S_T0}, s2, 3")
        self(f"s_add_u32 s{S_T0}, s{S_T0}, s{S_WAVE}")
        self(f"s_lshl_b32 s{S_T0}, s{S_T0}, 6")
        self(f"s_add_u32 s{S_T0}, s{S_T0}, {PROF_OFF}")
        self("v_mov_b32 v1, 0")
        for i in range(n):
            self(f"v_mov_b32 v2, s{S_ST+2*i}")
            self(f"buffer_store_dword v2, v1, s[{R_WS}:{R_WS+3}], s{S_T0} offen offset:{4*i}")
            self("s_nop 0")
        self("s_waitcnt vmcnt(0)")
    def poll(self, vaddr, vtmp, nlanes, sleep=1):
        L, Dn = self.uid("L_poll"), self.uid("L_polled")
        if nlanes < 64: self(f"s_mov_b64 exec, {hex((1 << nlanes) - 1)}")
        self(f"s_mov_b32 s{S_BND}, {self.spin}")
        self.label(L)
        self(f"buffer_load_dword v{vtmp}, v{vaddr}, s[{R_WS}:{R_WS+3}], 0 offen sc1")
        self("s_waitcnt vmcnt(0)")
        self(f"v_cmp_ne_u32 vcc, s{S_NONCE}, v{vtmp}")
        self("s_nop 1")
        self(f"s_cbranch_vccz {Dn}")
        self(f"s_sleep {sleep}")
        self(f"s_sub_u32 s{S_BND}, s{S_BND}, 1")
        self(f"s_cmp_lg_u32 s{S_BND}, 0")
        self(f"s_cbranch_scc1 {L}")
        self.label(Dn)
        if nlanes < 64: self("s_mov_b64 exec, -1")
    def signal(self, soff_reg, vtmp, vzero):
        self(f"v_mov_b32 v{vtmp}, s{S_NONCE}")
        self(f"v_mov_b32 v{vzero}, 0")
        self("s_mov_b64 exec, 1")
        self(f"buffer_store_dword v{vtmp}, v{vzero}, s[{R_WS}:{R_WS+3}], s{soff_reg} offen sc1")
        self("s_mov_b64 exec, -1")
    def get_nonce_spin(self, vtmp, vzero):
        L, Dn = self.uid("L_non"), self.uid("L_nond")
        self(f"s_mov_b32 s{S_BND}, {self.spin}")
        self(f"v_mov_b32 v{vzero}, 0")
        self.label(L)
        self(f"global_load_dword v{vtmp}, v{vzero}, s[{S_DBG}:{S_DBG+1}] sc1")
        self("s_waitcnt vmcnt(0)")
        self(f"v_readfirstlane_b32 s{S_NONCE}, v{vtmp}")
        self("s_nop 3")
        self(f"s_cmp_lg_u32 s{S_NONCE}, 0")
        self(f"s_cbranch_scc1 {Dn}")
        self("s_sleep 1")
        self(f"s_sub_u32 s{S_BND}, s{S_BND}, 1")
        self(f"s_cmp_lg_u32 s{S_BND}, 0")
        self(f"s_cbranch_scc1 {L}")
        self.label(Dn)

def vr(b, n=4): return f"v[{b}:{b+n-1}]"

def entry(a):
    a("s_load_dwordx16 s[4:19], s[0:1], 0")
    a("s_load_dwordx8 s[20:27], s[0:1], 64")
    a("s_load_dwordx2 s[28:29], s[0:1], 96")
    a("s_cmp_ge_u32 s2, 256")
    a("s_cbranch_scc1 L_end")
    a("v_lshrrev_b32 v1, 6, v0")
    a("v_and_b32 v0, 63, v0")
    a(f"v_readfirstlane_b32 s{S_WAVE}, v1")
    if "span" in a.exp:
        a("s_memrealtime s[88:89]")
        a(f"s_cmp_lg_u32 s{S_WAVE}, 3")
        a("s_cbranch_scc1 L_nospan")
        a("s_waitcnt lgkmcnt(0)")
        a("s_not_b32 s88, s88")
        a("v_mov_b32 v2, s88"); a("v_mov_b32 v3, 8")
        a("s_mov_b64 exec, 1")
        a(f"global_atomic_umax v3, v2, s[{S_DBG}:{S_DBG+1}]")
        a("s_mov_b64 exec, -1")
        a.label("L_nospan")
    a("s_cmp_lt_u32 s2, 32")
    a("s_cbranch_scc1 L_prep")
    a(f"s_sub_u32 s{S_M}, s2, 32")
    a(f"s_and_b32 s{S_T0}, s{S_M}, 7")
    a(f"s_lshr_b32 s{S_T1}, s{S_M}, 3")
    if "map4x7" in a.exp:
        a(f"s_mul_i32 s{S_T2}, s{S_T1}, 37")
        a(f"s_lshr_b32 s{S_T2}, s{S_T2}, 8")
        a(f"s_mul_i32 s{S_T3}, s{S_T2}, 7")
        a(f"s_sub_u32 s{S_CT}, s{S_T1}, s{S_T3}")
        a(f"s_and_b32 s{S_PAR}, s{S_T0}, 1")
        a(f"s_lshr_b32 s{S_T0}, s{S_T0}, 1")
        a(f"s_lshl_b32 s{S_T0}, s{S_T0}, 2")
        a(f"s_add_u32 s{S_RT}, s{S_T0}, s{S_T2}")
        a(f"s_mul_i32 s{S_T0}, s{S_PAR}, 7")
        a(f"s_add_u32 s{S_FC}, s{S_T0}, s{S_CT}")
    else:
        a(f"s_mul_i32 s{S_T2}, s{S_T1}, 37")
        a(f"s_lshr_b32 s{S_T2}, s{S_T2}, 9")
        a(f"s_mul_i32 s{S_T3}, s{S_T2}, 14")
        a(f"s_sub_u32 s{S_FC}, s{S_T1}, s{S_T3}")
        a(f"s_lshl_b32 s{S_T0}, s{S_T0}, 1")
        a(f"s_add_u32 s{S_RT}, s{S_T0}, s{S_T2}")
        a(f"s_cmp_ge_u32 s{S_FC}, 7")
        a(f"s_cselect_b32 s{S_PAR}, 1, 0")
        a(f"s_mul_i32 s{S_T0}, s{S_PAR}, 7")
        a(f"s_sub_u32 s{S_CT}, s{S_FC}, s{S_T0}")
    a(f"s_lshl_b32 s{S_RB}, s{S_RT}, 1")
    a(f"s_add_u32 s{S_RB}, s{S_RB}, s{S_PAR}")
    a(f"s_cmp_lt_u32 s{S_WAVE}, 4")
    a("s_cbranch_scc1 L_cwave")

def w_tr_lane_consts(a, vbase, vt1, t0, t1):
    a(f"v_bfe_u32 v{t0}, v0, 2, 2")
    a(f"v_bfe_u32 v{t1}, v0, 1, 1")
    a(f"v_lshlrev_b32 v{vt1}, 1, v{t0}")
    a(f"v_xor_b32 v{vt1}, v{vt1}, v{t1}")
    a(f"v_bfe_u32 v{t1}, v0, 4, 1")
    a(f"v_lshlrev_b32 v{vbase}, 3, v{t1}")
    a(f"v_xor_b32 v{vt1}, v{vt1}, v{vbase}")
    a(f"v_mul_u32_u24 v{vbase}, {UR-GR}, v{t1}")
    a(f"v_lshrrev_b32 v{t1}, 5, v0")
    a(f"v_lshl_add_u32 v{t0}, v{t1}, 3, v{t0}")
    a(f"v_lshl_add_u32 v{vbase}, v{t0}, 8, v{vbase}")
    a(f"v_and_b32 v{t0}, 1, v0")
    a(f"v_lshl_add_u32 v{vbase}, v{t0}, 3, v{vbase}")
    a(f"v_add_u32 v{vbase}, {GR}, v{vbase}")

def x_frag_addrs(a, vdst, srowbase, t0, t1, t2):
    a(f"v_and_b32 v{t0}, 31, v0")
    a(f"v_bfe_u32 v{t1}, v0, 1, 3")
    a(f"v_add_u32 v{t0}, s{srowbase}, v{t0}")
    a(f"v_lshlrev_b32 v{t0}, 7, v{t0}")
    a(f"v_lshrrev_b32 v{t2}, 5, v0")
    a(f"v_xor_b32 v{t1}, v{t1}, v{t2}")
    for ks in range(4):
        a(f"v_xor_b32 v{t2}, {2*ks}, v{t1}")
        a(f"v_lshl_add_u32 v{vdst+ks}, v{t2}, 4, v{t0}")

def nonce_check(a, vnon, t0):
    Lok = a.uid("L_nonok")
    a(f"v_readfirstlane_b32 s{S_NONCE}, v{vnon}")
    a("s_nop 3")
    a(f"s_cmp_lg_u32 s{S_NONCE}, 0")
    a(f"s_cbranch_scc1 {Lok}")
    a.get_nonce_spin(vnon, t0)
    a.label(Lok)

def h_wave(a):
    vnon, vF0a, vF0d = 16, 22, 23
    vKA_, vKB_ = 32, 48
    t0, t1, t2, t3 = 64, 65, 66, 67
    w = S_A0
    sCH, sRH = 100, 101
    a(f"s_sub_u32 s{w}, s{S_WAVE}, 4")
    a(f"s_cmp_ge_u32 s{w}, 2")
    a("s_cbranch_scc1 L_side")
    def common_setup():
        a.srd(R_WS, S_WS, WS_BYTES); a.srd(R_E, S_SK, XB)
        a(f"s_lshr_b32 s{S_T1}, s{w}, 1")
        a(f"s_lshl_b32 s{sCH}, s{S_M}, 1")
        a(f"s_add_u32 s{sCH}, s{sCH}, s{S_T1}")
        a(f"s_and_b32 s{sRH}, s{w}, 1")
        a(f"s_lshr_b32 s{S_T1}, s{sCH}, 4")
        a(f"s_lshl_b32 s{S_T1}, s{S_T1}, 7")
        a(f"s_add_u32 s{S_T1}, s{S_T1}, {F0_OFF}")
        a(f"v_and_b32 v{t0}, 31, v0")
        a(f"v_lshlrev_b32 v{t0}, 2, v{t0}")
        a(f"v_add_u32 v{vF0a}, s{S_T1}, v{t0}")
    def nonce_load(vm):
        a(f"v_mov_b32 v{t0}, 0")
        a(f"global_load_dword v{vnon}, v{t0}, s[{S_DBG}:{S_DBG+1}] sc1"); vm.issue("non")
    def k_loads(vm):
        a(f"s_lshl_b32 s{S_T1}, s{sCH}, 12")
        a(f"v_lshlrev_b32 v{t0}, 4, v0")
        a(f"v_add_u32 v{t1}, 4, v{t0}")
        for i in range(4):
            a(f"buffer_load_dwordx4 {vr(vKA_+4*i)}, v{t0}, s[{R_E}:{R_E+3}], s{S_T1} offen offset:{1024*i}"); vm.issue("K")
            a(f"buffer_load_dwordx4 {vr(vKB_+4*i)}, v{t1}, s[{R_E}:{R_E+3}], s{S_T1} offen offset:{1024*i}"); vm.issue("K")
        a(f"buffer_load_dword v{vF0d}, v{vF0a}, s[{R_WS}:{R_WS+3}], 0 offen sc1"); vm.issue("f0")

    vm = VM(a)
    if "noprio" not in a.exp: a("s_setprio 2")
    vXe, vXo, vG, vU = 4, 5, 6, 7
    a(f"v_lshrrev_b32 v{t0}, 3, v0")
    a(f"v_mul_u32_u24 v{t0}, 896, v{t0}")
    a(f"v_lshrrev_b32 v{t1}, 4, v0")
    a(f"v_and_b32 v{t2}, 7, v0")
    a(f"v_xor_b32 v{t2}, v{t2}, v{t1}")
    a(f"v_lshl_add_u32 v{vXe}, v{t2}, 4, v{t0}")
    a(f"v_xor_b32 v{t2}, 4, v{t2}")
    a(f"v_lshl_add_u32 v{vXo}, v{t2}, 4, v{t0}")
    a(f"v_mul_u32_u24 v{t0}, 3584, v{t1}")
    a(f"v_and_b32 v{t2}, 15, v0")
    a(f"v_lshlrev_b32 v{t3}, 1, v{t1}")
    a(f"v_xor_b32 v{t2}, v{t2}, v{t3}")
    a(f"v_lshl_add_u32 v{vG}, v{t2}, 4, v{t0}")
    a(f"v_xor_b32 v{t2}, 8, v{t2}")
    a(f"v_lshl_add_u32 v{vU}, v{t2}, 4, v{t0}")
    sXs, sXd, sWs, sGd, sUd = S_A1, S_A2, S_A3, S_A4, S_A5
    a(f"s_lshl_b32 s{S_T0}, s{S_RT}, 7")
    a(f"s_lshl_b32 s{S_T1}, s{w}, 6")
    a(f"s_add_u32 s{S_T0}, s{S_T0}, s{S_T1}")
    a(f"s_mul_i32 s{sXs}, s{S_T0}, 896")
    a(f"s_lshl_b32 s{sXd}, s{w}, 13")
    a(f"s_mul_i32 s{S_T0}, s{w}, {32*3584}")
    a(f"s_lshl_b32 s{S_T1}, s{S_FC}, 8")
    a(f"s_add_u32 s{sWs}, s{S_T0}, s{S_T1}")
    a(f"s_add_u32 s{sGd}, s{sXd}, {GR}")
    a(f"s_add_u32 s{sUd}, s{sXd}, {UR}")
    a("s_waitcnt lgkmcnt(0)")
    a.srd(R_A, S_X, XB); a.srd(R_B, S_WG, WB); a.srd(R_C, S_WU, WB)
    def issue_stage(st, lo=0, hi=8):
        slot = st % 3
        for i in range(lo, hi):
            for (dst, voff, srd, src, step, base) in ((sXd, vXe if i % 2 == 0 else vXo, R_A, sXs, 8*896, st*128),
                                                      (sGd, vG, R_B, sWs, 4*3584, 64*st*3584), (sUd, vU, R_C, sWs, 4*3584, 64*st*3584)):
                a(f"s_add_u32 m0, s{dst}, {slot*SLOT + i*1024}")
                a(f"s_add_u32 s{S_T0}, s{src}, {base + i*step}")
                a(f"buffer_load_dwordx4 v{voff}, s[{srd}:{srd+3}], s{S_T0} offen lds")
                vm.issue(("st", st))
    issue_stage(0); issue_stage(1, 0, 5)
    a.stamp(0)
    common_setup()
    for st in range(7):
        vm.wait(("st", st))
        if a.stop == "p1": a.stamp(3 + st)
        a("s_barrier")
        if st == 0: issue_stage(1, 5, 8)
        if st == 1: nonce_load(vm)
        if st == 3:
            assert not vm.has("non")
            nonce_check(a, vnon, t0)
        if st <= 4: issue_stage(st + 2)
        if st == 5: k_loads(vm)
    a("s_branch L_htail")

    a.label("L_side")
    vm = VM(a)
    vCA, vSA, vUo, vCS, vST = 4, 8, 10, 72, 80
    vh, vl, e0 = 68, 69, 88
    sW = S_A1
    a(f"s_sub_u32 s{sW}, s{w}, 2")
    sTB, sCG = S_A2, S_A3
    a(f"s_mul_i32 s{sTB}, s{S_M}, 9363")
    a(f"s_lshr_b32 s{sTB}, s{sTB}, 16")
    a(f"s_mul_i32 s{S_T1}, s{sTB}, 7")
    a(f"s_sub_u32 s{sCG}, s{S_M}, s{S_T1}")
    KR, VR, WR, KF, WF, AC = 100, 128, 144, 160, 174, 182
    vKo, vKv, vKw, vT = 186, 189, 190, 191
    a(f"s_lshl_b32 s{S_T0}, s{sTB}, 6")
    a(f"s_lshl_b32 s{S_T1}, s{sW}, 5")
    a(f"s_add_u32 s{S_T0}, s{S_T0}, s{S_T1}")
    a(f"v_lshrrev_b32 v{t0}, 3, v0")
    a(f"v_lshl_add_u32 v{t1}, v{t0}, 2, s{S_T0}")
    a(f"v_and_b32 v{t2}, 7, v0")
    a(f"s_lshl_b32 s{S_T1}, s{sCG}, 7")
    a(f"v_lshl_add_u32 v{t3}, v{t2}, 4, s{S_T1}")
    a(f"v_mov_b32 v{vT}, 896")
    a(f"v_mad_u32_u24 v{vKv}, v{t1}, v{vT}, v{t3}")
    for i in range(3):
        a(f"v_cmp_gt_u32 vcc, {3-i}, v{t1}")
        a(f"v_subrev_u32 v{vKo+i}, {(3-i)*896}, v{vKv}")
        a(f"v_mov_b32 v{vT}, 0x40000000")
        a(f"v_cndmask_b32 v{vKo+i}, v{vKo+i}, v{vT}, vcc")
    a(f"s_lshl_b32 s{S_T1}, s{sCG}, 9")
    a(f"v_lshl_add_u32 v{vKw}, v{t2}, 6, s{S_T1}")
    a(f"v_lshrrev_b32 v{t1}, 1, v{t0}")
    a(f"s_lshl_b32 s{S_T1}, s{sW}, 2")
    a(f"v_add_u32 v{t1}, s{S_T1}, v{t1}")
    a(f"v_xor_b32 v{t1}, v{t1}, v{t2}")
    a(f"v_lshlrev_b32 v{t1}, 4, v{t1}")
    a(f"v_lshl_add_u32 v{t1}, v{t2}, 10, v{t1}")
    a(f"v_and_b32 v{t0}, 1, v{t0}")
    a(f"v_sub_u32 v{t0}, 1, v{t0}")
    a(f"v_lshl_add_u32 v{t1}, v{t0}, 3, v{t1}")
    a(f"v_add_u32 v{vT}, {EXT}, v{t1}")
    a("s_waitcnt lgkmcnt(0)")
    a.srd(R_A, S_X, XB); a.srd(R_B, S_K, XB); a.srd(R_C, S_V, XB); a.srd(92, S_SH, D*4*2)
    def kv_loads():
        for i in range(3):
            a(f"buffer_load_dwordx4 {vr(KR+4*i)}, v{vKo+i}, s[{R_B}:{R_B+3}], 0 offen"); vm.issue("kvl")
        for i in range(4):
            a(f"buffer_load_dwordx4 {vr(KR+12+4*i)}, v{vKv}, s[{R_B}:{R_B+3}], 0 offen offset:{896*i}"); vm.issue("kvl")
        for i in range(4):
            a(f"buffer_load_dwordx4 {vr(VR+4*i)}, v{vKv}, s[{R_C}:{R_C+3}], 0 offen offset:{896*i}"); vm.issue("kvl")
        for i in range(4):
            a(f"buffer_load_dwordx4 {vr(WR+4*i)}, v{vKw}, s[92:95], 0 offen offset:{16*i}"); vm.issue("kvl")
    a.stamp(0)
    common_setup()
    a(f"v_mov_b32 v{t0}, {CNT_L}")
    for r in range(4): a(f"v_mov_b32 v{e0+r}, 0")
    a(f"ds_write_b128 v{t0}, {vr(e0)}")
    a(f"v_bfe_u32 v{t0}, v0, 4, 1")
    a(f"v_mul_u32_u24 v{t0}, 1792, v{t0}")
    a(f"v_and_b32 v{t1}, 15, v0")
    a(f"v_add_u32 v{t0}, v{t0}, v{t1}")
    a(f"s_lshl_b32 s{S_T1}, s{S_FC}, 7")
    a(f"s_lshl_b32 s{S_T2}, s{sW}, 6")
    a(f"s_add_u32 s{S_T1}, s{S_T1}, s{S_T2}")
    a(f"v_add_u32 v{t0}, s{S_T1}, v{t0}")
    a(f"v_lshlrev_b32 v{t0}, 3, v{t0}")
    a(f"v_add_u32 v{vCA}, {CS_OFF}, v{t0}")
    a(f"s_lshl_b32 s{S_T1}, s{S_RT}, 7")
    a(f"s_add_u32 s{S_T1}, s{S_T1}, s{S_T2}")
    a(f"v_and_b32 v{t0}, 31, v0")
    a(f"v_add_u32 v{t0}, s{S_T1}, v{t0}")
    a(f"v_lshlrev_b32 v{t0}, 4, v{t0}")
    a(f"v_add_u32 v{vSA}, {SG_OFF}, v{t0}")
    vF0w = 9
    a(f"s_lshl_b32 s{S_T1}, s{sCG}, 2")
    a(f"s_lshl_b32 s{S_T2}, s{sW}, 1")
    a(f"s_add_u32 s{S_T1}, s{S_T1}, s{S_T2}")
    a(f"v_add_u32 v{t0}, s{S_T1}, v0")
    a(f"v_lshlrev_b32 v{t0}, 5, v{t0}")
    a(f"v_add_u32 v{t0}, s{sTB}, v{t0}")
    a(f"v_lshlrev_b32 v{t0}, 2, v{t0}")
    a(f"v_add_u32 v{vF0w}, {F0_OFF}, v{t0}")
    a(f"s_lshl_b32 s{S_T1}, s{sCG}, 6")
    a(f"s_lshl_b32 s{S_T0}, s{sW}, 5")
    a(f"s_add_u32 s{S_T1}, s{S_T1}, s{S_T0}")
    a(f"v_lshrrev_b32 v{t0}, 3, v0")
    a(f"v_add_u32 v{t0}, s{S_T1}, v{t0}")
    a(f"v_lshlrev_b32 v{t0}, 12, v{t0}")
    a(f"s_lshl_b32 s{S_T1}, s{sTB}, 7")
    a(f"s_add_u32 s{S_T1}, s{S_T1}, {UT_OFF}")
    a(f"v_add_u32 v{t0}, s{S_T1}, v{t0}")
    a(f"v_and_b32 v{t1}, 7, v0")
    a(f"s_lshl_b32 s{S_T1}, s{sW}, 2")
    a(f"v_xor_b32 v{t1}, s{S_T1}, v{t1}")
    for i in range(4):
        a(f"v_xor_b32 v{t2}, {i}, v{t1}")
        a(f"v_lshl_add_u32 v{vUo+i}, v{t2}, 4, v{t0}")
        if i: a(f"v_add_u32 v{vUo+i}, {8*4096*i}, v{vUo+i}")
    def kv_valu(j):
        for c in range(2):
            ch = 2*j + c
            a(f"v_lshlrev_b32 v{WF+4*c}, 16, v{WR+2*ch}"); a(f"v_and_b32 v{WF+4*c+1}, 0xffff0000, v{WR+2*ch}")
            a(f"v_lshlrev_b32 v{WF+4*c+2}, 16, v{WR+2*ch+1}"); a(f"v_and_b32 v{WF+4*c+3}, 0xffff0000, v{WR+2*ch+1}")
        for i in range(7):
            a(f"v_lshlrev_b32 v{KF+i}, 16, v{KR+4*i+j}"); a(f"v_and_b32 v{KF+7+i}, 0xffff0000, v{KR+4*i+j}")
        for c in range(2):
            kf, wf = KF + 7*c, WF + 4*c
            for t in range(4): a(f"v_mul_f32 v{AC+t}, v{wf}, v{kf+3+t}")
            for tap in range(1, 4):
                for t in range(4): a(f"v_fmac_f32 v{AC+t}, v{wf+tap}, v{kf+3+t-tap}")
            for t in range(4):
                a(f"v_and_b32 v{kf+t}, 0xffff0000, v{VR+4*t+j}" if c else f"v_lshlrev_b32 v{kf+t}, 16, v{VR+4*t+j}")
            for t in range(4): a(f"v_mul_f32 v{AC+t}, v{AC+t}, v{kf+t}")
            o = 70
            a(f"v_cvt_pk_bf16_f32 v{o}, v{AC+3}, v{AC+2}")
            a(f"v_cvt_pk_bf16_f32 v{o+1}, v{AC+1}, v{AC}")
            a(f"ds_write_b64 v{vT}, {vr(o, 2)} offset:{128*(2*j+c)}")
    def cs_load():
        for e in range(4):
            a(f"buffer_load_dwordx2 {vr(vCS+2*e, 2)}, v{vCA}, s[{R_WS}:{R_WS+3}], 0 offen offset:{128*e} sc1"); vm.issue("cs")
    def sg_load():
        for e in range(2):
            a(f"buffer_load_dwordx4 {vr(vST+4*e)}, v{vSA}, s[{R_WS}:{R_WS+3}], 0 offen offset:{512*e} sc1"); vm.issue("sg")
    vXG, vXA = 96, 14
    a(f"s_and_b32 s{S_T0}, s{S_M}, 7")
    a(f"s_mul_i32 s{S_T0}, s{S_T0}, {28*8}")
    a(f"s_add_u32 s{S_T0}, s{S_T0}, {XG_OFF}")
    a(f"v_min_u32 v{t0}, 27, v0")
    a(f"v_lshl_add_u32 v{vXA}, v{t0}, 3, s{S_T0}")
    def xg_load():
        a(f"buffer_load_dwordx2 {vr(vXG, 2)}, v{vXA}, s[{R_WS}:{R_WS+3}], 0 offen sc1"); vm.issue("sg")
    def tag_check(regs, reload):
        L, Dn = a.uid("L_tag"), a.uid("L_tagd")
        a(f"s_mov_b32 s{S_BND}, {a.spin}")
        a.label(L)
        a(f"v_cmp_ne_u32 vcc, s{S_NONCE}, v{regs[0]}")
        for r in regs[1:]:
            a(f"v_cmp_ne_u32 s[{S_EX}:{S_EX+1}], s{S_NONCE}, v{r}")
            a("s_nop 1")
            a(f"s_or_b64 vcc, vcc, s[{S_EX}:{S_EX+1}]")
        a(f"s_cbranch_vccz {Dn}")
        keep = list(vm.q); reload()
        a("s_waitcnt vmcnt(0)")
        vm.q = keep
        a(f"s_sub_u32 s{S_BND}, s{S_BND}, 1")
        a(f"s_cmp_lg_u32 s{S_BND}, 0")
        a(f"s_cbranch_scc1 {L}")
        a.label(Dn)
    def split(vsrc, neg):
        sg = "-" if neg else ""
        a(f"v_cvt_pk_bf16_f32 v{vh}, {sg}v{vsrc}, {sg}v{vsrc}")
        a(f"v_and_b32 v{t2}, 0xffff0000, v{vh}")
        a(f"v_sub_f32_e64 v{t2}, {sg}v{vsrc}, v{t2}")
        a(f"v_cvt_pk_bf16_f32 v{vl}, v{t2}, v{t2}")
    for st in range(7):
        if a.stop == "p1": a.stamp(3 + st)
        a("s_barrier")
        if st == 0:
            kv_loads()
        if st == 1:
            nonce_load(vm); vm.wait("kvl"); kv_valu(0); kv_valu(1)
        if st == 2:
            kv_valu(2); kv_valu(3); a("s_waitcnt lgkmcnt(0)")
        if st == 3:
            vm.wait("non"); nonce_check(a, vnon, t0)
            a(f"v_mov_b32 v{t0}, s{S_NONCE}")
            a(f"v_mov_b32 v{t1}, {NONCE_L}")
            a(f"ds_write_b32 v{t1}, v{t0}")
            Lns = a.uid("L_nosg")
            a(f"s_cmp_lg_u32 s{sW}, 0")
            a(f"s_cbranch_scc1 {Lns}")
            a(f"v_lshlrev_b32 v{t0}, 3, v0")
            a(f"v_add_u32 v{t0}, {STG_L}, v{t0}")
            a(f"ds_read_b64 {vr(t2, 2)}, v{t0}")
            a(f"v_and_b32 v{t0}, 3, v0")
            a(f"v_lshrrev_b32 v{t1}, 2, v0")
            a(f"v_mul_u32_u24 v{t1}, 56, v{t1}")
            a(f"v_add_u32 v{t0}, v{t0}, v{t1}")
            a(f"s_lshl_b32 s{S_T1}, s{S_FC}, 2")
            a(f"v_add_u32 v{t0}, s{S_T1}, v{t0}")
            a(f"v_cmp_gt_u32 vcc, 128, v{t0}")
            a(f"s_lshl_b32 s{S_T1}, s{S_RT}, 7")
            a(f"v_add_u32 v{t0}, s{S_T1}, v{t0}")
            a(f"v_lshlrev_b32 v{t0}, 4, v{t0}")
            a(f"v_add_u32 v{t0}, {SG_OFF}, v{t0}")
            a("s_and_b64 vcc, vcc, 0xfff")
            a("s_waitcnt lgkmcnt(0)")
            a(f"v_mov_b32 v{vST}, v{t2}")
            a(f"v_mov_b32 v{vST+1}, s{S_NONCE}")
            a(f"v_mov_b32 v{vST+2}, v{t3}")
            a(f"v_mov_b32 v{vST+3}, s{S_NONCE}")
            a("s_mov_b64 exec, vcc")
            a(f"buffer_store_dwordx4 {vr(vST)}, v{t0}, s[{R_WS}:{R_WS+3}], 0 offen sc1")
            a(f"s_getreg_b32 s{S_T2}, hwreg(HW_REG_XCC_ID, 0, 4)")
            a(f"s_and_b32 s{S_T0}, s{S_M}, 7")
            a(f"s_mul_i32 s{S_T0}, s{S_T0}, 28")
            a(f"s_lshr_b32 s{S_T1}, s{S_M}, 3")
            a(f"s_add_u32 s{S_T0}, s{S_T0}, s{S_T1}")
            a(f"s_lshl_b32 s{S_T0}, s{S_T0}, 3")
            a(f"s_add_u32 s{S_T0}, s{S_T0}, {XG_OFF}")
            a("s_mov_b64 exec, 1")
            a(f"v_mov_b32 v{t2}, s{S_T2}")
            a(f"v_mov_b32 v{t3}, s{S_NONCE}")
            a(f"v_mov_b32 v{t0}, 0")
            a(f"buffer_store_dwordx2 {vr(t2, 2)}, v{t0}, s[{R_WS}:{R_WS+3}], s{S_T0} offen sc1")
            a("s_mov_b64 exec, -1")
            a.label(Lns)
            a(f"s_lshl_b32 s{S_T1}, s{sW}, 12")
            a(f"s_add_u32 s{S_T1}, s{S_T1}, {EXT}")
            a(f"v_lshlrev_b32 v{t0}, 4, v0")
            a(f"v_add_u32 v{t0}, s{S_T1}, v{t0}")
            for i in range(4): a(f"ds_read_b128 {vr(100+4*i)}, v{t0} offset:{1024*i}")
            for i in range(4):
                a(f"s_waitcnt lgkmcnt({3-i})")
                a(f"buffer_store_dwordx4 {vr(100+4*i)}, v{vUo+i}, s[{R_WS}:{R_WS+3}], 0 offen sc1"); vm.issue("ut")
            cs_load()
        if st == 4:
            vm.wait("ut")
            a(f"v_mov_b32 v{t0}, s{S_NONCE}")
            a("s_mov_b64 exec, 3")
            a(f"buffer_store_dword v{t0}, v{vF0w}, s[{R_WS}:{R_WS+3}], 0 offen sc1"); vm.issue("sig")
            a("s_mov_b64 exec, -1")
            sg_load(); xg_load()
            vm.wait("cs")
            tag_check([vCS + 1, vCS + 3, vCS + 5, vCS + 7], cs_load)
            a("v_cmp_gt_u32 vcc, 32, v0")
            a(f"v_lshlrev_b32 v{t3}, 4, v0")
            a(f"s_lshl_b32 s{S_T1}, s{sW}, 12")
            a(f"s_add_u32 s{S_T1}, s{S_T1}, {WEXT}")
            a(f"v_add_u32 v{t1}, s{S_T1}, v{t3}")
            for e in range(4):
                f0 = e0 + 4*(e & 1)
                split(vCS + 2*e, False)
                a(f"v_and_b32 v{t2}, 0xffff, v{vl}")
                a(f"v_cndmask_b32 v{f0}, 0, v{vh}, vcc")
                a(f"v_cndmask_b32 v{f0+1}, 0, v{t2}, vcc")
                a(f"v_mov_b32 v{f0+2}, 0")
                a(f"v_mov_b32 v{f0+3}, 0")
                a(f"ds_write_b128 v{t1}, {vr(f0)} offset:{1024*e}")
        if st == 5:
            vm.wait("sg")
            k_loads(vm)
            tag_check([vST + 1, vST + 3, vST + 5, vST + 7, vXG + 1], lambda: (sg_load(), xg_load()))
            a(f"s_getreg_b32 s{S_T2}, hwreg(HW_REG_XCC_ID, 0, 4)")
            a(f"v_cmp_ne_u32 vcc, s{S_T2}, v{vXG}")
            a("s_nop 1")
            a("s_cmp_eq_u64 vcc, 0")
            a(f"s_cselect_b32 s{S_T2}, {0 if ('slowpath' in a.exp or 'map4x7' in a.exp) else 1}, 0")
            a(f"v_mov_b32 v{t1}, s{S_T2}")
            a(f"v_mov_b32 v{t2}, {FAST_L}")
            a(f"ds_write_b32 v{t2}, v{t1}")
            a("v_cmp_gt_u32 vcc, 32, v0")
            a(f"v_and_b32 v{t1}, 31, v0")
            a(f"s_lshl_b32 s{S_T1}, s{sW}, 9")
            a(f"v_lshl_add_u32 v{t1}, v{t1}, 3, s{S_T1}")
            a(f"v_add_u32 v98, {STATS_L}, v{t1}")
            a(f"v_lshlrev_b32 v{t3}, 4, v0")
            a(f"s_lshl_b32 s{S_T1}, s{sW}, 11")
            a(f"s_add_u32 s{S_T1}, s{S_T1}, {XEXT}")
            a(f"v_add_u32 v99, s{S_T1}, v{t3}")
            for e in range(2):
                g = vST + 4*e
                a(f"v_mov_b32 v{g+1}, v{g+2}")
                a(f"ds_write_b64 v98, {vr(g, 2)} offset:{256*e}")
                split(g, True)
                f0 = e0 + 4*e
                a(f"v_and_b32 v{t2}, 0xffff, v{vh}")
                a(f"v_lshlrev_b32 v{t1}, 16, v{vl}")
                a(f"v_or_b32 v{t1}, v{t1}, v{t2}")
                a(f"v_cndmask_b32 v{f0}, 0, v{t1}, vcc")
                a(f"v_cndmask_b32 v{f0+1}, 0, v{t2}, vcc")
                a(f"v_mov_b32 v{f0+2}, 0")
                a(f"v_mov_b32 v{f0+3}, 0")
                a(f"ds_write_b128 v99, {vr(f0)} offset:{1024*e}")
    a.label("L_htail")
    a.stamp(1)
    e0 = 88
    sUB, sKC, sUok = S_A2, S_A1, S_A3
    a(f"s_lshr_b32 s{S_T0}, s{w}, 1")
    a(f"s_mul_i32 s{sUB}, s{S_T0}, {UCH}")
    a(f"s_add_u32 s{sUB}, s{sUB}, {UB0}")
    a(f"s_mul_i32 s{sKC}, s{S_T0}, {KCH}")
    a(f"s_add_u32 s{sKC}, s{sKC}, {CV}")
    def u_dma():
        a(f"s_lshl_b32 s{S_T1}, s{sCH}, 12")
        a(f"s_add_u32 s{S_T1}, s{S_T1}, {UT_OFF}")
        a(f"v_lshlrev_b32 v{t0}, 4, v0")
        for i in range(4):
            a(f"s_add_u32 m0, s{sUB}, {512 + 1024*i}")
            a(f"s_add_u32 s{S_T2}, s{S_T1}, {1024*i}")
            a(f"buffer_load_dwordx4 v{t0}, s[{R_WS}:{R_WS+3}], s{S_T2} offen sc1 lds")
    a("s_waitcnt vmcnt(0)")
    a(f"v_cmp_ne_u32 vcc, s{S_NONCE}, v{vF0d}")
    a(f"s_mov_b32 s{sUok}, 0")
    a("s_nop 0")
    Lnu = a.uid("L_nou")
    a(f"s_cbranch_vccnz {Lnu}")
    a(f"s_mov_b32 s{sUok}, 1")
    u_dma()
    a.label(Lnu)
    a(f"v_lshlrev_b32 v{t3}, 4, v0")
    a(f"v_add_u32 v{t1}, s{sKC}, v{t3}")
    Lc1, Lcd = a.uid("L_copy1"), a.uid("L_copyd")
    a(f"s_cmp_eq_u32 s{sRH}, 1")
    a(f"s_cbranch_scc1 {Lc1}")
    for i in range(4):
        a(f"ds_write_b128 v{t1}, {vr(vKA_+4*i)} offset:{32 + 1024*i}")
    a(f"v_mov_b32 v{e0}, 0")
    a(f"v_mov_b32 v{e0+1}, 0")
    a(f"v_lshlrev_b32 v{t1}, 3, v0")
    a(f"v_add_u32 v{t2}, s{sUB}, v{t1}")
    a(f"ds_write_b64 v{t2}, {vr(e0, 2)}")
    a(f"v_add_u32 v{t2}, s{sKC}, v{t1}")
    a("s_mov_b64 exec, 0xf")
    a(f"ds_write_b64 v{t2}, {vr(e0, 2)}")
    a("s_mov_b64 exec, -1")
    a(f"s_branch {Lcd}")
    a.label(Lc1)
    a(f"v_lshlrev_b32 v{t2}, 16, v{vKA_}")
    for i in range(4):
        for j in range(4):
            a(f"v_alignbit_b32 v{vKB_+4*i+j}, v{vKB_+4*i+j}, v{vKA_+4*i+j}, 16")
    for i in range(4):
        a(f"ds_write_b128 v{t1}, {vr(vKB_+4*i)} offset:{4160 + 32 + 1024*i}")
    a(f"v_readfirstlane_b32 s{S_T1}, v{t2}")
    a(f"v_lshlrev_b32 v{t1}, 2, v0")
    a(f"v_add_u32 v{t1}, s{sKC}, v{t1}")
    a("v_cmp_eq_u32 vcc, 7, v0")
    a(f"v_mov_b32 v{t2}, s{S_T1}")
    a("s_nop 0")
    a(f"v_cndmask_b32 v{t2}, 0, v{t2}, vcc")
    a("s_mov_b64 exec, 0xff")
    a(f"ds_write_b32 v{t1}, v{t2} offset:4160")
    a("s_mov_b64 exec, -1")
    a.label(Lcd)
    a("s_waitcnt lgkmcnt(0)")
    a("s_barrier")
    a.stamp(2)
    if a.stop == "p1":
        a("s_waitcnt vmcnt(0)"); a("s_barrier"); a.stamps_out(10); a("s_endpgm"); return
    if "noprio" not in a.exp: a("s_setprio 1")
    Lgo = a.uid("L_ugo")
    a(f"s_cmp_eq_u32 s{sUok}, 1")
    a(f"s_cbranch_scc1 {Lgo}")
    a.poll(vF0a, t1, 64, sleep=2)
    u_dma()
    a.label(Lgo)
    a.stamp(3)
    if "noconv" not in a.exp: conv(a, w, sCH, sRH, sUB, sKC)
    a.stamp(5)
    final_h(a, w)

def lds_pair_sync(a, vaddr, vone, vtmp, target):
    L, Dn = a.uid("L_ps"), a.uid("L_psd")
    a("s_mov_b64 exec, 1")
    a(f"ds_add_u32 v{vaddr}, v{vone}")
    a("s_mov_b64 exec, -1")
    a(f"s_mov_b32 s{S_BND}, {a.spin}")
    a.label(L)
    a(f"ds_read_b32 v{vtmp}, v{vaddr}")
    a("s_waitcnt lgkmcnt(0)")
    a(f"v_readfirstlane_b32 s{S_T0}, v{vtmp}")
    a("s_nop 0")
    a(f"s_cmp_ge_u32 s{S_T0}, {target}")
    a(f"s_cbranch_scc1 {Dn}")
    a(f"s_sub_u32 s{S_BND}, s{S_BND}, 1")
    a(f"s_cmp_lg_u32 s{S_BND}, 0")
    a(f"s_cbranch_scc1 {L}")
    a.label(Dn)

def conv(a, w, sCH, sRH, sUB, sKC):
    t0, t1, t2, t3 = 64, 65, 66, 67
    a(f"s_lshl_b32 s{S_T0}, s{S_M}, 2")
    a(f"s_load_dword s{S_A4}, s[{S_SD}:{S_SD+1}], s{S_T0}")
    vKA, vUB = 8, 12
    a(f"v_and_b32 v{t0}, 15, v0")
    a(f"v_lshrrev_b32 v{t1}, 5, v0")
    a(f"v_bfe_u32 v{t2}, v0, 4, 1")
    a(f"v_lshlrev_b32 v{t3}, 4, v{t1}")
    a(f"v_add_u32 v{t3}, v{t3}, v{t0}")
    a(f"v_add_u32 v{t3}, 9, v{t3}")
    a(f"v_lshlrev_b32 v{vUB}, 3, v{t2}")
    a(f"v_sub_u32 v{t3}, v{t3}, v{vUB}")
    a(f"v_and_b32 v{vUB}, 1, v{t3}")
    a(f"v_mul_u32_u24 v{vUB}, 4158, v{vUB}")
    a(f"v_lshl_add_u32 v{t3}, v{t3}, 1, v{vUB}")
    a(f"s_lshl_b32 s{S_T1}, s{sRH}, 8")
    a(f"s_add_u32 s{S_T2}, s{sKC}, s{S_T1}")
    a(f"v_add_u32 v{vKA}, s{S_T2}, v{t3}")
    for i in range(1, 4): a(f"v_add_u32 v{vKA+i}, {1024*i}, v{vKA}")
    a(f"v_sub_u32 v{t3}, v{t0}, v{t1}")
    a(f"v_lshlrev_b32 v{t3}, 5, v{t3}")
    a(f"v_lshl_add_u32 v{t3}, v{t2}, 4, v{t3}")
    a(f"v_add_u32 v{t3}, {64 + 256}, v{t3}")
    a(f"s_sub_u32 s{S_T2}, s{sUB}, s{S_T1}")
    a(f"v_add_u32 v{vUB}, s{S_T2}, v{t3}")
    vUE, vYO, vXA, vCN, vOne = 13, 14, 15, 16, 17
    a(f"v_lshlrev_b32 v{t3}, 5, v{t0}")
    a(f"v_lshl_add_u32 v{t3}, v{t1}, 4, v{t3}")
    a(f"v_lshlrev_b32 v{vUE}, 3, v{t2}")
    a(f"v_sub_u32 v{t3}, v{t3}, v{vUE}")
    a(f"v_add_u32 v{t3}, 520, v{t3}")
    a(f"s_lshl_b32 s{S_T1}, s{sRH}, 11")
    a(f"s_add_u32 s{S_T2}, s{sUB}, s{S_T1}")
    a(f"v_add_u32 v{vUE}, s{S_T2}, v{t3}")
    a(f"v_lshrrev_b32 v{t3}, 4, v0")
    a(f"v_lshlrev_b32 v{t3}, 3, v{t3}")
    a(f"v_lshl_add_u32 v{vYO}, v{t0}, 5, v{t3}")
    a(f"v_lshlrev_b32 v{t3}, 4, v0")
    a(f"v_add_u32 v{vXA}, s{sKC}, v{t3}")
    a(f"s_lshr_b32 s{S_T1}, s{w}, 1")
    a(f"s_lshl_b32 s{S_T1}, s{S_T1}, 2")
    a(f"s_add_u32 s{S_T1}, s{S_T1}, {CNT_L}")
    a(f"v_mov_b32 v{vCN}, s{S_T1}")
    a(f"v_mov_b32 v{vOne}, 1")
    a("s_waitcnt vmcnt(0) lgkmcnt(0)")
    a.stamp(4)
    ACC = 224
    AS, BS = (96, 160), (128, 192)
    def loads(rr):
        s = rr & 1; L = []
        for x in range(8):
            L.append(f"ds_read_b128 {vr(BS[s]+4*x)}, v{vUB} offset:{512*x + 64*(3-rr)}")
            o = 128*(x & 1) + 16*rr
            L.append(f"ds_read2_b32 {vr(AS[s]+4*x, 2)}, v{vKA+(x>>1)} offset0:{o} offset1:{o+1}")
            L.append(f"ds_read2_b32 {vr(AS[s]+4*x+2, 2)}, v{vKA+(x>>1)} offset0:{o+2} offset1:{o+3}")
        return L
    for l in loads(0): a(l)
    for rr in range(4):
        a("s_waitcnt lgkmcnt(0)")
        nxt = loads(rr + 1) if rr < 3 else []
        s = rr & 1; k = 0
        for x in range(8):
            for c in range(x, 8):
                cin = "0" if (rr == 0 and x == 0) else vr(ACC+4*c)
                a(f"v_mfma_f32_16x16x32_bf16 {vr(ACC+4*c)}, {vr(AS[s]+4*x)}, {vr(BS[s]+4*(c-x))}, {cin}")
                if nxt and k < len(nxt): a(nxt[k]); k += 1
        while nxt and k < len(nxt): a(nxt[k]); k += 1
    a.stamp(9)
    lds_pair_sync(a, vCN, vOne, t0, 2)
    Lr1, Lrd = a.uid("L_r1"), a.uid("L_rd")
    a(f"s_cmp_eq_u32 s{sRH}, 1")
    a(f"s_cbranch_scc1 {Lr1}")
    for c in range(4): a(f"ds_write_b128 v{vXA}, {vr(ACC+16+4*c)} offset:{1024*c}")
    a(f"s_branch {Lrd}")
    a.label(Lr1)
    for c in range(4):
        a(f"ds_write_b128 v{vXA}, {vr(ACC+4*c)} offset:{4096 + 1024*c}")
    a("s_waitcnt lgkmcnt(0)")
    for c in range(16): a(f"v_mov_b32 v{ACC+c}, v{ACC+16+c}")
    a.label(Lrd)
    a("s_waitcnt lgkmcnt(0)")
    lds_pair_sync(a, vCN, vOne, t0, 4)
    a(f"s_xor_b32 s{S_T1}, s{sRH}, 1")
    a(f"s_lshl_b32 s{S_T1}, s{S_T1}, 12")
    a(f"v_add_u32 v{vXA}, s{S_T1}, v{vXA}")
    for c in range(4): a(f"ds_read_b128 {vr(128+4*c)}, v{vXA} offset:{1024*c}")
    for c in range(4): a(f"ds_read_b64 {vr(96+2*c, 2)}, v{vUE} offset:{512*c}")
    a(f"s_lshr_b32 s{S_T1}, s{w}, 1")
    a(f"s_lshl_b32 s{S_T1}, s{S_T1}, 4")
    a(f"s_lshr_b32 s{S_A4}, s{S_A4}, s{S_T1}")
    a(f"s_lshl_b32 s{S_A4}, s{S_A4}, 16")
    a(f"s_lshl_b32 s{S_T1}, s{sCH}, 12")
    a(f"s_lshl_b32 s{S_T2}, s{sRH}, 11")
    a(f"s_add_u32 s{S_T1}, s{S_T1}, s{S_T2}")
    a(f"s_add_u32 s{S_T1}, s{S_T1}, {YT_OFF}")
    a("s_waitcnt lgkmcnt(0)")
    for c in range(4):
        d0, d1 = 96 + 2*c, 97 + 2*c
        u = 144
        a(f"v_and_b32 v{u}, 0xffff0000, v{d1}")
        a(f"v_lshlrev_b32 v{u+1}, 16, v{d1}")
        a(f"v_and_b32 v{u+2}, 0xffff0000, v{d0}")
        a(f"v_lshlrev_b32 v{u+3}, 16, v{d0}")
        for i in range(4): a(f"v_add_f32 v{ACC+4*c+i}, v{ACC+4*c+i}, v{128+4*c+i}")
        for i in range(4): a(f"v_fmac_f32 v{ACC+4*c+i}, s{S_A4}, v{u+i}")
        o = 148 + 2*c
        a(f"v_cvt_pk_bf16_f32 v{o}, v{ACC+4*c}, v{ACC+4*c+1}")
        a(f"v_cvt_pk_bf16_f32 v{o+1}, v{ACC+4*c+2}, v{ACC+4*c+3}")
        a(f"buffer_store_dwordx2 {vr(o, 2)}, v{vYO}, s[{R_WS}:{R_WS+3}], s{S_T1} offen offset:{512*c} sc1")
    a(f"s_lshr_b32 s{S_T1}, s{sCH}, 6")
    a(f"s_lshl_b32 s{S_T1}, s{S_T1}, 1")
    a(f"s_add_u32 s{S_T1}, s{S_T1}, s{sRH}")
    a(f"s_lshl_b32 s{S_T1}, s{S_T1}, 6")
    a(f"s_and_b32 s{S_T2}, s{sCH}, 63")
    a(f"s_add_u32 s{S_T1}, s{S_T1}, s{S_T2}")
    a(f"s_lshl_b32 s{S_T1}, s{S_T1}, 2")
    a(f"s_add_u32 s{S_T1}, s{S_T1}, {F2_OFF}")
    if a.prof: a(f"s_mov_b32 s{S_A5}, s{S_T1}"); a.stamp(1); a(f"s_mov_b32 s{S_T1}, s{S_A5}")
    a("s_waitcnt vmcnt(0)")
    a.signal(S_T1, t0, t1)

def lds_wait(a, addr, vaddr, vtmp, target, sleep):
    L, Dn = a.uid("L_lw"), a.uid("L_lwd")
    a(f"v_mov_b32 v{vaddr}, {addr}")
    a(f"s_mov_b32 s{S_BND}, {a.spin}")
    a.label(L)
    a(f"ds_read_b32 v{vtmp}, v{vaddr}")
    a("s_waitcnt lgkmcnt(0)")
    a(f"v_readfirstlane_b32 s{S_T3}, v{vtmp}")
    a("s_nop 0")
    a(f"s_cmp_ge_u32 s{S_T3}, {target}")
    a(f"s_cbranch_scc1 {Dn}")
    a(f"s_sleep {sleep}")
    a(f"s_sub_u32 s{S_BND}, s{S_BND}, 1")
    a(f"s_cmp_lg_u32 s{S_BND}, 0")
    a(f"s_cbranch_scc1 {L}")
    a.label(Dn)

def final_h(a, w):
    t0, t1, t2, t3 = 64, 65, 66, 67
    vXo = 8
    BASE = 16
    RS2 = 32
    XD = 36
    YD = 44
    ST = 52
    if "noprio" not in a.exp: a("s_setprio 0")
    a(f"v_lshrrev_b32 v{t0}, 3, v0")
    a(f"v_mul_u32_u24 v{t0}, 896, v{t0}")
    a(f"v_and_b32 v{t1}, 7, v0")
    a(f"v_lshl_add_u32 v{vXo}, v{t1}, 4, v{t0}")
    sXO = S_A1
    a(f"s_lshl_b32 s{S_T0}, s{S_RB}, 6")
    a(f"s_lshl_b32 s{S_T1}, s{w}, 4")
    a(f"s_add_u32 s{S_T0}, s{S_T0}, s{S_T1}")
    a(f"s_mul_i32 s{sXO}, s{S_T0}, 896")
    a(f"s_lshl_b32 s{S_T1}, s{S_CT}, 7")
    a(f"s_add_u32 s{sXO}, s{sXO}, s{S_T1}")
    a(f"s_add_u32 s{S_T2}, s{sXO}, {8*896}")
    a(f"buffer_load_dwordx4 {vr(XD)}, v{vXo}, s[{R_A}:{R_A+3}], s{sXO} offen")
    a(f"buffer_load_dwordx4 {vr(XD+4)}, v{vXo}, s[{R_A}:{R_A+3}], s{S_T2} offen")
    a(f"s_lshl_b32 s{S_T1}, s{S_PAR}, 6")
    a(f"s_lshl_b32 s{S_T2}, s{w}, 4")
    a(f"s_add_u32 s{S_T1}, s{S_T1}, s{S_T2}")
    a(f"v_lshrrev_b32 v{t0}, 3, v0")
    a(f"v_add_u32 v{t0}, s{S_T1}, v{t0}")
    a(f"v_lshlrev_b32 v{t0}, 3, v{t0}")
    a(f"v_add_u32 v{t0}, {STATS_L}, v{t0}")
    a(f"ds_read_b64 {vr(ST, 2)}, v{t0}")
    a(f"ds_read_b64 {vr(ST+2, 2)}, v{t0} offset:64")
    lds_wait(a, CNT_L + 12, t0, t1, 4, 4)
    a(f"s_lshl_b32 s{S_T1}, s{S_CT}, 9")
    a(f"s_lshr_b32 s{S_T2}, s{S_RB}, 4")
    a(f"s_lshl_b32 s{S_T2}, s{S_T2}, 8")
    a(f"s_add_u32 s{S_T1}, s{S_T1}, s{S_T2}")
    a(f"s_lshl_b32 s{S_T2}, s{w}, 6")
    a(f"s_add_u32 s{S_T1}, s{S_T1}, s{S_T2}")
    a(f"s_add_u32 s{S_T1}, s{S_T1}, {F2_OFF}")
    a(f"v_and_b32 v{t0}, 15, v0")
    a(f"v_lshlrev_b32 v{t0}, 2, v{t0}")
    a(f"v_add_u32 v{t0}, s{S_T1}, v{t0}")
    if "noconv" not in a.exp and "nopoll2" not in a.exp: a.poll(t0, t1, 16, sleep=8)
    a.stamp(6)
    a(f"s_lshl_b32 s{S_T1}, s{S_CT}, 6")
    a(f"s_lshl_b32 s{S_T2}, s{w}, 4")
    a(f"s_add_u32 s{S_T1}, s{S_T1}, s{S_T2}")
    a(f"s_lshl_b32 s{S_T1}, s{S_T1}, 12")
    a(f"s_lshl_b32 s{S_T2}, s{S_RB}, 7")
    a(f"s_add_u32 s{S_T1}, s{S_T1}, s{S_T2}")
    a(f"s_add_u32 s{S_T1}, s{S_T1}, {YT_OFF}")
    a(f"s_add_u32 s{S_T2}, s{S_T1}, {8*4096}")
    a(f"v_lshrrev_b32 v{t0}, 3, v0")
    a(f"v_lshlrev_b32 v{t0}, 12, v{t0}")
    a(f"v_and_b32 v{t1}, 7, v0")
    a(f"v_lshl_add_u32 v{t0}, v{t1}, 4, v{t0}")
    a(f"buffer_load_dwordx4 {vr(YD)}, v{t0}, s[{R_WS}:{R_WS+3}], s{S_T1} offen sc1")
    a(f"buffer_load_dwordx4 {vr(YD+4)}, v{t0}, s[{R_WS}:{R_WS+3}], s{S_T2} offen sc1")
    a(f"v_lshrrev_b32 v{t0}, 3, v0")
    a(f"v_lshlrev_b32 v{t0}, 7, v{t0}")
    a(f"s_lshl_b32 s{S_T1}, s{w}, 1")
    a(f"v_xor_b32 v{t1}, s{S_T1}, v{t1}")
    a(f"v_lshl_add_u32 v{t2}, v{t1}, 4, v{t0}")
    a(f"v_xor_b32 v{t1}, 1, v{t1}")
    a(f"v_lshl_add_u32 v{t3}, v{t1}, 4, v{t0}")
    a(f"s_lshl_b32 s{S_T1}, s{w}, 11")
    a(f"s_add_u32 s{S_T1}, s{S_T1}, {EXT}")
    a(f"v_add_u32 v{t2}, s{S_T1}, v{t2}")
    a(f"v_add_u32 v{t3}, s{S_T1}, v{t3}")
    a("s_waitcnt vmcnt(0)")
    a(f"ds_write_b128 v{t2}, {vr(YD)}")
    a(f"ds_write_b128 v{t3}, {vr(YD+4)} offset:1024")
    a(f"v_mov_b32 v{t0}, {CNT_L + 8}")
    a(f"v_mov_b32 v{t1}, 1")
    a("s_waitcnt lgkmcnt(0)")
    lds_pair_sync(a, t0, t1, t2, 4)
    a(f"v_and_b32 v{t1}, 7, v0")
    a(f"s_lshl_b32 s{S_T1}, s{w}, 1")
    a(f"v_xor_b32 v{t2}, s{S_T1}, v{t1}")
    a(f"v_lshlrev_b32 v{t1}, 10, v{t1}")
    a(f"v_lshrrev_b32 v{t0}, 3, v0")
    a(f"v_lshl_add_u32 v{t1}, v{t0}, 1, v{t1}")
    a(f"v_add_u32 v{t1}, {EXT}, v{t1}")
    a(f"v_lshl_add_u32 v{t0}, v{t2}, 4, v{t1}")
    a(f"v_xor_b32 v{t2}, 1, v{t2}")
    a(f"v_lshl_add_u32 v{t2}, v{t2}, 4, v{t1}")
    YG = 96
    for q in range(2):
        for e in range(8):
            a(f"ds_read_u16 v{YG+8*q+e}, v{(t0, t2)[q]} offset:{128*e}")
    a("s_waitcnt lgkmcnt(0)")
    for q in range(2):
        mean, rstd = ST + 2*q, ST + 2*q + 1
        a(f"v_mul_f32 v{RS2+q}, v{rstd}, v{rstd}")
        for e in range(8):
            xs = XD + 4*q + (e >> 1)
            if e & 1: a(f"v_and_b32 v{t0}, 0xffff0000, v{xs}")
            else:     a(f"v_lshlrev_b32 v{t0}, 16, v{xs}")
            a(f"v_lshlrev_b32 v{t2}, 16, v{YG+8*q+e}")
            a(f"v_sub_f32 v{t3}, v{t0}, v{mean}")
            a(f"v_mul_f32 v{t3}, v{t3}, v{rstd}")
            a(f"v_fma_f32 v{BASE+8*q+e}, v{t3}, v{t2}, v{t0}")
    vF0, vF1 = 12, 13
    a(f"v_lshrrev_b32 v{t0}, 3, v0")
    a(f"s_lshl_b32 s{S_T1}, s{w}, 4")
    a(f"v_add_u32 v{t0}, s{S_T1}, v{t0}")
    a(f"v_mul_u32_u24 v{t0}, {PROW}, v{t0}")
    a(f"v_and_b32 v{t1}, 7, v0")
    a(f"v_lshl_add_u32 v{vF0}, v{t1}, 5, v{t0}")
    a(f"v_add_u32 v{vF1}, {2*RING}, v{vF0}")
    a.srd(R_B, S_OUT, XB)
    a.stamp(7)
    a("s_barrier")
    P = 128
    for q in range(2):
        for kq in range(4):
            base = vF0 if kq < 2 else vF1
            for hh in range(2):
                a(f"ds_read_b128 {vr(P+32*q+8*kq+4*hh)}, v{base} offset:{(kq & 1)*RING + q*8*PROW + 16*hh}")
    for q in range(2):
        a(f"s_waitcnt lgkmcnt({8 if q == 0 else 0})")
        p = P + 32*q
        for e in range(8):
            a(f"v_add_f32 v{p+e}, v{p+e}, v{p+8+e}")
            a(f"v_add_f32 v{p+16+e}, v{p+16+e}, v{p+24+e}")
        for e in range(8):
            a(f"v_add_f32 v{p+e}, v{p+e}, v{p+16+e}")
        for e in range(8):
            a(f"v_fmac_f32 v{BASE+8*q+e}, v{RS2+q}, v{p+e}")
        for e in range(4):
            a(f"v_cvt_pk_bf16_f32 v{XD+4*q+e}, v{BASE+8*q+2*e}, v{BASE+8*q+2*e+1}")
        so = sXO
        if q == 1:
            a(f"s_add_u32 s{S_T2}, s{sXO}, {8*896}"); so = S_T2
        a(f"buffer_store_dwordx4 {vr(XD+4*q)}, v{vXo}, s[{R_B}:{R_B+3}], s{so} offen")
    a.stamp(8)
    if "span" in a.exp:
        a("s_waitcnt vmcnt(0)")
        a(f"s_cmp_lg_u32 s{S_WAVE}, 4")
        a("s_cbranch_scc1 L_hout")
        a("s_memrealtime s[88:89]")
        a("s_waitcnt lgkmcnt(0)")
        a("v_mov_b32 v2, s88"); a("v_mov_b32 v3, 12")
        a("s_mov_b64 exec, 1")
        a(f"global_atomic_umax v3, v2, s[{S_DBG}:{S_DBG+1}]")
        a("s_mov_b64 exec, -1")
    a.label("L_hout")
    a.stamps_out(10)
    a("s_endpgm")

def row_stats(a, part):
    t0, t1 = 4, 5
    XD, SS = 64, 76
    if part == 1: return row_stats2(a, t0, t1, XD, SS)
    a.srd(R_B, S_X, XB)
    a(f"s_lshl_b32 s{S_T0}, s{S_FC}, 2")
    a(f"s_add_u32 s{S_T0}, s{S_T0}, s{S_WAVE}")
    a(f"s_lshl_b32 s{S_T1}, s{S_RT}, 7")
    a(f"s_add_u32 s{S_T1}, s{S_T1}, s{S_T0}")
    a(f"s_mul_i32 s{S_T1}, s{S_T1}, 896")
    a(f"v_mov_b32 v{t1}, 0x40000000")
    a("v_cmp_gt_u32 vcc, 56, v0")
    a(f"s_add_u32 s{S_T2}, s{S_T1}, {56*896}")
    a(f"s_add_u32 s{S_T3}, s{S_T1}, {112*896}")
    a(f"v_cndmask_b32 v{t0}, v{t1}, v17, vcc")
    a(f"buffer_load_dwordx4 {vr(XD)}, v{t0}, s[{R_B}:{R_B+3}], s{S_T1} offen")
    a(f"buffer_load_dwordx4 {vr(XD+4)}, v{t0}, s[{R_B}:{R_B+3}], s{S_T2} offen")
    a(f"s_cmp_lt_u32 s{S_T0}, 16")
    a(f"s_cselect_b32 s{S_T3}, s{S_T3}, s{S_T2}")
    a(f"buffer_load_dwordx4 {vr(XD+8)}, v{t0}, s[{R_B}:{R_B+3}], s{S_T3} offen")

def row_stats2(a, t0, t1, XD, SS):
    a(f"v_mov_b32 v{t1}, 0x3f803f80")
    for j in range(3):
        a(f"s_waitcnt vmcnt({2-j})")
        for q in range(4):
            c0 = "0" if q == 0 else f"v{SS+j}"; c1 = "0" if q == 0 else f"v{SS+3+j}"
            a(f"v_dot2_f32_bf16 v{SS+j}, v{XD+4*j+q}, v{t1}, {c0}")
            a(f"v_dot2_f32_bf16 v{SS+3+j}, v{XD+4*j+q}, v{XD+4*j+q}, {c1}")
    a("s_nop 2")
    for mod in ("row_shr:1 row_mask:0xf", "row_shr:2 row_mask:0xf", "row_shr:4 row_mask:0xf", "row_shr:8 row_mask:0xf",
                "row_bcast:15 row_mask:0xa", "row_bcast:31 row_mask:0xc"):
        for r in range(6): a(f"v_add_f32_dpp v{SS+r}, v{SS+r}, v{SS+r} {mod} bank_mask:0xf")
    for j in range(3):
        m, q = 82 + 2*j, SS + 3 + j
        a(f"v_mul_f32 v{m}, {1.0/448.0!r}, v{SS+j}")
        a(f"v_mul_f32 v{q}, {1.0/448.0!r}, v{q}")
        a(f"v_fma_f32 v{q}, -v{m}, v{m}, v{q}")
        a(f"v_max_f32 v{q}, 0, v{q}")
        a(f"v_add_f32 v{q}, 0x3727c5ac, v{q}")
        a(f"v_rsq_f32 v{m+1}, v{q}")
    a(f"s_lshl_b32 s{S_T0}, s{S_WAVE}, 3")
    a(f"s_add_u32 s{S_T0}, s{S_T0}, {STG_L}")
    a(f"v_mov_b32 v{t0}, s{S_T0}")
    a("s_mov_b32 exec_lo, 0")
    a("s_mov_b32 exec_hi, 0x80000000")
    for j in range(3): a(f"ds_write_b64 v{t0}, {vr(82+2*j, 2)} offset:{32*j}")
    a("s_mov_b64 exec, -1")
    a("s_waitcnt lgkmcnt(0)")

def c_wave(a):
    a.label("L_cwave")
    vX, vW = 8, 12
    t0, t1, t2, t3 = 4, 5, 6, 7
    AS, BS, ACC = (64, 80), (96, 104), 128
    sWR, sWF = S_A0, S_A1
    a(f"v_lshlrev_b32 v17, 4, v0")
    a("s_waitcnt lgkmcnt(0)")
    row_stats(a, 0)
    a(f"s_lshr_b32 s{sWR}, s{S_WAVE}, 1")
    a(f"s_and_b32 s{sWF}, s{S_WAVE}, 1")
    a(f"s_lshl_b32 s{S_T1}, s{sWR}, 6")
    x_frag_addrs(a, vX, S_T1, t0, t1, t2)
    w_tr_lane_consts(a, t3, 16, t0, t1)
    a(f"s_lshl_b32 s{S_T1}, s{sWF}, 3")
    a(f"v_xor_b32 v16, s{S_T1}, v16")
    for m in range(4):
        a(f"v_xor_b32 v{t0}, {2*m}, v16")
        a(f"v_lshl_add_u32 v{vW+m}, v{t0}, 4, v{t3}")
    a.srd(R_WS, S_WS, WS_BYTES); a.srd(R_A, S_WD, WB)
    a.stamp(0)
    def reads(t):
        s = t & 1
        if t == 28:
            return [f"ds_read_b128 {vr(BS[s])}, v18",
                    f"ds_read_b128 {vr(AS[s])}, v19",
                    f"ds_read_b128 {vr(BS[s]+4)}, v18 offset:1024",
                    f"ds_read_b128 {vr(AS[s]+4)}, v19 offset:1024",
                    f"ds_read_b128 {vr(AS[s]+8)}, v19 offset:2048",
                    f"ds_read_b128 {vr(AS[s]+12)}, v19 offset:3072"]
        st, ks = t >> 2, t & 3
        so = (st % 3) * SLOT
        def wr(m): return [f"ds_read_b64_tr_b16 {vr(AS[s]+4*m+2*h, 2)}, v{vW+m} offset:{so + (16*ks + 4*h)*256}" for h in range(2)]
        return ([f"ds_read_b128 {vr(BS[s])}, v{vX+ks} offset:{so}"] + wr(0) +
                [f"ds_read_b128 {vr(BS[s]+4)}, v{vX+ks} offset:{so + 4096}"] + wr(1) + wr(2) + wr(3))
    a(f"s_lshl_b32 s{S_T1}, s{sWR}, 11")
    a(f"s_add_u32 s{S_T1}, s{S_T1}, {XEXT}")
    a(f"v_add_u32 v18, s{S_T1}, v17")
    a(f"s_lshl_b32 s{S_T1}, s{sWF}, 12")
    a(f"s_add_u32 s{S_T1}, s{S_T1}, {WEXT}")
    a(f"v_add_u32 v19, s{S_T1}, v17")
    row_stats(a, 1)
    a("s_barrier")
    a.stamp(1)
    if "nomma" not in a.exp:
        for l in reads(0): a(l)
    for t in range(29):
        s = t & 1
        a("s_waitcnt lgkmcnt(0)")
        if t < 28 and (t & 3) == 3:
            if a.stop == "p1": a.stamp(5 + (t >> 2))
            a("s_barrier")
        nxt = reads(t + 1) if t < 28 else []
        if "nomma" in a.exp: continue
        k = 0
        for m in range(4):
            for n in range(2):
                d = ACC + (2*m + n)*16
                cin = "0" if t == 0 else vr(d, 16)
                a(f"v_mfma_f32_32x32x16_bf16 {vr(d,16)}, {vr(AS[s]+4*m)}, {vr(BS[s]+4*n)}, {cin}")
                for _ in range(2):
                    if k < len(nxt): a(nxt[k]); k += 1
    a.stamp(2)
    a(f"v_mov_b32 v{t0}, {NONCE_L}")
    a(f"ds_read_b64 v[20:21], v{t0}")
    vm = VM(a)
    sH = S_A2
    a(f"s_lshl_b32 s{S_T0}, s{S_RT}, 2")
    a(f"s_lshl_b32 s{S_T1}, s{sWR}, 1")
    a(f"s_add_u32 s{S_T0}, s{S_T0}, s{S_T1}")
    a(f"s_mul_i32 s{S_T0}, s{S_T0}, 112")
    a(f"s_lshl_b32 s{S_T1}, s{S_FC}, 3")
    a(f"s_add_u32 s{S_T0}, s{S_T0}, s{S_T1}")
    a(f"s_lshl_b32 s{S_T1}, s{sWF}, 2")
    a(f"s_add_u32 s{S_T0}, s{S_T0}, s{S_T1}")
    a(f"s_lshl_b32 s{sH}, s{S_T0}, 10")
    if H_OFF: a(f"s_add_u32 s{sH}, s{sH}, {H_OFF}")
    sFast = 99
    a("s_waitcnt lgkmcnt(0)")
    a(f"v_readfirstlane_b32 s{S_NONCE}, v20")
    a(f"v_readfirstlane_b32 s{sFast}, v21")
    def either(plain, wt):
        L1, L2 = a.uid("L_wt"), a.uid("L_st")
        a(f"s_cmp_eq_u32 s{sFast}, 0")
        a(f"s_cbranch_scc1 {L1}")
        a(plain); a(f"s_branch {L2}")
        a.label(L1); a(wt); a.label(L2)
    a("s_nop 1")
    for m in range(4):
        for n in range(2):
            d = ACC + (2*m + n)*16
            o = 24 + 4*((2*m + n) & 3)
            for i in range(8): a(f"v_max_f32 v{d+i}, 0, v{d+i}")
            for i in range(8): a(f"v_mul_f32 v{d+i}, v{d+i}, v{d+8+i}")
            for i in range(4): a(f"v_cvt_pk_bf16_f32 v{o+i}, v{d+2*i}, v{d+2*i+1}")
            a(f"s_add_u32 s{S_T0}, s{sH}, {(n*112 + m)*1024}")
            st_ = f"buffer_store_dwordx4 {vr(o)}, v17, s[{R_WS}:{R_WS+3}], s{S_T0} offen"
            either(st_, st_ + " sc1")
            vm.issue("h")
    a.stamp(3)
    sKQ = S_WAVE
    vWd, vA0, vA1, vFl = 21, 22, 23, 40
    a(f"v_lshrrev_b32 v{t0}, 3, v0")
    a(f"v_and_b32 v{t1}, 7, v0")
    a(f"v_bfe_u32 v{t2}, v0, 4, 1")
    a(f"v_lshlrev_b32 v{t2}, 2, v{t2}")
    a(f"v_xor_b32 v{t1}, v{t1}, v{t2}")
    a(f"v_mul_u32_u24 v{t0}, 896, v{t0}")
    a(f"v_lshl_add_u32 v{vWd}, v{t1}, 4, v{t0}")
    sWdS, sRing = S_A3, S_A4
    a(f"s_mul_i32 s{sWdS}, s{sKQ}, {448*896}")
    a(f"s_lshl_b32 s{S_T0}, s{S_CT}, 7")
    a(f"s_add_u32 s{sWdS}, s{sWdS}, s{S_T0}")
    a(f"s_mul_i32 s{sRing}, s{sKQ}, {RING}")
    sRot, sKW, sKH = 96, 97, 98
    a(f"s_mov_b32 s{sRot}, 0")
    a(f"s_mul_i32 s{sKW}, s{sRot}, {16*896}")
    a(f"s_lshl_b32 s{sKH}, s{sRot}, 10")
    def wd_dma(ks):
        for hh in range(2):
            a(f"s_add_u32 m0, s{sRing}, {(ks % NSLOT)*2048 + hh*1024}")
            a(f"s_add_u32 s{S_T0}, s{sWdS}, s{sKW}")
            if hh: a(f"s_add_u32 s{S_T0}, s{S_T0}, {8*896}")
            a(f"buffer_load_dwordx4 v{vWd}, s[{R_A}:{R_A+3}], s{S_T0} offen lds")
            vm.issue(("wd", ks))
        a(f"s_add_u32 s{sKW}, s{sKW}, {16*896}")
        a(f"s_cmp_eq_u32 s{sKW}, {28*16*896}")
        a(f"s_cselect_b32 s{sKW}, 0, s{sKW}")
    NPRE = 4
    if a.stop != "p1":
        for ks in range(NPRE): wd_dma(ks)
    a(f"s_lshl_b32 s{S_T0}, s{S_RT}, 1")
    a(f"s_add_u32 s{S_T0}, s{S_T0}, s{sWR}")
    a(f"s_mul_i32 s{S_T0}, s{S_T0}, 28")
    a(f"s_lshl_b32 s{S_T1}, s{S_FC}, 1")
    a(f"s_add_u32 s{S_T0}, s{S_T0}, s{S_T1}")
    a(f"s_add_u32 s{S_T0}, s{S_T0}, s{sWF}")
    a(f"s_lshl_b32 s{S_T0}, s{S_T0}, 7")
    a(f"s_add_u32 s{S_T1}, s{S_T0}, {F1_OFF}")
    vm.wait("h")
    a(f"v_mov_b32 v{t0}, s{S_NONCE}")
    a(f"v_mov_b32 v{t1}, 0")
    a("s_mov_b64 exec, 1")
    st_ = f"buffer_store_dword v{t0}, v{t1}, s[{R_WS}:{R_WS+3}], s{S_T1} offen"
    either(st_, st_ + " sc1")
    a("s_mov_b64 exec, -1")
    a.stamp(4)
    if a.stop == "p1":
        a("s_barrier"); a.stamps_out(12); a("s_endpgm"); return
    for ks in range(NPRE, NSLOT): wd_dma(ks)
    a(f"v_bfe_u32 v{t0}, v0, 2, 2")
    a(f"v_lshrrev_b32 v{t1}, 5, v0")
    a(f"v_lshl_add_u32 v{t1}, v{t1}, 2, v{t0}")
    a(f"v_lshlrev_b32 v{t1}, 7, v{t1}")
    a(f"v_and_b32 v{t2}, 1, v0")
    a(f"v_lshl_add_u32 v{t1}, v{t2}, 3, v{t1}")
    a(f"v_add_u32 v{t1}, s{sRing}, v{t1}")
    a(f"v_bfe_u32 v{t2}, v0, 4, 1")
    a(f"v_bfe_u32 v{t3}, v0, 1, 1")
    a(f"v_lshl_add_u32 v{t2}, v{t2}, 1, v{t3}")
    a(f"v_bfe_u32 v{t3}, v0, 3, 1")
    a(f"v_lshl_add_u32 v{t2}, v{t3}, 2, v{t2}")
    a(f"v_lshl_add_u32 v{vA0}, v{t2}, 4, v{t1}")
    a(f"v_xor_b32 v{t2}, 4, v{t2}")
    a(f"v_lshl_add_u32 v{vA1}, v{t2}, 4, v{t1}")
    a(f"s_mul_i32 s{S_T0}, s{S_RB}, 28")
    a(f"s_mul_i32 s{S_T1}, s{sKQ}, 7")
    a(f"s_add_u32 s{S_T0}, s{S_T0}, s{S_T1}")
    a(f"s_lshl_b32 s{S_T0}, s{S_T0}, 7")
    a(f"s_add_u32 s{S_T0}, s{S_T0}, {F1_OFF}")
    a(f"v_lshlrev_b32 v{vFl}, 7, v0")
    a(f"v_add_u32 v{vFl}, s{S_T0}, v{vFl}")
    a.poll(vFl, t0, 7)
    vm.reset()
    a.stamp(5)
    sHr = S_A2
    a(f"s_mul_i32 s{sHr}, s{S_RB}, {2*112}")
    a(f"s_mul_i32 s{S_T0}, s{sKQ}, 28")
    a(f"s_add_u32 s{sHr}, s{sHr}, s{S_T0}")
    a(f"s_lshl_b32 s{sHr}, s{sHr}, 10")
    if H_OFF: a(f"s_add_u32 s{sHr}, s{sHr}, {H_OFF}")
    HB, A3, ACC3 = 96, (80, 88), 192
    def h_load(ks):
        for n in range(2):
            a(f"s_add_u32 s{S_T0}, s{sHr}, s{sKH}")
            if n: a(f"s_add_u32 s{S_T0}, s{S_T0}, {112*1024}")
            a(f"buffer_load_dwordx4 {vr(HB + 8*(ks % HD) + 4*n)}, v17, s[{R_WS}:{R_WS+3}], s{S_T0} offen sc1")
            vm.issue(("h", ks))
        a(f"s_add_u32 s{sKH}, s{sKH}, 1024")
        a(f"s_cmp_eq_u32 s{sKH}, {28*1024}")
        a(f"s_cselect_b32 s{sKH}, 0, s{sKH}")
    def tr3(ks):
        s = ks & 1; so = (ks % NSLOT)*2048
        return [f"ds_read_b64_tr_b16 {vr(A3[s]+4*m+2*h, 2)}, v{(vA0, vA1)[m]} offset:{so + 1024*h}" for m in range(2) for h in range(2)]
    for ks in range(HD): h_load(ks)
    for l in tr3(0): a(l)
    for t in range(28):
        s = t & 1
        if vm.has(("h", t)): vm.wait(("h", t))
        if t + 1 < 28 and vm.has(("wd", t + 1)): vm.wait(("wd", t + 1))
        a("s_waitcnt lgkmcnt(0)")
        nxt = tr3(t + 1) if t + 1 < 28 else []
        k = 0
        for m in range(2):
            for n in range(2):
                d = ACC3 + (2*m + n)*16
                cin = "0" if t == 0 else vr(d, 16)
                a(f"v_mfma_f32_32x32x16_bf16 {vr(d,16)}, {vr(A3[s]+4*m)}, {vr(HB + 8*(t % HD) + 4*n)}, {cin}")
                if k < len(nxt): a(nxt[k]); k += 1
        if t == 4:
            a(f"v_mov_b32 v{t0}, {CNT_L + 12}")
            a(f"v_mov_b32 v{t1}, 1")
            a("s_mov_b64 exec, 1")
            a(f"ds_add_u32 v{t0}, v{t1}")
            a("s_mov_b64 exec, -1")
        if t + NSLOT < 28 and "nowd" not in a.exp: wd_dma(t + NSLOT)
        if t + HD < 28: h_load(t + HD)
        if "p3st" in a.exp and t in (0, 6, 13, 20): a.stamp(8 + (0, 6, 13, 20).index(t))
    a.stamp(6)
    a(f"v_and_b32 v{t0}, 31, v0")
    a(f"v_mul_u32_u24 v{t0}, {PROW}, v{t0}")
    a(f"v_lshrrev_b32 v{t1}, 5, v0")
    a(f"v_lshl_add_u32 v{t0}, v{t1}, 4, v{t0}")
    a(f"v_add_u32 v{t0}, s{sRing}, v{t0}")
    a("s_nop 7")
    for m in range(2):
        for n in range(2):
            d = ACC3 + (2*m + n)*16
            for j in range(4):
                a(f"ds_write_b128 v{t0}, {vr(d+4*j)} offset:{n*32*PROW + m*128 + j*32}")
    a("s_waitcnt lgkmcnt(0)")
    a("s_barrier")
    a.stamp(7)
    a.label("L_cout")
    a.stamps_out(12 if "p3st" in a.exp else 8)
    a("s_endpgm")

def aux(a):
    a.label("L_prep")
    t0, t1, t2, t3 = 4, 5, 6, 7
    sP = 2
    CSL = 0
    vCo = 14
    a(f"v_lshrrev_b32 v{t0}, 4, v0")
    a(f"v_mul_u32_u24 v{t0}, 3584, v{t0}")
    a(f"v_and_b32 v{t1}, 15, v0")
    a(f"v_lshl_add_u32 v{vCo}, v{t1}, 4, v{t0}")
    a(f"v_lshlrev_b32 v15, 4, v0")
    a("s_waitcnt lgkmcnt(0)")
    a.srd(R_WS, S_WS, WS_BYTES); a.srd(R_A, S_SK, XB); a.srd(R_B, S_WD, WB)
    a.stamp(0)
    CD, CA = 192, 248
    sC = S_A1
    a(f"s_cmp_ge_u32 s{sP}, 28")
    a("s_cbranch_scc1 L_aux_nocs")
    a(f"s_cmp_ge_u32 s{sP}, 14")
    a("s_cbranch_scc1 L_aux_up")
    a.srd(R_E, S_WG, WB)
    a(f"s_mov_b32 s{sC}, s{sP}")
    a("s_branch L_aux_cs")
    a.label("L_aux_up")
    a.srd(R_E, S_WU, WB)
    a(f"s_sub_u32 s{sC}, s{sP}, 14")
    a.label("L_aux_cs")
    a(f"s_mul_i32 s{S_T0}, s{S_WAVE}, {4*3584}")
    a(f"s_lshl_b32 s{S_T1}, s{sC}, 8")
    a(f"s_add_u32 s{S_T0}, s{S_T0}, s{S_T1}")
    for i in range(14):
        a(f"buffer_load_dwordx4 {vr(CD+4*i)}, v{vCo}, s[{R_E}:{R_E+3}], s{S_T0} offen")
        if i < 13: a(f"s_add_u32 s{S_T0}, s{S_T0}, {32*3584}")
    sLo, sHi = S_A2, S_A3
    a(f"s_mov_b32 s{sLo}, 0x00003f80")
    a(f"s_mov_b32 s{sHi}, 0x3f800000")
    for i in range(14):
        a(f"s_waitcnt vmcnt({13 - i})")
        for q in range(4):
            c0 = "0" if i == 0 else f"v{CA+2*q}"; c1 = "0" if i == 0 else f"v{CA+2*q+1}"
            a(f"v_dot2_f32_bf16 v{CA+2*q}, v{CD+4*i+q}, s{sLo}, {c0}")
            a(f"v_dot2_f32_bf16 v{CA+2*q+1}, v{CD+4*i+q}, s{sHi}, {c1}")
    a(f"v_lshrrev_b32 v{t0}, 4, v0")
    a(f"s_lshl_b32 s{S_T0}, s{S_WAVE}, 2")
    a(f"v_add_u32 v{t0}, s{S_T0}, v{t0}")
    a(f"v_lshlrev_b32 v{t0}, 9, v{t0}")
    a(f"v_and_b32 v{t1}, 15, v0")
    a(f"v_lshl_add_u32 v{t0}, v{t1}, 5, v{t0}")
    if CSL: a(f"v_add_u32 v{t0}, {CSL}, v{t0}")
    a(f"ds_write_b128 v{t0}, {vr(CA)}")
    a(f"ds_write_b128 v{t0}, {vr(CA+4)} offset:16")
    a("s_waitcnt lgkmcnt(0)")
    a("s_barrier")
    a(f"s_cmp_lg_u32 s{S_WAVE}, 7")
    a("s_cbranch_scc1 L_aux_touch")
    a(f"v_lshlrev_b32 v{t0}, 2, v0")
    if CSL: a(f"v_add_u32 v{t0}, {CSL}, v{t0}")
    for hh in range(2):
        for i in range(32):
            a(f"ds_read_b32 v{CD-64+32*hh+i}, v{t0} offset:{512*i + 256*hh}")
            if i % 8 == 7: a("s_waitcnt lgkmcnt(7)")
    a.get_nonce_spin(t1, t2)
    a("s_waitcnt lgkmcnt(0)")
    for hh in range(2):
        b = CD - 64 + 32*hh
        for st in (16, 8, 4, 2, 1):
            for i in range(st): a(f"v_add_f32 v{b+i}, v{b+i}, v{b+i+st}")
        a(f"v_mov_b32 v{b+1}, s{S_NONCE}")
    a(f"s_cmp_ge_u32 s{sP}, 14")
    a(f"s_cselect_b32 s{S_T0}, 1792, 0")
    a(f"s_lshl_b32 s{S_T1}, s{sC}, 7")
    a(f"s_add_u32 s{S_T0}, s{S_T0}, s{S_T1}")
    a(f"s_lshl_b32 s{S_T0}, s{S_T0}, 3")
    a(f"s_add_u32 s{S_T0}, s{S_T0}, {CS_OFF}")
    a(f"v_lshlrev_b32 v{t0}, 3, v0")
    a(f"buffer_store_dwordx2 {vr(CD-64, 2)}, v{t0}, s[{R_WS}:{R_WS+3}], s{S_T0} offen sc1")
    a(f"buffer_store_dwordx2 {vr(CD-32, 2)}, v{t0}, s[{R_WS}:{R_WS+3}], s{S_T0} offen offset:512 sc1")
    a("s_branch L_aux_touch")
    a.label("L_aux_nocs")
    a(f"s_cmp_lg_u32 s{sP}, 28")
    a("s_cbranch_scc1 L_aux_touch")
    a(f"s_cmp_lg_u32 s{S_WAVE}, 7")
    a("s_cbranch_scc1 L_aux_touch")
    a(f"v_mov_b32 v{t1}, {EP_OFF}")
    a(f"buffer_load_dword v{t0}, v{t1}, s[{R_WS}:{R_WS+3}], 0 offen sc1")
    a("s_waitcnt vmcnt(0)")
    a(f"v_add_u32 v{t0}, 1, v{t0}")
    a(f"v_max_u32 v{t0}, 1, v{t0}")
    a(f"v_mov_b32 v{t2}, 0")
    a("s_mov_b64 exec, 1")
    a(f"global_store_dword v{t2}, v{t0}, s[{S_DBG}:{S_DBG+1}] sc1")
    a(f"buffer_store_dword v{t0}, v{t1}, s[{R_WS}:{R_WS+3}], 0 offen sc1")
    a("s_mov_b64 exec, -1")
    a.label("L_aux_touch")
    a.stamp(1)
    a(f"s_mul_i32 s{S_T0}, s{sP}, 57344")
    a(f"s_lshl_b32 s{S_T1}, s{S_WAVE}, 10")
    a(f"s_add_u32 s{S_T0}, s{S_T0}, s{S_T1}")
    for i in range(7):
        a(f"buffer_load_dwordx4 {vr(16+4*i)}, v15, s[{R_A}:{R_A+3}], s{S_T0} offen")
        a(f"s_add_u32 s{S_T0}, s{S_T0}, 8192")
    a(f"s_mul_i32 s{S_T0}, s{sP}, 50176")
    a(f"s_add_u32 s{S_T0}, s{S_T0}, s{S_T1}")
    for i in range(7):
        a(f"buffer_load_dwordx4 {vr(48+4*i)}, v15, s[{R_B}:{R_B+3}], s{S_T0} offen")
        a(f"s_add_u32 s{S_T0}, s{S_T0}, 8192")
    a.stamp(2)
    a("s_waitcnt vmcnt(0)")
    a.stamp(3)
    a.stamps_out(4)
    a("s_endpgm")

HEADER = open(os.path.join(os.path.dirname(os.path.abspath(__file__)), "header.txt")).read()

def build(prof=False, spin=1 << 20, stop=None, exp=()):
    a = Gen(prof=prof, spin=spin, stop=stop, exp=exp)
    entry(a)
    h_wave(a)
    c_wave(a)
    aux(a)
    a.label("L_end")
    a("s_endpgm")
    txt = HEADER + f"; @launch grid=(256,1,1) block=(512,1,1) lds={LDS_BYTES}\n"
    txt += f'.amdgcn_target "amdgcn-amd-amdhsa--gfx950"\n.text\n.globl {NAME}\n.p2align 8\n.type {NAME},@function\n{NAME}:\n'
    body = [l for l in a.lines if l is not None]
    txt += "\n".join(("    " + l) if not l.endswith(":") else l for l in body) + "\n"
    txt += (f'.section .rodata,"a"\n.p2align 6\n.amdhsa_kernel {NAME}\n'
            "  .amdhsa_next_free_vgpr 256\n  .amdhsa_next_free_sgpr 102\n  .amdhsa_accum_offset 256\n"
            "  .amdhsa_group_segment_fixed_size 0\n  .amdhsa_kernarg_size 104\n  .amdhsa_user_sgpr_count 2\n"
            "  .amdhsa_user_sgpr_kernarg_segment_ptr 1\n  .amdhsa_system_sgpr_workgroup_id_x 1\n"
            "  .amdhsa_float_denorm_mode_32 3\n"
            ".end_amdhsa_kernel\n")
    return txt

if __name__ == "__main__":
    import argparse
    ap = argparse.ArgumentParser()
    ap.add_argument("-o", default="parallel_sum__ssm_conv_h3__glu_gated_reglu__prompt.s")
    ap.add_argument("--prof", nargs="?", const="rt", default=None)
    ap.add_argument("--spin", type=int, default=1 << 20)
    ap.add_argument("--stop", default=None)
    ap.add_argument("--exp", default="")
    x = ap.parse_args()
    open(x.o, "w").write(build(x.prof, x.spin, x.stop, [e for e in x.exp.split(',') if e]))
    print("wrote", x.o)
```

```python
import sys, os
sys.path.insert(0, os.path.dirname(os.path.abspath(__file__)))
from asmlib import Asm

NAME = "parallel_sum__ssm_conv_h3__glu_gated_reglu__prompt_kernel"
S, D, F = 2048, 448, 1792
XB = S * D * 2
WB = D * F * 2

H_OFF  = 0x000000
UT_OFF = 0x700000
YT_OFF = 0x8C0000
F0_OFF = 0xA80000
F1_OFF = 0xAA0000
F2_OFF = 0xAC0000
EP_OFF = 0xAE0000
SG_OFF = 0xAE8000
XG_OFF = 0xAE0100
CS_OFF = 0xAF0000
PROF_OFF = 0xB00000
WS_BYTES = 0x10000000

XR, GR, UR = 0, 49152, 98304
SLOT = 16384
CV = 122880
KCH = 8320
UB0 = CV + 2 * KCH
UCH = 4608
EXT = 149504
XEXT, WEXT = EXT, EXT + 4096
STATS_L = 161792
NONCE_L = 162816
FAST_L = 162820
STG_L = 162832
CNT_L = 162944
RING = 30720
NSLOT = 15
PROW = 272
LDS_BYTES = 163840
HD = 12

S_X, S_K, S_V, S_SH, S_SK, S_SD, S_WG, S_WU, S_WD, S_OUT, S_DBG, S_WS = 4, 6, 8, 10, 12, 14, 18, 20, 22, 24, 26, 28
S_WAVE, S_NONCE = 30, 31
R_A, R_B, R_C, R_WS, R_E = 32, 36, 40, 44, 48
S_RT, S_FC, S_PAR, S_CT, S_RB, S_M = 52, 53, 54, 55, 56, 57
S_T0, S_T1, S_T2, S_T3 = 58, 59, 60, 61
S_A0, S_A1, S_A2, S_A3, S_A4, S_A5 = 62, 63, 64, 65, 66, 67
S_BND = 68
S_EX = 70
S_ST = 72

class VM:
    def __init__(self, a): self.a, self.q = a, []
    def issue(self, tag): self.q.append(tag)
    def wait(self, tag):
        idx = max(i for i, t in enumerate(self.q) if t == tag)
        n = len(self.q) - 1 - idx
        assert n <= 63, (tag, n)
        self.a(f"s_waitcnt vmcnt({n})")
        self.q = self.q[idx + 1:]
    def has(self, tag): return tag in self.q
    def drain(self):
        self.a("s_waitcnt vmcnt(0)"); self.q = []
    def reset(self): self.q = []

class Gen(Asm):
    def __init__(self, prof=False, spin=1 << 20, stop=None, exp=()):
        super().__init__()
        self.exp = set(exp)
        self.prof, self.spin, self.stop = prof, spin, stop
        self.nst = 0
    def srd(self, dst, base, nbytes):
        self(f"s_mov_b32 s{dst}, s{base}")
        self(f"s_and_b32 s{dst+1}, s{base+1}, 0xffff")
        self(f"s_mov_b32 s{dst+2}, {nbytes}")
        self(f"s_mov_b32 s{dst+3}, 0x20000")
    def stamp(self, i):
        if self.prof:
            self(f"{'s_memtime' if self.prof == 'cyc' else 's_memrealtime'} s[{S_ST+2*i}:{S_ST+2*i+1}]")
            self("s_waitcnt lgkmcnt(0)")
    def stamps_out(self, n):
        if not self.prof: return
        self("s_waitcnt vmcnt(0) lgkmcnt(0)")
        self("s_mov_b64 exec, 1")
        self(f"s_lshl_b32 s{S_T0}, s2, 3")
        self(f"s_add_u32 s{S_T0}, s{S_T0}, s{S_WAVE}")
        self(f"s_lshl_b32 s{S_T0}, s{S_T0}, 6")
        self(f"s_add_u32 s{S_T0}, s{S_T0}, {PROF_OFF}")
        self("v_mov_b32 v1, 0")
        for i in range(n):
            self(f"v_mov_b32 v2, s{S_ST+2*i}")
            self(f"buffer_store_dword v2, v1, s[{R_WS}:{R_WS+3}], s{S_T0} offen offset:{4*i}")
            self("s_nop 0")
        self("s_waitcnt vmcnt(0)")
    def poll(self, vaddr, vtmp, nlanes, sleep=1):
        L, Dn = self.uid("L_poll"), self.uid("L_polled")
        if nlanes < 64: self(f"s_mov_b64 exec, {hex((1 << nlanes) - 1)}")
        self(f"s_mov_b32 s{S_BND}, {self.spin}")
        self.label(L)
        self(f"buffer_load_dword v{vtmp}, v{vaddr}, s[{R_WS}:{R_WS+3}], 0 offen sc1")
        self("s_waitcnt vmcnt(0)")
        self(f"v_cmp_ne_u32 vcc, s{S_NONCE}, v{vtmp}")
        self("s_nop 1")
        self(f"s_cbranch_vccz {Dn}")
        self(f"s_sleep {sleep}")
        self(f"s_sub_u32 s{S_BND}, s{S_BND}, 1")
        self(f"s_cmp_lg_u32 s{S_BND}, 0")
        self(f"s_cbranch_scc1 {L}")
        self.label(Dn)
        if nlanes < 64: self("s_mov_b64 exec, -1")
    def signal(self, soff_reg, vtmp, vzero):
        self(f"v_mov_b32 v{vtmp}, s{S_NONCE}")
        self(f"v_mov_b32 v{vzero}, 0")
        self("s_mov_b64 exec, 1")
        self(f"buffer_store_dword v{vtmp}, v{vzero}, s[{R_WS}:{R_WS+3}], s{soff_reg} offen sc1")
        self("s_mov_b64 exec, -1")
    def get_nonce_spin(self, vtmp, vzero):
        L, Dn = self.uid("L_non"), self.uid("L_nond")
        self(f"s_mov_b32 s{S_BND}, {self.spin}")
        self(f"v_mov_b32 v{vzero}, 0")
        self.label(L)
        self(f"global_load_dword v{vtmp}, v{vzero}, s[{S_DBG}:{S_DBG+1}] sc1")
        self("s_waitcnt vmcnt(0)")
        self(f"v_readfirstlane_b32 s{S_NONCE}, v{vtmp}")
        self("s_nop 3")
        self(f"s_cmp_lg_u32 s{S_NONCE}, 0")
        self(f"s_cbranch_scc1 {Dn}")
        self("s_sleep 1")
        self(f"s_sub_u32 s{S_BND}, s{S_BND}, 1")
        self(f"s_cmp_lg_u32 s{S_BND}, 0")
        self(f"s_cbranch_scc1 {L}")
        self.label(Dn)

def vr(b, n=4): return f"v[{b}:{b+n-1}]"

def entry(a):
    a("s_load_dwordx16 s[4:19], s[0:1], 0")
    a("s_load_dwordx8 s[20:27], s[0:1], 64")
    a("s_load_dwordx2 s[28:29], s[0:1], 96")
    a("s_cmp_ge_u32 s2, 256")
    a("s_cbranch_scc1 L_end")
    a("v_lshrrev_b32 v1, 6, v0")
    a("v_and_b32 v0, 63, v0")
    a(f"v_readfirstlane_b32 s{S_WAVE}, v1")
    if "span" in a.exp:
        a("s_memrealtime s[88:89]")
        a(f"s_cmp_lg_u32 s{S_WAVE}, 3")
        a("s_cbranch_scc1 L_nospan")
        a("s_waitcnt lgkmcnt(0)")
        a("s_not_b32 s88, s88")
        a("v_mov_b32 v2, s88"); a("v_mov_b32 v3, 8")
        a("s_mov_b64 exec, 1")
        a(f"global_atomic_umax v3, v2, s[{S_DBG}:{S_DBG+1}]")
        a("s_mov_b64 exec, -1")
        a.label("L_nospan")
    a("s_cmp_lt_u32 s2, 32")
    a("s_cbranch_scc1 L_prep")
    a(f"s_sub_u32 s{S_M}, s2, 32")
    a(f"s_and_b32 s{S_T0}, s{S_M}, 7")
    a(f"s_lshr_b32 s{S_T1}, s{S_M}, 3")
    if "map2x14" not in a.exp:
        a(f"s_mul_i32 s{S_T2}, s{S_T1}, 37")
        a(f"s_lshr_b32 s{S_T2}, s{S_T2}, 8")
        a(f"s_mul_i32 s{S_T3}, s{S_T2}, 7")
        a(f"s_sub_u32 s{S_CT}, s{S_T1}, s{S_T3}")
        a(f"s_and_b32 s{S_PAR}, s{S_T0}, 1")
        a(f"s_lshr_b32 s{S_T0}, s{S_T0}, 1")
        a(f"s_lshl_b32 s{S_T0}, s{S_T0}, 2")
        a(f"s_add_u32 s{S_RT}, s{S_T0}, s{S_T2}")
        a(f"s_mul_i32 s{S_T0}, s{S_PAR}, 7")
        a(f"s_add_u32 s{S_FC}, s{S_T0}, s{S_CT}")
    else:
        a(f"s_mul_i32 s{S_T2}, s{S_T1}, 37")
        a(f"s_lshr_b32 s{S_T2}, s{S_T2}, 9")
        a(f"s_mul_i32 s{S_T3}, s{S_T2}, 14")
        a(f"s_sub_u32 s{S_FC}, s{S_T1}, s{S_T3}")
        a(f"s_lshl_b32 s{S_T0}, s{S_T0}, 1")
        a(f"s_add_u32 s{S_RT}, s{S_T0}, s{S_T2}")
        a(f"s_cmp_ge_u32 s{S_FC}, 7")
        a(f"s_cselect_b32 s{S_PAR}, 1, 0")
        a(f"s_mul_i32 s{S_T0}, s{S_PAR}, 7")
        a(f"s_sub_u32 s{S_CT}, s{S_FC}, s{S_T0}")
    a(f"s_lshl_b32 s{S_RB}, s{S_RT}, 1")
    a(f"s_add_u32 s{S_RB}, s{S_RB}, s{S_PAR}")
    a(f"s_cmp_lt_u32 s{S_WAVE}, 4")
    a("s_cbranch_scc1 L_cwave")

def w_tr_lane_consts(a, vbase, vt1, t0, t1):
    a(f"v_bfe_u32 v{t0}, v0, 2, 2")
    a(f"v_bfe_u32 v{t1}, v0, 1, 1")
    a(f"v_lshlrev_b32 v{vt1}, 1, v{t0}")
    a(f"v_xor_b32 v{vt1}, v{vt1}, v{t1}")
    a(f"v_bfe_u32 v{t1}, v0, 4, 1")
    a(f"v_lshlrev_b32 v{vbase}, 3, v{t1}")
    a(f"v_xor_b32 v{vt1}, v{vt1}, v{vbase}")
    a(f"v_mul_u32_u24 v{vbase}, {UR-GR}, v{t1}")
    a(f"v_lshrrev_b32 v{t1}, 5, v0")
    a(f"v_lshl_add_u32 v{t0}, v{t1}, 3, v{t0}")
    a(f"v_lshl_add_u32 v{vbase}, v{t0}, 8, v{vbase}")
    a(f"v_and_b32 v{t0}, 1, v0")
    a(f"v_lshl_add_u32 v{vbase}, v{t0}, 3, v{vbase}")
    a(f"v_add_u32 v{vbase}, {GR}, v{vbase}")

def x_frag_addrs(a, vdst, srowbase, t0, t1, t2):
    a(f"v_and_b32 v{t0}, 31, v0")
    a(f"v_bfe_u32 v{t1}, v0, 1, 3")
    a(f"v_add_u32 v{t0}, s{srowbase}, v{t0}")
    a(f"v_lshlrev_b32 v{t0}, 7, v{t0}")
    a(f"v_lshrrev_b32 v{t2}, 5, v0")
    a(f"v_xor_b32 v{t1}, v{t1}, v{t2}")
    for ks in range(4):
        a(f"v_xor_b32 v{t2}, {2*ks}, v{t1}")
        a(f"v_lshl_add_u32 v{vdst+ks}, v{t2}, 4, v{t0}")

def nonce_check(a, vnon, t0):
    Lok = a.uid("L_nonok")
    a(f"v_readfirstlane_b32 s{S_NONCE}, v{vnon}")
    a("s_nop 3")
    a(f"s_cmp_lg_u32 s{S_NONCE}, 0")
    a(f"s_cbranch_scc1 {Lok}")
    a.get_nonce_spin(vnon, t0)
    a.label(Lok)

def h_wave(a):
    vnon, vF0a, vF0d = 16, 22, 23
    vKA_, vKB_ = 32, 48
    t0, t1, t2, t3 = 64, 65, 66, 67
    w = S_A0
    sCH, sRH = 100, 101
    a(f"s_sub_u32 s{w}, s{S_WAVE}, 4")
    a(f"s_cmp_ge_u32 s{w}, 2")
    a("s_cbranch_scc1 L_side")
    def common_setup():
        a.srd(R_WS, S_WS, WS_BYTES); a.srd(R_E, S_SK, XB)
        a(f"s_lshr_b32 s{S_T1}, s{w}, 1")
        a(f"s_lshl_b32 s{sCH}, s{S_M}, 1")
        a(f"s_add_u32 s{sCH}, s{sCH}, s{S_T1}")
        a(f"s_and_b32 s{sRH}, s{w}, 1")
        a(f"s_lshr_b32 s{S_T1}, s{sCH}, 4")
        a(f"s_lshl_b32 s{S_T1}, s{S_T1}, 7")
        a(f"s_add_u32 s{S_T1}, s{S_T1}, {F0_OFF}")
        a(f"v_and_b32 v{t0}, 31, v0")
        a(f"v_lshlrev_b32 v{t0}, 2, v{t0}")
        a(f"v_add_u32 v{vF0a}, s{S_T1}, v{t0}")
    def nonce_load(vm):
        a(f"v_mov_b32 v{t0}, 0")
        a(f"global_load_dword v{vnon}, v{t0}, s[{S_DBG}:{S_DBG+1}] sc1"); vm.issue("non")
    def k_loads(vm):
        a(f"s_lshl_b32 s{S_T1}, s{sCH}, 12")
        a(f"v_lshlrev_b32 v{t0}, 4, v0")
        a(f"v_add_u32 v{t1}, 4, v{t0}")
        for i in range(4):
            a(f"buffer_load_dwordx4 {vr(vKA_+4*i)}, v{t0}, s[{R_E}:{R_E+3}], s{S_T1} offen offset:{1024*i}"); vm.issue("K")
            a(f"buffer_load_dwordx4 {vr(vKB_+4*i)}, v{t1}, s[{R_E}:{R_E+3}], s{S_T1} offen offset:{1024*i}"); vm.issue("K")
    def f0_load(vm):
        a(f"buffer_load_dword v{vF0d}, v{vF0a}, s[{R_WS}:{R_WS+3}], 0 offen sc1"); vm.issue("f0")

    vm = VM(a)
    if "noprio" not in a.exp: a("s_setprio 2")
    vXe, vXo, vG, vU = 4, 5, 6, 7
    a(f"v_lshrrev_b32 v{t0}, 3, v0")
    a(f"v_mul_u32_u24 v{t0}, 896, v{t0}")
    a(f"v_lshrrev_b32 v{t1}, 4, v0")
    a(f"v_and_b32 v{t2}, 7, v0")
    a(f"v_xor_b32 v{t2}, v{t2}, v{t1}")
    a(f"v_lshl_add_u32 v{vXe}, v{t2}, 4, v{t0}")
    a(f"v_xor_b32 v{t2}, 4, v{t2}")
    a(f"v_lshl_add_u32 v{vXo}, v{t2}, 4, v{t0}")
    a(f"v_mul_u32_u24 v{t0}, 3584, v{t1}")
    a(f"v_and_b32 v{t2}, 15, v0")
    a(f"v_lshlrev_b32 v{t3}, 1, v{t1}")
    a(f"v_xor_b32 v{t2}, v{t2}, v{t3}")
    a(f"v_lshl_add_u32 v{vG}, v{t2}, 4, v{t0}")
    a(f"v_xor_b32 v{t2}, 8, v{t2}")
    a(f"v_lshl_add_u32 v{vU}, v{t2}, 4, v{t0}")
    sXs, sXd, sWs, sGd, sUd = S_A1, S_A2, S_A3, S_A4, S_A5
    a(f"s_lshl_b32 s{S_T0}, s{S_RT}, 7")
    a(f"s_lshl_b32 s{S_T1}, s{w}, 6")
    a(f"s_add_u32 s{S_T0}, s{S_T0}, s{S_T1}")
    a(f"s_mul_i32 s{sXs}, s{S_T0}, 896")
    a(f"s_lshl_b32 s{sXd}, s{w}, 13")
    a(f"s_mul_i32 s{S_T0}, s{w}, {32*3584}")
    a(f"s_lshl_b32 s{S_T1}, s{S_FC}, 8")
    a(f"s_add_u32 s{sWs}, s{S_T0}, s{S_T1}")
    a(f"s_add_u32 s{sGd}, s{sXd}, {GR}")
    a(f"s_add_u32 s{sUd}, s{sXd}, {UR}")
    a("s_waitcnt lgkmcnt(0)")
    a.srd(R_A, S_X, XB); a.srd(R_B, S_WG, WB); a.srd(R_C, S_WU, WB)
    def issue_stage(st, lo=0, hi=8):
        slot = st % 3
        for i in range(lo, hi):
            for (dst, voff, srd, src, step, base) in ((sXd, vXe if i % 2 == 0 else vXo, R_A, sXs, 8*896, st*128),
                                                      (sGd, vG, R_B, sWs, 4*3584, 64*st*3584), (sUd, vU, R_C, sWs, 4*3584, 64*st*3584)):
                a(f"s_add_u32 m0, s{dst}, {slot*SLOT + i*1024}")
                a(f"s_add_u32 s{S_T0}, s{src}, {base + i*step}")
                a(f"buffer_load_dwordx4 v{voff}, s[{srd}:{srd+3}], s{S_T0} offen lds")
                vm.issue(("st", st))
    issue_stage(0); issue_stage(1, 0, 5)
    a.stamp(0)
    common_setup()
    for st in range(7):
        vm.wait(("st", st))
        if a.stop == "p1": a.stamp(3 + st)
        a("s_barrier")
        if st == 0: issue_stage(1, 5, 8)
        if st == 1: nonce_load(vm)
        if st == 3:
            assert not vm.has("non")
            nonce_check(a, vnon, t0)
        if st <= 4: issue_stage(st + 2)
        if st == 5: k_loads(vm)
        if st == 6: f0_load(vm); vm.wait("K")
    a("s_branch L_htail")

    a.label("L_side")
    if "noprio" not in a.exp: a("s_setprio 2")
    vm = VM(a)
    vCA, vSA, vUo, vCS, vST = 4, 8, 10, 72, 80
    vh, vl, e0 = 68, 69, 88
    sW = S_A1
    a(f"s_sub_u32 s{sW}, s{w}, 2")
    sTB, sCG = S_A2, S_A3
    a(f"s_mul_i32 s{sTB}, s{S_M}, 9363")
    a(f"s_lshr_b32 s{sTB}, s{sTB}, 16")
    a(f"s_mul_i32 s{S_T1}, s{sTB}, 7")
    a(f"s_sub_u32 s{sCG}, s{S_M}, s{S_T1}")
    KR, VR, WR, KF, WF, AC = 100, 128, 144, 160, 174, 182
    vKo, vKv, vKw, vT = 186, 189, 190, 191
    a(f"s_lshl_b32 s{S_T0}, s{sTB}, 6")
    a(f"s_lshl_b32 s{S_T1}, s{sW}, 5")
    a(f"s_add_u32 s{S_T0}, s{S_T0}, s{S_T1}")
    a(f"v_lshrrev_b32 v{t0}, 3, v0")
    a(f"v_lshl_add_u32 v{t1}, v{t0}, 2, s{S_T0}")
    a(f"v_and_b32 v{t2}, 7, v0")
    a(f"s_lshl_b32 s{S_T1}, s{sCG}, 7")
    a(f"v_lshl_add_u32 v{t3}, v{t2}, 4, s{S_T1}")
    a(f"v_mov_b32 v{vT}, 896")
    a(f"v_mad_u32_u24 v{vKv}, v{t1}, v{vT}, v{t3}")
    for i in range(3):
        a(f"v_cmp_gt_u32 vcc, {3-i}, v{t1}")
        a(f"v_subrev_u32 v{vKo+i}, {(3-i)*896}, v{vKv}")
        a(f"v_mov_b32 v{vT}, 0x40000000")
        a(f"v_cndmask_b32 v{vKo+i}, v{vKo+i}, v{vT}, vcc")
    a(f"s_lshl_b32 s{S_T1}, s{sCG}, 9")
    a(f"v_lshl_add_u32 v{vKw}, v{t2}, 6, s{S_T1}")
    a(f"v_lshrrev_b32 v{t1}, 1, v{t0}")
    a(f"s_lshl_b32 s{S_T1}, s{sW}, 2")
    a(f"v_add_u32 v{t1}, s{S_T1}, v{t1}")
    a(f"v_xor_b32 v{t1}, v{t1}, v{t2}")
    a(f"v_lshlrev_b32 v{t1}, 4, v{t1}")
    a(f"v_lshl_add_u32 v{t1}, v{t2}, 10, v{t1}")
    a(f"v_and_b32 v{t0}, 1, v{t0}")
    a(f"v_sub_u32 v{t0}, 1, v{t0}")
    a(f"v_lshl_add_u32 v{t1}, v{t0}, 3, v{t1}")
    a(f"v_add_u32 v{vT}, {EXT}, v{t1}")
    a("s_waitcnt lgkmcnt(0)")
    a.srd(R_A, S_X, XB); a.srd(R_B, S_K, XB); a.srd(R_C, S_V, XB); a.srd(92, S_SH, D*4*2)
    def kv_loads():
        for i in range(3):
            a(f"buffer_load_dwordx4 {vr(KR+4*i)}, v{vKo+i}, s[{R_B}:{R_B+3}], 0 offen"); vm.issue("kvl")
        for i in range(4):
            a(f"buffer_load_dwordx4 {vr(KR+12+4*i)}, v{vKv}, s[{R_B}:{R_B+3}], 0 offen offset:{896*i}"); vm.issue("kvl")
        for i in range(4):
            a(f"buffer_load_dwordx4 {vr(VR+4*i)}, v{vKv}, s[{R_C}:{R_C+3}], 0 offen offset:{896*i}"); vm.issue("kvl")
        for i in range(4):
            a(f"buffer_load_dwordx4 {vr(WR+4*i)}, v{vKw}, s[92:95], 0 offen offset:{16*i}"); vm.issue("kvl")
    a.stamp(0)
    common_setup()
    a(f"v_mov_b32 v{t0}, {CNT_L}")
    for r in range(4): a(f"v_mov_b32 v{e0+r}, 0")
    a(f"ds_write_b128 v{t0}, {vr(e0)}")
    a(f"v_bfe_u32 v{t0}, v0, 4, 1")
    a(f"v_mul_u32_u24 v{t0}, 1792, v{t0}")
    a(f"v_and_b32 v{t1}, 15, v0")
    a(f"v_add_u32 v{t0}, v{t0}, v{t1}")
    a(f"s_lshl_b32 s{S_T1}, s{S_FC}, 7")
    a(f"s_lshl_b32 s{S_T2}, s{sW}, 6")
    a(f"s_add_u32 s{S_T1}, s{S_T1}, s{S_T2}")
    a(f"v_add_u32 v{t0}, s{S_T1}, v{t0}")
    a(f"v_lshlrev_b32 v{t0}, 3, v{t0}")
    a(f"v_add_u32 v{vCA}, {CS_OFF}, v{t0}")
    a(f"s_lshl_b32 s{S_T1}, s{S_RT}, 7")
    a(f"s_add_u32 s{S_T1}, s{S_T1}, s{S_T2}")
    a(f"v_and_b32 v{t0}, 31, v0")
    a(f"v_add_u32 v{t0}, s{S_T1}, v{t0}")
    a(f"v_lshlrev_b32 v{t0}, 4, v{t0}")
    a(f"v_add_u32 v{vSA}, {SG_OFF}, v{t0}")
    vF0w = 9
    a(f"s_lshl_b32 s{S_T1}, s{sCG}, 2")
    a(f"s_lshl_b32 s{S_T2}, s{sW}, 1")
    a(f"s_add_u32 s{S_T1}, s{S_T1}, s{S_T2}")
    a(f"v_add_u32 v{t0}, s{S_T1}, v0")
    a(f"v_lshlrev_b32 v{t0}, 5, v{t0}")
    a(f"v_add_u32 v{t0}, s{sTB}, v{t0}")
    a(f"v_lshlrev_b32 v{t0}, 2, v{t0}")
    a(f"v_add_u32 v{vF0w}, {F0_OFF}, v{t0}")
    a(f"s_lshl_b32 s{S_T1}, s{sCG}, 6")
    a(f"s_lshl_b32 s{S_T0}, s{sW}, 5")
    a(f"s_add_u32 s{S_T1}, s{S_T1}, s{S_T0}")
    a(f"v_lshrrev_b32 v{t0}, 3, v0")
    a(f"v_add_u32 v{t0}, s{S_T1}, v{t0}")
    a(f"v_lshlrev_b32 v{t0}, 12, v{t0}")
    a(f"s_lshl_b32 s{S_T1}, s{sTB}, 7")
    a(f"s_add_u32 s{S_T1}, s{S_T1}, {UT_OFF}")
    a(f"v_add_u32 v{t0}, s{S_T1}, v{t0}")
    a(f"v_and_b32 v{t1}, 7, v0")
    a(f"s_lshl_b32 s{S_T1}, s{sW}, 2")
    a(f"v_xor_b32 v{t1}, s{S_T1}, v{t1}")
    for i in range(4):
        a(f"v_xor_b32 v{t2}, {i}, v{t1}")
        a(f"v_lshl_add_u32 v{vUo+i}, v{t2}, 4, v{t0}")
        if i: a(f"v_add_u32 v{vUo+i}, {8*4096*i}, v{vUo+i}")
    def kv_valu(j):
        for c in range(2):
            ch = 2*j + c
            a(f"v_lshlrev_b32 v{WF+4*c}, 16, v{WR+2*ch}"); a(f"v_and_b32 v{WF+4*c+1}, 0xffff0000, v{WR+2*ch}")
            a(f"v_lshlrev_b32 v{WF+4*c+2}, 16, v{WR+2*ch+1}"); a(f"v_and_b32 v{WF+4*c+3}, 0xffff0000, v{WR+2*ch+1}")
        for i in range(7):
            a(f"v_lshlrev_b32 v{KF+i}, 16, v{KR+4*i+j}"); a(f"v_and_b32 v{KF+7+i}, 0xffff0000, v{KR+4*i+j}")
        for c in range(2):
            kf, wf = KF + 7*c, WF + 4*c
            for t in range(4): a(f"v_mul_f32 v{AC+t}, v{wf}, v{kf+3+t}")
            for tap in range(1, 4):
                for t in range(4): a(f"v_fmac_f32 v{AC+t}, v{wf+tap}, v{kf+3+t-tap}")
            for t in range(4):
                a(f"v_and_b32 v{kf+t}, 0xffff0000, v{VR+4*t+j}" if c else f"v_lshlrev_b32 v{kf+t}, 16, v{VR+4*t+j}")
            for t in range(4): a(f"v_mul_f32 v{AC+t}, v{AC+t}, v{kf+t}")
            o = 70
            a(f"v_cvt_pk_bf16_f32 v{o}, v{AC+3}, v{AC+2}")
            a(f"v_cvt_pk_bf16_f32 v{o+1}, v{AC+1}, v{AC}")
            a(f"ds_write_b64 v{vT}, {vr(o, 2)} offset:{128*(2*j+c)}")
    def cs_load():
        for e in range(4):
            a(f"buffer_load_dwordx2 {vr(vCS+2*e, 2)}, v{vCA}, s[{R_WS}:{R_WS+3}], 0 offen offset:{128*e} sc1"); vm.issue("cs")
    def sg_load():
        for e in range(2):
            a(f"buffer_load_dwordx4 {vr(vST+4*e)}, v{vSA}, s[{R_WS}:{R_WS+3}], 0 offen offset:{512*e} sc1"); vm.issue("sg")
    vXG, vXA = 96, 14
    a(f"s_and_b32 s{S_T0}, s{S_M}, 7")
    a(f"s_mul_i32 s{S_T0}, s{S_T0}, {28*8}")
    a(f"s_add_u32 s{S_T0}, s{S_T0}, {XG_OFF}")
    a(f"v_min_u32 v{t0}, 27, v0")
    a(f"v_lshl_add_u32 v{vXA}, v{t0}, 3, s{S_T0}")
    def xg_load():
        a(f"buffer_load_dwordx2 {vr(vXG, 2)}, v{vXA}, s[{R_WS}:{R_WS+3}], 0 offen sc1"); vm.issue("sg")
    def tag_check(regs, reload):
        L, Dn = a.uid("L_tag"), a.uid("L_tagd")
        a(f"s_mov_b32 s{S_BND}, {a.spin}")
        a.label(L)
        a(f"v_cmp_ne_u32 vcc, s{S_NONCE}, v{regs[0]}")
        for r in regs[1:]:
            a(f"v_cmp_ne_u32 s[{S_EX}:{S_EX+1}], s{S_NONCE}, v{r}")
            a("s_nop 1")
            a(f"s_or_b64 vcc, vcc, s[{S_EX}:{S_EX+1}]")
        a(f"s_cbranch_vccz {Dn}")
        keep = list(vm.q); reload()
        a("s_waitcnt vmcnt(0)")
        vm.q = keep
        a(f"s_sub_u32 s{S_BND}, s{S_BND}, 1")
        a(f"s_cmp_lg_u32 s{S_BND}, 0")
        a(f"s_cbranch_scc1 {L}")
        a.label(Dn)
    def split(vsrc, neg):
        sg = "-" if neg else ""
        a(f"v_cvt_pk_bf16_f32 v{vh}, {sg}v{vsrc}, {sg}v{vsrc}")
        a(f"v_and_b32 v{t2}, 0xffff0000, v{vh}")
        a(f"v_sub_f32_e64 v{t2}, {sg}v{vsrc}, v{t2}")
        a(f"v_cvt_pk_bf16_f32 v{vl}, v{t2}, v{t2}")
    for st in range(7):
        if a.stop == "p1": a.stamp(3 + st)
        a("s_barrier")
        if st == 0:
            nonce_load(vm)
        if st == 1:
            kv_loads()
        if st == 2:
            vm.wait("kvl"); kv_valu(0); kv_valu(1)
        if st == 3:
            nonce_check(a, vnon, t0)
            a(f"v_mov_b32 v{t0}, s{S_NONCE}")
            a(f"v_mov_b32 v{t1}, {NONCE_L}")
            a(f"ds_write_b32 v{t1}, v{t0}")
            Lns = a.uid("L_nosg")
            a(f"s_cmp_lg_u32 s{sW}, 0")
            a(f"s_cbranch_scc1 {Lns}")
            a(f"v_lshlrev_b32 v{t0}, 3, v0")
            a(f"v_add_u32 v{t0}, {STG_L}, v{t0}")
            a(f"ds_read_b64 {vr(t2, 2)}, v{t0}")
            a(f"v_and_b32 v{t0}, 3, v0")
            a(f"v_lshrrev_b32 v{t1}, 2, v0")
            a(f"v_mul_u32_u24 v{t1}, 56, v{t1}")
            a(f"v_add_u32 v{t0}, v{t0}, v{t1}")
            a(f"s_lshl_b32 s{S_T1}, s{S_FC}, 2")
            a(f"v_add_u32 v{t0}, s{S_T1}, v{t0}")
            a(f"v_cmp_gt_u32 vcc, 128, v{t0}")
            a(f"s_lshl_b32 s{S_T1}, s{S_RT}, 7")
            a(f"v_add_u32 v{t0}, s{S_T1}, v{t0}")
            a(f"v_lshlrev_b32 v{t0}, 4, v{t0}")
            a(f"v_add_u32 v{t0}, {SG_OFF}, v{t0}")
            a("s_and_b64 vcc, vcc, 0xfff")
            a("s_waitcnt lgkmcnt(0)")
            a(f"v_mov_b32 v{vST}, v{t2}")
            a(f"v_mov_b32 v{vST+1}, s{S_NONCE}")
            a(f"v_mov_b32 v{vST+2}, v{t3}")
            a(f"v_mov_b32 v{vST+3}, s{S_NONCE}")
            a("s_mov_b64 exec, vcc")
            a(f"buffer_store_dwordx4 {vr(vST)}, v{t0}, s[{R_WS}:{R_WS+3}], 0 offen sc1")
            if "fast" in a.exp:
                a(f"s_getreg_b32 s{S_T2}, hwreg(HW_REG_XCC_ID, 0, 4)")
                a(f"s_and_b32 s{S_T0}, s{S_M}, 7")
                a(f"s_mul_i32 s{S_T0}, s{S_T0}, 28")
                a(f"s_lshr_b32 s{S_T1}, s{S_M}, 3")
                a(f"s_add_u32 s{S_T0}, s{S_T0}, s{S_T1}")
                a(f"s_lshl_b32 s{S_T0}, s{S_T0}, 3")
                a(f"s_add_u32 s{S_T0}, s{S_T0}, {XG_OFF}")
                a("s_mov_b64 exec, 1")
                a(f"v_mov_b32 v{t2}, s{S_T2}")
                a(f"v_mov_b32 v{t3}, s{S_NONCE}")
                a(f"v_mov_b32 v{t0}, 0")
                a(f"buffer_store_dwordx2 {vr(t2, 2)}, v{t0}, s[{R_WS}:{R_WS+3}], s{S_T0} offen sc1")
                a("s_mov_b64 exec, -1")
            a("s_mov_b64 exec, -1")
            a.label(Lns)
            cs_load()
            kv_valu(2); kv_valu(3); a("s_waitcnt lgkmcnt(0)")
        if st == 4:
            a(f"s_lshl_b32 s{S_T1}, s{sW}, 12")
            a(f"s_add_u32 s{S_T1}, s{S_T1}, {EXT}")
            a(f"v_lshlrev_b32 v{t0}, 4, v0")
            a(f"v_add_u32 v{t0}, s{S_T1}, v{t0}")
            for i in range(4): a(f"ds_read_b128 {vr(100+4*i)}, v{t0} offset:{1024*i}")
            for i in range(4):
                a(f"s_waitcnt lgkmcnt({3-i})")
                a(f"buffer_store_dwordx4 {vr(100+4*i)}, v{vUo+i}, s[{R_WS}:{R_WS+3}], 0 offen sc1"); vm.issue("ut")
        if st == 5:
            vm.wait("cs")
            sg_load()
            if "fast" in a.exp: xg_load()
            k_loads(vm)
            tag_check([vCS + 1, vCS + 3, vCS + 5, vCS + 7], cs_load)
            a("v_cmp_gt_u32 vcc, 32, v0")
            a(f"v_lshlrev_b32 v{t3}, 4, v0")
            a(f"s_lshl_b32 s{S_T1}, s{sW}, 12")
            a(f"s_add_u32 s{S_T1}, s{S_T1}, {WEXT}")
            a(f"v_add_u32 v{t1}, s{S_T1}, v{t3}")
            for e in range(4):
                f0 = e0 + 4*(e & 1)
                split(vCS + 2*e, False)
                a(f"v_and_b32 v{t2}, 0xffff, v{vl}")
                a(f"v_cndmask_b32 v{f0}, 0, v{vh}, vcc")
                a(f"v_cndmask_b32 v{f0+1}, 0, v{t2}, vcc")
                a(f"v_mov_b32 v{f0+2}, 0")
                a(f"v_mov_b32 v{f0+3}, 0")
                a(f"ds_write_b128 v{t1}, {vr(f0)} offset:{1024*e}")
            vm.wait("ut")
            a(f"v_mov_b32 v{t0}, s{S_NONCE}")
            a("s_mov_b64 exec, 3")
            a(f"buffer_store_dword v{t0}, v{vF0w}, s[{R_WS}:{R_WS+3}], 0 offen sc1"); vm.issue("sig")
            a("s_mov_b64 exec, -1")
        if st == 6:
            f0_load(vm)
            vm.wait("K")
            if "fast" in a.exp:
                tag_check([vST + 1, vST + 3, vST + 5, vST + 7, vXG + 1], lambda: (sg_load(), xg_load()))
                a(f"s_getreg_b32 s{S_T2}, hwreg(HW_REG_XCC_ID, 0, 4)")
                a(f"v_cmp_ne_u32 vcc, s{S_T2}, v{vXG}")
                a("s_nop 1")
                a("s_cmp_eq_u64 vcc, 0")
                a(f"s_cselect_b32 s{S_T2}, 1, 0")
                a(f"v_mov_b32 v{t1}, s{S_T2}")
            else:
                tag_check([vST + 1, vST + 3, vST + 5, vST + 7], sg_load)
                a(f"v_mov_b32 v{t1}, 0")
            a(f"v_mov_b32 v{t2}, {FAST_L}")
            a(f"ds_write_b32 v{t2}, v{t1}")
            a("v_cmp_gt_u32 vcc, 32, v0")
            a(f"v_and_b32 v{t1}, 31, v0")
            a(f"s_lshl_b32 s{S_T1}, s{sW}, 9")
            a(f"v_lshl_add_u32 v{t1}, v{t1}, 3, s{S_T1}")
            a(f"v_add_u32 v98, {STATS_L}, v{t1}")
            a(f"v_lshlrev_b32 v{t3}, 4, v0")
            a(f"s_lshl_b32 s{S_T1}, s{sW}, 11")
            a(f"s_add_u32 s{S_T1}, s{S_T1}, {XEXT}")
            a(f"v_add_u32 v99, s{S_T1}, v{t3}")
            for e in range(2):
                g = vST + 4*e
                a(f"v_mov_b32 v{g+1}, v{g+2}")
                a(f"ds_write_b64 v98, {vr(g, 2)} offset:{256*e}")
                split(g, True)
                f0 = e0 + 4*e
                a(f"v_and_b32 v{t2}, 0xffff, v{vh}")
                a(f"v_lshlrev_b32 v{t1}, 16, v{vl}")
                a(f"v_or_b32 v{t1}, v{t1}, v{t2}")
                a(f"v_cndmask_b32 v{f0}, 0, v{t1}, vcc")
                a(f"v_cndmask_b32 v{f0+1}, 0, v{t2}, vcc")
                a(f"v_mov_b32 v{f0+2}, 0")
                a(f"v_mov_b32 v{f0+3}, 0")
                a(f"ds_write_b128 v99, {vr(f0)} offset:{1024*e}")
    a.label("L_htail")
    a.stamp(1)
    e0 = 88
    sUB, sKC, sUok = S_A2, S_A1, S_A3
    a(f"s_lshr_b32 s{S_T0}, s{w}, 1")
    a(f"s_mul_i32 s{sUB}, s{S_T0}, {UCH}")
    a(f"s_add_u32 s{sUB}, s{sUB}, {UB0}")
    a(f"s_mul_i32 s{sKC}, s{S_T0}, {KCH}")
    a(f"s_add_u32 s{sKC}, s{sKC}, {CV}")
    def u_dma():
        a(f"s_lshl_b32 s{S_T1}, s{sCH}, 12")
        a(f"s_add_u32 s{S_T1}, s{S_T1}, {UT_OFF}")
        a(f"v_lshlrev_b32 v{t0}, 4, v0")
        for i in range(4):
            a(f"s_add_u32 m0, s{sUB}, {512 + 1024*i}")
            a(f"s_add_u32 s{S_T2}, s{S_T1}, {1024*i}")
            a(f"buffer_load_dwordx4 v{t0}, s[{R_WS}:{R_WS+3}], s{S_T2} offen sc1 lds")
    a(f"v_lshlrev_b32 v{t3}, 4, v0")
    a(f"v_add_u32 v{t1}, s{sKC}, v{t3}")
    Lc1, Lcd = a.uid("L_copy1"), a.uid("L_copyd")
    a(f"s_cmp_eq_u32 s{sRH}, 1")
    a(f"s_cbranch_scc1 {Lc1}")
    for i in range(4):
        a(f"ds_write_b128 v{t1}, {vr(vKA_+4*i)} offset:{32 + 1024*i}")
    a(f"v_mov_b32 v{e0}, 0")
    a(f"v_mov_b32 v{e0+1}, 0")
    a(f"v_lshlrev_b32 v{t1}, 3, v0")
    a(f"v_add_u32 v{t2}, s{sUB}, v{t1}")
    a(f"ds_write_b64 v{t2}, {vr(e0, 2)}")
    a(f"v_add_u32 v{t2}, s{sKC}, v{t1}")
    a("s_mov_b64 exec, 0xf")
    a(f"ds_write_b64 v{t2}, {vr(e0, 2)}")
    a("s_mov_b64 exec, -1")
    a(f"s_branch {Lcd}")
    a.label(Lc1)
    a(f"v_lshlrev_b32 v{t2}, 16, v{vKA_}")
    for i in range(4):
        for j in range(4):
            a(f"v_alignbit_b32 v{vKB_+4*i+j}, v{vKB_+4*i+j}, v{vKA_+4*i+j}, 16")
    for i in range(4):
        a(f"ds_write_b128 v{t1}, {vr(vKB_+4*i)} offset:{4160 + 32 + 1024*i}")
    a(f"v_readfirstlane_b32 s{S_T1}, v{t2}")
    a(f"v_lshlrev_b32 v{t1}, 2, v0")
    a(f"v_add_u32 v{t1}, s{sKC}, v{t1}")
    a("v_cmp_eq_u32 vcc, 7, v0")
    a(f"v_mov_b32 v{t2}, s{S_T1}")
    a("s_nop 0")
    a(f"v_cndmask_b32 v{t2}, 0, v{t2}, vcc")
    a("s_mov_b64 exec, 0xff")
    a(f"ds_write_b32 v{t1}, v{t2} offset:4160")
    a("s_mov_b64 exec, -1")
    a.label(Lcd)
    a("s_waitcnt vmcnt(0)")
    a(f"v_cmp_ne_u32 vcc, s{S_NONCE}, v{vF0d}")
    a(f"s_mov_b32 s{sUok}, 0")
    a("s_nop 0")
    Lnu = a.uid("L_nou")
    a(f"s_cbranch_vccnz {Lnu}")
    a(f"s_mov_b32 s{sUok}, 1")
    u_dma()
    a.label(Lnu)
    a("s_waitcnt lgkmcnt(0)")
    a("s_barrier")
    a.stamp(2)
    if a.stop == "p1":
        a("s_waitcnt vmcnt(0)"); a("s_barrier"); a.stamps_out(10); a("s_endpgm"); return
    if "noprio" not in a.exp: a("s_setprio 1")
    Lgo = a.uid("L_ugo")
    a(f"s_cmp_eq_u32 s{sUok}, 1")
    a(f"s_cbranch_scc1 {Lgo}")
    a.poll(vF0a, t1, 64, sleep=2)
    u_dma()
    a.label(Lgo)
    a.stamp(3)
    if "noconv" not in a.exp: conv(a, w, sCH, sRH, sUB, sKC)
    a.stamp(5)
    final_h(a, w)

def lds_pair_sync(a, vaddr, vone, vtmp, target):
    L, Dn = a.uid("L_ps"), a.uid("L_psd")
    a("s_mov_b64 exec, 1")
    a(f"ds_add_u32 v{vaddr}, v{vone}")
    a("s_mov_b64 exec, -1")
    a(f"s_mov_b32 s{S_BND}, {a.spin}")
    a.label(L)
    a(f"ds_read_b32 v{vtmp}, v{vaddr}")
    a("s_waitcnt lgkmcnt(0)")
    a(f"v_readfirstlane_b32 s{S_T0}, v{vtmp}")
    a("s_nop 0")
    a(f"s_cmp_ge_u32 s{S_T0}, {target}")
    a(f"s_cbranch_scc1 {Dn}")
    a(f"s_sub_u32 s{S_BND}, s{S_BND}, 1")
    a(f"s_cmp_lg_u32 s{S_BND}, 0")
    a(f"s_cbranch_scc1 {L}")
    a.label(Dn)

def conv(a, w, sCH, sRH, sUB, sKC):
    t0, t1, t2, t3 = 64, 65, 66, 67
    a(f"s_lshl_b32 s{S_T0}, s{S_M}, 2")
    a(f"s_load_dword s{S_A4}, s[{S_SD}:{S_SD+1}], s{S_T0}")
    vKA, vUB = 8, 12
    a(f"v_and_b32 v{t0}, 15, v0")
    a(f"v_lshrrev_b32 v{t1}, 5, v0")
    a(f"v_bfe_u32 v{t2}, v0, 4, 1")
    a(f"v_lshlrev_b32 v{t3}, 4, v{t1}")
    a(f"v_add_u32 v{t3}, v{t3}, v{t0}")
    a(f"v_add_u32 v{t3}, 9, v{t3}")
    a(f"v_lshlrev_b32 v{vUB}, 3, v{t2}")
    a(f"v_sub_u32 v{t3}, v{t3}, v{vUB}")
    a(f"v_and_b32 v{vUB}, 1, v{t3}")
    a(f"v_mul_u32_u24 v{vUB}, 4158, v{vUB}")
    a(f"v_lshl_add_u32 v{t3}, v{t3}, 1, v{vUB}")
    a(f"s_lshl_b32 s{S_T1}, s{sRH}, 8")
    a(f"s_add_u32 s{S_T2}, s{sKC}, s{S_T1}")
    a(f"v_add_u32 v{vKA}, s{S_T2}, v{t3}")
    for i in range(1, 4): a(f"v_add_u32 v{vKA+i}, {1024*i}, v{vKA}")
    a(f"v_sub_u32 v{t3}, v{t0}, v{t1}")
    a(f"v_lshlrev_b32 v{t3}, 5, v{t3}")
    a(f"v_lshl_add_u32 v{t3}, v{t2}, 4, v{t3}")
    a(f"v_add_u32 v{t3}, {64 + 256}, v{t3}")
    a(f"s_sub_u32 s{S_T2}, s{sUB}, s{S_T1}")
    a(f"v_add_u32 v{vUB}, s{S_T2}, v{t3}")
    vUE, vYO, vXA, vCN, vOne = 13, 14, 15, 16, 17
    a(f"v_lshlrev_b32 v{t3}, 5, v{t0}")
    a(f"v_lshl_add_u32 v{t3}, v{t1}, 4, v{t3}")
    a(f"v_lshlrev_b32 v{vUE}, 3, v{t2}")
    a(f"v_sub_u32 v{t3}, v{t3}, v{vUE}")
    a(f"v_add_u32 v{t3}, 520, v{t3}")
    a(f"s_lshl_b32 s{S_T1}, s{sRH}, 11")
    a(f"s_add_u32 s{S_T2}, s{sUB}, s{S_T1}")
    a(f"v_add_u32 v{vUE}, s{S_T2}, v{t3}")
    a(f"v_lshrrev_b32 v{t3}, 4, v0")
    a(f"v_lshlrev_b32 v{t3}, 3, v{t3}")
    a(f"v_lshl_add_u32 v{vYO}, v{t0}, 5, v{t3}")
    a(f"v_lshlrev_b32 v{t3}, 4, v0")
    a(f"v_add_u32 v{vXA}, s{sKC}, v{t3}")
    a(f"s_lshr_b32 s{S_T1}, s{w}, 1")
    a(f"s_lshl_b32 s{S_T1}, s{S_T1}, 2")
    a(f"s_add_u32 s{S_T1}, s{S_T1}, {CNT_L}")
    a(f"v_mov_b32 v{vCN}, s{S_T1}")
    a(f"v_mov_b32 v{vOne}, 1")
    a("s_waitcnt vmcnt(0) lgkmcnt(0)")
    a.stamp(4)
    ACC = 224
    AS, BS = (96, 160), (128, 192)
    def loads(rr):
        s = rr & 1; L = []
        for x in range(8):
            L.append(f"ds_read_b128 {vr(BS[s]+4*x)}, v{vUB} offset:{512*x + 64*(3-rr)}")
            o = 128*(x & 1) + 16*rr
            L.append(f"ds_read2_b32 {vr(AS[s]+4*x, 2)}, v{vKA+(x>>1)} offset0:{o} offset1:{o+1}")
            L.append(f"ds_read2_b32 {vr(AS[s]+4*x+2, 2)}, v{vKA+(x>>1)} offset0:{o+2} offset1:{o+3}")
        return L
    for l in loads(0): a(l)
    for rr in range(4):
        a("s_waitcnt lgkmcnt(0)")
        nxt = loads(rr + 1) if rr < 3 else []
        s = rr & 1; k = 0
        for x in range(8):
            for c in range(x, 8):
                cin = "0" if (rr == 0 and x == 0) else vr(ACC+4*c)
                a(f"v_mfma_f32_16x16x32_bf16 {vr(ACC+4*c)}, {vr(AS[s]+4*x)}, {vr(BS[s]+4*(c-x))}, {cin}")
                if nxt and k < len(nxt): a(nxt[k]); k += 1
        while nxt and k < len(nxt): a(nxt[k]); k += 1
    a.stamp(9)
    lds_pair_sync(a, vCN, vOne, t0, 2)
    Lr1, Lrd = a.uid("L_r1"), a.uid("L_rd")
    a(f"s_cmp_eq_u32 s{sRH}, 1")
    a(f"s_cbranch_scc1 {Lr1}")
    for c in range(4): a(f"ds_write_b128 v{vXA}, {vr(ACC+16+4*c)} offset:{1024*c}")
    a(f"s_branch {Lrd}")
    a.label(Lr1)
    for c in range(4):
        a(f"ds_write_b128 v{vXA}, {vr(ACC+4*c)} offset:{4096 + 1024*c}")
    a("s_waitcnt lgkmcnt(0)")
    for c in range(16): a(f"v_mov_b32 v{ACC+c}, v{ACC+16+c}")
    a.label(Lrd)
    a("s_waitcnt lgkmcnt(0)")
    lds_pair_sync(a, vCN, vOne, t0, 4)
    a(f"s_xor_b32 s{S_T1}, s{sRH}, 1")
    a(f"s_lshl_b32 s{S_T1}, s{S_T1}, 12")
    a(f"v_add_u32 v{vXA}, s{S_T1}, v{vXA}")
    for c in range(4): a(f"ds_read_b128 {vr(128+4*c)}, v{vXA} offset:{1024*c}")
    for c in range(4): a(f"ds_read_b64 {vr(96+2*c, 2)}, v{vUE} offset:{512*c}")
    a(f"s_lshr_b32 s{S_T1}, s{w}, 1")
    a(f"s_lshl_b32 s{S_T1}, s{S_T1}, 4")
    a(f"s_lshr_b32 s{S_A4}, s{S_A4}, s{S_T1}")
    a(f"s_lshl_b32 s{S_A4}, s{S_A4}, 16")
    a(f"s_lshl_b32 s{S_T1}, s{sCH}, 12")
    a(f"s_lshl_b32 s{S_T2}, s{sRH}, 11")
    a(f"s_add_u32 s{S_T1}, s{S_T1}, s{S_T2}")
    a(f"s_add_u32 s{S_T1}, s{S_T1}, {YT_OFF}")
    a("s_waitcnt lgkmcnt(0)")
    for c in range(4):
        d0, d1 = 96 + 2*c, 97 + 2*c
        u = 144
        a(f"v_and_b32 v{u}, 0xffff0000, v{d1}")
        a(f"v_lshlrev_b32 v{u+1}, 16, v{d1}")
        a(f"v_and_b32 v{u+2}, 0xffff0000, v{d0}")
        a(f"v_lshlrev_b32 v{u+3}, 16, v{d0}")
        for i in range(4): a(f"v_add_f32 v{ACC+4*c+i}, v{ACC+4*c+i}, v{128+4*c+i}")
        for i in range(4): a(f"v_fmac_f32 v{ACC+4*c+i}, s{S_A4}, v{u+i}")
        o = 148 + 2*c
        a(f"v_cvt_pk_bf16_f32 v{o}, v{ACC+4*c}, v{ACC+4*c+1}")
        a(f"v_cvt_pk_bf16_f32 v{o+1}, v{ACC+4*c+2}, v{ACC+4*c+3}")
        a(f"buffer_store_dwordx2 {vr(o, 2)}, v{vYO}, s[{R_WS}:{R_WS+3}], s{S_T1} offen offset:{512*c} sc1")
    a(f"s_lshr_b32 s{S_T1}, s{sCH}, 6")
    a(f"s_lshl_b32 s{S_T1}, s{S_T1}, 1")
    a(f"s_add_u32 s{S_T1}, s{S_T1}, s{sRH}")
    a(f"s_lshl_b32 s{S_T1}, s{S_T1}, 6")
    a(f"s_and_b32 s{S_T2}, s{sCH}, 63")
    a(f"s_add_u32 s{S_T1}, s{S_T1}, s{S_T2}")
    a(f"s_lshl_b32 s{S_T1}, s{S_T1}, 2")
    a(f"s_add_u32 s{S_T1}, s{S_T1}, {F2_OFF}")
    if a.prof: a(f"s_mov_b32 s{S_A5}, s{S_T1}"); a.stamp(1); a(f"s_mov_b32 s{S_T1}, s{S_A5}")
    a("s_waitcnt vmcnt(0)")
    a.signal(S_T1, t0, t1)

def lds_wait(a, addr, vaddr, vtmp, target, sleep):
    L, Dn = a.uid("L_lw"), a.uid("L_lwd")
    a(f"v_mov_b32 v{vaddr}, {addr}")
    a(f"s_mov_b32 s{S_BND}, {a.spin}")
    a.label(L)
    a(f"ds_read_b32 v{vtmp}, v{vaddr}")
    a("s_waitcnt lgkmcnt(0)")
    a(f"v_readfirstlane_b32 s{S_T3}, v{vtmp}")
    a("s_nop 0")
    a(f"s_cmp_ge_u32 s{S_T3}, {target}")
    a(f"s_cbranch_scc1 {Dn}")
    a(f"s_sleep {sleep}")
    a(f"s_sub_u32 s{S_BND}, s{S_BND}, 1")
    a(f"s_cmp_lg_u32 s{S_BND}, 0")
    a(f"s_cbranch_scc1 {L}")
    a.label(Dn)

def final_h(a, w):
    t0, t1, t2, t3 = 64, 65, 66, 67
    vXo = 8
    BASE = 16
    RS2 = 32
    XD = 36
    YD = 44
    ST = 52
    if "noprio" not in a.exp: a("s_setprio 0")
    a(f"v_lshrrev_b32 v{t0}, 3, v0")
    a(f"v_mul_u32_u24 v{t0}, 896, v{t0}")
    a(f"v_and_b32 v{t1}, 7, v0")
    a(f"v_lshl_add_u32 v{vXo}, v{t1}, 4, v{t0}")
    sXO = S_A1
    a(f"s_lshl_b32 s{S_T0}, s{S_RB}, 6")
    a(f"s_lshl_b32 s{S_T1}, s{w}, 4")
    a(f"s_add_u32 s{S_T0}, s{S_T0}, s{S_T1}")
    a(f"s_mul_i32 s{sXO}, s{S_T0}, 896")
    a(f"s_lshl_b32 s{S_T1}, s{S_CT}, 7")
    a(f"s_add_u32 s{sXO}, s{sXO}, s{S_T1}")
    a(f"s_add_u32 s{S_T2}, s{sXO}, {8*896}")
    a(f"buffer_load_dwordx4 {vr(XD)}, v{vXo}, s[{R_A}:{R_A+3}], s{sXO} offen")
    a(f"buffer_load_dwordx4 {vr(XD+4)}, v{vXo}, s[{R_A}:{R_A+3}], s{S_T2} offen")
    a(f"s_lshl_b32 s{S_T1}, s{S_PAR}, 6")
    a(f"s_lshl_b32 s{S_T2}, s{w}, 4")
    a(f"s_add_u32 s{S_T1}, s{S_T1}, s{S_T2}")
    a(f"v_lshrrev_b32 v{t0}, 3, v0")
    a(f"v_add_u32 v{t0}, s{S_T1}, v{t0}")
    a(f"v_lshlrev_b32 v{t0}, 3, v{t0}")
    a(f"v_add_u32 v{t0}, {STATS_L}, v{t0}")
    a(f"ds_read_b64 {vr(ST, 2)}, v{t0}")
    a(f"ds_read_b64 {vr(ST+2, 2)}, v{t0} offset:64")
    lds_wait(a, CNT_L + 12, t0, t1, 4, 4)
    a(f"s_lshl_b32 s{S_T1}, s{S_CT}, 9")
    a(f"s_lshr_b32 s{S_T2}, s{S_RB}, 4")
    a(f"s_lshl_b32 s{S_T2}, s{S_T2}, 8")
    a(f"s_add_u32 s{S_T1}, s{S_T1}, s{S_T2}")
    a(f"s_lshl_b32 s{S_T2}, s{w}, 6")
    a(f"s_add_u32 s{S_T1}, s{S_T1}, s{S_T2}")
    a(f"s_add_u32 s{S_T1}, s{S_T1}, {F2_OFF}")
    a(f"v_and_b32 v{t0}, 15, v0")
    a(f"v_lshlrev_b32 v{t0}, 2, v{t0}")
    a(f"v_add_u32 v{t0}, s{S_T1}, v{t0}")
    if "noconv" not in a.exp and "nopoll2" not in a.exp: a.poll(t0, t1, 16, sleep=8)
    a.stamp(6)
    a(f"s_lshl_b32 s{S_T1}, s{S_CT}, 6")
    a(f"s_lshl_b32 s{S_T2}, s{w}, 4")
    a(f"s_add_u32 s{S_T1}, s{S_T1}, s{S_T2}")
    a(f"s_lshl_b32 s{S_T1}, s{S_T1}, 12")
    a(f"s_lshl_b32 s{S_T2}, s{S_RB}, 7")
    a(f"s_add_u32 s{S_T1}, s{S_T1}, s{S_T2}")
    a(f"s_add_u32 s{S_T1}, s{S_T1}, {YT_OFF}")
    a(f"s_add_u32 s{S_T2}, s{S_T1}, {8*4096}")
    a(f"v_lshrrev_b32 v{t0}, 3, v0")
    a(f"v_lshlrev_b32 v{t0}, 12, v{t0}")
    a(f"v_and_b32 v{t1}, 7, v0")
    a(f"v_lshl_add_u32 v{t0}, v{t1}, 4, v{t0}")
    a(f"buffer_load_dwordx4 {vr(YD)}, v{t0}, s[{R_WS}:{R_WS+3}], s{S_T1} offen sc1")
    a(f"buffer_load_dwordx4 {vr(YD+4)}, v{t0}, s[{R_WS}:{R_WS+3}], s{S_T2} offen sc1")
    a(f"v_lshrrev_b32 v{t0}, 3, v0")
    a(f"v_lshlrev_b32 v{t0}, 7, v{t0}")
    a(f"s_lshl_b32 s{S_T1}, s{w}, 1")
    a(f"v_xor_b32 v{t1}, s{S_T1}, v{t1}")
    a(f"v_lshl_add_u32 v{t2}, v{t1}, 4, v{t0}")
    a(f"v_xor_b32 v{t1}, 1, v{t1}")
    a(f"v_lshl_add_u32 v{t3}, v{t1}, 4, v{t0}")
    a(f"s_lshl_b32 s{S_T1}, s{w}, 11")
    a(f"s_add_u32 s{S_T1}, s{S_T1}, {EXT}")
    a(f"v_add_u32 v{t2}, s{S_T1}, v{t2}")
    a(f"v_add_u32 v{t3}, s{S_T1}, v{t3}")
    a("s_waitcnt vmcnt(0)")
    a(f"ds_write_b128 v{t2}, {vr(YD)}")
    a(f"ds_write_b128 v{t3}, {vr(YD+4)} offset:1024")
    a(f"v_mov_b32 v{t0}, {CNT_L + 8}")
    a(f"v_mov_b32 v{t1}, 1")
    a("s_waitcnt lgkmcnt(0)")
    lds_pair_sync(a, t0, t1, t2, 4)
    a(f"v_and_b32 v{t1}, 7, v0")
    a(f"s_lshl_b32 s{S_T1}, s{w}, 1")
    a(f"v_xor_b32 v{t2}, s{S_T1}, v{t1}")
    a(f"v_lshlrev_b32 v{t1}, 10, v{t1}")
    a(f"v_lshrrev_b32 v{t0}, 3, v0")
    a(f"v_lshl_add_u32 v{t1}, v{t0}, 1, v{t1}")
    a(f"v_add_u32 v{t1}, {EXT}, v{t1}")
    a(f"v_lshl_add_u32 v{t0}, v{t2}, 4, v{t1}")
    a(f"v_xor_b32 v{t2}, 1, v{t2}")
    a(f"v_lshl_add_u32 v{t2}, v{t2}, 4, v{t1}")
    YG = 96
    for q in range(2):
        for e in range(8):
            a(f"ds_read_u16 v{YG+8*q+e}, v{(t0, t2)[q]} offset:{128*e}")
    a("s_waitcnt lgkmcnt(0)")
    for q in range(2):
        mean, rstd = ST + 2*q, ST + 2*q + 1
        a(f"v_mul_f32 v{RS2+q}, v{rstd}, v{rstd}")
        for e in range(8):
            xs = XD + 4*q + (e >> 1)
            if e & 1: a(f"v_and_b32 v{t0}, 0xffff0000, v{xs}")
            else:     a(f"v_lshlrev_b32 v{t0}, 16, v{xs}")
            a(f"v_lshlrev_b32 v{t2}, 16, v{YG+8*q+e}")
            a(f"v_sub_f32 v{t3}, v{t0}, v{mean}")
            a(f"v_mul_f32 v{t3}, v{t3}, v{rstd}")
            a(f"v_fma_f32 v{BASE+8*q+e}, v{t3}, v{t2}, v{t0}")
    vF0, vF1 = 12, 13
    a(f"v_lshrrev_b32 v{t0}, 3, v0")
    a(f"s_lshl_b32 s{S_T1}, s{w}, 4")
    a(f"v_add_u32 v{t0}, s{S_T1}, v{t0}")
    a(f"v_mul_u32_u24 v{t0}, {PROW}, v{t0}")
    a(f"v_and_b32 v{t1}, 7, v0")
    a(f"v_lshl_add_u32 v{vF0}, v{t1}, 5, v{t0}")
    a(f"v_add_u32 v{vF1}, {2*RING}, v{vF0}")
    a.srd(R_B, S_OUT, XB)
    a.stamp(7)
    a("s_barrier")
    P = 128
    for q in range(2):
        for kq in range(4):
            base = vF0 if kq < 2 else vF1
            for hh in range(2):
                a(f"ds_read_b128 {vr(P+32*q+8*kq+4*hh)}, v{base} offset:{(kq & 1)*RING + q*8*PROW + 16*hh}")
    for q in range(2):
        a(f"s_waitcnt lgkmcnt({8 if q == 0 else 0})")
        p = P + 32*q
        for e in range(8):
            a(f"v_add_f32 v{p+e}, v{p+e}, v{p+8+e}")
            a(f"v_add_f32 v{p+16+e}, v{p+16+e}, v{p+24+e}")
        for e in range(8):
            a(f"v_add_f32 v{p+e}, v{p+e}, v{p+16+e}")
        for e in range(8):
            a(f"v_fmac_f32 v{BASE+8*q+e}, v{RS2+q}, v{p+e}")
        for e in range(4):
            a(f"v_cvt_pk_bf16_f32 v{XD+4*q+e}, v{BASE+8*q+2*e}, v{BASE+8*q+2*e+1}")
        so = sXO
        if q == 1:
            a(f"s_add_u32 s{S_T2}, s{sXO}, {8*896}"); so = S_T2
        a(f"buffer_store_dwordx4 {vr(XD+4*q)}, v{vXo}, s[{R_B}:{R_B+3}], s{so} offen")
    a.stamp(8)
    if "span" in a.exp:
        a("s_waitcnt vmcnt(0)")
        a(f"s_cmp_lg_u32 s{S_WAVE}, 4")
        a("s_cbranch_scc1 L_hout")
        a("s_memrealtime s[88:89]")
        a("s_waitcnt lgkmcnt(0)")
        a("v_mov_b32 v2, s88"); a("v_mov_b32 v3, 12")
        a("s_mov_b64 exec, 1")
        a(f"global_atomic_umax v3, v2, s[{S_DBG}:{S_DBG+1}]")
        a("s_mov_b64 exec, -1")
    a.label("L_hout")
    a.stamps_out(10)
    a("s_endpgm")

def row_stats(a, part):
    t0, t1 = 4, 5
    XD, SS = 24, 36
    if part == 1: return row_stats2(a, XD, SS)
    a.srd(R_B, S_X, XB)
    a(f"s_lshl_b32 s{S_T0}, s{S_FC}, 2")
    a(f"s_add_u32 s{S_T0}, s{S_T0}, s{S_WAVE}")
    a(f"s_lshl_b32 s{S_T1}, s{S_RT}, 7")
    a(f"s_add_u32 s{S_T1}, s{S_T1}, s{S_T0}")
    a(f"s_mul_i32 s{S_T1}, s{S_T1}, 896")
    a(f"v_mov_b32 v{t1}, 0x40000000")
    a("v_cmp_gt_u32 vcc, 56, v0")
    a(f"s_add_u32 s{S_T2}, s{S_T1}, {56*896}")
    a(f"s_add_u32 s{S_T3}, s{S_T1}, {112*896}")
    a(f"v_cndmask_b32 v{t0}, v{t1}, v17, vcc")
    a(f"buffer_load_dwordx4 {vr(XD)}, v{t0}, s[{R_B}:{R_B+3}], s{S_T1} offen")
    a(f"buffer_load_dwordx4 {vr(XD+4)}, v{t0}, s[{R_B}:{R_B+3}], s{S_T2} offen")
    a(f"s_cmp_lt_u32 s{S_T0}, 16")
    a(f"s_cselect_b32 s{S_T3}, s{S_T3}, s{S_T2}")
    a(f"buffer_load_dwordx4 {vr(XD+8)}, v{t0}, s[{R_B}:{R_B+3}], s{S_T3} offen")

def row_stats2(a, XD, SS):
    L = []
    lo, hi, M = 42, 43, 44
    L.append("s_waitcnt vmcnt(0)")
    for j in range(3):
        for q in range(4):
            d = XD + 4*j + q
            L += [f"v_lshlrev_b32 v{lo}, 16, v{d}", f"v_and_b32 v{hi}, 0xffff0000, v{d}"]
            if q == 0: L += [f"v_add_f32 v{SS+j}, v{lo}, v{hi}", f"v_mul_f32 v{SS+3+j}, v{lo}, v{lo}"]
            else:      L += [f"v_add_f32 v{SS+j}, v{SS+j}, v{lo}", f"v_fmac_f32 v{SS+3+j}, v{lo}, v{lo}", f"v_add_f32 v{SS+j}, v{SS+j}, v{hi}"]
            L.append(f"v_fmac_f32 v{SS+3+j}, v{hi}, v{hi}")
    L += ["s_nop 0"]
    for mod in ("row_shr:1 row_mask:0xf", "row_shr:2 row_mask:0xf", "row_shr:4 row_mask:0xf", "row_shr:8 row_mask:0xf",
                "row_bcast:15 row_mask:0xa", "row_bcast:31 row_mask:0xc"):
        L += [f"v_add_f32_dpp v{SS+r}, v{SS+r}, v{SS+r} {mod} bank_mask:0xf" for r in range(6)]
    for j in range(3):
        m, q = M + 2*j, SS + 3 + j
        L += [f"v_mul_f32 v{m}, {1.0/448.0!r}, v{SS+j}",
              f"v_mul_f32 v{q}, {1.0/448.0!r}, v{q}",
              f"v_fma_f32 v{q}, -v{m}, v{m}, v{q}",
              f"v_max_f32 v{q}, 0, v{q}",
              f"v_add_f32 v{q}, 0x3727c5ac, v{q}",
              f"v_rsq_f32 v{m+1}, v{q}"]
    L += ["s_mov_b32 exec_lo, 0", "s_mov_b32 exec_hi, 0x80000000"]
    L += [f"ds_write_b64 v50, {vr(M+2*j, 2)} offset:{32*j}" for j in range(3)]
    L += ["s_mov_b64 exec, -1"]
    return L

def c_wave(a):
    a.label("L_cwave")
    vX, vW = 8, 12
    t0, t1, t2, t3 = 4, 5, 6, 7
    AS, BS, ACC = (64, 80), (96, 104), 128
    sWR, sWF = S_A0, S_A1
    a(f"v_lshlrev_b32 v17, 4, v0")
    a("s_waitcnt lgkmcnt(0)")
    row_stats(a, 0)
    a(f"s_lshr_b32 s{sWR}, s{S_WAVE}, 1")
    a(f"s_and_b32 s{sWF}, s{S_WAVE}, 1")
    a(f"s_lshl_b32 s{S_T1}, s{sWR}, 6")
    x_frag_addrs(a, vX, S_T1, t0, t1, t2)
    w_tr_lane_consts(a, t3, 16, t0, t1)
    a(f"s_lshl_b32 s{S_T1}, s{sWF}, 3")
    a(f"v_xor_b32 v16, s{S_T1}, v16")
    for m in range(4):
        a(f"v_xor_b32 v{t0}, {2*m}, v16")
        a(f"v_lshl_add_u32 v{vW+m}, v{t0}, 4, v{t3}")
    a.srd(R_WS, S_WS, WS_BYTES); a.srd(R_A, S_WD, WB)
    a.stamp(0)
    def reads(t):
        s = t & 1
        if t == 28:
            return [f"ds_read_b128 {vr(BS[s])}, v18",
                    f"ds_read_b128 {vr(AS[s])}, v19",
                    f"ds_read_b128 {vr(BS[s]+4)}, v18 offset:1024",
                    f"ds_read_b128 {vr(AS[s]+4)}, v19 offset:1024",
                    f"ds_read_b128 {vr(AS[s]+8)}, v19 offset:2048",
                    f"ds_read_b128 {vr(AS[s]+12)}, v19 offset:3072"]
        st, ks = t >> 2, t & 3
        so = (st % 3) * SLOT
        def wr(m): return [f"ds_read_b64_tr_b16 {vr(AS[s]+4*m+2*h, 2)}, v{vW+m} offset:{so + (16*ks + 4*h)*256}" for h in range(2)]
        return ([f"ds_read_b128 {vr(BS[s])}, v{vX+ks} offset:{so}"] + wr(0) +
                [f"ds_read_b128 {vr(BS[s]+4)}, v{vX+ks} offset:{so + 4096}"] + wr(1) + wr(2) + wr(3))
    a(f"s_lshl_b32 s{S_T1}, s{sWR}, 11")
    a(f"s_add_u32 s{S_T1}, s{S_T1}, {XEXT}")
    a(f"v_add_u32 v18, s{S_T1}, v17")
    a(f"s_lshl_b32 s{S_T1}, s{sWF}, 12")
    a(f"s_add_u32 s{S_T1}, s{S_T1}, {WEXT}")
    a(f"v_add_u32 v19, s{S_T1}, v17")
    a(f"s_lshl_b32 s{S_T0}, s{S_WAVE}, 3")
    a(f"s_add_u32 s{S_T0}, s{S_T0}, {STG_L}")
    a(f"v_mov_b32 v50, s{S_T0}")
    stat_ops = row_stats(a, 1)
    a("s_barrier")
    a.stamp(1)
    if "nomma" not in a.exp:
        for l in reads(0): a(l)
    for t in range(29):
        s = t & 1
        a("s_waitcnt lgkmcnt(0)")
        if t < 28 and (t & 3) == 3:
            if a.stop == "p1": a.stamp(5 + (t >> 2))
            a("s_barrier")
        nxt = reads(t + 1) if t < 28 else []
        if "nomma" in a.exp: continue
        k = 0
        for m in range(4):
            for n in range(2):
                d = ACC + (2*m + n)*16
                cin = "0" if t == 0 else vr(d, 16)
                a(f"v_mfma_f32_32x32x16_bf16 {vr(d,16)}, {vr(AS[s]+4*m)}, {vr(BS[s]+4*n)}, {cin}")
                for _ in range(2):
                    if k < len(nxt): a(nxt[k]); k += 1
                if 4 <= t < 11 and stat_ops:
                    n_ = 3
                    if stat_ops[0].startswith("s_mov_b32 exec_lo"): n_ = len(stat_ops)
                    cut = []
                    while stat_ops and len(cut) < n_:
                        if stat_ops[0].startswith("s_mov_b32 exec_lo") and cut: break
                        cut.append(stat_ops.pop(0))
                    for l in cut: a(l)
                    if n_ > 3: a("s_nop 3")
    assert not stat_ops
    a.stamp(2)
    a(f"v_mov_b32 v{t0}, {NONCE_L}")
    a(f"ds_read_b64 v[20:21], v{t0}")
    vm = VM(a)
    sH = S_A2
    a(f"s_lshl_b32 s{S_T0}, s{S_RT}, 2")
    a(f"s_lshl_b32 s{S_T1}, s{sWR}, 1")
    a(f"s_add_u32 s{S_T0}, s{S_T0}, s{S_T1}")
    a(f"s_mul_i32 s{S_T0}, s{S_T0}, 112")
    a(f"s_lshl_b32 s{S_T1}, s{S_FC}, 3")
    a(f"s_add_u32 s{S_T0}, s{S_T0}, s{S_T1}")
    a(f"s_lshl_b32 s{S_T1}, s{sWF}, 2")
    a(f"s_add_u32 s{S_T0}, s{S_T0}, s{S_T1}")
    a(f"s_lshl_b32 s{sH}, s{S_T0}, 10")
    if H_OFF: a(f"s_add_u32 s{sH}, s{sH}, {H_OFF}")
    sFast = 99
    a("s_waitcnt lgkmcnt(0)")
    a(f"v_readfirstlane_b32 s{S_NONCE}, v20")
    a(f"v_readfirstlane_b32 s{sFast}, v21")
    def either(plain, wt):
        L1, L2 = a.uid("L_wt"), a.uid("L_st")
        a(f"s_cmp_eq_u32 s{sFast}, 0")
        a(f"s_cbranch_scc1 {L1}")
        a(plain); a(f"s_branch {L2}")
        a.label(L1); a(wt); a.label(L2)
    a("s_nop 1")
    for m in range(4):
        for n in range(2):
            d = ACC + (2*m + n)*16
            o = 24 + 4*((2*m + n) & 3)
            for i in range(8): a(f"v_max_f32 v{d+i}, 0, v{d+i}")
            for i in range(8): a(f"v_mul_f32 v{d+i}, v{d+i}, v{d+8+i}")
            for i in range(4): a(f"v_cvt_pk_bf16_f32 v{o+i}, v{d+2*i}, v{d+2*i+1}")
            a(f"s_add_u32 s{S_T0}, s{sH}, {(n*112 + m)*1024}")
            st_ = f"buffer_store_dwordx4 {vr(o)}, v17, s[{R_WS}:{R_WS+3}], s{S_T0} offen"
            either(st_, st_ + " sc1")
            vm.issue("h")
    a.stamp(3)
    sKQ = S_WAVE
    vWd, vA0, vA1, vFl = 21, 22, 23, 40
    a(f"v_lshrrev_b32 v{t0}, 3, v0")
    a(f"v_and_b32 v{t1}, 7, v0")
    a(f"v_bfe_u32 v{t2}, v0, 4, 1")
    a(f"v_lshlrev_b32 v{t2}, 2, v{t2}")
    a(f"v_xor_b32 v{t1}, v{t1}, v{t2}")
    a(f"v_mul_u32_u24 v{t0}, 896, v{t0}")
    a(f"v_lshl_add_u32 v{vWd}, v{t1}, 4, v{t0}")
    sWdS, sRing = S_A3, S_A4
    a(f"s_mul_i32 s{sWdS}, s{sKQ}, {448*896}")
    a(f"s_lshl_b32 s{S_T0}, s{S_CT}, 7")
    a(f"s_add_u32 s{sWdS}, s{sWdS}, s{S_T0}")
    a(f"s_mul_i32 s{sRing}, s{sKQ}, {RING}")
    sRot, sKW, sKH = 96, 97, 98
    a(f"s_mov_b32 s{sRot}, 0")
    a(f"s_mul_i32 s{sKW}, s{sRot}, {16*896}")
    a(f"s_lshl_b32 s{sKH}, s{sRot}, 10")
    def wd_dma(ks):
        for hh in range(2):
            a(f"s_add_u32 m0, s{sRing}, {(ks % NSLOT)*2048 + hh*1024}")
            a(f"s_add_u32 s{S_T0}, s{sWdS}, s{sKW}")
            if hh: a(f"s_add_u32 s{S_T0}, s{S_T0}, {8*896}")
            a(f"buffer_load_dwordx4 v{vWd}, s[{R_A}:{R_A+3}], s{S_T0} offen lds")
            vm.issue(("wd", ks))
        a(f"s_add_u32 s{sKW}, s{sKW}, {16*896}")
        a(f"s_cmp_eq_u32 s{sKW}, {28*16*896}")
        a(f"s_cselect_b32 s{sKW}, 0, s{sKW}")
    NPRE = 4
    if a.stop != "p1":
        for ks in range(NPRE): wd_dma(ks)
    a(f"s_lshl_b32 s{S_T0}, s{S_RT}, 1")
    a(f"s_add_u32 s{S_T0}, s{S_T0}, s{sWR}")
    a(f"s_mul_i32 s{S_T0}, s{S_T0}, 28")
    a(f"s_lshl_b32 s{S_T1}, s{S_FC}, 1")
    a(f"s_add_u32 s{S_T0}, s{S_T0}, s{S_T1}")
    a(f"s_add_u32 s{S_T0}, s{S_T0}, s{sWF}")
    a(f"s_lshl_b32 s{S_T0}, s{S_T0}, 7")
    a(f"s_add_u32 s{S_T1}, s{S_T0}, {F1_OFF}")
    vm.wait("h")
    a(f"v_mov_b32 v{t0}, s{S_NONCE}")
    a(f"v_mov_b32 v{t1}, 0")
    a("s_mov_b64 exec, 1")
    st_ = f"buffer_store_dword v{t0}, v{t1}, s[{R_WS}:{R_WS+3}], s{S_T1} offen"
    either(st_, st_ + " sc1")
    a("s_mov_b64 exec, -1")
    a.stamp(4)
    if a.stop == "p1":
        a("s_barrier"); a.stamps_out(12); a("s_endpgm"); return
    for ks in range(NPRE, NSLOT): wd_dma(ks)
    a(f"v_bfe_u32 v{t0}, v0, 2, 2")
    a(f"v_lshrrev_b32 v{t1}, 5, v0")
    a(f"v_lshl_add_u32 v{t1}, v{t1}, 2, v{t0}")
    a(f"v_lshlrev_b32 v{t1}, 7, v{t1}")
    a(f"v_and_b32 v{t2}, 1, v0")
    a(f"v_lshl_add_u32 v{t1}, v{t2}, 3, v{t1}")
    a(f"v_add_u32 v{t1}, s{sRing}, v{t1}")
    a(f"v_bfe_u32 v{t2}, v0, 4, 1")
    a(f"v_bfe_u32 v{t3}, v0, 1, 1")
    a(f"v_lshl_add_u32 v{t2}, v{t2}, 1, v{t3}")
    a(f"v_bfe_u32 v{t3}, v0, 3, 1")
    a(f"v_lshl_add_u32 v{t2}, v{t3}, 2, v{t2}")
    a(f"v_lshl_add_u32 v{vA0}, v{t2}, 4, v{t1}")
    a(f"v_xor_b32 v{t2}, 4, v{t2}")
    a(f"v_lshl_add_u32 v{vA1}, v{t2}, 4, v{t1}")
    a(f"s_mul_i32 s{S_T0}, s{S_RB}, 28")
    a(f"s_mul_i32 s{S_T1}, s{sKQ}, 7")
    a(f"s_add_u32 s{S_T0}, s{S_T0}, s{S_T1}")
    a(f"s_lshl_b32 s{S_T0}, s{S_T0}, 7")
    a(f"s_add_u32 s{S_T0}, s{S_T0}, {F1_OFF}")
    a(f"v_lshlrev_b32 v{vFl}, 7, v0")
    a(f"v_add_u32 v{vFl}, s{S_T0}, v{vFl}")
    a.poll(vFl, t0, 7)
    vm.reset()
    a.stamp(5)
    sHr = S_A2
    a(f"s_mul_i32 s{sHr}, s{S_RB}, {2*112}")
    a(f"s_mul_i32 s{S_T0}, s{sKQ}, 28")
    a(f"s_add_u32 s{sHr}, s{sHr}, s{S_T0}")
    a(f"s_lshl_b32 s{sHr}, s{sHr}, 10")
    if H_OFF: a(f"s_add_u32 s{sHr}, s{sHr}, {H_OFF}")
    HB, A3, ACC3 = 96, (80, 88), 192
    def h_load(ks):
        for n in range(2):
            a(f"s_add_u32 s{S_T0}, s{sHr}, s{sKH}")
            if n: a(f"s_add_u32 s{S_T0}, s{S_T0}, {112*1024}")
            a(f"buffer_load_dwordx4 {vr(HB + 8*(ks % HD) + 4*n)}, v17, s[{R_WS}:{R_WS+3}], s{S_T0} offen sc1")
            vm.issue(("h", ks))
        a(f"s_add_u32 s{sKH}, s{sKH}, 1024")
        a(f"s_cmp_eq_u32 s{sKH}, {28*1024}")
        a(f"s_cselect_b32 s{sKH}, 0, s{sKH}")
    def tr3(ks):
        s = ks & 1; so = (ks % NSLOT)*2048
        return [f"ds_read_b64_tr_b16 {vr(A3[s]+4*m+2*h, 2)}, v{(vA0, vA1)[m]} offset:{so + 1024*h}" for m in range(2) for h in range(2)]
    for ks in range(HD): h_load(ks)
    for l in tr3(0): a(l)
    for t in range(28):
        s = t & 1
        if vm.has(("h", t)): vm.wait(("h", t))
        if t + 1 < 28 and vm.has(("wd", t + 1)): vm.wait(("wd", t + 1))
        a("s_waitcnt lgkmcnt(0)")
        nxt = tr3(t + 1) if t + 1 < 28 else []
        k = 0
        for m in range(2):
            for n in range(2):
                d = ACC3 + (2*m + n)*16
                cin = "0" if t == 0 else vr(d, 16)
                a(f"v_mfma_f32_32x32x16_bf16 {vr(d,16)}, {vr(A3[s]+4*m)}, {vr(HB + 8*(t % HD) + 4*n)}, {cin}")
                if k < len(nxt): a(nxt[k]); k += 1
        if t == 4:
            a(f"v_mov_b32 v{t0}, {CNT_L + 12}")
            a(f"v_mov_b32 v{t1}, 1")
            a("s_mov_b64 exec, 1")
            a(f"ds_add_u32 v{t0}, v{t1}")
            a("s_mov_b64 exec, -1")
        if t + NSLOT < 28 and "nowd" not in a.exp: wd_dma(t + NSLOT)
        if t + HD < 28: h_load(t + HD)
        if "p3st" in a.exp and t in (0, 6, 13, 20): a.stamp(8 + (0, 6, 13, 20).index(t))
    a.stamp(6)
    a(f"v_and_b32 v{t0}, 31, v0")
    a(f"v_mul_u32_u24 v{t0}, {PROW}, v{t0}")
    a(f"v_lshrrev_b32 v{t1}, 5, v0")
    a(f"v_lshl_add_u32 v{t0}, v{t1}, 4, v{t0}")
    a(f"v_add_u32 v{t0}, s{sRing}, v{t0}")
    a("s_nop 7")
    for m in range(2):
        for n in range(2):
            d = ACC3 + (2*m + n)*16
            for j in range(4):
                a(f"ds_write_b128 v{t0}, {vr(d+4*j)} offset:{n*32*PROW + m*128 + j*32}")
    a("s_waitcnt lgkmcnt(0)")
    a("s_barrier")
    a.stamp(7)
    a.label("L_cout")
    a.stamps_out(12 if "p3st" in a.exp else 8)
    a("s_endpgm")

def aux(a):
    a.label("L_prep")
    t0, t1, t2, t3 = 4, 5, 6, 7
    sP = 2
    CSL = 0
    vCo = 14
    a(f"v_lshrrev_b32 v{t0}, 4, v0")
    a(f"v_mul_u32_u24 v{t0}, 3584, v{t0}")
    a(f"v_and_b32 v{t1}, 15, v0")
    a(f"v_lshl_add_u32 v{vCo}, v{t1}, 4, v{t0}")
    a(f"v_lshlrev_b32 v15, 4, v0")
    a("s_waitcnt lgkmcnt(0)")
    a.srd(R_WS, S_WS, WS_BYTES); a.srd(R_A, S_SK, XB); a.srd(R_B, S_WD, WB)
    a.stamp(0)
    CD, CA = 192, 248
    sC = S_A1
    a(f"s_cmp_ge_u32 s{sP}, 28")
    a("s_cbranch_scc1 L_aux_nocs")
    a(f"s_cmp_ge_u32 s{sP}, 14")
    a("s_cbranch_scc1 L_aux_up")
    a.srd(R_E, S_WG, WB)
    a(f"s_mov_b32 s{sC}, s{sP}")
    a("s_branch L_aux_cs")
    a.label("L_aux_up")
    a.srd(R_E, S_WU, WB)
    a(f"s_sub_u32 s{sC}, s{sP}, 14")
    a.label("L_aux_cs")
    a(f"s_mul_i32 s{S_T0}, s{S_WAVE}, {4*3584}")
    a(f"s_lshl_b32 s{S_T1}, s{sC}, 8")
    a(f"s_add_u32 s{S_T0}, s{S_T0}, s{S_T1}")
    for i in range(14):
        a(f"buffer_load_dwordx4 {vr(CD+4*i)}, v{vCo}, s[{R_E}:{R_E+3}], s{S_T0} offen")
        if i < 13: a(f"s_add_u32 s{S_T0}, s{S_T0}, {32*3584}")
    sLo, sHi = S_A2, S_A3
    a(f"s_mov_b32 s{sLo}, 0x00003f80")
    a(f"s_mov_b32 s{sHi}, 0x3f800000")
    for i in range(14):
        a(f"s_waitcnt vmcnt({13 - i})")
        for q in range(4):
            c0 = "0" if i == 0 else f"v{CA+2*q}"; c1 = "0" if i == 0 else f"v{CA+2*q+1}"
            a(f"v_dot2_f32_bf16 v{CA+2*q}, v{CD+4*i+q}, s{sLo}, {c0}")
            a(f"v_dot2_f32_bf16 v{CA+2*q+1}, v{CD+4*i+q}, s{sHi}, {c1}")
    a(f"v_lshrrev_b32 v{t0}, 4, v0")
    a(f"s_lshl_b32 s{S_T0}, s{S_WAVE}, 2")
    a(f"v_add_u32 v{t0}, s{S_T0}, v{t0}")
    a(f"v_lshlrev_b32 v{t0}, 9, v{t0}")
    a(f"v_and_b32 v{t1}, 15, v0")
    a(f"v_lshl_add_u32 v{t0}, v{t1}, 5, v{t0}")
    if CSL: a(f"v_add_u32 v{t0}, {CSL}, v{t0}")
    a(f"ds_write_b128 v{t0}, {vr(CA)}")
    a(f"ds_write_b128 v{t0}, {vr(CA+4)} offset:16")
    a("s_waitcnt lgkmcnt(0)")
    a("s_barrier")
    a(f"s_cmp_lg_u32 s{S_WAVE}, 7")
    a("s_cbranch_scc1 L_aux_touch")
    a(f"v_lshlrev_b32 v{t0}, 2, v0")
    if CSL: a(f"v_add_u32 v{t0}, {CSL}, v{t0}")
    for hh in range(2):
        for i in range(32):
            a(f"ds_read_b32 v{CD-64+32*hh+i}, v{t0} offset:{512*i + 256*hh}")
            if i % 8 == 7: a("s_waitcnt lgkmcnt(7)")
    a.get_nonce_spin(t1, t2)
    a("s_waitcnt lgkmcnt(0)")
    for hh in range(2):
        b = CD - 64 + 32*hh
        for st in (16, 8, 4, 2, 1):
            for i in range(st): a(f"v_add_f32 v{b+i}, v{b+i}, v{b+i+st}")
        a(f"v_mov_b32 v{b+1}, s{S_NONCE}")
    a(f"s_cmp_ge_u32 s{sP}, 14")
    a(f"s_cselect_b32 s{S_T0}, 1792, 0")
    a(f"s_lshl_b32 s{S_T1}, s{sC}, 7")
    a(f"s_add_u32 s{S_T0}, s{S_T0}, s{S_T1}")
    a(f"s_lshl_b32 s{S_T0}, s{S_T0}, 3")
    a(f"s_add_u32 s{S_T0}, s{S_T0}, {CS_OFF}")
    a(f"v_lshlrev_b32 v{t0}, 3, v0")
    a(f"buffer_store_dwordx2 {vr(CD-64, 2)}, v{t0}, s[{R_WS}:{R_WS+3}], s{S_T0} offen sc1")
    a(f"buffer_store_dwordx2 {vr(CD-32, 2)}, v{t0}, s[{R_WS}:{R_WS+3}], s{S_T0} offen offset:512 sc1")
    a("s_branch L_aux_touch")
    a.label("L_aux_nocs")
    a(f"s_cmp_lg_u32 s{sP}, 28")
    a("s_cbranch_scc1 L_aux_touch")
    a(f"s_cmp_lg_u32 s{S_WAVE}, 7")
    a("s_cbranch_scc1 L_aux_touch")
    a(f"v_mov_b32 v{t1}, {EP_OFF}")
    a(f"buffer_load_dword v{t0}, v{t1}, s[{R_WS}:{R_WS+3}], 0 offen sc1")
    a("s_waitcnt vmcnt(0)")
    a(f"v_add_u32 v{t0}, 1, v{t0}")
    a(f"v_max_u32 v{t0}, 1, v{t0}")
    a(f"v_mov_b32 v{t2}, 0")
    a("s_mov_b64 exec, 1")
    a(f"global_store_dword v{t2}, v{t0}, s[{S_DBG}:{S_DBG+1}] sc1")
    a(f"buffer_store_dword v{t0}, v{t1}, s[{R_WS}:{R_WS+3}], 0 offen sc1")
    a("s_mov_b64 exec, -1")
    a.label("L_aux_touch")
    a.stamp(1)
    a(f"s_mul_i32 s{S_T0}, s{sP}, 57344")
    a(f"s_lshl_b32 s{S_T1}, s{S_WAVE}, 10")
    a(f"s_add_u32 s{S_T0}, s{S_T0}, s{S_T1}")
    for i in range(7):
        a(f"buffer_load_dwordx4 {vr(16+4*i)}, v15, s[{R_A}:{R_A+3}], s{S_T0} offen")
        a(f"s_add_u32 s{S_T0}, s{S_T0}, 8192")
    a(f"s_mul_i32 s{S_T0}, s{sP}, 50176")
    a(f"s_add_u32 s{S_T0}, s{S_T0}, s{S_T1}")
    for i in range(7):
        a(f"buffer_load_dwordx4 {vr(48+4*i)}, v15, s[{R_B}:{R_B+3}], s{S_T0} offen")
        a(f"s_add_u32 s{S_T0}, s{S_T0}, 8192")
    a.stamp(2)
    a("s_waitcnt vmcnt(0)")
    a.stamp(3)
    a.stamps_out(4)
    a("s_endpgm")

HEADER = open(os.path.join(os.path.dirname(os.path.abspath(__file__)), "header.txt")).read()

def build(prof=False, spin=1 << 20, stop=None, exp=()):
    a = Gen(prof=prof, spin=spin, stop=stop, exp=exp)
    entry(a)
    h_wave(a)
    c_wave(a)
    aux(a)
    a.label("L_end")
    a("s_endpgm")
    txt = HEADER + f"; @launch grid=(256,1,1) block=(512,1,1) lds={LDS_BYTES}\n"
    txt += f'.amdgcn_target "amdgcn-amd-amdhsa--gfx950"\n.text\n.globl {NAME}\n.p2align 8\n.type {NAME},@function\n{NAME}:\n'
    body = [l for l in a.lines if l is not None]
    txt += "\n".join(("    " + l) if not l.endswith(":") else l for l in body) + "\n"
    txt += (f'.section .rodata,"a"\n.p2align 6\n.amdhsa_kernel {NAME}\n'
            "  .amdhsa_next_free_vgpr 256\n  .amdhsa_next_free_sgpr 102\n  .amdhsa_accum_offset 256\n"
            "  .amdhsa_group_segment_fixed_size 0\n  .amdhsa_kernarg_size 104\n  .amdhsa_user_sgpr_count 2\n"
            "  .amdhsa_user_sgpr_kernarg_segment_ptr 1\n  .amdhsa_system_sgpr_workgroup_id_x 1\n"
            "  .amdhsa_float_denorm_mode_32 3\n"
            ".end_amdhsa_kernel\n")
    return txt

if __name__ == "__main__":
    import argparse
    ap = argparse.ArgumentParser()
    ap.add_argument("-o", default="parallel_sum__ssm_conv_h3__glu_gated_reglu__prompt.s")
    ap.add_argument("--prof", nargs="?", const="rt", default=None)
    ap.add_argument("--spin", type=int, default=1 << 20)
    ap.add_argument("--stop", default=None)
    ap.add_argument("--exp", default="")
    x = ap.parse_args()
    open(x.o, "w").write(build(x.prof, x.spin, x.stop, [e for e in x.exp.split(',') if e]))
    print("wrote", x.o)
```

```python
import sys, os
sys.path.insert(0, os.path.dirname(os.path.abspath(__file__)))
from asmlib import Asm

NAME = "parallel_sum__ssm_conv_h3__glu_gated_reglu__prompt_kernel"
S, D, F = 2048, 448, 1792
XB = S * D * 2
WB = D * F * 2

H_OFF  = 0x000000
UT_OFF = 0x700000
YT_OFF = 0x8C0000
F0_OFF = 0xA80000
F1_OFF = 0xAA0000
F2_OFF = 0xAC0000
EP_OFF = 0xAE0000
SG_OFF = 0xAE8000
XG_OFF = 0xAE0100
CS_OFF = 0xAF0000
PROF_OFF = 0xB00000
WS_BYTES = 0x10000000

XR, GR, UR = 0, 49152, 98304
SLOT = 16384
CV = 122880
KCH = 8320
UB0 = CV + 2 * KCH
UCH = 4608
EXT = 149504
XEXT, WEXT = EXT, EXT + 4096
STATS_L = 161792
NONCE_L = 162816
FAST_L = 162820
STG_L = 162832
CNT_L = 162944
RING = 30720
NSLOT = 15
PROW = 272
LDS_BYTES = 163840
HD = 6

S_X, S_K, S_V, S_SH, S_SK, S_SD, S_WG, S_WU, S_WD, S_OUT, S_DBG, S_WS = 4, 6, 8, 10, 12, 14, 18, 20, 22, 24, 26, 28
S_WAVE, S_NONCE = 30, 31
R_A, R_B, R_C, R_WS, R_E = 32, 36, 40, 44, 48
S_RT, S_FC, S_PAR, S_CT, S_RB, S_M = 52, 53, 54, 55, 56, 57
S_T0, S_T1, S_T2, S_T3 = 58, 59, 60, 61
S_A0, S_A1, S_A2, S_A3, S_A4, S_A5 = 62, 63, 64, 65, 66, 67
S_BND = 68
S_EX = 70
S_ST = 72

class VM:
    def __init__(self, a): self.a, self.q = a, []
    def issue(self, tag): self.q.append(tag)
    def wait(self, tag):
        idx = max(i for i, t in enumerate(self.q) if t == tag)
        n = len(self.q) - 1 - idx
        assert n <= 63, (tag, n)
        self.a(f"s_waitcnt vmcnt({n})")
        self.q = self.q[idx + 1:]
    def has(self, tag): return tag in self.q
    def drain(self):
        self.a("s_waitcnt vmcnt(0)"); self.q = []
    def reset(self): self.q = []

class Gen(Asm):
    def __init__(self, prof=False, spin=1 << 16, stop=None, exp=()):
        super().__init__()
        self.exp = set(exp)
        self.prof, self.spin, self.stop = prof, spin, stop
        self.nst = 0
    def srd(self, dst, base, nbytes):
        self(f"s_mov_b32 s{dst}, s{base}")
        self(f"s_and_b32 s{dst+1}, s{base+1}, 0xffff")
        self(f"s_mov_b32 s{dst+2}, {nbytes}")
        self(f"s_mov_b32 s{dst+3}, 0x20000")
    def stamp(self, i):
        if self.prof:
            self(f"{'s_memtime' if self.prof == 'cyc' else 's_memrealtime'} s[{S_ST+2*i}:{S_ST+2*i+1}]")
            self("s_waitcnt lgkmcnt(0)")
    def stamps_out(self, n):
        if not self.prof: return
        self("s_waitcnt vmcnt(0) lgkmcnt(0)")
        self("s_mov_b64 exec, 1")
        self(f"s_lshl_b32 s{S_T0}, s2, 3")
        self(f"s_add_u32 s{S_T0}, s{S_T0}, s{S_WAVE}")
        self(f"s_lshl_b32 s{S_T0}, s{S_T0}, 6")
        self(f"s_add_u32 s{S_T0}, s{S_T0}, {PROF_OFF}")
        self("v_mov_b32 v1, 0")
        for i in range(n):
            self(f"v_mov_b32 v2, s{S_ST+2*i}")
            self(f"buffer_store_dword v2, v1, s[{R_WS}:{R_WS+3}], s{S_T0} offen offset:{4*i}")
            self("s_nop 0")
        self("s_waitcnt vmcnt(0)")
    def poll(self, vaddr, vtmp, nlanes, sleep=1):
        L, Dn = self.uid("L_poll"), self.uid("L_polled")
        if nlanes < 64: self(f"s_mov_b64 exec, {hex((1 << nlanes) - 1)}")
        self(f"s_mov_b32 s{S_BND}, {self.spin}")
        self.label(L)
        self(f"buffer_load_dword v{vtmp}, v{vaddr}, s[{R_WS}:{R_WS+3}], 0 offen sc1")
        self("s_waitcnt vmcnt(0)")
        self(f"v_cmp_ne_u32 vcc, s{S_NONCE}, v{vtmp}")
        self("s_nop 1")
        self(f"s_cbranch_vccz {Dn}")
        self(f"s_sleep {sleep}")
        self(f"s_sub_u32 s{S_BND}, s{S_BND}, 1")
        self(f"s_cmp_lg_u32 s{S_BND}, 0")
        self(f"s_cbranch_scc1 {L}")
        self.label(Dn)
        if nlanes < 64: self("s_mov_b64 exec, -1")
    def signal(self, soff_reg, vtmp, vzero):
        self(f"v_mov_b32 v{vtmp}, s{S_NONCE}")
        self(f"v_mov_b32 v{vzero}, 0")
        self("s_mov_b64 exec, 1")
        self(f"buffer_store_dword v{vtmp}, v{vzero}, s[{R_WS}:{R_WS+3}], s{soff_reg} offen sc1")
        self("s_mov_b64 exec, -1")
    def nonce_from(self, vtmp):
        self(f"v_readfirstlane_b32 s{S_NONCE}, v{vtmp}")
        self("s_nop 3")
        self(f"s_add_u32 s{S_NONCE}, s{S_NONCE}, 1")

def vr(b, n=4): return f"v[{b}:{b+n-1}]"

def entry(a):
    a("s_load_dwordx16 s[4:19], s[0:1], 0")
    a("s_load_dwordx8 s[20:27], s[0:1], 64")
    a("s_load_dwordx2 s[28:29], s[0:1], 96")
    a("s_cmp_ge_u32 s2, 256")
    a("s_cbranch_scc1 L_end")
    a("v_lshrrev_b32 v1, 6, v0")
    a("v_and_b32 v0, 63, v0")
    a(f"v_readfirstlane_b32 s{S_WAVE}, v1")
    if "span" in a.exp:
        a("s_memrealtime s[88:89]")
        a(f"s_cmp_lg_u32 s{S_WAVE}, 3")
        a("s_cbranch_scc1 L_nospan")
        a("s_waitcnt lgkmcnt(0)")
        a("s_not_b32 s88, s88")
        a("v_mov_b32 v2, s88"); a("v_mov_b32 v3, 8")
        a("s_mov_b64 exec, 1")
        a(f"global_atomic_umax v3, v2, s[{S_DBG}:{S_DBG+1}]")
        a("s_mov_b64 exec, -1")
        a.label("L_nospan")
    a("s_cmp_lt_u32 s2, 32")
    a("s_cbranch_scc1 L_prep")
    a(f"s_sub_u32 s{S_M}, s2, 32")
    a(f"s_and_b32 s{S_T0}, s{S_M}, 7")
    a(f"s_lshr_b32 s{S_T1}, s{S_M}, 3")
    if "map2x14" not in a.exp:
        a(f"s_mul_i32 s{S_T2}, s{S_T1}, 37")
        a(f"s_lshr_b32 s{S_T2}, s{S_T2}, 8")
        a(f"s_mul_i32 s{S_T3}, s{S_T2}, 7")
        a(f"s_sub_u32 s{S_CT}, s{S_T1}, s{S_T3}")
        a(f"s_and_b32 s{S_PAR}, s{S_T0}, 1")
        a(f"s_lshr_b32 s{S_T0}, s{S_T0}, 1")
        a(f"s_lshl_b32 s{S_T0}, s{S_T0}, 2")
        a(f"s_add_u32 s{S_RT}, s{S_T0}, s{S_T2}")
        a(f"s_mul_i32 s{S_T0}, s{S_PAR}, 7")
        a(f"s_add_u32 s{S_FC}, s{S_T0}, s{S_CT}")
    else:
        a(f"s_mul_i32 s{S_T2}, s{S_T1}, 37")
        a(f"s_lshr_b32 s{S_T2}, s{S_T2}, 9")
        a(f"s_mul_i32 s{S_T3}, s{S_T2}, 14")
        a(f"s_sub_u32 s{S_FC}, s{S_T1}, s{S_T3}")
        a(f"s_lshl_b32 s{S_T0}, s{S_T0}, 1")
        a(f"s_add_u32 s{S_RT}, s{S_T0}, s{S_T2}")
        a(f"s_cmp_ge_u32 s{S_FC}, 7")
        a(f"s_cselect_b32 s{S_PAR}, 1, 0")
        a(f"s_mul_i32 s{S_T0}, s{S_PAR}, 7")
        a(f"s_sub_u32 s{S_CT}, s{S_FC}, s{S_T0}")
    a(f"s_lshl_b32 s{S_RB}, s{S_RT}, 1")
    a(f"s_add_u32 s{S_RB}, s{S_RB}, s{S_PAR}")
    a(f"s_cmp_lt_u32 s{S_WAVE}, 4")
    a("s_cbranch_scc1 L_cwave")

def w_tr_lane_consts(a, vbase, vt1, t0, t1):
    a(f"v_bfe_u32 v{t0}, v0, 2, 2")
    a(f"v_bfe_u32 v{t1}, v0, 1, 1")
    a(f"v_lshlrev_b32 v{vt1}, 1, v{t0}")
    a(f"v_xor_b32 v{vt1}, v{vt1}, v{t1}")
    a(f"v_bfe_u32 v{t1}, v0, 4, 1")
    a(f"v_lshlrev_b32 v{vbase}, 3, v{t1}")
    a(f"v_xor_b32 v{vt1}, v{vt1}, v{vbase}")
    a(f"v_mul_u32_u24 v{vbase}, {UR-GR}, v{t1}")
    a(f"v_lshrrev_b32 v{t1}, 5, v0")
    a(f"v_lshl_add_u32 v{t0}, v{t1}, 3, v{t0}")
    a(f"v_lshl_add_u32 v{vbase}, v{t0}, 8, v{vbase}")
    a(f"v_and_b32 v{t0}, 1, v0")
    a(f"v_lshl_add_u32 v{vbase}, v{t0}, 3, v{vbase}")
    a(f"v_add_u32 v{vbase}, {GR}, v{vbase}")

def x_frag_addrs(a, vdst, srowbase, t0, t1, t2):
    a(f"v_and_b32 v{t0}, 31, v0")
    a(f"v_bfe_u32 v{t1}, v0, 1, 3")
    a(f"v_add_u32 v{t0}, s{srowbase}, v{t0}")
    a(f"v_lshlrev_b32 v{t0}, 7, v{t0}")
    a(f"v_lshrrev_b32 v{t2}, 5, v0")
    a(f"v_xor_b32 v{t1}, v{t1}, v{t2}")
    for ks in range(4):
        a(f"v_xor_b32 v{t2}, {2*ks}, v{t1}")
        a(f"v_lshl_add_u32 v{vdst+ks}, v{t2}, 4, v{t0}")

def nonce_check(a, vnon, t0):
    a.nonce_from(vnon)

def h_wave(a):
    vnon, vF0a, vF0d = 16, 22, 23
    vKA_, vKB_ = 32, 48
    t0, t1, t2, t3 = 64, 65, 66, 67
    w = S_A0
    sCH, sRH = 100, 101
    a(f"s_sub_u32 s{w}, s{S_WAVE}, 4")
    a(f"s_cmp_ge_u32 s{w}, 2")
    a("s_cbranch_scc1 L_side")
    def common_setup():
        a.srd(R_WS, S_WS, WS_BYTES); a.srd(R_E, S_SK, XB)
        a(f"s_lshr_b32 s{S_T1}, s{w}, 1")
        a(f"s_lshl_b32 s{sCH}, s{S_M}, 1")
        a(f"s_add_u32 s{sCH}, s{sCH}, s{S_T1}")
        a(f"s_and_b32 s{sRH}, s{w}, 1")
        a(f"s_lshr_b32 s{S_T1}, s{sCH}, 4")
        a(f"s_lshl_b32 s{S_T1}, s{S_T1}, 7")
        a(f"s_add_u32 s{S_T1}, s{S_T1}, {F0_OFF}")
        a(f"v_and_b32 v{t0}, 31, v0")
        a(f"v_lshlrev_b32 v{t0}, 2, v{t0}")
        a(f"v_add_u32 v{vF0a}, s{S_T1}, v{t0}")
    def nonce_load(vm):
        a(f"v_mov_b32 v{t0}, {EP_OFF}")
        a(f"buffer_load_dword v{vnon}, v{t0}, s[{R_WS}:{R_WS+3}], 0 offen sc1"); vm.issue("non")
    def k_loads(vm):
        a(f"s_lshl_b32 s{S_T1}, s{sCH}, 12")
        a(f"v_lshlrev_b32 v{t0}, 4, v0")
        a(f"v_add_u32 v{t1}, 4, v{t0}")
        for i in range(4):
            a(f"buffer_load_dwordx4 {vr(vKA_+4*i)}, v{t0}, s[{R_E}:{R_E+3}], s{S_T1} offen offset:{1024*i}"); vm.issue("K")
            a(f"buffer_load_dwordx4 {vr(vKB_+4*i)}, v{t1}, s[{R_E}:{R_E+3}], s{S_T1} offen offset:{1024*i}"); vm.issue("K")
    def f0_load(vm):
        a(f"buffer_load_dword v{vF0d}, v{vF0a}, s[{R_WS}:{R_WS+3}], 0 offen sc1"); vm.issue("f0")

    vm = VM(a)
    if "noprio" not in a.exp: a("s_setprio 2")
    vXe, vXo, vG, vU = 4, 5, 6, 7
    a(f"v_lshrrev_b32 v{t0}, 3, v0")
    a(f"v_mul_u32_u24 v{t0}, 896, v{t0}")
    a(f"v_lshrrev_b32 v{t1}, 4, v0")
    a(f"v_and_b32 v{t2}, 7, v0")
    a(f"v_xor_b32 v{t2}, v{t2}, v{t1}")
    a(f"v_lshl_add_u32 v{vXe}, v{t2}, 4, v{t0}")
    a(f"v_xor_b32 v{t2}, 4, v{t2}")
    a(f"v_lshl_add_u32 v{vXo}, v{t2}, 4, v{t0}")
    a(f"v_mul_u32_u24 v{t0}, 3584, v{t1}")
    a(f"v_and_b32 v{t2}, 15, v0")
    a(f"v_lshlrev_b32 v{t3}, 1, v{t1}")
    a(f"v_xor_b32 v{t2}, v{t2}, v{t3}")
    a(f"v_lshl_add_u32 v{vG}, v{t2}, 4, v{t0}")
    a(f"v_xor_b32 v{t2}, 8, v{t2}")
    a(f"v_lshl_add_u32 v{vU}, v{t2}, 4, v{t0}")
    sXs, sXd, sWs, sGd, sUd = S_A1, S_A2, S_A3, S_A4, S_A5
    a(f"s_lshl_b32 s{S_T0}, s{S_RT}, 7")
    a(f"s_lshl_b32 s{S_T1}, s{w}, 6")
    a(f"s_add_u32 s{S_T0}, s{S_T0}, s{S_T1}")
    a(f"s_mul_i32 s{sXs}, s{S_T0}, 896")
    a(f"s_lshl_b32 s{sXd}, s{w}, 13")
    a(f"s_mul_i32 s{S_T0}, s{w}, {32*3584}")
    a(f"s_lshl_b32 s{S_T1}, s{S_FC}, 8")
    a(f"s_add_u32 s{sWs}, s{S_T0}, s{S_T1}")
    a(f"s_add_u32 s{sGd}, s{sXd}, {GR}")
    a(f"s_add_u32 s{sUd}, s{sXd}, {UR}")
    a("s_waitcnt lgkmcnt(0)")
    a.srd(R_A, S_X, XB); a.srd(R_B, S_WG, WB); a.srd(R_C, S_WU, WB)
    def issue_stage(st, lo=0, hi=8):
        slot = st % 3
        for i in range(lo, hi):
            for (dst, voff, srd, src, step, base) in ((sXd, vXe if i % 2 == 0 else vXo, R_A, sXs, 8*896, st*128),
                                                      (sGd, vG, R_B, sWs, 4*3584, 64*st*3584), (sUd, vU, R_C, sWs, 4*3584, 64*st*3584)):
                a(f"s_add_u32 m0, s{dst}, {slot*SLOT + i*1024}")
                a(f"s_add_u32 s{S_T0}, s{src}, {base + i*step}")
                a(f"buffer_load_dwordx4 v{voff}, s[{srd}:{srd+3}], s{S_T0} offen lds")
                vm.issue(("st", st))
    issue_stage(0); issue_stage(1, 0, 5)
    a.stamp(0)
    common_setup()
    for st in range(7):
        vm.wait(("st", st))
        if a.stop == "p1": a.stamp(3 + st)
        a("s_barrier")
        if st == 0: issue_stage(1, 5, 8)
        if st == 1: nonce_load(vm)
        if st == 3:
            assert not vm.has("non")
            nonce_check(a, vnon, t0)
        if st <= 4: issue_stage(st + 2)
        if st == 5: k_loads(vm)
        if st == 6: f0_load(vm); vm.wait("K")
    a("s_branch L_htail")

    a.label("L_side")
    if "noprio" not in a.exp: a("s_setprio 2")
    vm = VM(a)
    vCA, vSA, vUo, vCS, vST = 4, 8, 10, 72, 80
    vh, vl, e0 = 68, 69, 88
    sW = S_A1
    a(f"s_sub_u32 s{sW}, s{w}, 2")
    sTB, sCG = S_A2, S_A3
    a(f"s_mul_i32 s{sTB}, s{S_M}, 9363")
    a(f"s_lshr_b32 s{sTB}, s{sTB}, 16")
    a(f"s_mul_i32 s{S_T1}, s{sTB}, 7")
    a(f"s_sub_u32 s{sCG}, s{S_M}, s{S_T1}")
    KR, VR, WR, KF, WF, AC = 100, 128, 144, 160, 174, 182
    vKo, vKv, vKw, vT = 186, 189, 190, 191
    a(f"s_lshl_b32 s{S_T0}, s{sTB}, 6")
    a(f"s_lshl_b32 s{S_T1}, s{sW}, 5")
    a(f"s_add_u32 s{S_T0}, s{S_T0}, s{S_T1}")
    a(f"v_lshrrev_b32 v{t0}, 3, v0")
    a(f"v_lshl_add_u32 v{t1}, v{t0}, 2, s{S_T0}")
    a(f"v_and_b32 v{t2}, 7, v0")
    a(f"s_lshl_b32 s{S_T1}, s{sCG}, 7")
    a(f"v_lshl_add_u32 v{t3}, v{t2}, 4, s{S_T1}")
    a(f"v_mov_b32 v{vT}, 896")
    a(f"v_mad_u32_u24 v{vKv}, v{t1}, v{vT}, v{t3}")
    for i in range(3):
        a(f"v_cmp_gt_u32 vcc, {3-i}, v{t1}")
        a(f"v_subrev_u32 v{vKo+i}, {(3-i)*896}, v{vKv}")
        a(f"v_mov_b32 v{vT}, 0x40000000")
        a(f"v_cndmask_b32 v{vKo+i}, v{vKo+i}, v{vT}, vcc")
    a(f"s_lshl_b32 s{S_T1}, s{sCG}, 9")
    a(f"v_lshl_add_u32 v{vKw}, v{t2}, 6, s{S_T1}")
    a(f"v_lshrrev_b32 v{t1}, 1, v{t0}")
    a(f"s_lshl_b32 s{S_T1}, s{sW}, 2")
    a(f"v_add_u32 v{t1}, s{S_T1}, v{t1}")
    a(f"v_xor_b32 v{t1}, v{t1}, v{t2}")
    a(f"v_lshlrev_b32 v{t1}, 4, v{t1}")
    a(f"v_lshl_add_u32 v{t1}, v{t2}, 10, v{t1}")
    a(f"v_and_b32 v{t0}, 1, v{t0}")
    a(f"v_sub_u32 v{t0}, 1, v{t0}")
    a(f"v_lshl_add_u32 v{t1}, v{t0}, 3, v{t1}")
    a(f"v_add_u32 v{vT}, {EXT}, v{t1}")
    a("s_waitcnt lgkmcnt(0)")
    a.srd(R_A, S_X, XB); a.srd(R_B, S_K, XB); a.srd(R_C, S_V, XB); a.srd(92, S_SH, D*4*2)
    def kv_loads():
        for i in range(3):
            a(f"buffer_load_dwordx4 {vr(KR+4*i)}, v{vKo+i}, s[{R_B}:{R_B+3}], 0 offen"); vm.issue("kvl")
        for i in range(4):
            a(f"buffer_load_dwordx4 {vr(KR+12+4*i)}, v{vKv}, s[{R_B}:{R_B+3}], 0 offen offset:{896*i}"); vm.issue("kvl")
        for i in range(4):
            a(f"buffer_load_dwordx4 {vr(VR+4*i)}, v{vKv}, s[{R_C}:{R_C+3}], 0 offen offset:{896*i}"); vm.issue("kvl")
        for i in range(4):
            a(f"buffer_load_dwordx4 {vr(WR+4*i)}, v{vKw}, s[92:95], 0 offen offset:{16*i}"); vm.issue("kvl")
    a.stamp(0)
    common_setup()
    a(f"v_mov_b32 v{t0}, {CNT_L}")
    for r in range(4): a(f"v_mov_b32 v{e0+r}, 0")
    a(f"ds_write_b128 v{t0}, {vr(e0)}")
    a(f"v_bfe_u32 v{t0}, v0, 4, 1")
    a(f"v_mul_u32_u24 v{t0}, 1792, v{t0}")
    a(f"v_and_b32 v{t1}, 15, v0")
    a(f"v_add_u32 v{t0}, v{t0}, v{t1}")
    a(f"s_lshl_b32 s{S_T1}, s{S_FC}, 7")
    a(f"s_lshl_b32 s{S_T2}, s{sW}, 6")
    a(f"s_add_u32 s{S_T1}, s{S_T1}, s{S_T2}")
    a(f"v_add_u32 v{t0}, s{S_T1}, v{t0}")
    a(f"v_lshlrev_b32 v{t0}, 3, v{t0}")
    a(f"v_add_u32 v{vCA}, {CS_OFF}, v{t0}")
    a(f"s_lshl_b32 s{S_T1}, s{S_RT}, 7")
    a(f"s_add_u32 s{S_T1}, s{S_T1}, s{S_T2}")
    a(f"v_and_b32 v{t0}, 31, v0")
    a(f"v_add_u32 v{t0}, s{S_T1}, v{t0}")
    a(f"v_lshlrev_b32 v{t0}, 4, v{t0}")
    a(f"v_add_u32 v{vSA}, {SG_OFF}, v{t0}")
    vF0w = 9
    a(f"s_lshl_b32 s{S_T1}, s{sCG}, 2")
    a(f"s_lshl_b32 s{S_T2}, s{sW}, 1")
    a(f"s_add_u32 s{S_T1}, s{S_T1}, s{S_T2}")
    a(f"v_add_u32 v{t0}, s{S_T1}, v0")
    a(f"v_lshlrev_b32 v{t0}, 5, v{t0}")
    a(f"v_add_u32 v{t0}, s{sTB}, v{t0}")
    a(f"v_lshlrev_b32 v{t0}, 2, v{t0}")
    a(f"v_add_u32 v{vF0w}, {F0_OFF}, v{t0}")
    a(f"s_lshl_b32 s{S_T1}, s{sCG}, 6")
    a(f"s_lshl_b32 s{S_T0}, s{sW}, 5")
    a(f"s_add_u32 s{S_T1}, s{S_T1}, s{S_T0}")
    a(f"v_lshrrev_b32 v{t0}, 3, v0")
    a(f"v_add_u32 v{t0}, s{S_T1}, v{t0}")
    a(f"v_lshlrev_b32 v{t0}, 12, v{t0}")
    a(f"s_lshl_b32 s{S_T1}, s{sTB}, 7")
    a(f"s_add_u32 s{S_T1}, s{S_T1}, {UT_OFF}")
    a(f"v_add_u32 v{t0}, s{S_T1}, v{t0}")
    a(f"v_and_b32 v{t1}, 7, v0")
    a(f"s_lshl_b32 s{S_T1}, s{sW}, 2")
    a(f"v_xor_b32 v{t1}, s{S_T1}, v{t1}")
    for i in range(4):
        a(f"v_xor_b32 v{t2}, {i}, v{t1}")
        a(f"v_lshl_add_u32 v{vUo+i}, v{t2}, 4, v{t0}")
        if i: a(f"v_add_u32 v{vUo+i}, {8*4096*i}, v{vUo+i}")
    def kv_valu(j):
        for c in range(2):
            ch = 2*j + c
            a(f"v_lshlrev_b32 v{WF+4*c}, 16, v{WR+2*ch}"); a(f"v_and_b32 v{WF+4*c+1}, 0xffff0000, v{WR+2*ch}")
            a(f"v_lshlrev_b32 v{WF+4*c+2}, 16, v{WR+2*ch+1}"); a(f"v_and_b32 v{WF+4*c+3}, 0xffff0000, v{WR+2*ch+1}")
        for i in range(7):
            a(f"v_lshlrev_b32 v{KF+i}, 16, v{KR+4*i+j}"); a(f"v_and_b32 v{KF+7+i}, 0xffff0000, v{KR+4*i+j}")
        for c in range(2):
            kf, wf = KF + 7*c, WF + 4*c
            for t in range(4): a(f"v_mul_f32 v{AC+t}, v{wf}, v{kf+3+t}")
            for tap in range(1, 4):
                for t in range(4): a(f"v_fmac_f32 v{AC+t}, v{wf+tap}, v{kf+3+t-tap}")
            for t in range(4):
                a(f"v_and_b32 v{kf+t}, 0xffff0000, v{VR+4*t+j}" if c else f"v_lshlrev_b32 v{kf+t}, 16, v{VR+4*t+j}")
            for t in range(4): a(f"v_mul_f32 v{AC+t}, v{AC+t}, v{kf+t}")
            o = 70
            a(f"v_cvt_pk_bf16_f32 v{o}, v{AC+3}, v{AC+2}")
            a(f"v_cvt_pk_bf16_f32 v{o+1}, v{AC+1}, v{AC}")
            a(f"ds_write_b64 v{vT}, {vr(o, 2)} offset:{128*(2*j+c)}")
    def cs_load():
        for e in range(4):
            a(f"buffer_load_dwordx2 {vr(vCS+2*e, 2)}, v{vCA}, s[{R_WS}:{R_WS+3}], 0 offen offset:{128*e} sc1"); vm.issue("cs")
    def sg_load():
        for e in range(2):
            a(f"buffer_load_dwordx4 {vr(vST+4*e)}, v{vSA}, s[{R_WS}:{R_WS+3}], 0 offen offset:{512*e} sc1"); vm.issue("sg")
    vXG, vXA = 96, 14
    a(f"s_and_b32 s{S_T0}, s{S_M}, 7")
    a(f"s_mul_i32 s{S_T0}, s{S_T0}, {28*8}")
    a(f"s_add_u32 s{S_T0}, s{S_T0}, {XG_OFF}")
    a(f"v_min_u32 v{t0}, 27, v0")
    a(f"v_lshl_add_u32 v{vXA}, v{t0}, 3, s{S_T0}")
    def xg_load():
        a(f"buffer_load_dwordx2 {vr(vXG, 2)}, v{vXA}, s[{R_WS}:{R_WS+3}], 0 offen sc1"); vm.issue("sg")
    def tag_check(regs, reload):
        L, Dn = a.uid("L_tag"), a.uid("L_tagd")
        a(f"s_mov_b32 s{S_BND}, {a.spin}")
        a.label(L)
        a(f"v_cmp_ne_u32 vcc, s{S_NONCE}, v{regs[0]}")
        for r in regs[1:]:
            a(f"v_cmp_ne_u32 s[{S_EX}:{S_EX+1}], s{S_NONCE}, v{r}")
            a("s_nop 1")
            a(f"s_or_b64 vcc, vcc, s[{S_EX}:{S_EX+1}]")
        a(f"s_cbranch_vccz {Dn}")
        keep = list(vm.q); reload()
        a("s_waitcnt vmcnt(0)")
        vm.q = keep
        a(f"s_sub_u32 s{S_BND}, s{S_BND}, 1")
        a(f"s_cmp_lg_u32 s{S_BND}, 0")
        a(f"s_cbranch_scc1 {L}")
        a.label(Dn)
    def split(vsrc, neg):
        sg = "-" if neg else ""
        a(f"v_cvt_pk_bf16_f32 v{vh}, {sg}v{vsrc}, {sg}v{vsrc}")
        a(f"v_and_b32 v{t2}, 0xffff0000, v{vh}")
        a(f"v_sub_f32_e64 v{t2}, {sg}v{vsrc}, v{t2}")
        a(f"v_cvt_pk_bf16_f32 v{vl}, v{t2}, v{t2}")
    for st in range(7):
        if a.stop == "p1": a.stamp(3 + st)
        a("s_barrier")
        if st == 0:
            nonce_load(vm)
        if st == 1:
            kv_loads()
        if st == 2:
            vm.wait("kvl"); kv_valu(0); kv_valu(1)
        if st == 3:
            nonce_check(a, vnon, t0)
            a(f"v_mov_b32 v{t0}, s{S_NONCE}")
            a(f"v_mov_b32 v{t1}, {NONCE_L}")
            a(f"ds_write_b32 v{t1}, v{t0}")
            Lns = a.uid("L_nosg")
            a(f"s_cmp_lg_u32 s{sW}, 0")
            a(f"s_cbranch_scc1 {Lns}")
            a(f"v_lshlrev_b32 v{t0}, 3, v0")
            a(f"v_add_u32 v{t0}, {STG_L}, v{t0}")
            a(f"ds_read_b64 {vr(t2, 2)}, v{t0}")
            a(f"v_and_b32 v{t0}, 3, v0")
            a(f"v_lshrrev_b32 v{t1}, 2, v0")
            a(f"v_mul_u32_u24 v{t1}, 56, v{t1}")
            a(f"v_add_u32 v{t0}, v{t0}, v{t1}")
            a(f"s_lshl_b32 s{S_T1}, s{S_FC}, 2")
            a(f"v_add_u32 v{t0}, s{S_T1}, v{t0}")
            a(f"v_cmp_gt_u32 vcc, 128, v{t0}")
            a(f"s_lshl_b32 s{S_T1}, s{S_RT}, 7")
            a(f"v_add_u32 v{t0}, s{S_T1}, v{t0}")
            a(f"v_lshlrev_b32 v{t0}, 4, v{t0}")
            a(f"v_add_u32 v{t0}, {SG_OFF}, v{t0}")
            a("s_and_b64 vcc, vcc, 0xfff")
            a("s_waitcnt lgkmcnt(0)")
            a(f"v_mov_b32 v{vST}, v{t2}")
            a(f"v_mov_b32 v{vST+1}, s{S_NONCE}")
            a(f"v_mov_b32 v{vST+2}, v{t3}")
            a(f"v_mov_b32 v{vST+3}, s{S_NONCE}")
            a("s_mov_b64 exec, vcc")
            a(f"buffer_store_dwordx4 {vr(vST)}, v{t0}, s[{R_WS}:{R_WS+3}], 0 offen sc1")
            if "fast" in a.exp:
                a(f"s_getreg_b32 s{S_T2}, hwreg(HW_REG_XCC_ID, 0, 4)")
                a(f"s_and_b32 s{S_T0}, s{S_M}, 7")
                a(f"s_mul_i32 s{S_T0}, s{S_T0}, 28")
                a(f"s_lshr_b32 s{S_T1}, s{S_M}, 3")
                a(f"s_add_u32 s{S_T0}, s{S_T0}, s{S_T1}")
                a(f"s_lshl_b32 s{S_T0}, s{S_T0}, 3")
                a(f"s_add_u32 s{S_T0}, s{S_T0}, {XG_OFF}")
                a("s_mov_b64 exec, 1")
                a(f"v_mov_b32 v{t2}, s{S_T2}")
                a(f"v_mov_b32 v{t3}, s{S_NONCE}")
                a(f"v_mov_b32 v{t0}, 0")
                a(f"buffer_store_dwordx2 {vr(t2, 2)}, v{t0}, s[{R_WS}:{R_WS+3}], s{S_T0} offen sc1")
                a("s_mov_b64 exec, -1")
            a("s_mov_b64 exec, -1")
            a.label(Lns)
            cs_load()
            kv_valu(2); kv_valu(3); a("s_waitcnt lgkmcnt(0)")
        if st == 4:
            a(f"s_lshl_b32 s{S_T1}, s{sW}, 12")
            a(f"s_add_u32 s{S_T1}, s{S_T1}, {EXT}")
            a(f"v_lshlrev_b32 v{t0}, 4, v0")
            a(f"v_add_u32 v{t0}, s{S_T1}, v{t0}")
            for i in range(4): a(f"ds_read_b128 {vr(100+4*i)}, v{t0} offset:{1024*i}")
            for i in range(4):
                a(f"s_waitcnt lgkmcnt({3-i})")
                a(f"buffer_store_dwordx4 {vr(100+4*i)}, v{vUo+i}, s[{R_WS}:{R_WS+3}], 0 offen sc1"); vm.issue("ut")
        if st == 5:
            vm.wait("cs")
            sg_load()
            if "fast" in a.exp: xg_load()
            k_loads(vm)
            tag_check([vCS + 1, vCS + 3, vCS + 5, vCS + 7], cs_load)
            a("v_cmp_gt_u32 vcc, 32, v0")
            a(f"v_lshlrev_b32 v{t3}, 4, v0")
            a(f"s_lshl_b32 s{S_T1}, s{sW}, 12")
            a(f"s_add_u32 s{S_T1}, s{S_T1}, {WEXT}")
            a(f"v_add_u32 v{t1}, s{S_T1}, v{t3}")
            for e in range(4):
                f0 = e0 + 4*(e & 1)
                split(vCS + 2*e, False)
                a(f"v_and_b32 v{t2}, 0xffff, v{vl}")
                a(f"v_cndmask_b32 v{f0}, 0, v{vh}, vcc")
                a(f"v_cndmask_b32 v{f0+1}, 0, v{t2}, vcc")
                a(f"v_mov_b32 v{f0+2}, 0")
                a(f"v_mov_b32 v{f0+3}, 0")
                a(f"ds_write_b128 v{t1}, {vr(f0)} offset:{1024*e}")
            vm.wait("ut")
            a(f"v_mov_b32 v{t0}, s{S_NONCE}")
            a("s_mov_b64 exec, 3")
            a(f"buffer_store_dword v{t0}, v{vF0w}, s[{R_WS}:{R_WS+3}], 0 offen sc1"); vm.issue("sig")
            a("s_mov_b64 exec, -1")
        if st == 6:
            f0_load(vm)
            vm.wait("K")
            if "fast" in a.exp:
                tag_check([vST + 1, vST + 3, vST + 5, vST + 7, vXG + 1], lambda: (sg_load(), xg_load()))
                a(f"s_getreg_b32 s{S_T2}, hwreg(HW_REG_XCC_ID, 0, 4)")
                a(f"v_cmp_ne_u32 vcc, s{S_T2}, v{vXG}")
                a("s_nop 1")
                a("s_cmp_eq_u64 vcc, 0")
                a(f"s_cselect_b32 s{S_T2}, 1, 0")
                a(f"v_mov_b32 v{t1}, s{S_T2}")
            else:
                tag_check([vST + 1, vST + 3, vST + 5, vST + 7], sg_load)
                a(f"v_mov_b32 v{t1}, 0")
            a(f"v_mov_b32 v{t2}, {FAST_L}")
            a(f"ds_write_b32 v{t2}, v{t1}")
            a("v_cmp_gt_u32 vcc, 32, v0")
            a(f"v_and_b32 v{t1}, 31, v0")
            a(f"s_lshl_b32 s{S_T1}, s{sW}, 9")
            a(f"v_lshl_add_u32 v{t1}, v{t1}, 3, s{S_T1}")
            a(f"v_add_u32 v98, {STATS_L}, v{t1}")
            a(f"v_lshlrev_b32 v{t3}, 4, v0")
            a(f"s_lshl_b32 s{S_T1}, s{sW}, 11")
            a(f"s_add_u32 s{S_T1}, s{S_T1}, {XEXT}")
            a(f"v_add_u32 v99, s{S_T1}, v{t3}")
            for e in range(2):
                g = vST + 4*e
                a(f"v_mov_b32 v{g+1}, v{g+2}")
                a(f"ds_write_b64 v98, {vr(g, 2)} offset:{256*e}")
                split(g, True)
                f0 = e0 + 4*e
                a(f"v_and_b32 v{t2}, 0xffff, v{vh}")
                a(f"v_lshlrev_b32 v{t1}, 16, v{vl}")
                a(f"v_or_b32 v{t1}, v{t1}, v{t2}")
                a(f"v_cndmask_b32 v{f0}, 0, v{t1}, vcc")
                a(f"v_cndmask_b32 v{f0+1}, 0, v{t2}, vcc")
                a(f"v_mov_b32 v{f0+2}, 0")
                a(f"v_mov_b32 v{f0+3}, 0")
                a(f"ds_write_b128 v99, {vr(f0)} offset:{1024*e}")
    a.label("L_htail")
    a.stamp(1)
    e0 = 88
    sUB, sKC, sUok = S_A2, S_A1, S_A3
    a(f"s_lshr_b32 s{S_T0}, s{w}, 1")
    a(f"s_mul_i32 s{sUB}, s{S_T0}, {UCH}")
    a(f"s_add_u32 s{sUB}, s{sUB}, {UB0}")
    a(f"s_mul_i32 s{sKC}, s{S_T0}, {KCH}")
    a(f"s_add_u32 s{sKC}, s{sKC}, {CV}")
    def u_dma():
        a(f"s_lshl_b32 s{S_T1}, s{sCH}, 12")
        a(f"s_add_u32 s{S_T1}, s{S_T1}, {UT_OFF}")
        a(f"v_lshlrev_b32 v{t0}, 4, v0")
        for i in range(4):
            a(f"s_add_u32 m0, s{sUB}, {512 + 1024*i}")
            a(f"s_add_u32 s{S_T2}, s{S_T1}, {1024*i}")
            a(f"buffer_load_dwordx4 v{t0}, s[{R_WS}:{R_WS+3}], s{S_T2} offen sc1 lds")
    a(f"v_lshlrev_b32 v{t3}, 4, v0")
    a(f"v_add_u32 v{t1}, s{sKC}, v{t3}")
    Lc1, Lcd = a.uid("L_copy1"), a.uid("L_copyd")
    a(f"s_cmp_eq_u32 s{sRH}, 1")
    a(f"s_cbranch_scc1 {Lc1}")
    for i in range(4):
        a(f"ds_write_b128 v{t1}, {vr(vKA_+4*i)} offset:{32 + 1024*i}")
    a(f"v_mov_b32 v{e0}, 0")
    a(f"v_mov_b32 v{e0+1}, 0")
    a(f"v_lshlrev_b32 v{t1}, 3, v0")
    a(f"v_add_u32 v{t2}, s{sUB}, v{t1}")
    a(f"ds_write_b64 v{t2}, {vr(e0, 2)}")
    a(f"v_add_u32 v{t2}, s{sKC}, v{t1}")
    a("s_mov_b64 exec, 0xf")
    a(f"ds_write_b64 v{t2}, {vr(e0, 2)}")
    a("s_mov_b64 exec, -1")
    a(f"s_branch {Lcd}")
    a.label(Lc1)
    a(f"v_lshlrev_b32 v{t2}, 16, v{vKA_}")
    for i in range(4):
        for j in range(4):
            a(f"v_alignbit_b32 v{vKB_+4*i+j}, v{vKB_+4*i+j}, v{vKA_+4*i+j}, 16")
    for i in range(4):
        a(f"ds_write_b128 v{t1}, {vr(vKB_+4*i)} offset:{4160 + 32 + 1024*i}")
    a(f"v_readfirstlane_b32 s{S_T1}, v{t2}")
    a(f"v_lshlrev_b32 v{t1}, 2, v0")
    a(f"v_add_u32 v{t1}, s{sKC}, v{t1}")
    a("v_cmp_eq_u32 vcc, 7, v0")
    a(f"v_mov_b32 v{t2}, s{S_T1}")
    a("s_nop 0")
    a(f"v_cndmask_b32 v{t2}, 0, v{t2}, vcc")
    a("s_mov_b64 exec, 0xff")
    a(f"ds_write_b32 v{t1}, v{t2} offset:4160")
    a("s_mov_b64 exec, -1")
    a.label(Lcd)
    a("s_waitcnt vmcnt(0)")
    a(f"v_cmp_ne_u32 vcc, s{S_NONCE}, v{vF0d}")
    a(f"s_mov_b32 s{sUok}, 0")
    a("s_nop 0")
    Lnu = a.uid("L_nou")
    a(f"s_cbranch_vccnz {Lnu}")
    a(f"s_mov_b32 s{sUok}, 1")
    u_dma()
    a.label(Lnu)
    a("s_waitcnt lgkmcnt(0)")
    a("s_barrier")
    a.stamp(2)
    if a.stop == "p1":
        a("s_waitcnt vmcnt(0)"); a("s_barrier"); a.stamps_out(10); a("s_endpgm"); return
    if "noprio" not in a.exp: a("s_setprio 1")
    Lgo = a.uid("L_ugo")
    a(f"s_cmp_eq_u32 s{sUok}, 1")
    a(f"s_cbranch_scc1 {Lgo}")
    a.poll(vF0a, t1, 64, sleep=2)
    u_dma()
    a.label(Lgo)
    a.stamp(3)
    if "noconv" not in a.exp: conv(a, w, sCH, sRH, sUB, sKC)
    a.stamp(5)
    final_h(a, w)

def lds_pair_sync(a, vaddr, vone, vtmp, target):
    L, Dn = a.uid("L_ps"), a.uid("L_psd")
    a("s_mov_b64 exec, 1")
    a(f"ds_add_u32 v{vaddr}, v{vone}")
    a("s_mov_b64 exec, -1")
    a(f"s_mov_b32 s{S_BND}, {a.spin}")
    a.label(L)
    a(f"ds_read_b32 v{vtmp}, v{vaddr}")
    a("s_waitcnt lgkmcnt(0)")
    a(f"v_readfirstlane_b32 s{S_T0}, v{vtmp}")
    a("s_nop 0")
    a(f"s_cmp_ge_u32 s{S_T0}, {target}")
    a(f"s_cbranch_scc1 {Dn}")
    a(f"s_sub_u32 s{S_BND}, s{S_BND}, 1")
    a(f"s_cmp_lg_u32 s{S_BND}, 0")
    a(f"s_cbranch_scc1 {L}")
    a.label(Dn)

def conv(a, w, sCH, sRH, sUB, sKC):
    t0, t1, t2, t3 = 64, 65, 66, 67
    a(f"s_lshl_b32 s{S_T0}, s{S_M}, 2")
    a(f"s_load_dword s{S_A4}, s[{S_SD}:{S_SD+1}], s{S_T0}")
    vKA, vUB = 8, 12
    a(f"v_and_b32 v{t0}, 15, v0")
    a(f"v_lshrrev_b32 v{t1}, 5, v0")
    a(f"v_bfe_u32 v{t2}, v0, 4, 1")
    a(f"v_lshlrev_b32 v{t3}, 4, v{t1}")
    a(f"v_add_u32 v{t3}, v{t3}, v{t0}")
    a(f"v_add_u32 v{t3}, 9, v{t3}")
    a(f"v_lshlrev_b32 v{vUB}, 3, v{t2}")
    a(f"v_sub_u32 v{t3}, v{t3}, v{vUB}")
    a(f"v_and_b32 v{vUB}, 1, v{t3}")
    a(f"v_mul_u32_u24 v{vUB}, 4158, v{vUB}")
    a(f"v_lshl_add_u32 v{t3}, v{t3}, 1, v{vUB}")
    a(f"s_lshl_b32 s{S_T1}, s{sRH}, 8")
    a(f"s_add_u32 s{S_T2}, s{sKC}, s{S_T1}")
    a(f"v_add_u32 v{vKA}, s{S_T2}, v{t3}")
    for i in range(1, 4): a(f"v_add_u32 v{vKA+i}, {1024*i}, v{vKA}")
    a(f"v_sub_u32 v{t3}, v{t0}, v{t1}")
    a(f"v_lshlrev_b32 v{t3}, 5, v{t3}")
    a(f"v_lshl_add_u32 v{t3}, v{t2}, 4, v{t3}")
    a(f"v_add_u32 v{t3}, {64 + 256}, v{t3}")
    a(f"s_sub_u32 s{S_T2}, s{sUB}, s{S_T1}")
    a(f"v_add_u32 v{vUB}, s{S_T2}, v{t3}")
    vUE, vYO, vXA, vCN, vOne = 13, 14, 15, 16, 17
    a(f"v_lshlrev_b32 v{t3}, 5, v{t0}")
    a(f"v_lshl_add_u32 v{t3}, v{t1}, 4, v{t3}")
    a(f"v_lshlrev_b32 v{vUE}, 3, v{t2}")
    a(f"v_sub_u32 v{t3}, v{t3}, v{vUE}")
    a(f"v_add_u32 v{t3}, 520, v{t3}")
    a(f"s_lshl_b32 s{S_T1}, s{sRH}, 11")
    a(f"s_add_u32 s{S_T2}, s{sUB}, s{S_T1}")
    a(f"v_add_u32 v{vUE}, s{S_T2}, v{t3}")
    a(f"v_lshrrev_b32 v{t3}, 4, v0")
    a(f"v_lshlrev_b32 v{t3}, 3, v{t3}")
    a(f"v_lshl_add_u32 v{vYO}, v{t0}, 5, v{t3}")
    a(f"v_lshlrev_b32 v{t3}, 4, v0")
    a(f"v_add_u32 v{vXA}, s{sKC}, v{t3}")
    a(f"s_lshr_b32 s{S_T1}, s{w}, 1")
    a(f"s_lshl_b32 s{S_T1}, s{S_T1}, 2")
    a(f"s_add_u32 s{S_T1}, s{S_T1}, {CNT_L}")
    a(f"v_mov_b32 v{vCN}, s{S_T1}")
    a(f"v_mov_b32 v{vOne}, 1")
    a("s_waitcnt vmcnt(0) lgkmcnt(0)")
    a.stamp(4)
    ACC = 224
    AS, BS = (96, 160), (128, 192)
    def loads(rr):
        s = rr & 1; L = []
        for x in range(8):
            L.append(f"ds_read_b128 {vr(BS[s]+4*x)}, v{vUB} offset:{512*x + 64*(3-rr)}")
            o = 128*(x & 1) + 16*rr
            L.append(f"ds_read2_b32 {vr(AS[s]+4*x, 2)}, v{vKA+(x>>1)} offset0:{o} offset1:{o+1}")
            L.append(f"ds_read2_b32 {vr(AS[s]+4*x+2, 2)}, v{vKA+(x>>1)} offset0:{o+2} offset1:{o+3}")
        return L
    for l in loads(0): a(l)
    for rr in range(4):
        a("s_waitcnt lgkmcnt(0)")
        nxt = loads(rr + 1) if rr < 3 else []
        s = rr & 1; k = 0
        for x in range(8):
            for c in range(x, 8):
                cin = "0" if (rr == 0 and x == 0) else vr(ACC+4*c)
                a(f"v_mfma_f32_16x16x32_bf16 {vr(ACC+4*c)}, {vr(AS[s]+4*x)}, {vr(BS[s]+4*(c-x))}, {cin}")
                if nxt and k < len(nxt): a(nxt[k]); k += 1
        while nxt and k < len(nxt): a(nxt[k]); k += 1
    a.stamp(9)
    lds_pair_sync(a, vCN, vOne, t0, 2)
    Lr1, Lrd = a.uid("L_r1"), a.uid("L_rd")
    a(f"s_cmp_eq_u32 s{sRH}, 1")
    a(f"s_cbranch_scc1 {Lr1}")
    for c in range(4): a(f"ds_write_b128 v{vXA}, {vr(ACC+16+4*c)} offset:{1024*c}")
    a(f"s_branch {Lrd}")
    a.label(Lr1)
    for c in range(4):
        a(f"ds_write_b128 v{vXA}, {vr(ACC+4*c)} offset:{4096 + 1024*c}")
    a("s_waitcnt lgkmcnt(0)")
    for c in range(16): a(f"v_mov_b32 v{ACC+c}, v{ACC+16+c}")
    a.label(Lrd)
    a("s_waitcnt lgkmcnt(0)")
    lds_pair_sync(a, vCN, vOne, t0, 4)
    a(f"s_xor_b32 s{S_T1}, s{sRH}, 1")
    a(f"s_lshl_b32 s{S_T1}, s{S_T1}, 12")
    a(f"v_add_u32 v{vXA}, s{S_T1}, v{vXA}")
    for c in range(4): a(f"ds_read_b128 {vr(128+4*c)}, v{vXA} offset:{1024*c}")
    for c in range(4): a(f"ds_read_b64 {vr(96+2*c, 2)}, v{vUE} offset:{512*c}")
    a(f"s_lshr_b32 s{S_T1}, s{w}, 1")
    a(f"s_lshl_b32 s{S_T1}, s{S_T1}, 4")
    a(f"s_lshr_b32 s{S_A4}, s{S_A4}, s{S_T1}")
    a(f"s_lshl_b32 s{S_A4}, s{S_A4}, 16")
    a(f"s_lshl_b32 s{S_T1}, s{sCH}, 12")
    a(f"s_lshl_b32 s{S_T2}, s{sRH}, 11")
    a(f"s_add_u32 s{S_T1}, s{S_T1}, s{S_T2}")
    a(f"s_add_u32 s{S_T1}, s{S_T1}, {YT_OFF}")
    a("s_waitcnt lgkmcnt(0)")
    for c in range(4):
        d0, d1 = 96 + 2*c, 97 + 2*c
        u = 144
        a(f"v_and_b32 v{u}, 0xffff0000, v{d1}")
        a(f"v_lshlrev_b32 v{u+1}, 16, v{d1}")
        a(f"v_and_b32 v{u+2}, 0xffff0000, v{d0}")
        a(f"v_lshlrev_b32 v{u+3}, 16, v{d0}")
        for i in range(4): a(f"v_add_f32 v{ACC+4*c+i}, v{ACC+4*c+i}, v{128+4*c+i}")
        for i in range(4): a(f"v_fmac_f32 v{ACC+4*c+i}, s{S_A4}, v{u+i}")
        o = 148 + 2*c
        a(f"v_cvt_pk_bf16_f32 v{o}, v{ACC+4*c}, v{ACC+4*c+1}")
        a(f"v_cvt_pk_bf16_f32 v{o+1}, v{ACC+4*c+2}, v{ACC+4*c+3}")
        a(f"buffer_store_dwordx2 {vr(o, 2)}, v{vYO}, s[{R_WS}:{R_WS+3}], s{S_T1} offen offset:{512*c} sc1")
    a(f"s_lshr_b32 s{S_T1}, s{sCH}, 6")
    a(f"s_lshl_b32 s{S_T1}, s{S_T1}, 1")
    a(f"s_add_u32 s{S_T1}, s{S_T1}, s{sRH}")
    a(f"s_lshl_b32 s{S_T1}, s{S_T1}, 6")
    a(f"s_and_b32 s{S_T2}, s{sCH}, 63")
    a(f"s_add_u32 s{S_T1}, s{S_T1}, s{S_T2}")
    a(f"s_lshl_b32 s{S_T1}, s{S_T1}, 2")
    a(f"s_add_u32 s{S_T1}, s{S_T1}, {F2_OFF}")
    if a.prof: a(f"s_mov_b32 s{S_A5}, s{S_T1}"); a.stamp(1); a(f"s_mov_b32 s{S_T1}, s{S_A5}")
    a("s_waitcnt vmcnt(0)")
    a.signal(S_T1, t0, t1)

def lds_wait(a, addr, vaddr, vtmp, target, sleep):
    L, Dn = a.uid("L_lw"), a.uid("L_lwd")
    a(f"v_mov_b32 v{vaddr}, {addr}")
    a(f"s_mov_b32 s{S_BND}, {a.spin}")
    a.label(L)
    a(f"ds_read_b32 v{vtmp}, v{vaddr}")
    a("s_waitcnt lgkmcnt(0)")
    a(f"v_readfirstlane_b32 s{S_T3}, v{vtmp}")
    a("s_nop 0")
    a(f"s_cmp_ge_u32 s{S_T3}, {target}")
    a(f"s_cbranch_scc1 {Dn}")
    a(f"s_sleep {sleep}")
    a(f"s_sub_u32 s{S_BND}, s{S_BND}, 1")
    a(f"s_cmp_lg_u32 s{S_BND}, 0")
    a(f"s_cbranch_scc1 {L}")
    a.label(Dn)

def final_h(a, w):
    t0, t1, t2, t3 = 64, 65, 66, 67
    vXo = 8
    BASE = 16
    RS2 = 32
    XD = 36
    YD = 44
    ST = 52
    if "noprio" not in a.exp: a("s_setprio 0")
    a(f"v_lshrrev_b32 v{t0}, 3, v0")
    a(f"v_mul_u32_u24 v{t0}, 896, v{t0}")
    a(f"v_and_b32 v{t1}, 7, v0")
    a(f"v_lshl_add_u32 v{vXo}, v{t1}, 4, v{t0}")
    sXO = S_A1
    a(f"s_lshl_b32 s{S_T0}, s{S_RB}, 6")
    a(f"s_lshl_b32 s{S_T1}, s{w}, 4")
    a(f"s_add_u32 s{S_T0}, s{S_T0}, s{S_T1}")
    a(f"s_mul_i32 s{sXO}, s{S_T0}, 896")
    a(f"s_lshl_b32 s{S_T1}, s{S_CT}, 7")
    a(f"s_add_u32 s{sXO}, s{sXO}, s{S_T1}")
    a(f"s_add_u32 s{S_T2}, s{sXO}, {8*896}")
    a(f"buffer_load_dwordx4 {vr(XD)}, v{vXo}, s[{R_A}:{R_A+3}], s{sXO} offen")
    a(f"buffer_load_dwordx4 {vr(XD+4)}, v{vXo}, s[{R_A}:{R_A+3}], s{S_T2} offen")
    a(f"s_lshl_b32 s{S_T1}, s{S_PAR}, 6")
    a(f"s_lshl_b32 s{S_T2}, s{w}, 4")
    a(f"s_add_u32 s{S_T1}, s{S_T1}, s{S_T2}")
    a(f"v_lshrrev_b32 v{t0}, 3, v0")
    a(f"v_add_u32 v{t0}, s{S_T1}, v{t0}")
    a(f"v_lshlrev_b32 v{t0}, 3, v{t0}")
    a(f"v_add_u32 v{t0}, {STATS_L}, v{t0}")
    a(f"ds_read_b64 {vr(ST, 2)}, v{t0}")
    a(f"ds_read_b64 {vr(ST+2, 2)}, v{t0} offset:64")
    lds_wait(a, CNT_L + 12, t0, t1, 4, 4)
    a(f"s_lshl_b32 s{S_T1}, s{S_CT}, 9")
    a(f"s_lshr_b32 s{S_T2}, s{S_RB}, 4")
    a(f"s_lshl_b32 s{S_T2}, s{S_T2}, 8")
    a(f"s_add_u32 s{S_T1}, s{S_T1}, s{S_T2}")
    a(f"s_lshl_b32 s{S_T2}, s{w}, 6")
    a(f"s_add_u32 s{S_T1}, s{S_T1}, s{S_T2}")
    a(f"s_add_u32 s{S_T1}, s{S_T1}, {F2_OFF}")
    a(f"v_and_b32 v{t0}, 15, v0")
    a(f"v_lshlrev_b32 v{t0}, 2, v{t0}")
    a(f"v_add_u32 v{t0}, s{S_T1}, v{t0}")
    if "noconv" not in a.exp and "nopoll2" not in a.exp: a.poll(t0, t1, 16, sleep=8)
    a.stamp(6)
    a(f"s_lshl_b32 s{S_T1}, s{S_CT}, 6")
    a(f"s_lshl_b32 s{S_T2}, s{w}, 4")
    a(f"s_add_u32 s{S_T1}, s{S_T1}, s{S_T2}")
    a(f"s_lshl_b32 s{S_T1}, s{S_T1}, 12")
    a(f"s_lshl_b32 s{S_T2}, s{S_RB}, 7")
    a(f"s_add_u32 s{S_T1}, s{S_T1}, s{S_T2}")
    a(f"s_add_u32 s{S_T1}, s{S_T1}, {YT_OFF}")
    a(f"s_add_u32 s{S_T2}, s{S_T1}, {8*4096}")
    a(f"v_lshrrev_b32 v{t0}, 3, v0")
    a(f"v_lshlrev_b32 v{t0}, 12, v{t0}")
    a(f"v_and_b32 v{t1}, 7, v0")
    a(f"v_lshl_add_u32 v{t0}, v{t1}, 4, v{t0}")
    a(f"buffer_load_dwordx4 {vr(YD)}, v{t0}, s[{R_WS}:{R_WS+3}], s{S_T1} offen sc1")
    a(f"buffer_load_dwordx4 {vr(YD+4)}, v{t0}, s[{R_WS}:{R_WS+3}], s{S_T2} offen sc1")
    a(f"v_lshrrev_b32 v{t0}, 3, v0")
    a(f"v_lshlrev_b32 v{t0}, 7, v{t0}")
    a(f"s_lshl_b32 s{S_T1}, s{w}, 1")
    a(f"v_xor_b32 v{t1}, s{S_T1}, v{t1}")
    a(f"v_lshl_add_u32 v{t2}, v{t1}, 4, v{t0}")
    a(f"v_xor_b32 v{t1}, 1, v{t1}")
    a(f"v_lshl_add_u32 v{t3}, v{t1}, 4, v{t0}")
    a(f"s_lshl_b32 s{S_T1}, s{w}, 11")
    a(f"s_add_u32 s{S_T1}, s{S_T1}, {EXT}")
    a(f"v_add_u32 v{t2}, s{S_T1}, v{t2}")
    a(f"v_add_u32 v{t3}, s{S_T1}, v{t3}")
    a("s_waitcnt vmcnt(0)")
    a(f"ds_write_b128 v{t2}, {vr(YD)}")
    a(f"ds_write_b128 v{t3}, {vr(YD+4)} offset:1024")
    a(f"v_mov_b32 v{t0}, {CNT_L + 8}")
    a(f"v_mov_b32 v{t1}, 1")
    a("s_waitcnt lgkmcnt(0)")
    lds_pair_sync(a, t0, t1, t2, 4)
    a(f"v_and_b32 v{t1}, 7, v0")
    a(f"s_lshl_b32 s{S_T1}, s{w}, 1")
    a(f"v_xor_b32 v{t2}, s{S_T1}, v{t1}")
    a(f"v_lshlrev_b32 v{t1}, 10, v{t1}")
    a(f"v_lshrrev_b32 v{t0}, 3, v0")
    a(f"v_lshl_add_u32 v{t1}, v{t0}, 1, v{t1}")
    a(f"v_add_u32 v{t1}, {EXT}, v{t1}")
    a(f"v_lshl_add_u32 v{t0}, v{t2}, 4, v{t1}")
    a(f"v_xor_b32 v{t2}, 1, v{t2}")
    a(f"v_lshl_add_u32 v{t2}, v{t2}, 4, v{t1}")
    YG = 96
    for q in range(2):
        for e in range(8):
            a(f"ds_read_u16 v{YG+8*q+e}, v{(t0, t2)[q]} offset:{128*e}")
    a("s_waitcnt lgkmcnt(0)")
    for q in range(2):
        mean, rstd = ST + 2*q, ST + 2*q + 1
        a(f"v_mul_f32 v{RS2+q}, v{rstd}, v{rstd}")
        for e in range(8):
            xs = XD + 4*q + (e >> 1)
            if e & 1: a(f"v_and_b32 v{t0}, 0xffff0000, v{xs}")
            else:     a(f"v_lshlrev_b32 v{t0}, 16, v{xs}")
            a(f"v_lshlrev_b32 v{t2}, 16, v{YG+8*q+e}")
            a(f"v_sub_f32 v{t3}, v{t0}, v{mean}")
            a(f"v_mul_f32 v{t3}, v{t3}, v{rstd}")
            a(f"v_fma_f32 v{BASE+8*q+e}, v{t3}, v{t2}, v{t0}")
    vF0, vF1 = 12, 13
    a(f"v_lshrrev_b32 v{t0}, 3, v0")
    a(f"s_lshl_b32 s{S_T1}, s{w}, 4")
    a(f"v_add_u32 v{t0}, s{S_T1}, v{t0}")
    a(f"v_mul_u32_u24 v{t0}, {PROW}, v{t0}")
    a(f"v_and_b32 v{t1}, 7, v0")
    a(f"v_lshl_add_u32 v{vF0}, v{t1}, 5, v{t0}")
    a(f"v_add_u32 v{vF1}, {2*RING}, v{vF0}")
    a.srd(R_B, S_OUT, XB)
    a.stamp(7)
    a("s_barrier")
    P = 128
    for q in range(2):
        for kq in range(4):
            base = vF0 if kq < 2 else vF1
            for hh in range(2):
                a(f"ds_read_b128 {vr(P+32*q+8*kq+4*hh)}, v{base} offset:{(kq & 1)*RING + q*8*PROW + 16*hh}")
    for q in range(2):
        a(f"s_waitcnt lgkmcnt({8 if q == 0 else 0})")
        p = P + 32*q
        for e in range(8):
            a(f"v_add_f32 v{p+e}, v{p+e}, v{p+8+e}")
            a(f"v_add_f32 v{p+16+e}, v{p+16+e}, v{p+24+e}")
        for e in range(8):
            a(f"v_add_f32 v{p+e}, v{p+e}, v{p+16+e}")
        for e in range(8):
            a(f"v_fmac_f32 v{BASE+8*q+e}, v{RS2+q}, v{p+e}")
        for e in range(4):
            a(f"v_cvt_pk_bf16_f32 v{XD+4*q+e}, v{BASE+8*q+2*e}, v{BASE+8*q+2*e+1}")
        so = sXO
        if q == 1:
            a(f"s_add_u32 s{S_T2}, s{sXO}, {8*896}"); so = S_T2
        a(f"buffer_store_dwordx4 {vr(XD+4*q)}, v{vXo}, s[{R_B}:{R_B+3}], s{so} offen" + (" sc1" if "outsc1" in a.exp else " nt" if "outnt" in a.exp else ""))
    a.stamp(8)
    if "span" in a.exp:
        a("s_waitcnt vmcnt(0)")
        a(f"s_cmp_lg_u32 s{S_WAVE}, 4")
        a("s_cbranch_scc1 L_hout")
        a("s_memrealtime s[88:89]")
        a("s_waitcnt lgkmcnt(0)")
        a("v_mov_b32 v2, s88"); a("v_mov_b32 v3, 12")
        a("s_mov_b64 exec, 1")
        a(f"global_atomic_umax v3, v2, s[{S_DBG}:{S_DBG+1}]")
        a("s_mov_b64 exec, -1")
    a.label("L_hout")
    a.stamps_out(10)
    a("s_endpgm")

def row_stats(a, part):
    t0, t1 = 4, 5
    XD, SS = 24, 36
    if part == 1: return row_stats2(a, XD, SS)
    a.srd(R_B, S_X, XB)
    a(f"s_lshl_b32 s{S_T0}, s{S_FC}, 2")
    a(f"s_add_u32 s{S_T0}, s{S_T0}, s{S_WAVE}")
    a(f"s_lshl_b32 s{S_T1}, s{S_RT}, 7")
    a(f"s_add_u32 s{S_T1}, s{S_T1}, s{S_T0}")
    a(f"s_mul_i32 s{S_T1}, s{S_T1}, 896")
    a(f"v_mov_b32 v{t1}, 0x40000000")
    a("v_cmp_gt_u32 vcc, 56, v0")
    a(f"s_add_u32 s{S_T2}, s{S_T1}, {56*896}")
    a(f"s_add_u32 s{S_T3}, s{S_T1}, {112*896}")
    a(f"v_cndmask_b32 v{t0}, v{t1}, v17, vcc")
    a(f"buffer_load_dwordx4 {vr(XD)}, v{t0}, s[{R_B}:{R_B+3}], s{S_T1} offen")
    a(f"buffer_load_dwordx4 {vr(XD+4)}, v{t0}, s[{R_B}:{R_B+3}], s{S_T2} offen")
    a(f"s_cmp_lt_u32 s{S_T0}, 16")
    a(f"s_cselect_b32 s{S_T3}, s{S_T3}, s{S_T2}")
    a(f"buffer_load_dwordx4 {vr(XD+8)}, v{t0}, s[{R_B}:{R_B+3}], s{S_T3} offen")

def row_stats2(a, XD, SS):
    L = []
    lo, hi, M = 42, 43, 44
    L.append("s_waitcnt vmcnt(0)")
    for j in range(3):
        for q in range(4):
            d = XD + 4*j + q
            L += [f"v_lshlrev_b32 v{lo}, 16, v{d}", f"v_and_b32 v{hi}, 0xffff0000, v{d}"]
            if q == 0: L += [f"v_add_f32 v{SS+j}, v{lo}, v{hi}", f"v_mul_f32 v{SS+3+j}, v{lo}, v{lo}"]
            else:      L += [f"v_add_f32 v{SS+j}, v{SS+j}, v{lo}", f"v_fmac_f32 v{SS+3+j}, v{lo}, v{lo}", f"v_add_f32 v{SS+j}, v{SS+j}, v{hi}"]
            L.append(f"v_fmac_f32 v{SS+3+j}, v{hi}, v{hi}")
    L += ["s_nop 0"]
    for mod in ("row_shr:1 row_mask:0xf", "row_shr:2 row_mask:0xf", "row_shr:4 row_mask:0xf", "row_shr:8 row_mask:0xf",
                "row_bcast:15 row_mask:0xa", "row_bcast:31 row_mask:0xc"):
        L += [f"v_add_f32_dpp v{SS+r}, v{SS+r}, v{SS+r} {mod} bank_mask:0xf" for r in range(6)]
    for j in range(3):
        m, q = M + 2*j, SS + 3 + j
        L += [f"v_mul_f32 v{m}, {1.0/448.0!r}, v{SS+j}",
              f"v_mul_f32 v{q}, {1.0/448.0!r}, v{q}",
              f"v_fma_f32 v{q}, -v{m}, v{m}, v{q}",
              f"v_max_f32 v{q}, 0, v{q}",
              f"v_add_f32 v{q}, 0x3727c5ac, v{q}",
              f"v_rsq_f32 v{m+1}, v{q}"]
    L += ["s_mov_b32 exec_lo, 0", "s_mov_b32 exec_hi, 0x80000000"]
    L += [f"ds_write_b64 v50, {vr(M+2*j, 2)} offset:{32*j}" for j in range(3)]
    L += ["s_mov_b64 exec, -1"]
    return L

def c_wave(a):
    a.label("L_cwave")
    vX, vW = 8, 12
    t0, t1, t2, t3 = 4, 5, 6, 7
    AS, BS, ACC = (64, 80), (96, 104), 128
    sWR, sWF = S_A0, S_A1
    a(f"v_lshlrev_b32 v17, 4, v0")
    a("s_waitcnt lgkmcnt(0)")
    row_stats(a, 0)
    a(f"s_lshr_b32 s{sWR}, s{S_WAVE}, 1")
    a(f"s_and_b32 s{sWF}, s{S_WAVE}, 1")
    a(f"s_lshl_b32 s{S_T1}, s{sWR}, 6")
    x_frag_addrs(a, vX, S_T1, t0, t1, t2)
    w_tr_lane_consts(a, t3, 16, t0, t1)
    a(f"s_lshl_b32 s{S_T1}, s{sWF}, 3")
    a(f"v_xor_b32 v16, s{S_T1}, v16")
    for m in range(4):
        a(f"v_xor_b32 v{t0}, {2*m}, v16")
        a(f"v_lshl_add_u32 v{vW+m}, v{t0}, 4, v{t3}")
    a.srd(R_WS, S_WS, WS_BYTES); a.srd(R_A, S_WD, WB)
    a.stamp(0)
    def reads(t):
        s = t & 1
        if t == 28:
            return [f"ds_read_b128 {vr(BS[s])}, v18",
                    f"ds_read_b128 {vr(AS[s])}, v19",
                    f"ds_read_b128 {vr(BS[s]+4)}, v18 offset:1024",
                    f"ds_read_b128 {vr(AS[s]+4)}, v19 offset:1024",
                    f"ds_read_b128 {vr(AS[s]+8)}, v19 offset:2048",
                    f"ds_read_b128 {vr(AS[s]+12)}, v19 offset:3072"]
        st, ks = t >> 2, t & 3
        so = (st % 3) * SLOT
        def wr(m): return [f"ds_read_b64_tr_b16 {vr(AS[s]+4*m+2*h, 2)}, v{vW+m} offset:{so + (16*ks + 4*h)*256}" for h in range(2)]
        return ([f"ds_read_b128 {vr(BS[s])}, v{vX+ks} offset:{so}"] + wr(0) +
                [f"ds_read_b128 {vr(BS[s]+4)}, v{vX+ks} offset:{so + 4096}"] + wr(1) + wr(2) + wr(3))
    a(f"s_lshl_b32 s{S_T1}, s{sWR}, 11")
    a(f"s_add_u32 s{S_T1}, s{S_T1}, {XEXT}")
    a(f"v_add_u32 v18, s{S_T1}, v17")
    a(f"s_lshl_b32 s{S_T1}, s{sWF}, 12")
    a(f"s_add_u32 s{S_T1}, s{S_T1}, {WEXT}")
    a(f"v_add_u32 v19, s{S_T1}, v17")
    a(f"s_lshl_b32 s{S_T0}, s{S_WAVE}, 3")
    a(f"s_add_u32 s{S_T0}, s{S_T0}, {STG_L}")
    a(f"v_mov_b32 v50, s{S_T0}")
    stat_ops = row_stats(a, 1)
    a("s_barrier")
    a.stamp(1)
    if "nomma" not in a.exp:
        for l in reads(0): a(l)
    for t in range(29):
        s = t & 1
        a("s_waitcnt lgkmcnt(0)")
        if t < 28 and (t & 3) == 3:
            if a.stop == "p1": a.stamp(5 + (t >> 2))
            a("s_barrier")
        nxt = reads(t + 1) if t < 28 else []
        if "nomma" in a.exp: continue
        k = 0
        for m in range(4):
            for n in range(2):
                d = ACC + (2*m + n)*16
                cin = "0" if t == 0 else vr(d, 16)
                a(f"v_mfma_f32_32x32x16_bf16 {vr(d,16)}, {vr(AS[s]+4*m)}, {vr(BS[s]+4*n)}, {cin}")
                for _ in range(2):
                    if k < len(nxt): a(nxt[k]); k += 1
                if 4 <= t < 11 and stat_ops:
                    n_ = 3
                    if stat_ops[0].startswith("s_mov_b32 exec_lo"): n_ = len(stat_ops)
                    cut = []
                    while stat_ops and len(cut) < n_:
                        if stat_ops[0].startswith("s_mov_b32 exec_lo") and cut: break
                        cut.append(stat_ops.pop(0))
                    for l in cut: a(l)
                    if n_ > 3: a("s_nop 3")
    assert not stat_ops
    a.stamp(2)
    a(f"v_mov_b32 v{t0}, {NONCE_L}")
    a(f"ds_read_b64 v[20:21], v{t0}")
    vm = VM(a)
    sH = S_A2
    a(f"s_lshl_b32 s{S_T0}, s{S_RT}, 2")
    a(f"s_lshl_b32 s{S_T1}, s{sWR}, 1")
    a(f"s_add_u32 s{S_T0}, s{S_T0}, s{S_T1}")
    a(f"s_mul_i32 s{S_T0}, s{S_T0}, 112")
    a(f"s_lshl_b32 s{S_T1}, s{S_FC}, 3")
    a(f"s_add_u32 s{S_T0}, s{S_T0}, s{S_T1}")
    a(f"s_lshl_b32 s{S_T1}, s{sWF}, 2")
    a(f"s_add_u32 s{S_T0}, s{S_T0}, s{S_T1}")
    a(f"s_lshl_b32 s{sH}, s{S_T0}, 10")
    if H_OFF: a(f"s_add_u32 s{sH}, s{sH}, {H_OFF}")
    sFast = 99
    a("s_waitcnt lgkmcnt(0)")
    a(f"v_readfirstlane_b32 s{S_NONCE}, v20")
    a(f"v_readfirstlane_b32 s{sFast}, v21")
    sKQ = S_WAVE
    vWd, vA0, vA1, vFl = 21, 22, 23, 16
    a(f"v_lshrrev_b32 v{t0}, 3, v0")
    a(f"v_and_b32 v{t1}, 7, v0")
    a(f"v_bfe_u32 v{t2}, v0, 4, 1")
    a(f"v_lshlrev_b32 v{t2}, 2, v{t2}")
    a(f"v_xor_b32 v{t1}, v{t1}, v{t2}")
    a(f"v_mul_u32_u24 v{t0}, 896, v{t0}")
    a(f"v_lshl_add_u32 v{vWd}, v{t1}, 4, v{t0}")
    sWdS, sRing = S_A3, S_A4
    a(f"s_mul_i32 s{sWdS}, s{sKQ}, {448*896}")
    a(f"s_lshl_b32 s{S_T0}, s{S_CT}, 7")
    a(f"s_add_u32 s{sWdS}, s{sWdS}, s{S_T0}")
    a(f"s_mul_i32 s{sRing}, s{sKQ}, {RING}")
    NPARK = 28 - NSLOT
    def wd_dma(ks, slot):
        for hh in range(2):
            a(f"s_add_u32 m0, s{sRing}, {slot*2048 + hh*1024}")
            a(f"s_add_u32 s{S_T1}, s{sWdS}, {(16*ks + 8*hh)*896}")
            a(f"buffer_load_dwordx4 v{vWd}, s[{R_A}:{R_A+3}], s{S_T1} offen lds")
            vm.issue(("wd", ks))
    def either(plain, wt):
        if "fast" not in a.exp: a(wt); return
        L1, L2 = a.uid("L_wt"), a.uid("L_st")
        a(f"s_cmp_eq_u32 s{sFast}, 0")
        a(f"s_cbranch_scc1 {L1}")
        a(plain); a(f"s_branch {L2}")
        a.label(L1); a(wt); a.label(L2)
    r1 = list(range(NSLOT, 28)) if a.stop != "p1" else []
    for m in range(4):
        for n in range(2):
            d = ACC + (2*m + n)*16
            o = 24 + 4*((2*m + n) & 3)
            for i in range(8): a(f"v_max_f32 v{d+i}, 0, v{d+i}")
            for i in range(8): a(f"v_mul_f32 v{d+i}, v{d+i}, v{d+8+i}")
            for i in range(4): a(f"v_cvt_pk_bf16_f32 v{o+i}, v{d+2*i}, v{d+2*i+1}")
            a(f"s_add_u32 s{S_T0}, s{sH}, {(n*112 + m)*1024}")
            st_ = f"buffer_store_dwordx4 {vr(o)}, v17, s[{R_WS}:{R_WS+3}], s{S_T0} offen"
            either(st_, st_ + " sc1")
            vm.issue("h")
            if 2*m + n >= 2:
                for _ in range(2):
                    if r1: ks = r1.pop(0); wd_dma(ks, ks - NSLOT)
    a.stamp(3)
    while r1: ks = r1.pop(0); wd_dma(ks, ks - NSLOT)
    a(f"s_lshl_b32 s{S_T0}, s{S_RT}, 1")
    a(f"s_add_u32 s{S_T0}, s{S_T0}, s{sWR}")
    a(f"s_mul_i32 s{S_T0}, s{S_T0}, 28")
    a(f"s_lshl_b32 s{S_T1}, s{S_FC}, 1")
    a(f"s_add_u32 s{S_T0}, s{S_T0}, s{S_T1}")
    a(f"s_add_u32 s{S_T0}, s{S_T0}, s{sWF}")
    a(f"s_lshl_b32 s{S_T0}, s{S_T0}, 7")
    a(f"s_add_u32 s{S_T1}, s{S_T0}, {F1_OFF}")
    vm.wait("h")
    a(f"v_mov_b32 v{t0}, s{S_NONCE}")
    a(f"v_mov_b32 v{t1}, 0")
    a("s_mov_b64 exec, 1")
    st_ = f"buffer_store_dword v{t0}, v{t1}, s[{R_WS}:{R_WS+3}], s{S_T1} offen"
    either(st_, st_ + " sc1")
    vm.issue("sig")
    a("s_mov_b64 exec, -1")
    a.stamp(4)
    if a.stop == "p1":
        a("s_barrier"); a.stamps_out(12); a("s_endpgm"); return
    a(f"v_bfe_u32 v{t0}, v0, 2, 2")
    a(f"v_lshrrev_b32 v{t1}, 5, v0")
    a(f"v_lshl_add_u32 v{t1}, v{t1}, 2, v{t0}")
    a(f"v_lshlrev_b32 v{t1}, 7, v{t1}")
    a(f"v_and_b32 v{t2}, 1, v0")
    a(f"v_lshl_add_u32 v{t1}, v{t2}, 3, v{t1}")
    a(f"v_add_u32 v{t1}, s{sRing}, v{t1}")
    a(f"v_bfe_u32 v{t2}, v0, 4, 1")
    a(f"v_bfe_u32 v{t3}, v0, 1, 1")
    a(f"v_lshl_add_u32 v{t2}, v{t2}, 1, v{t3}")
    a(f"v_bfe_u32 v{t3}, v0, 3, 1")
    a(f"v_lshl_add_u32 v{t2}, v{t3}, 2, v{t2}")
    a(f"v_lshl_add_u32 v{vA0}, v{t2}, 4, v{t1}")
    a(f"v_xor_b32 v{t2}, 4, v{t2}")
    a(f"v_lshl_add_u32 v{vA1}, v{t2}, 4, v{t1}")
    HB, A3, PK, ACC3 = 40, (24, 32), 88, 192
    def tr3(slot, dst):
        return [f"ds_read_b64_tr_b16 {vr(dst+4*m+2*h, 2)}, v{(vA0, vA1)[m]} offset:{slot*2048 + 1024*h}" for m in range(2) for h in range(2)]
    vm.wait(("wd", 27))
    for j in range(NPARK):
        for l in tr3(j, PK + 8*j): a(l)
        if j % 3 == 2: a("s_waitcnt lgkmcnt(4)")
    a("s_waitcnt lgkmcnt(0)")
    NR2 = 8
    for ks in range(NR2): wd_dma(ks, ks)
    a(f"s_mul_i32 s{S_T0}, s{S_RB}, 28")
    a(f"s_mul_i32 s{S_T1}, s{sKQ}, 7")
    a(f"s_add_u32 s{S_T0}, s{S_T0}, s{S_T1}")
    a(f"s_lshl_b32 s{S_T0}, s{S_T0}, 7")
    a(f"s_add_u32 s{S_T0}, s{S_T0}, {F1_OFF}")
    a(f"v_lshlrev_b32 v{vFl}, 7, v0")
    a(f"v_add_u32 v{vFl}, s{S_T0}, v{vFl}")
    a.poll(vFl, t0, 7)
    vm.reset()
    a.stamp(5)
    sHr = S_A2
    a(f"s_mul_i32 s{sHr}, s{S_RB}, {2*112}")
    a(f"s_mul_i32 s{S_T0}, s{sKQ}, 28")
    a(f"s_add_u32 s{sHr}, s{sHr}, s{S_T0}")
    a(f"s_lshl_b32 s{sHr}, s{sHr}, 10")
    if H_OFF: a(f"s_add_u32 s{sHr}, s{sHr}, {H_OFF}")
    kof = lambda t: (NSLOT + t) if t < NPARK else (t - NPARK)
    def h_load(t):
        for n in range(2):
            a(f"s_add_u32 s{S_T0}, s{sHr}, {(n*112 + kof(t))*1024}")
            a(f"buffer_load_dwordx4 {vr(HB + 8*(t % HD) + 4*n)}, v17, s[{R_WS}:{R_WS+3}], s{S_T0} offen sc1")
            vm.issue(("h", t))
    for t in range(HD): h_load(t)
    for t in range(28):
        s = t & 1
        vm.wait(("h", t))
        nxt = []
        if NPARK <= t + 1 < 28:
            if vm.has(("wd", kof(t + 1))): vm.wait(("wd", kof(t + 1)))
            nxt = tr3(kof(t + 1), A3[(t + 1) & 1])
        if t >= NPARK: a("s_waitcnt lgkmcnt(0)" if not nxt or True else "")
        src = (PK + 8*t) if t < NPARK else A3[s]
        k = 0
        for m in range(2):
            for n in range(2):
                d = ACC3 + (2*m + n)*16
                cin = "0" if t == 0 else vr(d, 16)
                a(f"v_mfma_f32_32x32x16_bf16 {vr(d,16)}, {vr(src+4*m)}, {vr(HB + 8*(t % HD) + 4*n)}, {cin}")
                if k < len(nxt): a(nxt[k]); k += 1
        if t == 4:
            a(f"v_mov_b32 v{t0}, {CNT_L + 12}")
            a(f"v_mov_b32 v{t1}, 1")
            a("s_mov_b64 exec, 1")
            a(f"ds_add_u32 v{t0}, v{t1}")
            a("s_mov_b64 exec, -1")
        if NR2 + t < NSLOT: wd_dma(NR2 + t, NR2 + t)
        if t + HD < 28: h_load(t + HD)
        if "p3st" in a.exp and t in (0, 6, 13, 20): a.stamp(8 + (0, 6, 13, 20).index(t))
    a.stamp(6)
    a(f"v_and_b32 v{t0}, 31, v0")
    a(f"v_mul_u32_u24 v{t0}, {PROW}, v{t0}")
    a(f"v_lshrrev_b32 v{t1}, 5, v0")
    a(f"v_lshl_add_u32 v{t0}, v{t1}, 4, v{t0}")
    a(f"v_add_u32 v{t0}, s{sRing}, v{t0}")
    a("s_nop 7")
    for m in range(2):
        for n in range(2):
            d = ACC3 + (2*m + n)*16
            for j in range(4):
                a(f"ds_write_b128 v{t0}, {vr(d+4*j)} offset:{n*32*PROW + m*128 + j*32}")
    a("s_waitcnt lgkmcnt(0)")
    a("s_barrier")
    a.stamp(7)
    a.label("L_cout")
    a.stamps_out(12 if "p3st" in a.exp else 8)
    a("s_endpgm")

def aux(a):
    a.label("L_prep")
    t0, t1, t2, t3 = 4, 5, 6, 7
    sP = 2
    CSL = 0
    vCo = 14
    a(f"v_lshrrev_b32 v{t0}, 4, v0")
    a(f"v_mul_u32_u24 v{t0}, 3584, v{t0}")
    a(f"v_and_b32 v{t1}, 15, v0")
    a(f"v_lshl_add_u32 v{vCo}, v{t1}, 4, v{t0}")
    a(f"v_lshlrev_b32 v15, 4, v0")
    a("s_waitcnt lgkmcnt(0)")
    a.srd(R_WS, S_WS, WS_BYTES); a.srd(R_A, S_SK, XB); a.srd(R_B, S_WD, WB)
    a.stamp(0)
    CD, CA = 192, 248
    sC = S_A1
    a(f"s_cmp_ge_u32 s{sP}, 28")
    a("s_cbranch_scc1 L_aux_nocs")
    a(f"s_cmp_ge_u32 s{sP}, 14")
    a("s_cbranch_scc1 L_aux_up")
    a.srd(R_E, S_WG, WB)
    a(f"s_mov_b32 s{sC}, s{sP}")
    a("s_branch L_aux_cs")
    a.label("L_aux_up")
    a.srd(R_E, S_WU, WB)
    a(f"s_sub_u32 s{sC}, s{sP}, 14")
    a.label("L_aux_cs")
    a(f"s_mul_i32 s{S_T0}, s{S_WAVE}, {4*3584}")
    a(f"s_lshl_b32 s{S_T1}, s{sC}, 8")
    a(f"s_add_u32 s{S_T0}, s{S_T0}, s{S_T1}")
    for i in range(14):
        a(f"buffer_load_dwordx4 {vr(CD+4*i)}, v{vCo}, s[{R_E}:{R_E+3}], s{S_T0} offen")
        if i < 13: a(f"s_add_u32 s{S_T0}, s{S_T0}, {32*3584}")
    sLo, sHi = S_A2, S_A3
    a(f"s_mov_b32 s{sLo}, 0x00003f80")
    a(f"s_mov_b32 s{sHi}, 0x3f800000")
    for i in range(14):
        a(f"s_waitcnt vmcnt({13 - i})")
        for q in range(4):
            c0 = "0" if i == 0 else f"v{CA+2*q}"; c1 = "0" if i == 0 else f"v{CA+2*q+1}"
            a(f"v_dot2_f32_bf16 v{CA+2*q}, v{CD+4*i+q}, s{sLo}, {c0}")
            a(f"v_dot2_f32_bf16 v{CA+2*q+1}, v{CD+4*i+q}, s{sHi}, {c1}")
    a(f"v_lshrrev_b32 v{t0}, 4, v0")
    a(f"s_lshl_b32 s{S_T0}, s{S_WAVE}, 2")
    a(f"v_add_u32 v{t0}, s{S_T0}, v{t0}")
    a(f"v_lshlrev_b32 v{t0}, 9, v{t0}")
    a(f"v_and_b32 v{t1}, 15, v0")
    a(f"v_lshl_add_u32 v{t0}, v{t1}, 5, v{t0}")
    if CSL: a(f"v_add_u32 v{t0}, {CSL}, v{t0}")
    a(f"ds_write_b128 v{t0}, {vr(CA)}")
    a(f"ds_write_b128 v{t0}, {vr(CA+4)} offset:16")
    a("s_waitcnt lgkmcnt(0)")
    a("s_barrier")
    a(f"s_cmp_lg_u32 s{S_WAVE}, 7")
    a("s_cbranch_scc1 L_aux_touch")
    a(f"v_lshlrev_b32 v{t0}, 2, v0")
    if CSL: a(f"v_add_u32 v{t0}, {CSL}, v{t0}")
    for hh in range(2):
        for i in range(32):
            a(f"ds_read_b32 v{CD-64+32*hh+i}, v{t0} offset:{512*i + 256*hh}")
            if i % 8 == 7: a("s_waitcnt lgkmcnt(7)")
    a(f"v_mov_b32 v{t1}, {EP_OFF}")
    a(f"buffer_load_dword v{t2}, v{t1}, s[{R_WS}:{R_WS+3}], 0 offen sc1")
    a("s_waitcnt vmcnt(0) lgkmcnt(0)")
    a.nonce_from(t2)
    for hh in range(2):
        b = CD - 64 + 32*hh
        for st in (16, 8, 4, 2, 1):
            for i in range(st): a(f"v_add_f32 v{b+i}, v{b+i}, v{b+i+st}")
        a(f"v_mov_b32 v{b+1}, s{S_NONCE}")
    a(f"s_cmp_ge_u32 s{sP}, 14")
    a(f"s_cselect_b32 s{S_T0}, 1792, 0")
    a(f"s_lshl_b32 s{S_T1}, s{sC}, 7")
    a(f"s_add_u32 s{S_T0}, s{S_T0}, s{S_T1}")
    a(f"s_lshl_b32 s{S_T0}, s{S_T0}, 3")
    a(f"s_add_u32 s{S_T0}, s{S_T0}, {CS_OFF}")
    a(f"v_lshlrev_b32 v{t0}, 3, v0")
    a(f"buffer_store_dwordx2 {vr(CD-64, 2)}, v{t0}, s[{R_WS}:{R_WS+3}], s{S_T0} offen sc1")
    a(f"buffer_store_dwordx2 {vr(CD-32, 2)}, v{t0}, s[{R_WS}:{R_WS+3}], s{S_T0} offen offset:512 sc1")
    a("s_branch L_aux_touch")
    a.label("L_aux_nocs")
    a.label("L_aux_touch")
    a.stamp(1)
    a(f"s_mul_i32 s{S_T0}, s{sP}, 57344")
    a(f"s_lshl_b32 s{S_T1}, s{S_WAVE}, 10")
    a(f"s_add_u32 s{S_T0}, s{S_T0}, s{S_T1}")
    for i in range(7):
        a(f"buffer_load_dwordx4 {vr(16+4*i)}, v15, s[{R_A}:{R_A+3}], s{S_T0} offen")
        a(f"s_add_u32 s{S_T0}, s{S_T0}, 8192")
    a(f"s_mul_i32 s{S_T0}, s{sP}, 50176")
    a(f"s_add_u32 s{S_T0}, s{S_T0}, s{S_T1}")
    for i in range(7):
        a(f"buffer_load_dwordx4 {vr(48+4*i)}, v15, s[{R_B}:{R_B+3}], s{S_T0} offen")
        a(f"s_add_u32 s{S_T0}, s{S_T0}, 8192")
    a.stamp(2)
    a("s_waitcnt vmcnt(0)")
    a.stamp(3)
    a(f"s_cmp_lg_u32 s{sP}, 28")
    a("s_cbranch_scc1 L_aux_end")
    a(f"s_cmp_lg_u32 s{S_WAVE}, 0")
    a("s_cbranch_scc1 L_aux_end")
    a(f"v_mov_b32 v{t1}, {EP_OFF}")
    a(f"buffer_load_dword v{t2}, v{t1}, s[{R_WS}:{R_WS+3}], 0 offen sc1")
    a("s_waitcnt vmcnt(0)")
    a.nonce_from(t2)
    a(f"v_lshlrev_b32 v{t0}, 2, v0")
    a(f"v_add_u32 v{t0}, {F2_OFF}, v{t0}")
    a(f"s_mov_b32 s{S_BND}, {a.spin}")
    a.label("L_aux_ep")
    a("s_sleep 32")
    for i in range(14): a(f"buffer_load_dword v{16+i}, v{t0}, s[{R_WS}:{R_WS+3}], 0 offen offset:{256*i} sc1")
    a("s_waitcnt vmcnt(0)")
    for i in range(14): a(f"v_xor_b32 v{16+i}, s{S_NONCE}, v{16+i}")
    for i in range(1, 14): a(f"v_or_b32 v16, v16, v{16+i}")
    a("v_cmp_ne_u32 vcc, 0, v16")
    a("s_nop 1")
    a("s_cbranch_vccz L_aux_epw")
    a(f"s_sub_u32 s{S_BND}, s{S_BND}, 1")
    a(f"s_cmp_lg_u32 s{S_BND}, 0")
    a("s_cbranch_scc1 L_aux_ep")
    a.label("L_aux_epw")
    a(f"v_mov_b32 v{t2}, s{S_NONCE}")
    a("s_mov_b64 exec, 1")
    a(f"buffer_store_dword v{t2}, v{t1}, s[{R_WS}:{R_WS+3}], 0 offen sc1")
    a("s_mov_b64 exec, -1")
    a("s_waitcnt vmcnt(0)")
    a.label("L_aux_end")
    a.stamps_out(4)
    a("s_endpgm")

HEADER = open(os.path.join(os.path.dirname(os.path.abspath(__file__)), "header.txt")).read()

def build(prof=False, spin=1 << 16, stop=None, exp=()):
    a = Gen(prof=prof, spin=spin, stop=stop, exp=exp)
    entry(a)
    h_wave(a)
    c_wave(a)
    aux(a)
    a.label("L_end")
    a("s_endpgm")
    txt = HEADER + f"; @launch grid=(256,1,1) block=(512,1,1) lds={LDS_BYTES}\n"
    txt += f'.amdgcn_target "amdgcn-amd-amdhsa--gfx950"\n.text\n.globl {NAME}\n.p2align 8\n.type {NAME},@function\n{NAME}:\n'
    body = [l for l in a.lines if l is not None]
    txt += "\n".join(("    " + l) if not l.endswith(":") else l for l in body) + "\n"
    txt += (f'.section .rodata,"a"\n.p2align 6\n.amdhsa_kernel {NAME}\n'
            "  .amdhsa_next_free_vgpr 256\n  .amdhsa_next_free_sgpr 102\n  .amdhsa_accum_offset 256\n"
            "  .amdhsa_group_segment_fixed_size 0\n  .amdhsa_kernarg_size 104\n  .amdhsa_user_sgpr_count 2\n"
            "  .amdhsa_user_sgpr_kernarg_segment_ptr 1\n  .amdhsa_system_sgpr_workgroup_id_x 1\n"
            "  .amdhsa_float_denorm_mode_32 3\n"
            ".end_amdhsa_kernel\n")
    return txt

if __name__ == "__main__":
    import argparse
    ap = argparse.ArgumentParser()
    ap.add_argument("-o", default="parallel_sum__ssm_conv_h3__glu_gated_reglu__prompt.s")
    ap.add_argument("--prof", nargs="?", const="rt", default=None)
    ap.add_argument("--spin", type=int, default=1 << 16)
    ap.add_argument("--stop", default=None)
    ap.add_argument("--exp", default="")
    x = ap.parse_args()
    open(x.o, "w").write(build(x.prof, x.spin, x.stop, [e for e in x.exp.split(',') if e]))
    print("wrote", x.o)
```

```python
import sys, os
sys.path.insert(0, os.path.dirname(os.path.abspath(__file__)))
from asmlib import Asm

NAME = "parallel_sum__ssm_conv_h3__glu_gated_reglu__prompt_kernel"
S, D, F = 2048, 448, 1792
XB = S * D * 2
WB = D * F * 2

H_OFF  = 0x000000
UT_OFF = 0x700000
YT_OFF = 0x8C0000
F0_OFF = 0xA80000
F1_OFF = 0xAA0000
F2_OFF = 0xAC0000
EP_OFF = 0xAE0000
SG_OFF = 0xAE8000
XG_OFF = 0xAE0100
CS_OFF = 0xAF0000
PROF_OFF = 0xB00000
WS_BYTES = 0x10000000

XR, GR, UR = 0, 49152, 98304
SLOT = 16384
CV = 122880
KCH = 8320
UB0 = CV + 2 * KCH
UCH = 4608
EXT = 149504
XEXT, WEXT, ZEXT = EXT + 8192, EXT + 9216, EXT + 11264
STATS_L = 161792
NONCE_L = 162816
FAST_L = 162820
STG_L = 162832
CNT_L = 162944
RING = 30720
NSLOT = 15
PROW = 272
LDS_BYTES = 163840
HD = 6

S_X, S_K, S_V, S_SH, S_SK, S_SD, S_WG, S_WU, S_WD, S_OUT, S_DBG, S_WS = 4, 6, 8, 10, 12, 14, 18, 20, 22, 24, 26, 28
S_WAVE, S_NONCE = 30, 31
R_A, R_B, R_C, R_WS, R_E = 32, 36, 40, 44, 48
S_RT, S_FC, S_PAR, S_CT, S_RB, S_M = 52, 53, 54, 55, 56, 57
S_T0, S_T1, S_T2, S_T3 = 58, 59, 60, 61
S_A0, S_A1, S_A2, S_A3, S_A4, S_A5 = 62, 63, 64, 65, 66, 67
S_BND = 68
S_EX = 70
S_ST = 72

class VM:
    def __init__(self, a): self.a, self.q = a, []
    def issue(self, tag): self.q.append(tag)
    def wait(self, tag):
        idx = max(i for i, t in enumerate(self.q) if t == tag)
        n = len(self.q) - 1 - idx
        assert n <= 63, (tag, n)
        self.a(f"s_waitcnt vmcnt({n})")
        self.q = self.q[idx + 1:]
    def has(self, tag): return tag in self.q
    def drain(self):
        self.a("s_waitcnt vmcnt(0)"); self.q = []
    def reset(self): self.q = []

class Gen(Asm):
    def __init__(self, prof=False, spin=1 << 16, stop=None, exp=()):
        super().__init__()
        self.exp = set(exp)
        self.prof, self.spin, self.stop = prof, spin, stop
        self.nst = 0
    def srd(self, dst, base, nbytes):
        self(f"s_mov_b32 s{dst}, s{base}")
        self(f"s_and_b32 s{dst+1}, s{base+1}, 0xffff")
        self(f"s_mov_b32 s{dst+2}, {nbytes}")
        self(f"s_mov_b32 s{dst+3}, 0x20000")
    def stamp(self, i):
        if self.prof:
            self(f"{'s_memtime' if self.prof == 'cyc' else 's_memrealtime'} s[{S_ST+2*i}:{S_ST+2*i+1}]")
            self("s_waitcnt lgkmcnt(0)")
    def stamps_out(self, n):
        if not self.prof: return
        self("s_waitcnt vmcnt(0) lgkmcnt(0)")
        self("s_mov_b64 exec, 1")
        self(f"s_lshl_b32 s{S_T0}, s2, 3")
        self(f"s_add_u32 s{S_T0}, s{S_T0}, s{S_WAVE}")
        self(f"s_lshl_b32 s{S_T0}, s{S_T0}, 6")
        self(f"s_add_u32 s{S_T0}, s{S_T0}, {PROF_OFF}")
        self("v_mov_b32 v1, 0")
        for i in range(n):
            self(f"v_mov_b32 v2, s{S_ST+2*i}")
            self(f"buffer_store_dword v2, v1, s[{R_WS}:{R_WS+3}], s{S_T0} offen offset:{4*i}")
            self("s_nop 0")
        self("s_waitcnt vmcnt(0)")
    def poll(self, vaddr, vtmp, nlanes, sleep=1):
        L, Dn = self.uid("L_poll"), self.uid("L_polled")
        if nlanes < 64: self(f"s_mov_b64 exec, {hex((1 << nlanes) - 1)}")
        self(f"s_mov_b32 s{S_BND}, {self.spin}")
        self.label(L)
        self(f"buffer_load_dword v{vtmp}, v{vaddr}, s[{R_WS}:{R_WS+3}], 0 offen sc1")
        self("s_waitcnt vmcnt(0)")
        self(f"v_cmp_ne_u32 vcc, s{S_NONCE}, v{vtmp}")
        self("s_nop 1")
        self(f"s_cbranch_vccz {Dn}")
        self(f"s_sleep {sleep}")
        self(f"s_sub_u32 s{S_BND}, s{S_BND}, 1")
        self(f"s_cmp_lg_u32 s{S_BND}, 0")
        self(f"s_cbranch_scc1 {L}")
        self.label(Dn)
        if nlanes < 64: self("s_mov_b64 exec, -1")
    def signal(self, soff_reg, vtmp, vzero):
        self(f"v_mov_b32 v{vtmp}, s{S_NONCE}")
        self(f"v_mov_b32 v{vzero}, 0")
        self("s_mov_b64 exec, 1")
        self(f"buffer_store_dword v{vtmp}, v{vzero}, s[{R_WS}:{R_WS+3}], s{soff_reg} offen sc1")
        self("s_mov_b64 exec, -1")
    def nonce_from(self, vtmp):
        self(f"v_readfirstlane_b32 s{S_NONCE}, v{vtmp}")
        self("s_nop 3")
        self(f"s_add_u32 s{S_NONCE}, s{S_NONCE}, 1")

def vr(b, n=4): return f"v[{b}:{b+n-1}]"

def entry(a):
    a("s_load_dwordx16 s[4:19], s[0:1], 0")
    a("s_load_dwordx8 s[20:27], s[0:1], 64")
    a("s_load_dwordx2 s[28:29], s[0:1], 96")
    a("s_cmp_ge_u32 s2, 256")
    a("s_cbranch_scc1 L_end")
    a("v_lshrrev_b32 v1, 6, v0")
    a("v_and_b32 v0, 63, v0")
    a(f"v_readfirstlane_b32 s{S_WAVE}, v1")
    if "span" in a.exp:
        a("s_memrealtime s[88:89]")
        a(f"s_cmp_lg_u32 s{S_WAVE}, 3")
        a("s_cbranch_scc1 L_nospan")
        a("s_waitcnt lgkmcnt(0)")
        a("s_not_b32 s88, s88")
        a("v_mov_b32 v2, s88"); a("v_mov_b32 v3, 8")
        a("s_mov_b64 exec, 1")
        a(f"global_atomic_umax v3, v2, s[{S_DBG}:{S_DBG+1}]")
        a("s_mov_b64 exec, -1")
        a.label("L_nospan")
    a("s_cmp_lt_u32 s2, 32")
    a("s_cbranch_scc1 L_prep")
    a(f"s_sub_u32 s{S_M}, s2, 32")
    a(f"s_and_b32 s{S_T0}, s{S_M}, 7")
    a(f"s_lshr_b32 s{S_T1}, s{S_M}, 3")
    if "map2x14" not in a.exp:
        a(f"s_mul_i32 s{S_T2}, s{S_T1}, 37")
        a(f"s_lshr_b32 s{S_T2}, s{S_T2}, 8")
        a(f"s_mul_i32 s{S_T3}, s{S_T2}, 7")
        a(f"s_sub_u32 s{S_CT}, s{S_T1}, s{S_T3}")
        a(f"s_and_b32 s{S_PAR}, s{S_T0}, 1")
        a(f"s_lshr_b32 s{S_T0}, s{S_T0}, 1")
        a(f"s_lshl_b32 s{S_T0}, s{S_T0}, 2")
        a(f"s_add_u32 s{S_RT}, s{S_T0}, s{S_T2}")
        a(f"s_mul_i32 s{S_T0}, s{S_PAR}, 7")
        a(f"s_add_u32 s{S_FC}, s{S_T0}, s{S_CT}")
    else:
        a(f"s_mul_i32 s{S_T2}, s{S_T1}, 37")
        a(f"s_lshr_b32 s{S_T2}, s{S_T2}, 9")
        a(f"s_mul_i32 s{S_T3}, s{S_T2}, 14")
        a(f"s_sub_u32 s{S_FC}, s{S_T1}, s{S_T3}")
        a(f"s_lshl_b32 s{S_T0}, s{S_T0}, 1")
        a(f"s_add_u32 s{S_RT}, s{S_T0}, s{S_T2}")
        a(f"s_cmp_ge_u32 s{S_FC}, 7")
        a(f"s_cselect_b32 s{S_PAR}, 1, 0")
        a(f"s_mul_i32 s{S_T0}, s{S_PAR}, 7")
        a(f"s_sub_u32 s{S_CT}, s{S_FC}, s{S_T0}")
    a(f"s_lshl_b32 s{S_RB}, s{S_RT}, 1")
    a(f"s_add_u32 s{S_RB}, s{S_RB}, s{S_PAR}")
    a(f"s_cmp_lt_u32 s{S_WAVE}, 4")
    a("s_cbranch_scc1 L_cwave")

def w_tr_lane_consts(a, vbase, vt1, t0, t1):
    a(f"v_bfe_u32 v{t0}, v0, 2, 2")
    a(f"v_bfe_u32 v{t1}, v0, 1, 1")
    a(f"v_lshlrev_b32 v{vt1}, 1, v{t0}")
    a(f"v_xor_b32 v{vt1}, v{vt1}, v{t1}")
    a(f"v_bfe_u32 v{t1}, v0, 4, 1")
    a(f"v_lshlrev_b32 v{vbase}, 3, v{t1}")
    a(f"v_xor_b32 v{vt1}, v{vt1}, v{vbase}")
    a(f"v_mul_u32_u24 v{vbase}, {UR-GR}, v{t1}")
    a(f"v_lshrrev_b32 v{t1}, 5, v0")
    a(f"v_lshl_add_u32 v{t0}, v{t1}, 3, v{t0}")
    a(f"v_lshl_add_u32 v{vbase}, v{t0}, 8, v{vbase}")
    a(f"v_and_b32 v{t0}, 1, v0")
    a(f"v_lshl_add_u32 v{vbase}, v{t0}, 3, v{vbase}")
    a(f"v_add_u32 v{vbase}, {GR}, v{vbase}")

def x_frag_addrs(a, vdst, srowbase, t0, t1, t2):
    a(f"v_and_b32 v{t0}, 31, v0")
    a(f"v_bfe_u32 v{t1}, v0, 1, 3")
    a(f"v_add_u32 v{t0}, s{srowbase}, v{t0}")
    a(f"v_lshlrev_b32 v{t0}, 7, v{t0}")
    a(f"v_lshrrev_b32 v{t2}, 5, v0")
    a(f"v_xor_b32 v{t1}, v{t1}, v{t2}")
    for ks in range(4):
        a(f"v_xor_b32 v{t2}, {2*ks}, v{t1}")
        a(f"v_lshl_add_u32 v{vdst+ks}, v{t2}, 4, v{t0}")

def nonce_check(a, vnon, t0):
    a.nonce_from(vnon)

def h_wave(a):
    vnon, vF0a, vF0d = 16, 22, 23
    vKA_, vKB_ = 32, 48
    t0, t1, t2, t3 = 64, 65, 66, 67
    w = S_A0
    sCH, sRH = 100, 101
    a(f"s_sub_u32 s{w}, s{S_WAVE}, 4")
    a(f"s_cmp_ge_u32 s{w}, 2")
    a("s_cbranch_scc1 L_side")
    def common_setup():
        a.srd(R_WS, S_WS, WS_BYTES); a.srd(R_E, S_SK, XB)
        a(f"s_lshr_b32 s{S_T1}, s{w}, 1")
        a(f"s_lshl_b32 s{sCH}, s{S_M}, 1")
        a(f"s_add_u32 s{sCH}, s{sCH}, s{S_T1}")
        a(f"s_and_b32 s{sRH}, s{w}, 1")
        a(f"s_lshr_b32 s{S_T1}, s{sCH}, 4")
        a(f"s_lshl_b32 s{S_T1}, s{S_T1}, 7")
        a(f"s_add_u32 s{S_T1}, s{S_T1}, {F0_OFF}")
        a(f"v_and_b32 v{t0}, 31, v0")
        a(f"v_lshlrev_b32 v{t0}, 2, v{t0}")
        a(f"v_add_u32 v{vF0a}, s{S_T1}, v{t0}")
    def nonce_load(vm):
        a(f"v_mov_b32 v{t0}, {EP_OFF}")
        a(f"buffer_load_dword v{vnon}, v{t0}, s[{R_WS}:{R_WS+3}], 0 offen sc1"); vm.issue("non")
    def k_loads(vm):
        a(f"s_lshl_b32 s{S_T1}, s{sCH}, 12")
        a(f"v_lshlrev_b32 v{t0}, 4, v0")
        a(f"v_add_u32 v{t1}, 4, v{t0}")
        for i in range(4):
            a(f"buffer_load_dwordx4 {vr(vKA_+4*i)}, v{t0}, s[{R_E}:{R_E+3}], s{S_T1} offen offset:{1024*i}"); vm.issue("K")
            a(f"buffer_load_dwordx4 {vr(vKB_+4*i)}, v{t1}, s[{R_E}:{R_E+3}], s{S_T1} offen offset:{1024*i}"); vm.issue("K")
    def f0_load(vm):
        a(f"buffer_load_dword v{vF0d}, v{vF0a}, s[{R_WS}:{R_WS+3}], 0 offen sc1"); vm.issue("f0")

    vm = VM(a)
    if "noprio" not in a.exp: a("s_setprio 2")
    vXe, vXo, vG, vU = 4, 5, 6, 7
    a(f"v_lshrrev_b32 v{t0}, 3, v0")
    a(f"v_mul_u32_u24 v{t0}, 896, v{t0}")
    a(f"v_lshrrev_b32 v{t1}, 4, v0")
    a(f"v_and_b32 v{t2}, 7, v0")
    a(f"v_xor_b32 v{t2}, v{t2}, v{t1}")
    a(f"v_lshl_add_u32 v{vXe}, v{t2}, 4, v{t0}")
    a(f"v_xor_b32 v{t2}, 4, v{t2}")
    a(f"v_lshl_add_u32 v{vXo}, v{t2}, 4, v{t0}")
    a(f"v_mul_u32_u24 v{t0}, 3584, v{t1}")
    a(f"v_and_b32 v{t2}, 15, v0")
    a(f"v_lshlrev_b32 v{t3}, 1, v{t1}")
    a(f"v_xor_b32 v{t2}, v{t2}, v{t3}")
    a(f"v_lshl_add_u32 v{vG}, v{t2}, 4, v{t0}")
    a(f"v_xor_b32 v{t2}, 8, v{t2}")
    a(f"v_lshl_add_u32 v{vU}, v{t2}, 4, v{t0}")
    sXs, sXd, sWs, sGd, sUd = S_A1, S_A2, S_A3, S_A4, S_A5
    a(f"s_lshl_b32 s{S_T0}, s{S_RT}, 7")
    a(f"s_lshl_b32 s{S_T1}, s{w}, 6")
    a(f"s_add_u32 s{S_T0}, s{S_T0}, s{S_T1}")
    a(f"s_mul_i32 s{sXs}, s{S_T0}, 896")
    a(f"s_lshl_b32 s{sXd}, s{w}, 13")
    a(f"s_mul_i32 s{S_T0}, s{w}, {32*3584}")
    a(f"s_lshl_b32 s{S_T1}, s{S_FC}, 8")
    a(f"s_add_u32 s{sWs}, s{S_T0}, s{S_T1}")
    a(f"s_add_u32 s{sGd}, s{sXd}, {GR}")
    a(f"s_add_u32 s{sUd}, s{sXd}, {UR}")
    a("s_waitcnt lgkmcnt(0)")
    a.srd(R_A, S_X, XB); a.srd(R_B, S_WG, WB); a.srd(R_C, S_WU, WB)
    def issue_stage(st, lo=0, hi=8):
        slot = st % 3
        for i in range(lo, hi):
            for (dst, voff, srd, src, step, base) in ((sXd, vXe if i % 2 == 0 else vXo, R_A, sXs, 8*896, st*128),
                                                      (sGd, vG, R_B, sWs, 4*3584, 64*st*3584), (sUd, vU, R_C, sWs, 4*3584, 64*st*3584)):
                a(f"s_add_u32 m0, s{dst}, {slot*SLOT + i*1024}")
                a(f"s_add_u32 s{S_T0}, s{src}, {base + i*step}")
                a(f"buffer_load_dwordx4 v{voff}, s[{srd}:{srd+3}], s{S_T0} offen lds")
                vm.issue(("st", st))
    issue_stage(0); issue_stage(1, 0, 5)
    a.stamp(0)
    common_setup()
    vCA, vSA, vCS, vST = 10, 11, 72, 80
    vh, vl, e0 = 68, 69, 88
    a(f"v_bfe_u32 v{t0}, v0, 4, 1")
    a(f"v_mul_u32_u24 v{t0}, 1792, v{t0}")
    a(f"v_and_b32 v{t1}, 15, v0")
    a(f"v_add_u32 v{t0}, v{t0}, v{t1}")
    a(f"s_lshl_b32 s{S_T1}, s{S_FC}, 7")
    a(f"s_lshl_b32 s{S_T2}, s{w}, 6")
    a(f"s_add_u32 s{S_T1}, s{S_T1}, s{S_T2}")
    a(f"v_add_u32 v{t0}, s{S_T1}, v{t0}")
    a(f"v_lshlrev_b32 v{t0}, 3, v{t0}")
    a(f"v_add_u32 v{vCA}, {CS_OFF}, v{t0}")
    a(f"s_lshl_b32 s{S_T1}, s{S_RT}, 7")
    a(f"s_add_u32 s{S_T1}, s{S_T1}, s{S_T2}")
    a(f"v_and_b32 v{t0}, 31, v0")
    a(f"v_add_u32 v{t0}, s{S_T1}, v{t0}")
    a(f"v_lshlrev_b32 v{t0}, 4, v{t0}")
    a(f"v_add_u32 v{vSA}, {SG_OFF}, v{t0}")
    def cs_load():
        for e in range(4):
            a(f"buffer_load_dwordx2 {vr(vCS+2*e, 2)}, v{vCA}, s[{R_WS}:{R_WS+3}], 0 offen offset:{128*e} sc1"); vm.issue("cs")
    def sg_load():
        for e in range(2):
            a(f"buffer_load_dwordx4 {vr(vST+4*e)}, v{vSA}, s[{R_WS}:{R_WS+3}], 0 offen offset:{512*e} sc1"); vm.issue("sg")
    def tag_check(regs, reload):
        L, Dn = a.uid("L_tag"), a.uid("L_tagd")
        a(f"s_mov_b32 s{S_BND}, {a.spin}")
        a.label(L)
        a(f"v_cmp_ne_u32 vcc, s{S_NONCE}, v{regs[0]}")
        for r in regs[1:]:
            a(f"v_cmp_ne_u32 s[{S_EX}:{S_EX+1}], s{S_NONCE}, v{r}")
            a("s_nop 1")
            a(f"s_or_b64 vcc, vcc, s[{S_EX}:{S_EX+1}]")
        a(f"s_cbranch_vccz {Dn}")
        keep = list(vm.q); reload()
        a("s_waitcnt vmcnt(0)")
        vm.q = keep
        a(f"s_sub_u32 s{S_BND}, s{S_BND}, 1")
        a(f"s_cmp_lg_u32 s{S_BND}, 0")
        a(f"s_cbranch_scc1 {L}")
        a.label(Dn)
    def split(vsrc, neg):
        sg = "-" if neg else ""
        a(f"v_cvt_pk_bf16_f32 v{vh}, {sg}v{vsrc}, {sg}v{vsrc}")
        a(f"v_and_b32 v{t2}, 0xffff0000, v{vh}")
        a(f"v_sub_f32_e64 v{t2}, {sg}v{vsrc}, v{t2}")
        a(f"v_cvt_pk_bf16_f32 v{vl}, v{t2}, v{t2}")
    for st in range(7):
        vm.wait(("st", st))
        if a.stop == "p1": a.stamp(3 + st)
        a("s_barrier")
        if st == 0: issue_stage(1, 5, 8)
        if st == 1: nonce_load(vm)
        if st == 3:
            assert not vm.has("non")
            nonce_check(a, vnon, t0)
        if st <= 4: issue_stage(st + 2)
        if st == 2:
            a(f"v_mov_b32 v{t0}, {CNT_L + 24}")
            a(f"v_mov_b32 v{t1}, 1")
            a("s_mov_b64 exec, 1")
            a(f"ds_add_u32 v{t0}, v{t1}")
            a("s_mov_b64 exec, -1")
        if st == 5:
            sg_load(); cs_load()
        if st == 6:
            vm.wait("cs")
            tag_check([vST + 1, vST + 3, vST + 5, vST + 7], sg_load)
            a(f"v_and_b32 v{t1}, 31, v0")
            a(f"s_lshl_b32 s{S_T1}, s{w}, 9")
            a(f"v_lshl_add_u32 v{t3}, v{t1}, 3, s{S_T1}")
            a(f"v_add_u32 v98, {STATS_L}, v{t3}")
            a(f"v_add_u32 v99, {XEXT}, v{t3}")
            for e in range(2):
                g = vST + 4*e
                a(f"v_mov_b32 v{g+1}, v{g+2}")
                a(f"ds_write_b64 v98, {vr(g, 2)} offset:{256*e}")
                split(g, True)
                f0 = e0 + 2*e
                a(f"v_and_b32 v{f0+1}, 0xffff, v{vh}")
                a(f"v_lshlrev_b32 v{t1}, 16, v{vl}")
                a(f"v_or_b32 v{f0}, v{t1}, v{f0+1}")
                a(f"ds_write_b64 v99, {vr(f0, 2)} offset:{256*e}")
            tag_check([vCS + 1, vCS + 3, vCS + 5, vCS + 7], cs_load)
            a(f"v_and_b32 v{t1}, 31, v0")
            a(f"s_lshl_b32 s{S_T1}, s{w}, 10")
            a(f"v_lshl_add_u32 v{t3}, v{t1}, 3, s{S_T1}")
            a(f"v_add_u32 v99, {WEXT}, v{t3}")
            for e in range(4):
                f0 = e0 + 4 + 2*(e & 1)
                split(vCS + 2*e, False)
                a(f"v_mov_b32 v{f0}, v{vh}")
                a(f"v_and_b32 v{f0+1}, 0xffff, v{vl}")
                a(f"ds_write_b64 v99, {vr(f0, 2)} offset:{256*e}")
            a(f"v_mov_b32 v{t1}, 0")
            a(f"v_mov_b32 v{t2}, {FAST_L}")
            a(f"ds_write_b32 v{t2}, v{t1}")
            a("s_waitcnt lgkmcnt(0)")
    a("s_branch L_htail")

    a.label("L_side")
    if "noprio" not in a.exp: a("s_setprio 2")
    vm = VM(a)
    vCA, vSA, vUo, vCS, vST = 4, 8, 10, 72, 80
    vh, vl, e0 = 68, 69, 88
    sW = S_A1
    a(f"s_sub_u32 s{sW}, s{w}, 2")
    sTB, sCG = S_A2, S_A3
    a(f"s_mul_i32 s{sTB}, s{S_M}, 9363")
    a(f"s_lshr_b32 s{sTB}, s{sTB}, 16")
    a(f"s_mul_i32 s{S_T1}, s{sTB}, 7")
    a(f"s_sub_u32 s{sCG}, s{S_M}, s{S_T1}")
    KR, VR, WR, KF, WF, AC = 100, 128, 144, 160, 174, 182
    vKo, vKv, vKw, vT = 186, 189, 190, 191
    a(f"s_lshl_b32 s{S_T0}, s{sTB}, 6")
    a(f"s_lshl_b32 s{S_T1}, s{sW}, 5")
    a(f"s_add_u32 s{S_T0}, s{S_T0}, s{S_T1}")
    a(f"v_lshrrev_b32 v{t0}, 3, v0")
    a(f"v_lshl_add_u32 v{t1}, v{t0}, 2, s{S_T0}")
    a(f"v_and_b32 v{t2}, 7, v0")
    a(f"s_lshl_b32 s{S_T1}, s{sCG}, 7")
    a(f"v_lshl_add_u32 v{t3}, v{t2}, 4, s{S_T1}")
    a(f"v_mov_b32 v{vT}, 896")
    a(f"v_mad_u32_u24 v{vKv}, v{t1}, v{vT}, v{t3}")
    for i in range(3):
        a(f"v_cmp_gt_u32 vcc, {3-i}, v{t1}")
        a(f"v_subrev_u32 v{vKo+i}, {(3-i)*896}, v{vKv}")
        a(f"v_mov_b32 v{vT}, 0x40000000")
        a(f"v_cndmask_b32 v{vKo+i}, v{vKo+i}, v{vT}, vcc")
    a(f"s_lshl_b32 s{S_T1}, s{sCG}, 9")
    a(f"v_lshl_add_u32 v{vKw}, v{t2}, 6, s{S_T1}")
    a(f"v_lshrrev_b32 v{t1}, 1, v{t0}")
    a(f"s_lshl_b32 s{S_T1}, s{sW}, 2")
    a(f"v_add_u32 v{t1}, s{S_T1}, v{t1}")
    a(f"v_xor_b32 v{t1}, v{t1}, v{t2}")
    a(f"v_lshlrev_b32 v{t1}, 4, v{t1}")
    a(f"v_lshl_add_u32 v{t1}, v{t2}, 10, v{t1}")
    a(f"v_and_b32 v{t0}, 1, v{t0}")
    a(f"v_sub_u32 v{t0}, 1, v{t0}")
    a(f"v_lshl_add_u32 v{t1}, v{t0}, 3, v{t1}")
    a(f"v_add_u32 v{vT}, {EXT}, v{t1}")
    a("s_waitcnt lgkmcnt(0)")
    a.srd(R_A, S_X, XB); a.srd(R_B, S_K, XB); a.srd(R_C, S_V, XB); a.srd(92, S_SH, D*4*2)
    def kv_loads():
        for i in range(3):
            a(f"buffer_load_dwordx4 {vr(KR+4*i)}, v{vKo+i}, s[{R_B}:{R_B+3}], 0 offen"); vm.issue("kvl")
        for i in range(4):
            a(f"buffer_load_dwordx4 {vr(KR+12+4*i)}, v{vKv}, s[{R_B}:{R_B+3}], 0 offen offset:{896*i}"); vm.issue("kvl")
        for i in range(4):
            a(f"buffer_load_dwordx4 {vr(VR+4*i)}, v{vKv}, s[{R_C}:{R_C+3}], 0 offen offset:{896*i}"); vm.issue("kvl")
        for i in range(4):
            a(f"buffer_load_dwordx4 {vr(WR+4*i)}, v{vKw}, s[92:95], 0 offen offset:{16*i}"); vm.issue("kvl")
    a.stamp(0)
    common_setup()
    a(f"v_mov_b32 v{t0}, {CNT_L}")
    for r in range(4): a(f"v_mov_b32 v{e0+r}, 0")
    a(f"ds_write_b128 v{t0}, {vr(e0)}")
    a(f"ds_write_b128 v{t0}, {vr(e0)} offset:16")
    a(f"v_mov_b32 v{t0}, {ZEXT}")
    a(f"ds_write_b64 v{t0}, {vr(e0, 2)}")
    vF0w = 9
    a(f"s_lshl_b32 s{S_T1}, s{sCG}, 2")
    a(f"s_lshl_b32 s{S_T2}, s{sW}, 1")
    a(f"s_add_u32 s{S_T1}, s{S_T1}, s{S_T2}")
    a(f"v_add_u32 v{t0}, s{S_T1}, v0")
    a(f"v_lshlrev_b32 v{t0}, 5, v{t0}")
    a(f"v_add_u32 v{t0}, s{sTB}, v{t0}")
    a(f"v_lshlrev_b32 v{t0}, 2, v{t0}")
    a(f"v_add_u32 v{vF0w}, {F0_OFF}, v{t0}")
    a(f"s_lshl_b32 s{S_T1}, s{sCG}, 6")
    a(f"s_lshl_b32 s{S_T0}, s{sW}, 5")
    a(f"s_add_u32 s{S_T1}, s{S_T1}, s{S_T0}")
    a(f"v_lshrrev_b32 v{t0}, 3, v0")
    a(f"v_add_u32 v{t0}, s{S_T1}, v{t0}")
    a(f"v_lshlrev_b32 v{t0}, 12, v{t0}")
    a(f"s_lshl_b32 s{S_T1}, s{sTB}, 7")
    a(f"s_add_u32 s{S_T1}, s{S_T1}, {UT_OFF}")
    a(f"v_add_u32 v{t0}, s{S_T1}, v{t0}")
    a(f"v_and_b32 v{t1}, 7, v0")
    a(f"s_lshl_b32 s{S_T1}, s{sW}, 2")
    a(f"v_xor_b32 v{t1}, s{S_T1}, v{t1}")
    for i in range(4):
        a(f"v_xor_b32 v{t2}, {i}, v{t1}")
        a(f"v_lshl_add_u32 v{vUo+i}, v{t2}, 4, v{t0}")
        if i: a(f"v_add_u32 v{vUo+i}, {8*4096*i}, v{vUo+i}")
    def kv_valu(j):
        for c in range(2):
            ch = 2*j + c
            a(f"v_lshlrev_b32 v{WF+4*c}, 16, v{WR+2*ch}"); a(f"v_and_b32 v{WF+4*c+1}, 0xffff0000, v{WR+2*ch}")
            a(f"v_lshlrev_b32 v{WF+4*c+2}, 16, v{WR+2*ch+1}"); a(f"v_and_b32 v{WF+4*c+3}, 0xffff0000, v{WR+2*ch+1}")
        for i in range(7):
            a(f"v_lshlrev_b32 v{KF+i}, 16, v{KR+4*i+j}"); a(f"v_and_b32 v{KF+7+i}, 0xffff0000, v{KR+4*i+j}")
        for c in range(2):
            kf, wf = KF + 7*c, WF + 4*c
            for t in range(4): a(f"v_mul_f32 v{AC+t}, v{wf}, v{kf+3+t}")
            for tap in range(1, 4):
                for t in range(4): a(f"v_fmac_f32 v{AC+t}, v{wf+tap}, v{kf+3+t-tap}")
            for t in range(4):
                a(f"v_and_b32 v{kf+t}, 0xffff0000, v{VR+4*t+j}" if c else f"v_lshlrev_b32 v{kf+t}, 16, v{VR+4*t+j}")
            for t in range(4): a(f"v_mul_f32 v{AC+t}, v{AC+t}, v{kf+t}")
            o = 70
            a(f"v_cvt_pk_bf16_f32 v{o}, v{AC+3}, v{AC+2}")
            a(f"v_cvt_pk_bf16_f32 v{o+1}, v{AC+1}, v{AC}")
            a(f"ds_write_b64 v{vT}, {vr(o, 2)} offset:{128*(2*j+c)}")
    for st in range(7):
        if a.stop == "p1": a.stamp(3 + st)
        a("s_barrier")
        if st == 1:
            nonce_load(vm)
        if st == 2:
            lds_wait(a, CNT_L + 24, t0, t1, 2, 1)
            kv_loads()
        if st == 3:
            vm.wait("non"); nonce_check(a, vnon, t0)
            a(f"v_mov_b32 v{t0}, s{S_NONCE}")
            a(f"v_mov_b32 v{t1}, {NONCE_L}")
            a(f"ds_write_b32 v{t1}, v{t0}")
            Lns = a.uid("L_nosg")
            a(f"s_cmp_lg_u32 s{sW}, 0")
            a(f"s_cbranch_scc1 {Lns}")
            a(f"v_lshlrev_b32 v{t0}, 3, v0")
            a(f"v_add_u32 v{t0}, {STG_L}, v{t0}")
            a(f"ds_read_b64 {vr(t2, 2)}, v{t0}")
            a(f"v_and_b32 v{t0}, 3, v0")
            a(f"v_lshrrev_b32 v{t1}, 2, v0")
            a(f"v_mul_u32_u24 v{t1}, 56, v{t1}")
            a(f"v_add_u32 v{t0}, v{t0}, v{t1}")
            a(f"s_lshl_b32 s{S_T1}, s{S_FC}, 2")
            a(f"v_add_u32 v{t0}, s{S_T1}, v{t0}")
            a(f"v_cmp_gt_u32 vcc, 128, v{t0}")
            a(f"s_lshl_b32 s{S_T1}, s{S_RT}, 7")
            a(f"v_add_u32 v{t0}, s{S_T1}, v{t0}")
            a(f"v_lshlrev_b32 v{t0}, 4, v{t0}")
            a(f"v_add_u32 v{t0}, {SG_OFF}, v{t0}")
            a("s_and_b64 vcc, vcc, 0xfff")
            a("s_waitcnt lgkmcnt(0)")
            a(f"v_mov_b32 v{vST}, v{t2}")
            a(f"v_mov_b32 v{vST+1}, s{S_NONCE}")
            a(f"v_mov_b32 v{vST+2}, v{t3}")
            a(f"v_mov_b32 v{vST+3}, s{S_NONCE}")
            a("s_mov_b64 exec, vcc")
            a(f"buffer_store_dwordx4 {vr(vST)}, v{t0}, s[{R_WS}:{R_WS+3}], 0 offen sc1")
            if "fast" in a.exp:
                a(f"s_getreg_b32 s{S_T2}, hwreg(HW_REG_XCC_ID, 0, 4)")
                a(f"s_and_b32 s{S_T0}, s{S_M}, 7")
                a(f"s_mul_i32 s{S_T0}, s{S_T0}, 28")
                a(f"s_lshr_b32 s{S_T1}, s{S_M}, 3")
                a(f"s_add_u32 s{S_T0}, s{S_T0}, s{S_T1}")
                a(f"s_lshl_b32 s{S_T0}, s{S_T0}, 3")
                a(f"s_add_u32 s{S_T0}, s{S_T0}, {XG_OFF}")
                a("s_mov_b64 exec, 1")
                a(f"v_mov_b32 v{t2}, s{S_T2}")
                a(f"v_mov_b32 v{t3}, s{S_NONCE}")
                a(f"v_mov_b32 v{t0}, 0")
                a(f"buffer_store_dwordx2 {vr(t2, 2)}, v{t0}, s[{R_WS}:{R_WS+3}], s{S_T0} offen sc1")
                a("s_mov_b64 exec, -1")
            a("s_mov_b64 exec, -1")
            a.label(Lns)
            vm.wait("kvl"); kv_valu(0); kv_valu(1)
        if st == 4:
            kv_valu(2); kv_valu(3); a("s_waitcnt lgkmcnt(0)")
        if st == 5:
            a(f"s_lshl_b32 s{S_T1}, s{sW}, 12")
            a(f"s_add_u32 s{S_T1}, s{S_T1}, {EXT}")
            a(f"v_lshlrev_b32 v{t0}, 4, v0")
            a(f"v_add_u32 v{t0}, s{S_T1}, v{t0}")
            for i in range(4): a(f"ds_read_b128 {vr(100+4*i)}, v{t0} offset:{1024*i}")
            for i in range(4):
                a(f"s_waitcnt lgkmcnt({3-i})")
                a(f"buffer_store_dwordx4 {vr(100+4*i)}, v{vUo+i}, s[{R_WS}:{R_WS+3}], 0 offen sc1"); vm.issue("ut")
            a(f"s_lshl_b32 s{S_T1}, s{S_M}, 1")
            a(f"s_add_u32 s{S_T1}, s{S_T1}, s{sW}")
            a(f"s_lshl_b32 s{S_T1}, s{S_T1}, 12")
            a(f"v_lshlrev_b32 v{t0}, 4, v0")
            a(f"v_add_u32 v{t1}, 4, v{t0}")
            for i in range(4):
                a(f"buffer_load_dwordx4 {vr(vKA_+4*i)}, v{t0}, s[{R_E}:{R_E+3}], s{S_T1} offen offset:{1024*i}"); vm.issue("K")
                a(f"buffer_load_dwordx4 {vr(vKB_+4*i)}, v{t1}, s[{R_E}:{R_E+3}], s{S_T1} offen offset:{1024*i}"); vm.issue("K")
        if st == 6:
            vm.wait("ut")
            a(f"v_mov_b32 v{t0}, s{S_NONCE}")
            a("s_mov_b64 exec, 3")
            a(f"buffer_store_dword v{t0}, v{vF0w}, s[{R_WS}:{R_WS+3}], 0 offen sc1"); vm.issue("sig")
            a("s_mov_b64 exec, -1")
            vm.wait("K")
            sKC_, sUB_ = S_T2, S_T3
            a(f"s_mul_i32 s{sKC_}, s{sW}, {KCH}")
            a(f"s_add_u32 s{sKC_}, s{sKC_}, {CV}")
            a(f"s_mul_i32 s{sUB_}, s{sW}, {UCH}")
            a(f"s_add_u32 s{sUB_}, s{sUB_}, {UB0}")
            a(f"v_lshlrev_b32 v{t3}, 4, v0")
            a(f"v_add_u32 v{t1}, s{sKC_}, v{t3}")
            for i in range(4):
                a(f"ds_write_b128 v{t1}, {vr(vKA_+4*i)} offset:{32 + 1024*i}")
            a(f"v_lshlrev_b32 v{t2}, 16, v{vKA_}")
            for i in range(4):
                for j in range(4):
                    a(f"v_alignbit_b32 v{vKB_+4*i+j}, v{vKB_+4*i+j}, v{vKA_+4*i+j}, 16")
            for i in range(4):
                a(f"ds_write_b128 v{t1}, {vr(vKB_+4*i)} offset:{4160 + 32 + 1024*i}")
            a(f"v_readfirstlane_b32 s{S_T1}, v{t2}")
            a(f"v_lshlrev_b32 v{t1}, 2, v0")
            a(f"v_add_u32 v{t1}, s{sKC_}, v{t1}")
            a("v_cmp_eq_u32 vcc, 7, v0")
            a(f"v_mov_b32 v{t2}, s{S_T1}")
            a(f"v_mov_b32 v{e0}, 0")
            a(f"v_cndmask_b32 v{t2}, 0, v{t2}, vcc")
            a("s_mov_b64 exec, 0xff")
            a(f"ds_write_b32 v{t1}, v{e0}")
            a(f"ds_write_b32 v{t1}, v{t2} offset:4160")
            a("s_mov_b64 exec, -1")
            a(f"v_mov_b32 v{e0+1}, 0")
            a(f"v_lshlrev_b32 v{t1}, 3, v0")
            a(f"v_add_u32 v{t2}, s{sUB_}, v{t1}")
            a(f"ds_write_b64 v{t2}, {vr(e0, 2)}")
            a("s_waitcnt lgkmcnt(0)")
    a.label("L_htail")
    a.stamp(1)
    a("s_barrier")
    a.stamp(2)
    if a.stop == "p1":
        a("s_waitcnt vmcnt(0)"); a("s_barrier"); a.stamps_out(10); a("s_endpgm"); return
    if "noprio" not in a.exp: a("s_setprio 1")
    sUB, sKC = S_A2, S_A1
    a(f"s_lshr_b32 s{S_T0}, s{w}, 1")
    a(f"s_mul_i32 s{sUB}, s{S_T0}, {UCH}")
    a(f"s_add_u32 s{sUB}, s{sUB}, {UB0}")
    a(f"s_mul_i32 s{sKC}, s{S_T0}, {KCH}")
    a(f"s_add_u32 s{sKC}, s{sKC}, {CV}")
    a.poll(vF0a, t1, 64, sleep=16)
    a(f"s_lshl_b32 s{S_T1}, s{sCH}, 12")
    a(f"s_add_u32 s{S_T1}, s{S_T1}, {UT_OFF}")
    a(f"v_lshlrev_b32 v{t0}, 4, v0")
    for i in range(4):
        a(f"s_add_u32 m0, s{sUB}, {512 + 1024*i}")
        a(f"s_add_u32 s{S_T2}, s{S_T1}, {1024*i}")
        a(f"buffer_load_dwordx4 v{t0}, s[{R_WS}:{R_WS+3}], s{S_T2} offen sc1 lds")
    a.stamp(3)
    if "noconv" not in a.exp: conv(a, w, sCH, sRH, sUB, sKC)
    a.stamp(5)
    final_h(a, w)

def lds_pair_sync(a, vaddr, vone, vtmp, target):
    L, Dn = a.uid("L_ps"), a.uid("L_psd")
    a("s_mov_b64 exec, 1")
    a(f"ds_add_u32 v{vaddr}, v{vone}")
    a("s_mov_b64 exec, -1")
    a(f"s_mov_b32 s{S_BND}, {a.spin}")
    a.label(L)
    a(f"ds_read_b32 v{vtmp}, v{vaddr}")
    a("s_waitcnt lgkmcnt(0)")
    a(f"v_readfirstlane_b32 s{S_T0}, v{vtmp}")
    a("s_nop 0")
    a(f"s_cmp_ge_u32 s{S_T0}, {target}")
    a(f"s_cbranch_scc1 {Dn}")
    a(f"s_sub_u32 s{S_BND}, s{S_BND}, 1")
    a(f"s_cmp_lg_u32 s{S_BND}, 0")
    a(f"s_cbranch_scc1 {L}")
    a.label(Dn)

def conv(a, w, sCH, sRH, sUB, sKC):
    t0, t1, t2, t3 = 64, 65, 66, 67
    a(f"s_lshl_b32 s{S_T0}, s{S_M}, 2")
    a(f"s_load_dword s{S_A4}, s[{S_SD}:{S_SD+1}], s{S_T0}")
    vKA, vUB = 8, 12
    a(f"v_and_b32 v{t0}, 15, v0")
    a(f"v_lshrrev_b32 v{t1}, 5, v0")
    a(f"v_bfe_u32 v{t2}, v0, 4, 1")
    a(f"v_lshlrev_b32 v{t3}, 4, v{t1}")
    a(f"v_add_u32 v{t3}, v{t3}, v{t0}")
    a(f"v_add_u32 v{t3}, 9, v{t3}")
    a(f"v_lshlrev_b32 v{vUB}, 3, v{t2}")
    a(f"v_sub_u32 v{t3}, v{t3}, v{vUB}")
    a(f"v_and_b32 v{vUB}, 1, v{t3}")
    a(f"v_mul_u32_u24 v{vUB}, 4158, v{vUB}")
    a(f"v_lshl_add_u32 v{t3}, v{t3}, 1, v{vUB}")
    a(f"s_lshl_b32 s{S_T1}, s{sRH}, 8")
    a(f"s_add_u32 s{S_T2}, s{sKC}, s{S_T1}")
    a(f"v_add_u32 v{vKA}, s{S_T2}, v{t3}")
    for i in range(1, 4): a(f"v_add_u32 v{vKA+i}, {1024*i}, v{vKA}")
    a(f"v_sub_u32 v{t3}, v{t0}, v{t1}")
    a(f"v_lshlrev_b32 v{t3}, 5, v{t3}")
    a(f"v_lshl_add_u32 v{t3}, v{t2}, 4, v{t3}")
    a(f"v_add_u32 v{t3}, {64 + 256}, v{t3}")
    a(f"s_sub_u32 s{S_T2}, s{sUB}, s{S_T1}")
    a(f"v_add_u32 v{vUB}, s{S_T2}, v{t3}")
    vUE, vYO, vXA, vCN, vOne = 13, 14, 15, 16, 17
    a(f"v_lshlrev_b32 v{t3}, 5, v{t0}")
    a(f"v_lshl_add_u32 v{t3}, v{t1}, 4, v{t3}")
    a(f"v_lshlrev_b32 v{vUE}, 3, v{t2}")
    a(f"v_sub_u32 v{t3}, v{t3}, v{vUE}")
    a(f"v_add_u32 v{t3}, 520, v{t3}")
    a(f"s_lshl_b32 s{S_T1}, s{sRH}, 11")
    a(f"s_add_u32 s{S_T2}, s{sUB}, s{S_T1}")
    a(f"v_add_u32 v{vUE}, s{S_T2}, v{t3}")
    a(f"v_lshrrev_b32 v{t3}, 4, v0")
    a(f"v_lshlrev_b32 v{t3}, 3, v{t3}")
    a(f"v_lshl_add_u32 v{vYO}, v{t0}, 5, v{t3}")
    a(f"v_lshlrev_b32 v{t3}, 4, v0")
    a(f"v_add_u32 v{vXA}, s{sKC}, v{t3}")
    a(f"s_lshr_b32 s{S_T1}, s{w}, 1")
    a(f"s_lshl_b32 s{S_T1}, s{S_T1}, 2")
    a(f"s_add_u32 s{S_T1}, s{S_T1}, {CNT_L}")
    a(f"v_mov_b32 v{vCN}, s{S_T1}")
    a(f"v_mov_b32 v{vOne}, 1")
    a("s_waitcnt vmcnt(0) lgkmcnt(0)")
    a.stamp(4)
    ACC = 224
    AS, BS = (96, 160), (128, 192)
    def loads(rr):
        s = rr & 1; L = []
        for x in range(8):
            L.append(f"ds_read_b128 {vr(BS[s]+4*x)}, v{vUB} offset:{512*x + 64*(3-rr)}")
            o = 128*(x & 1) + 16*rr
            L.append(f"ds_read2_b32 {vr(AS[s]+4*x, 2)}, v{vKA+(x>>1)} offset0:{o} offset1:{o+1}")
            L.append(f"ds_read2_b32 {vr(AS[s]+4*x+2, 2)}, v{vKA+(x>>1)} offset0:{o+2} offset1:{o+3}")
        return L
    for l in loads(0): a(l)
    for rr in range(4):
        a("s_waitcnt lgkmcnt(0)")
        nxt = loads(rr + 1) if rr < 3 else []
        s = rr & 1; k = 0
        for x in range(8):
            for c in range(x, 8):
                cin = "0" if (rr == 0 and x == 0) else vr(ACC+4*c)
                a(f"v_mfma_f32_16x16x32_bf16 {vr(ACC+4*c)}, {vr(AS[s]+4*x)}, {vr(BS[s]+4*(c-x))}, {cin}")
                if nxt and k < len(nxt): a(nxt[k]); k += 1
        while nxt and k < len(nxt): a(nxt[k]); k += 1
    a.stamp(9)
    lds_pair_sync(a, vCN, vOne, t0, 2)
    Lr1, Lrd = a.uid("L_r1"), a.uid("L_rd")
    a(f"s_cmp_eq_u32 s{sRH}, 1")
    a(f"s_cbranch_scc1 {Lr1}")
    for c in range(4): a(f"ds_write_b128 v{vXA}, {vr(ACC+16+4*c)} offset:{1024*c}")
    a(f"s_branch {Lrd}")
    a.label(Lr1)
    for c in range(4):
        a(f"ds_write_b128 v{vXA}, {vr(ACC+4*c)} offset:{4096 + 1024*c}")
    a("s_waitcnt lgkmcnt(0)")
    for c in range(16): a(f"v_mov_b32 v{ACC+c}, v{ACC+16+c}")
    a.label(Lrd)
    a("s_waitcnt lgkmcnt(0)")
    lds_pair_sync(a, vCN, vOne, t0, 4)
    a(f"s_xor_b32 s{S_T1}, s{sRH}, 1")
    a(f"s_lshl_b32 s{S_T1}, s{S_T1}, 12")
    a(f"v_add_u32 v{vXA}, s{S_T1}, v{vXA}")
    for c in range(4): a(f"ds_read_b128 {vr(128+4*c)}, v{vXA} offset:{1024*c}")
    for c in range(4): a(f"ds_read_b64 {vr(96+2*c, 2)}, v{vUE} offset:{512*c}")
    a(f"s_lshr_b32 s{S_T1}, s{w}, 1")
    a(f"s_lshl_b32 s{S_T1}, s{S_T1}, 4")
    a(f"s_lshr_b32 s{S_A4}, s{S_A4}, s{S_T1}")
    a(f"s_lshl_b32 s{S_A4}, s{S_A4}, 16")
    a(f"s_lshl_b32 s{S_T1}, s{sCH}, 12")
    a(f"s_lshl_b32 s{S_T2}, s{sRH}, 11")
    a(f"s_add_u32 s{S_T1}, s{S_T1}, s{S_T2}")
    a(f"s_add_u32 s{S_T1}, s{S_T1}, {YT_OFF}")
    a("s_waitcnt lgkmcnt(0)")
    for c in range(4):
        d0, d1 = 96 + 2*c, 97 + 2*c
        u = 144
        a(f"v_and_b32 v{u}, 0xffff0000, v{d1}")
        a(f"v_lshlrev_b32 v{u+1}, 16, v{d1}")
        a(f"v_and_b32 v{u+2}, 0xffff0000, v{d0}")
        a(f"v_lshlrev_b32 v{u+3}, 16, v{d0}")
        for i in range(4): a(f"v_add_f32 v{ACC+4*c+i}, v{ACC+4*c+i}, v{128+4*c+i}")
        for i in range(4): a(f"v_fmac_f32 v{ACC+4*c+i}, s{S_A4}, v{u+i}")
        o = 148 + 2*c
        a(f"v_cvt_pk_bf16_f32 v{o}, v{ACC+4*c}, v{ACC+4*c+1}")
        a(f"v_cvt_pk_bf16_f32 v{o+1}, v{ACC+4*c+2}, v{ACC+4*c+3}")
        a(f"buffer_store_dwordx2 {vr(o, 2)}, v{vYO}, s[{R_WS}:{R_WS+3}], s{S_T1} offen offset:{512*c} sc1")
    a(f"s_lshr_b32 s{S_T1}, s{sCH}, 6")
    a(f"s_lshl_b32 s{S_T1}, s{S_T1}, 1")
    a(f"s_add_u32 s{S_T1}, s{S_T1}, s{sRH}")
    a(f"s_lshl_b32 s{S_T1}, s{S_T1}, 6")
    a(f"s_and_b32 s{S_T2}, s{sCH}, 63")
    a(f"s_add_u32 s{S_T1}, s{S_T1}, s{S_T2}")
    a(f"s_lshl_b32 s{S_T1}, s{S_T1}, 2")
    a(f"s_add_u32 s{S_T1}, s{S_T1}, {F2_OFF}")
    if a.prof: a(f"s_mov_b32 s{S_A5}, s{S_T1}"); a.stamp(1); a(f"s_mov_b32 s{S_T1}, s{S_A5}")
    a("s_waitcnt vmcnt(0)")
    a.signal(S_T1, t0, t1)

def lds_wait(a, addr, vaddr, vtmp, target, sleep):
    L, Dn = a.uid("L_lw"), a.uid("L_lwd")
    a(f"v_mov_b32 v{vaddr}, {addr}")
    a(f"s_mov_b32 s{S_BND}, {a.spin}")
    a.label(L)
    a(f"ds_read_b32 v{vtmp}, v{vaddr}")
    a("s_waitcnt lgkmcnt(0)")
    a(f"v_readfirstlane_b32 s{S_T3}, v{vtmp}")
    a("s_nop 0")
    a(f"s_cmp_ge_u32 s{S_T3}, {target}")
    a(f"s_cbranch_scc1 {Dn}")
    a(f"s_sleep {sleep}")
    a(f"s_sub_u32 s{S_BND}, s{S_BND}, 1")
    a(f"s_cmp_lg_u32 s{S_BND}, 0")
    a(f"s_cbranch_scc1 {L}")
    a.label(Dn)

def final_h(a, w):
    t0, t1, t2, t3 = 64, 65, 66, 67
    vXo = 8
    BASE = 16
    RS2 = 32
    XD = 36
    YD = 44
    ST = 52
    if "noprio" not in a.exp: a("s_setprio 0")
    a(f"v_lshrrev_b32 v{t0}, 3, v0")
    a(f"v_mul_u32_u24 v{t0}, 896, v{t0}")
    a(f"v_and_b32 v{t1}, 7, v0")
    a(f"v_lshl_add_u32 v{vXo}, v{t1}, 4, v{t0}")
    sXO = S_A1
    a(f"s_lshl_b32 s{S_T0}, s{S_RB}, 6")
    a(f"s_lshl_b32 s{S_T1}, s{w}, 4")
    a(f"s_add_u32 s{S_T0}, s{S_T0}, s{S_T1}")
    a(f"s_mul_i32 s{sXO}, s{S_T0}, 896")
    a(f"s_lshl_b32 s{S_T1}, s{S_CT}, 7")
    a(f"s_add_u32 s{sXO}, s{sXO}, s{S_T1}")
    a(f"s_add_u32 s{S_T2}, s{sXO}, {8*896}")
    a(f"buffer_load_dwordx4 {vr(XD)}, v{vXo}, s[{R_A}:{R_A+3}], s{sXO} offen")
    a(f"buffer_load_dwordx4 {vr(XD+4)}, v{vXo}, s[{R_A}:{R_A+3}], s{S_T2} offen")
    a(f"s_lshl_b32 s{S_T1}, s{S_PAR}, 6")
    a(f"s_lshl_b32 s{S_T2}, s{w}, 4")
    a(f"s_add_u32 s{S_T1}, s{S_T1}, s{S_T2}")
    a(f"v_lshrrev_b32 v{t0}, 3, v0")
    a(f"v_add_u32 v{t0}, s{S_T1}, v{t0}")
    a(f"v_lshlrev_b32 v{t0}, 3, v{t0}")
    a(f"v_add_u32 v{t0}, {STATS_L}, v{t0}")
    a(f"ds_read_b64 {vr(ST, 2)}, v{t0}")
    a(f"ds_read_b64 {vr(ST+2, 2)}, v{t0} offset:64")
    lds_wait(a, CNT_L + 12, t0, t1, 4, 4)
    a(f"s_lshl_b32 s{S_T1}, s{S_CT}, 9")
    a(f"s_lshr_b32 s{S_T2}, s{S_RB}, 4")
    a(f"s_lshl_b32 s{S_T2}, s{S_T2}, 8")
    a(f"s_add_u32 s{S_T1}, s{S_T1}, s{S_T2}")
    a(f"s_lshl_b32 s{S_T2}, s{w}, 6")
    a(f"s_add_u32 s{S_T1}, s{S_T1}, s{S_T2}")
    a(f"s_add_u32 s{S_T1}, s{S_T1}, {F2_OFF}")
    a(f"v_and_b32 v{t0}, 15, v0")
    a(f"v_lshlrev_b32 v{t0}, 2, v{t0}")
    a(f"v_add_u32 v{t0}, s{S_T1}, v{t0}")
    if "noconv" not in a.exp and "nopoll2" not in a.exp: a.poll(t0, t1, 16, sleep=8)
    a.stamp(6)
    a(f"s_lshl_b32 s{S_T1}, s{S_CT}, 6")
    a(f"s_lshl_b32 s{S_T2}, s{w}, 4")
    a(f"s_add_u32 s{S_T1}, s{S_T1}, s{S_T2}")
    a(f"s_lshl_b32 s{S_T1}, s{S_T1}, 12")
    a(f"s_lshl_b32 s{S_T2}, s{S_RB}, 7")
    a(f"s_add_u32 s{S_T1}, s{S_T1}, s{S_T2}")
    a(f"s_add_u32 s{S_T1}, s{S_T1}, {YT_OFF}")
    a(f"s_add_u32 s{S_T2}, s{S_T1}, {8*4096}")
    a(f"v_lshrrev_b32 v{t0}, 3, v0")
    a(f"v_lshlrev_b32 v{t0}, 12, v{t0}")
    a(f"v_and_b32 v{t1}, 7, v0")
    a(f"v_lshl_add_u32 v{t0}, v{t1}, 4, v{t0}")
    a(f"buffer_load_dwordx4 {vr(YD)}, v{t0}, s[{R_WS}:{R_WS+3}], s{S_T1} offen sc1")
    a(f"buffer_load_dwordx4 {vr(YD+4)}, v{t0}, s[{R_WS}:{R_WS+3}], s{S_T2} offen sc1")
    a(f"v_lshrrev_b32 v{t0}, 3, v0")
    a(f"v_lshlrev_b32 v{t0}, 7, v{t0}")
    a(f"s_lshl_b32 s{S_T1}, s{w}, 1")
    a(f"v_xor_b32 v{t1}, s{S_T1}, v{t1}")
    a(f"v_lshl_add_u32 v{t2}, v{t1}, 4, v{t0}")
    a(f"v_xor_b32 v{t1}, 1, v{t1}")
    a(f"v_lshl_add_u32 v{t3}, v{t1}, 4, v{t0}")
    a(f"s_lshl_b32 s{S_T1}, s{w}, 11")
    a(f"s_add_u32 s{S_T1}, s{S_T1}, {EXT}")
    a(f"v_add_u32 v{t2}, s{S_T1}, v{t2}")
    a(f"v_add_u32 v{t3}, s{S_T1}, v{t3}")
    a("s_waitcnt vmcnt(0)")
    a(f"ds_write_b128 v{t2}, {vr(YD)}")
    a(f"ds_write_b128 v{t3}, {vr(YD+4)} offset:1024")
    a(f"v_mov_b32 v{t0}, {CNT_L + 8}")
    a(f"v_mov_b32 v{t1}, 1")
    a("s_waitcnt lgkmcnt(0)")
    lds_pair_sync(a, t0, t1, t2, 4)
    a(f"v_and_b32 v{t1}, 7, v0")
    a(f"s_lshl_b32 s{S_T1}, s{w}, 1")
    a(f"v_xor_b32 v{t2}, s{S_T1}, v{t1}")
    a(f"v_lshlrev_b32 v{t1}, 10, v{t1}")
    a(f"v_lshrrev_b32 v{t0}, 3, v0")
    a(f"v_lshl_add_u32 v{t1}, v{t0}, 1, v{t1}")
    a(f"v_add_u32 v{t1}, {EXT}, v{t1}")
    a(f"v_lshl_add_u32 v{t0}, v{t2}, 4, v{t1}")
    a(f"v_xor_b32 v{t2}, 1, v{t2}")
    a(f"v_lshl_add_u32 v{t2}, v{t2}, 4, v{t1}")
    YG = 96
    for q in range(2):
        for e in range(8):
            a(f"ds_read_u16 v{YG+8*q+e}, v{(t0, t2)[q]} offset:{128*e}")
    a("s_waitcnt lgkmcnt(0)")
    for q in range(2):
        mean, rstd = ST + 2*q, ST + 2*q + 1
        a(f"v_mul_f32 v{RS2+q}, v{rstd}, v{rstd}")
        for e in range(8):
            xs = XD + 4*q + (e >> 1)
            if e & 1: a(f"v_and_b32 v{t0}, 0xffff0000, v{xs}")
            else:     a(f"v_lshlrev_b32 v{t0}, 16, v{xs}")
            a(f"v_lshlrev_b32 v{t2}, 16, v{YG+8*q+e}")
            a(f"v_sub_f32 v{t3}, v{t0}, v{mean}")
            a(f"v_mul_f32 v{t3}, v{t3}, v{rstd}")
            a(f"v_fma_f32 v{BASE+8*q+e}, v{t3}, v{t2}, v{t0}")
    vF0, vF1 = 12, 13
    a(f"v_lshrrev_b32 v{t0}, 3, v0")
    a(f"s_lshl_b32 s{S_T1}, s{w}, 4")
    a(f"v_add_u32 v{t0}, s{S_T1}, v{t0}")
    a(f"v_mul_u32_u24 v{t0}, {PROW}, v{t0}")
    a(f"v_and_b32 v{t1}, 7, v0")
    a(f"v_lshl_add_u32 v{vF0}, v{t1}, 5, v{t0}")
    a(f"v_add_u32 v{vF1}, {2*RING}, v{vF0}")
    a.srd(R_B, S_OUT, XB)
    a.stamp(7)
    a("s_barrier")
    P = 128
    for q in range(2):
        for kq in range(4):
            base = vF0 if kq < 2 else vF1
            for hh in range(2):
                a(f"ds_read_b128 {vr(P+32*q+8*kq+4*hh)}, v{base} offset:{(kq & 1)*RING + q*8*PROW + 16*hh}")
    for q in range(2):
        a(f"s_waitcnt lgkmcnt({8 if q == 0 else 0})")
        p = P + 32*q
        for e in range(8):
            a(f"v_add_f32 v{p+e}, v{p+e}, v{p+8+e}")
            a(f"v_add_f32 v{p+16+e}, v{p+16+e}, v{p+24+e}")
        for e in range(8):
            a(f"v_add_f32 v{p+e}, v{p+e}, v{p+16+e}")
        for e in range(8):
            a(f"v_fmac_f32 v{BASE+8*q+e}, v{RS2+q}, v{p+e}")
        for e in range(4):
            a(f"v_cvt_pk_bf16_f32 v{XD+4*q+e}, v{BASE+8*q+2*e}, v{BASE+8*q+2*e+1}")
        so = sXO
        if q == 1:
            a(f"s_add_u32 s{S_T2}, s{sXO}, {8*896}"); so = S_T2
        a(f"buffer_store_dwordx4 {vr(XD+4*q)}, v{vXo}, s[{R_B}:{R_B+3}], s{so} offen" + (" sc1" if "outsc1" in a.exp else " nt" if "outnt" in a.exp else ""))
    a.stamp(8)
    if "span" in a.exp:
        a("s_waitcnt vmcnt(0)")
        a(f"s_cmp_lg_u32 s{S_WAVE}, 4")
        a("s_cbranch_scc1 L_hout")
        a("s_memrealtime s[88:89]")
        a("s_waitcnt lgkmcnt(0)")
        a("v_mov_b32 v2, s88"); a("v_mov_b32 v3, 12")
        a("s_mov_b64 exec, 1")
        a(f"global_atomic_umax v3, v2, s[{S_DBG}:{S_DBG+1}]")
        a("s_mov_b64 exec, -1")
    a.label("L_hout")
    a.stamps_out(10)
    a("s_endpgm")

def row_stats(a, part):
    t0, t1 = 4, 5
    XD, SS = 24, 36
    if part == 1: return row_stats2(a, XD, SS)
    a.srd(R_B, S_X, XB)
    a(f"s_lshl_b32 s{S_T0}, s{S_FC}, 2")
    a(f"s_add_u32 s{S_T0}, s{S_T0}, s{S_WAVE}")
    a(f"s_lshl_b32 s{S_T1}, s{S_RT}, 7")
    a(f"s_add_u32 s{S_T1}, s{S_T1}, s{S_T0}")
    a(f"s_mul_i32 s{S_T1}, s{S_T1}, 896")
    a(f"v_mov_b32 v{t1}, 0x40000000")
    a("v_cmp_gt_u32 vcc, 56, v0")
    a(f"s_add_u32 s{S_T2}, s{S_T1}, {56*896}")
    a(f"s_add_u32 s{S_T3}, s{S_T1}, {112*896}")
    a(f"v_cndmask_b32 v{t0}, v{t1}, v17, vcc")
    a(f"buffer_load_dwordx4 {vr(XD)}, v{t0}, s[{R_B}:{R_B+3}], s{S_T1} offen")
    a(f"buffer_load_dwordx4 {vr(XD+4)}, v{t0}, s[{R_B}:{R_B+3}], s{S_T2} offen")
    a(f"s_cmp_lt_u32 s{S_T0}, 16")
    a(f"s_cselect_b32 s{S_T3}, s{S_T3}, s{S_T2}")
    a(f"buffer_load_dwordx4 {vr(XD+8)}, v{t0}, s[{R_B}:{R_B+3}], s{S_T3} offen")

def row_stats2(a, XD, SS):
    L = []
    lo, hi, M = 42, 43, 44
    L.append("s_waitcnt vmcnt(0)")
    for j in range(3):
        for q in range(4):
            d = XD + 4*j + q
            L += [f"v_lshlrev_b32 v{lo}, 16, v{d}", f"v_and_b32 v{hi}, 0xffff0000, v{d}"]
            if q == 0: L += [f"v_add_f32 v{SS+j}, v{lo}, v{hi}", f"v_mul_f32 v{SS+3+j}, v{lo}, v{lo}"]
            else:      L += [f"v_add_f32 v{SS+j}, v{SS+j}, v{lo}", f"v_fmac_f32 v{SS+3+j}, v{lo}, v{lo}", f"v_add_f32 v{SS+j}, v{SS+j}, v{hi}"]
            L.append(f"v_fmac_f32 v{SS+3+j}, v{hi}, v{hi}")
    L += ["s_nop 0"]
    for mod in ("row_shr:1 row_mask:0xf", "row_shr:2 row_mask:0xf", "row_shr:4 row_mask:0xf", "row_shr:8 row_mask:0xf",
                "row_bcast:15 row_mask:0xa", "row_bcast:31 row_mask:0xc"):
        L += [f"v_add_f32_dpp v{SS+r}, v{SS+r}, v{SS+r} {mod} bank_mask:0xf" for r in range(6)]
    for j in range(3):
        m, q = M + 2*j, SS + 3 + j
        L += [f"v_mul_f32 v{m}, {1.0/448.0!r}, v{SS+j}",
              f"v_mul_f32 v{q}, {1.0/448.0!r}, v{q}",
              f"v_fma_f32 v{q}, -v{m}, v{m}, v{q}",
              f"v_max_f32 v{q}, 0, v{q}",
              f"v_add_f32 v{q}, 0x3727c5ac, v{q}",
              f"v_rsq_f32 v{m+1}, v{q}"]
    L += ["s_mov_b32 exec_lo, 0", "s_mov_b32 exec_hi, 0x80000000"]
    L += [f"ds_write_b64 v50, {vr(M+2*j, 2)} offset:{32*j}" for j in range(3)]
    L += ["s_mov_b64 exec, -1"]
    return L

def c_wave(a):
    a.label("L_cwave")
    vX, vW = 8, 12
    t0, t1, t2, t3 = 4, 5, 6, 7
    AS, BS, ACC = (64, 80), (96, 104), 128
    sWR, sWF = S_A0, S_A1
    a(f"v_lshlrev_b32 v17, 4, v0")
    a("s_waitcnt lgkmcnt(0)")
    row_stats(a, 0)
    a(f"s_lshr_b32 s{sWR}, s{S_WAVE}, 1")
    a(f"s_and_b32 s{sWF}, s{S_WAVE}, 1")
    a(f"s_lshl_b32 s{S_T1}, s{sWR}, 6")
    x_frag_addrs(a, vX, S_T1, t0, t1, t2)
    w_tr_lane_consts(a, t3, 16, t0, t1)
    a(f"s_lshl_b32 s{S_T1}, s{sWF}, 3")
    a(f"v_xor_b32 v16, s{S_T1}, v16")
    for m in range(4):
        a(f"v_xor_b32 v{t0}, {2*m}, v16")
        a(f"v_lshl_add_u32 v{vW+m}, v{t0}, 4, v{t3}")
    a.srd(R_WS, S_WS, WS_BYTES); a.srd(R_A, S_WD, WB)
    a.stamp(0)
    def reads(t):
        s = t & 1
        if t == 28:
            L = []
            for n in range(2): L += [f"ds_read_b64 {vr(BS[s]+4*n, 2)}, v{(18, 20)[n]}", f"v_mov_b32 v{BS[s]+4*n+2}, 0", f"v_mov_b32 v{BS[s]+4*n+3}, 0"]
            for m in range(4): L += [f"ds_read_b64 {vr(AS[s]+4*m, 2)}, v19 offset:{256*m}", f"v_mov_b32 v{AS[s]+4*m+2}, 0", f"v_mov_b32 v{AS[s]+4*m+3}, 0"]
            return L
        st, ks = t >> 2, t & 3
        so = (st % 3) * SLOT
        def wr(m): return [f"ds_read_b64_tr_b16 {vr(AS[s]+4*m+2*h, 2)}, v{vW+m} offset:{so + (16*ks + 4*h)*256}" for h in range(2)]
        return ([f"ds_read_b128 {vr(BS[s])}, v{vX+ks} offset:{so}"] + wr(0) +
                [f"ds_read_b128 {vr(BS[s]+4)}, v{vX+ks} offset:{so + 4096}"] + wr(1) + wr(2) + wr(3))
    a(f"v_lshlrev_b32 v{t0}, 3, v0")
    a("v_cmp_gt_u32 vcc, 32, v0")
    a(f"s_lshl_b32 s{S_T1}, s{sWR}, 9")
    a(f"s_add_u32 s{S_T1}, s{S_T1}, {XEXT}")
    a(f"v_add_u32 v18, s{S_T1}, v{t0}")
    a(f"v_add_u32 v20, 256, v18")
    a(f"v_mov_b32 v{t1}, {ZEXT}")
    a(f"v_cndmask_b32 v18, v{t1}, v18, vcc")
    a(f"v_cndmask_b32 v20, v{t1}, v20, vcc")
    a(f"v_and_b32 v{t0}, 0xff, v{t0}")
    a(f"s_lshl_b32 s{S_T1}, s{sWF}, 10")
    a(f"s_add_u32 s{S_T1}, s{S_T1}, {WEXT}")
    a(f"v_add_u32 v19, s{S_T1}, v{t0}")
    a(f"s_lshl_b32 s{S_T0}, s{S_WAVE}, 3")
    a(f"s_add_u32 s{S_T0}, s{S_T0}, {STG_L}")
    a(f"v_mov_b32 v50, s{S_T0}")
    stat_ops = row_stats(a, 1)
    a("s_barrier")
    a.stamp(1)
    if "nomma" not in a.exp:
        for l in reads(0): a(l)
    for t in range(29):
        s = t & 1
        a("s_waitcnt lgkmcnt(0)")
        if t < 28 and (t & 3) == 3:
            if a.stop == "p1": a.stamp(5 + (t >> 2))
            a("s_barrier")
        nxt = reads(t + 1) if t < 28 else []
        if "nomma" in a.exp: continue
        k = 0
        for m in range(4):
            for n in range(2):
                d = ACC + (2*m + n)*16
                cin = "0" if t == 0 else vr(d, 16)
                a(f"v_mfma_f32_32x32x16_bf16 {vr(d,16)}, {vr(AS[s]+4*m)}, {vr(BS[s]+4*n)}, {cin}")
                for _ in range(2):
                    if k < len(nxt): a(nxt[k]); k += 1
                if 4 <= t < 11 and stat_ops:
                    n_ = 3
                    if stat_ops[0].startswith("s_mov_b32 exec_lo"): n_ = len(stat_ops)
                    cut = []
                    while stat_ops and len(cut) < n_:
                        if stat_ops[0].startswith("s_mov_b32 exec_lo") and cut: break
                        cut.append(stat_ops.pop(0))
                    for l in cut: a(l)
                    if n_ > 3: a("s_nop 3")
        while k < len(nxt): a(nxt[k]); k += 1
    assert not stat_ops
    a.stamp(2)
    a(f"v_mov_b32 v{t0}, {NONCE_L}")
    a(f"ds_read_b64 v[20:21], v{t0}")
    vm = VM(a)
    sH = S_A2
    a(f"s_lshl_b32 s{S_T0}, s{S_RT}, 2")
    a(f"s_lshl_b32 s{S_T1}, s{sWR}, 1")
    a(f"s_add_u32 s{S_T0}, s{S_T0}, s{S_T1}")
    a(f"s_mul_i32 s{S_T0}, s{S_T0}, 112")
    a(f"s_lshl_b32 s{S_T1}, s{S_FC}, 3")
    a(f"s_add_u32 s{S_T0}, s{S_T0}, s{S_T1}")
    a(f"s_lshl_b32 s{S_T1}, s{sWF}, 2")
    a(f"s_add_u32 s{S_T0}, s{S_T0}, s{S_T1}")
    a(f"s_lshl_b32 s{sH}, s{S_T0}, 10")
    if H_OFF: a(f"s_add_u32 s{sH}, s{sH}, {H_OFF}")
    sFast = 99
    a("s_waitcnt lgkmcnt(0)")
    a(f"v_readfirstlane_b32 s{S_NONCE}, v20")
    a(f"v_readfirstlane_b32 s{sFast}, v21")
    sKQ = S_WAVE
    vWd, vA0, vA1, vFl = 21, 22, 23, 16
    a(f"v_lshrrev_b32 v{t0}, 3, v0")
    a(f"v_and_b32 v{t1}, 7, v0")
    a(f"v_bfe_u32 v{t2}, v0, 4, 1")
    a(f"v_lshlrev_b32 v{t2}, 2, v{t2}")
    a(f"v_xor_b32 v{t1}, v{t1}, v{t2}")
    a(f"v_mul_u32_u24 v{t0}, 896, v{t0}")
    a(f"v_lshl_add_u32 v{vWd}, v{t1}, 4, v{t0}")
    sWdS, sRing = S_A3, S_A4
    a(f"s_mul_i32 s{sWdS}, s{sKQ}, {448*896}")
    a(f"s_lshl_b32 s{S_T0}, s{S_CT}, 7")
    a(f"s_add_u32 s{sWdS}, s{sWdS}, s{S_T0}")
    a(f"s_mul_i32 s{sRing}, s{sKQ}, {RING}")
    NPARK = 28 - NSLOT
    def wd_dma(ks, slot):
        for hh in range(2):
            a(f"s_add_u32 m0, s{sRing}, {slot*2048 + hh*1024}")
            a(f"s_add_u32 s{S_T1}, s{sWdS}, {(16*ks + 8*hh)*896}")
            a(f"buffer_load_dwordx4 v{vWd}, s[{R_A}:{R_A+3}], s{S_T1} offen lds")
            vm.issue(("wd", ks))
    def either(plain, wt):
        if "fast" not in a.exp: a(wt); return
        L1, L2 = a.uid("L_wt"), a.uid("L_st")
        a(f"s_cmp_eq_u32 s{sFast}, 0")
        a(f"s_cbranch_scc1 {L1}")
        a(plain); a(f"s_branch {L2}")
        a.label(L1); a(wt); a.label(L2)
    r1 = list(range(NSLOT, 28)) if a.stop != "p1" else []
    for m in range(4):
        for n in range(2):
            d = ACC + (2*m + n)*16
            o = 24 + 4*((2*m + n) & 3)
            for i in range(8): a(f"v_max_f32 v{d+i}, 0, v{d+i}")
            for i in range(8): a(f"v_mul_f32 v{d+i}, v{d+i}, v{d+8+i}")
            for i in range(4): a(f"v_cvt_pk_bf16_f32 v{o+i}, v{d+2*i}, v{d+2*i+1}")
            a(f"s_add_u32 s{S_T0}, s{sH}, {(n*112 + m)*1024}")
            st_ = f"buffer_store_dwordx4 {vr(o)}, v17, s[{R_WS}:{R_WS+3}], s{S_T0} offen"
            either(st_, st_ + " sc1")
            vm.issue("h")
            if 2*m + n >= 2:
                for _ in range(2):
                    if r1: ks = r1.pop(0); wd_dma(ks, ks - NSLOT)
    a.stamp(3)
    while r1: ks = r1.pop(0); wd_dma(ks, ks - NSLOT)
    a(f"s_lshl_b32 s{S_T0}, s{S_RT}, 1")
    a(f"s_add_u32 s{S_T0}, s{S_T0}, s{sWR}")
    a(f"s_mul_i32 s{S_T0}, s{S_T0}, 28")
    a(f"s_lshl_b32 s{S_T1}, s{S_FC}, 1")
    a(f"s_add_u32 s{S_T0}, s{S_T0}, s{S_T1}")
    a(f"s_add_u32 s{S_T0}, s{S_T0}, s{sWF}")
    a(f"s_lshl_b32 s{S_T0}, s{S_T0}, 7")
    a(f"s_add_u32 s{S_T1}, s{S_T0}, {F1_OFF}")
    vm.wait("h")
    a(f"v_mov_b32 v{t0}, s{S_NONCE}")
    a(f"v_mov_b32 v{t1}, 0")
    a("s_mov_b64 exec, 1")
    st_ = f"buffer_store_dword v{t0}, v{t1}, s[{R_WS}:{R_WS+3}], s{S_T1} offen"
    either(st_, st_ + " sc1")
    vm.issue("sig")
    a("s_mov_b64 exec, -1")
    a.stamp(4)
    if a.stop == "p1":
        a("s_barrier"); a.stamps_out(12); a("s_endpgm"); return
    a(f"v_bfe_u32 v{t0}, v0, 2, 2")
    a(f"v_lshrrev_b32 v{t1}, 5, v0")
    a(f"v_lshl_add_u32 v{t1}, v{t1}, 2, v{t0}")
    a(f"v_lshlrev_b32 v{t1}, 7, v{t1}")
    a(f"v_and_b32 v{t2}, 1, v0")
    a(f"v_lshl_add_u32 v{t1}, v{t2}, 3, v{t1}")
    a(f"v_add_u32 v{t1}, s{sRing}, v{t1}")
    a(f"v_bfe_u32 v{t2}, v0, 4, 1")
    a(f"v_bfe_u32 v{t3}, v0, 1, 1")
    a(f"v_lshl_add_u32 v{t2}, v{t2}, 1, v{t3}")
    a(f"v_bfe_u32 v{t3}, v0, 3, 1")
    a(f"v_lshl_add_u32 v{t2}, v{t3}, 2, v{t2}")
    a(f"v_lshl_add_u32 v{vA0}, v{t2}, 4, v{t1}")
    a(f"v_xor_b32 v{t2}, 4, v{t2}")
    a(f"v_lshl_add_u32 v{vA1}, v{t2}, 4, v{t1}")
    HB, A3, PK, ACC3 = 40, (24, 32), 88, 192
    def tr3(slot, dst):
        return [f"ds_read_b64_tr_b16 {vr(dst+4*m+2*h, 2)}, v{(vA0, vA1)[m]} offset:{slot*2048 + 1024*h}" for m in range(2) for h in range(2)]
    vm.wait(("wd", 27))
    for j in range(NPARK):
        for l in tr3(j, PK + 8*j): a(l)
        if j % 3 == 2: a("s_waitcnt lgkmcnt(4)")
    a("s_waitcnt lgkmcnt(0)")
    NR2 = 8
    for ks in range(NR2): wd_dma(ks, ks)
    a(f"s_mul_i32 s{S_T0}, s{S_RB}, 28")
    a(f"s_mul_i32 s{S_T1}, s{sKQ}, 7")
    a(f"s_add_u32 s{S_T0}, s{S_T0}, s{S_T1}")
    a(f"s_lshl_b32 s{S_T0}, s{S_T0}, 7")
    a(f"s_add_u32 s{S_T0}, s{S_T0}, {F1_OFF}")
    a(f"v_lshlrev_b32 v{vFl}, 7, v0")
    a(f"v_add_u32 v{vFl}, s{S_T0}, v{vFl}")
    a.poll(vFl, t0, 7)
    vm.reset()
    a.stamp(5)
    sHr = S_A2
    a(f"s_mul_i32 s{sHr}, s{S_RB}, {2*112}")
    a(f"s_mul_i32 s{S_T0}, s{sKQ}, 28")
    a(f"s_add_u32 s{sHr}, s{sHr}, s{S_T0}")
    a(f"s_lshl_b32 s{sHr}, s{sHr}, 10")
    if H_OFF: a(f"s_add_u32 s{sHr}, s{sHr}, {H_OFF}")
    kof = lambda t: (NSLOT + t) if t < NPARK else (t - NPARK)
    def h_load(t):
        for n in range(2):
            a(f"s_add_u32 s{S_T0}, s{sHr}, {(n*112 + kof(t))*1024}")
            a(f"buffer_load_dwordx4 {vr(HB + 8*(t % HD) + 4*n)}, v17, s[{R_WS}:{R_WS+3}], s{S_T0} offen sc1")
            vm.issue(("h", t))
    for t in range(HD): h_load(t)
    for t in range(28):
        s = t & 1
        vm.wait(("h", t))
        nxt = []
        if NPARK <= t + 1 < 28:
            if vm.has(("wd", kof(t + 1))): vm.wait(("wd", kof(t + 1)))
            nxt = tr3(kof(t + 1), A3[(t + 1) & 1])
        if t >= NPARK: a("s_waitcnt lgkmcnt(0)" if not nxt or True else "")
        src = (PK + 8*t) if t < NPARK else A3[s]
        k = 0
        for m in range(2):
            for n in range(2):
                d = ACC3 + (2*m + n)*16
                cin = "0" if t == 0 else vr(d, 16)
                a(f"v_mfma_f32_32x32x16_bf16 {vr(d,16)}, {vr(src+4*m)}, {vr(HB + 8*(t % HD) + 4*n)}, {cin}")
                if k < len(nxt): a(nxt[k]); k += 1
        if t == 4:
            a(f"v_mov_b32 v{t0}, {CNT_L + 12}")
            a(f"v_mov_b32 v{t1}, 1")
            a("s_mov_b64 exec, 1")
            a(f"ds_add_u32 v{t0}, v{t1}")
            a("s_mov_b64 exec, -1")
        if NR2 + t < NSLOT: wd_dma(NR2 + t, NR2 + t)
        if t + HD < 28: h_load(t + HD)
        if "p3st" in a.exp and t in (0, 6, 13, 20): a.stamp(8 + (0, 6, 13, 20).index(t))
    a.stamp(6)
    a(f"v_and_b32 v{t0}, 31, v0")
    a(f"v_mul_u32_u24 v{t0}, {PROW}, v{t0}")
    a(f"v_lshrrev_b32 v{t1}, 5, v0")
    a(f"v_lshl_add_u32 v{t0}, v{t1}, 4, v{t0}")
    a(f"v_add_u32 v{t0}, s{sRing}, v{t0}")
    a("s_nop 7")
    for m in range(2):
        for n in range(2):
            d = ACC3 + (2*m + n)*16
            for j in range(4):
                a(f"ds_write_b128 v{t0}, {vr(d+4*j)} offset:{n*32*PROW + m*128 + j*32}")
    a("s_waitcnt lgkmcnt(0)")
    a("s_barrier")
    a.stamp(7)
    a.label("L_cout")
    a.stamps_out(12 if "p3st" in a.exp else 8)
    a("s_endpgm")

def aux(a):
    a.label("L_prep")
    t0, t1, t2, t3 = 4, 5, 6, 7
    sP = 2
    CSL = 0
    vCo = 14
    a(f"v_lshrrev_b32 v{t0}, 4, v0")
    a(f"v_mul_u32_u24 v{t0}, 3584, v{t0}")
    a(f"v_and_b32 v{t1}, 15, v0")
    a(f"v_lshl_add_u32 v{vCo}, v{t1}, 4, v{t0}")
    a(f"v_lshlrev_b32 v15, 4, v0")
    a("s_waitcnt lgkmcnt(0)")
    a.srd(R_WS, S_WS, WS_BYTES); a.srd(R_A, S_SK, XB); a.srd(R_B, S_WD, WB)
    a.stamp(0)
    CD, CA = 192, 248
    sC = S_A1
    a(f"s_cmp_ge_u32 s{sP}, 28")
    a("s_cbranch_scc1 L_aux_nocs")
    a(f"s_cmp_ge_u32 s{sP}, 14")
    a("s_cbranch_scc1 L_aux_up")
    a.srd(R_E, S_WG, WB)
    a(f"s_mov_b32 s{sC}, s{sP}")
    a("s_branch L_aux_cs")
    a.label("L_aux_up")
    a.srd(R_E, S_WU, WB)
    a(f"s_sub_u32 s{sC}, s{sP}, 14")
    a.label("L_aux_cs")
    a(f"v_mov_b32 v{t1}, {EP_OFF}")
    a(f"buffer_load_dword v12, v{t1}, s[{R_WS}:{R_WS+3}], 0 offen sc1")
    a(f"s_mul_i32 s{S_T0}, s{S_WAVE}, {4*3584}")
    a(f"s_lshl_b32 s{S_T1}, s{sC}, 8")
    a(f"s_add_u32 s{S_T0}, s{S_T0}, s{S_T1}")
    for i in range(14):
        a(f"buffer_load_dwordx4 {vr(CD+4*i)}, v{vCo}, s[{R_E}:{R_E+3}], s{S_T0} offen")
        if i < 13: a(f"s_add_u32 s{S_T0}, s{S_T0}, {32*3584}")
    sLo, sHi = S_A2, S_A3
    a(f"s_mov_b32 s{sLo}, 0x00003f80")
    a(f"s_mov_b32 s{sHi}, 0x3f800000")
    for i in range(14):
        a(f"s_waitcnt vmcnt({13 - i})")
        for q in range(4):
            c0 = "0" if i == 0 else f"v{CA+2*q}"; c1 = "0" if i == 0 else f"v{CA+2*q+1}"
            a(f"v_dot2_f32_bf16 v{CA+2*q}, v{CD+4*i+q}, s{sLo}, {c0}")
            a(f"v_dot2_f32_bf16 v{CA+2*q+1}, v{CD+4*i+q}, s{sHi}, {c1}")
    a(f"v_lshrrev_b32 v{t0}, 4, v0")
    a(f"s_lshl_b32 s{S_T0}, s{S_WAVE}, 2")
    a(f"v_add_u32 v{t0}, s{S_T0}, v{t0}")
    a(f"v_lshlrev_b32 v{t0}, 9, v{t0}")
    a(f"v_and_b32 v{t1}, 15, v0")
    a(f"v_lshl_add_u32 v{t0}, v{t1}, 5, v{t0}")
    if CSL: a(f"v_add_u32 v{t0}, {CSL}, v{t0}")
    a(f"ds_write_b128 v{t0}, {vr(CA)}")
    a(f"ds_write_b128 v{t0}, {vr(CA+4)} offset:16")
    a("s_waitcnt lgkmcnt(0)")
    a("s_barrier")
    a(f"s_cmp_lg_u32 s{S_WAVE}, 7")
    a("s_cbranch_scc1 L_aux_touch")
    a(f"v_lshlrev_b32 v{t0}, 2, v0")
    if CSL: a(f"v_add_u32 v{t0}, {CSL}, v{t0}")
    for hh in range(2):
        for i in range(32):
            a(f"ds_read_b32 v{CD-64+32*hh+i}, v{t0} offset:{512*i + 256*hh}")
            if i % 8 == 7: a("s_waitcnt lgkmcnt(7)")
    a("s_waitcnt lgkmcnt(0)")
    a.nonce_from(12)
    for hh in range(2):
        b = CD - 64 + 32*hh
        for st in (16, 8, 4, 2, 1):
            for i in range(st): a(f"v_add_f32 v{b+i}, v{b+i}, v{b+i+st}")
        a(f"v_mov_b32 v{b+1}, s{S_NONCE}")
    a(f"s_cmp_ge_u32 s{sP}, 14")
    a(f"s_cselect_b32 s{S_T0}, 1792, 0")
    a(f"s_lshl_b32 s{S_T1}, s{sC}, 7")
    a(f"s_add_u32 s{S_T0}, s{S_T0}, s{S_T1}")
    a(f"s_lshl_b32 s{S_T0}, s{S_T0}, 3")
    a(f"s_add_u32 s{S_T0}, s{S_T0}, {CS_OFF}")
    a(f"v_lshlrev_b32 v{t0}, 3, v0")
    a(f"buffer_store_dwordx2 {vr(CD-64, 2)}, v{t0}, s[{R_WS}:{R_WS+3}], s{S_T0} offen sc1")
    a(f"buffer_store_dwordx2 {vr(CD-32, 2)}, v{t0}, s[{R_WS}:{R_WS+3}], s{S_T0} offen offset:512 sc1")
    a("s_branch L_aux_touch")
    a.label("L_aux_nocs")
    a.label("L_aux_touch")
    a.stamp(1)
    a(f"s_mul_i32 s{S_T0}, s{sP}, 57344")
    a(f"s_lshl_b32 s{S_T1}, s{S_WAVE}, 10")
    a(f"s_add_u32 s{S_T0}, s{S_T0}, s{S_T1}")
    for i in range(7):
        a(f"buffer_load_dwordx4 {vr(16+4*i)}, v15, s[{R_A}:{R_A+3}], s{S_T0} offen")
        a(f"s_add_u32 s{S_T0}, s{S_T0}, 8192")
    a(f"s_mul_i32 s{S_T0}, s{sP}, 50176")
    a(f"s_add_u32 s{S_T0}, s{S_T0}, s{S_T1}")
    for i in range(7):
        a(f"buffer_load_dwordx4 {vr(48+4*i)}, v15, s[{R_B}:{R_B+3}], s{S_T0} offen")
        a(f"s_add_u32 s{S_T0}, s{S_T0}, 8192")
    a.stamp(2)
    a("s_waitcnt vmcnt(0)")
    a.stamp(3)
    a(f"s_cmp_lg_u32 s{sP}, 28")
    a("s_cbranch_scc1 L_aux_end")
    a(f"s_cmp_lg_u32 s{S_WAVE}, 0")
    a("s_cbranch_scc1 L_aux_end")
    a(f"v_mov_b32 v{t1}, {EP_OFF}")
    a(f"buffer_load_dword v{t2}, v{t1}, s[{R_WS}:{R_WS+3}], 0 offen sc1")
    a("s_waitcnt vmcnt(0)")
    a.nonce_from(t2)
    a(f"v_lshlrev_b32 v{t0}, 2, v0")
    a(f"v_add_u32 v{t0}, {F2_OFF}, v{t0}")
    a(f"s_mov_b32 s{S_BND}, {a.spin}")
    a.label("L_aux_ep")
    a("s_sleep 32")
    for i in range(14): a(f"buffer_load_dword v{16+i}, v{t0}, s[{R_WS}:{R_WS+3}], 0 offen offset:{256*i} sc1")
    a("s_waitcnt vmcnt(0)")
    for i in range(14): a(f"v_xor_b32 v{16+i}, s{S_NONCE}, v{16+i}")
    for i in range(1, 14): a(f"v_or_b32 v16, v16, v{16+i}")
    a("v_cmp_ne_u32 vcc, 0, v16")
    a("s_nop 1")
    a("s_cbranch_vccz L_aux_epw")
    a(f"s_sub_u32 s{S_BND}, s{S_BND}, 1")
    a(f"s_cmp_lg_u32 s{S_BND}, 0")
    a("s_cbranch_scc1 L_aux_ep")
    a.label("L_aux_epw")
    a(f"v_mov_b32 v{t2}, s{S_NONCE}")
    a("s_mov_b64 exec, 1")
    a(f"buffer_store_dword v{t2}, v{t1}, s[{R_WS}:{R_WS+3}], 0 offen sc1")
    a("s_mov_b64 exec, -1")
    a("s_waitcnt vmcnt(0)")
    a.label("L_aux_end")
    a.stamps_out(4)
    a("s_endpgm")

HEADER = open(os.path.join(os.path.dirname(os.path.abspath(__file__)), "header.txt")).read()

def build(prof=False, spin=1 << 16, stop=None, exp=()):
    a = Gen(prof=prof, spin=spin, stop=stop, exp=exp)
    entry(a)
    h_wave(a)
    c_wave(a)
    aux(a)
    a.label("L_end")
    a("s_endpgm")
    txt = HEADER + f"; @launch grid=(256,1,1) block=(512,1,1) lds={LDS_BYTES}\n"
    txt += f'.amdgcn_target "amdgcn-amd-amdhsa--gfx950"\n.text\n.globl {NAME}\n.p2align 8\n.type {NAME},@function\n{NAME}:\n'
    body = [l for l in a.lines if l is not None]
    txt += "\n".join(("    " + l) if not l.endswith(":") else l for l in body) + "\n"
    txt += (f'.section .rodata,"a"\n.p2align 6\n.amdhsa_kernel {NAME}\n'
            "  .amdhsa_next_free_vgpr 256\n  .amdhsa_next_free_sgpr 102\n  .amdhsa_accum_offset 256\n"
            "  .amdhsa_group_segment_fixed_size 0\n  .amdhsa_kernarg_size 104\n  .amdhsa_user_sgpr_count 2\n"
            "  .amdhsa_user_sgpr_kernarg_segment_ptr 1\n  .amdhsa_system_sgpr_workgroup_id_x 1\n"
            "  .amdhsa_float_denorm_mode_32 3\n"
            ".end_amdhsa_kernel\n")
    return txt

if __name__ == "__main__":
    import argparse
    ap = argparse.ArgumentParser()
    ap.add_argument("-o", default="parallel_sum__ssm_conv_h3__glu_gated_reglu__prompt.s")
    ap.add_argument("--prof", nargs="?", const="rt", default=None)
    ap.add_argument("--spin", type=int, default=1 << 16)
    ap.add_argument("--stop", default=None)
    ap.add_argument("--exp", default="")
    x = ap.parse_args()
    open(x.o, "w").write(build(x.prof, x.spin, x.stop, [e for e in x.exp.split(',') if e]))
    print("wrote", x.o)
```

```python
import sys, os
sys.path.insert(0, os.path.dirname(os.path.abspath(__file__)))
from asmlib import Asm

NAME = "parallel_sum__ssm_conv_h3__glu_gated_reglu__prompt_kernel"
S, D, F = 2048, 448, 1792
XB = S * D * 2
WB = D * F * 2

H_OFF  = 0x000000
UT_OFF = 0x700000
YT_OFF = 0x8C0000
F0_OFF = 0xA80000
F1_OFF = 0xAA0000
F2_OFF = 0xAC0000
EP_OFF = 0xAE0000
SG_OFF = 0xAE8000
XG_OFF = 0xAE0100
CS_OFF = 0xAF0000
PROF_OFF = 0xB00000
WS_BYTES = 0x10000000

XR, GR, UR = 0, 49152, 98304
SLOT = 16384
CV = 122880
KCH = 8320
UB0 = CV + 2 * KCH
UCH = 4608
EXT = 149504
XEXT, WEXT, ZEXT = EXT + 8192, EXT + 9216, EXT + 11264
STATS_L = 161792
NONCE_L = 162816
FAST_L = 162820
STG_L = 162832
CNT_L = 162944
RING = 30720
NSLOT = 15
PROW = 272
LDS_BYTES = 163840
HD = 6

S_X, S_K, S_V, S_SH, S_SK, S_SD, S_WG, S_WU, S_WD, S_OUT, S_DBG, S_WS = 4, 6, 8, 10, 12, 14, 18, 20, 22, 24, 26, 28
S_WAVE, S_NONCE = 30, 31
R_A, R_B, R_C, R_WS, R_E = 32, 36, 40, 44, 48
S_RT, S_FC, S_PAR, S_CT, S_RB, S_M = 52, 53, 54, 55, 56, 57
S_T0, S_T1, S_T2, S_T3 = 58, 59, 60, 61
S_A0, S_A1, S_A2, S_A3, S_A4, S_A5 = 62, 63, 64, 65, 66, 67
S_BND = 68
S_EX = 70
S_ST = 72

class VM:
    def __init__(self, a): self.a, self.q = a, []
    def issue(self, tag): self.q.append(tag)
    def wait(self, tag):
        idx = max(i for i, t in enumerate(self.q) if t == tag)
        n = len(self.q) - 1 - idx
        assert n <= 63, (tag, n)
        self.a(f"s_waitcnt vmcnt({n})")
        self.q = self.q[idx + 1:]
    def has(self, tag): return tag in self.q
    def drain(self):
        self.a("s_waitcnt vmcnt(0)"); self.q = []
    def reset(self): self.q = []

class Gen(Asm):
    def __init__(self, prof=False, spin=1 << 16, stop=None, exp=()):
        super().__init__()
        self.exp = set(exp)
        self.prof, self.spin, self.stop = prof, spin, stop
        self.nst = 0
    def srd(self, dst, base, nbytes):
        self(f"s_mov_b32 s{dst}, s{base}")
        self(f"s_and_b32 s{dst+1}, s{base+1}, 0xffff")
        self(f"s_mov_b32 s{dst+2}, {nbytes}")
        self(f"s_mov_b32 s{dst+3}, 0x20000")
    def stamp(self, i):
        if self.prof:
            self(f"{'s_memtime' if self.prof == 'cyc' else 's_memrealtime'} s[{S_ST+2*i}:{S_ST+2*i+1}]")
            self("s_waitcnt lgkmcnt(0)")
    def stamps_out(self, n):
        if not self.prof: return
        self("s_waitcnt vmcnt(0) lgkmcnt(0)")
        self("s_mov_b64 exec, 1")
        self(f"s_lshl_b32 s{S_T0}, s2, 3")
        self(f"s_add_u32 s{S_T0}, s{S_T0}, s{S_WAVE}")
        self(f"s_lshl_b32 s{S_T0}, s{S_T0}, 6")
        self(f"s_add_u32 s{S_T0}, s{S_T0}, {PROF_OFF}")
        self("v_mov_b32 v1, 0")
        for i in range(n):
            self(f"v_mov_b32 v2, s{S_ST+2*i}")
            self(f"buffer_store_dword v2, v1, s[{R_WS}:{R_WS+3}], s{S_T0} offen offset:{4*i}")
            self("s_nop 0")
        self("s_waitcnt vmcnt(0)")
    def poll(self, vaddr, vtmp, nlanes, sleep=1):
        L, Dn = self.uid("L_poll"), self.uid("L_polled")
        if nlanes < 64: self(f"s_mov_b64 exec, {hex((1 << nlanes) - 1)}")
        self(f"s_mov_b32 s{S_BND}, {self.spin}")
        self.label(L)
        self(f"buffer_load_dword v{vtmp}, v{vaddr}, s[{R_WS}:{R_WS+3}], 0 offen sc1")
        self("s_waitcnt vmcnt(0)")
        self(f"v_cmp_ne_u32 vcc, s{S_NONCE}, v{vtmp}")
        self("s_nop 1")
        self(f"s_cbranch_vccz {Dn}")
        self(f"s_sleep {sleep}")
        self(f"s_sub_u32 s{S_BND}, s{S_BND}, 1")
        self(f"s_cmp_lg_u32 s{S_BND}, 0")
        self(f"s_cbranch_scc1 {L}")
        self.label(Dn)
        if nlanes < 64: self("s_mov_b64 exec, -1")
    def signal(self, soff_reg, vtmp, vzero):
        self(f"v_mov_b32 v{vtmp}, s{S_NONCE}")
        self(f"v_mov_b32 v{vzero}, 0")
        self("s_mov_b64 exec, 1")
        self(f"buffer_store_dword v{vtmp}, v{vzero}, s[{R_WS}:{R_WS+3}], s{soff_reg} offen sc1")
        self("s_mov_b64 exec, -1")
    def nonce_from(self, vtmp):
        self(f"v_readfirstlane_b32 s{S_NONCE}, v{vtmp}")
        self("s_nop 3")
        self(f"s_add_u32 s{S_NONCE}, s{S_NONCE}, 1")

def vr(b, n=4): return f"v[{b}:{b+n-1}]"

def entry(a):
    a("s_load_dwordx16 s[4:19], s[0:1], 0")
    a("s_load_dwordx8 s[20:27], s[0:1], 64")
    a("s_load_dwordx2 s[28:29], s[0:1], 96")
    a("s_cmp_ge_u32 s2, 256")
    a("s_cbranch_scc1 L_end")
    a("v_lshrrev_b32 v1, 6, v0")
    a("v_and_b32 v0, 63, v0")
    a(f"v_readfirstlane_b32 s{S_WAVE}, v1")
    if "span" in a.exp:
        a("s_memrealtime s[88:89]")
        a(f"s_cmp_lg_u32 s{S_WAVE}, 3")
        a("s_cbranch_scc1 L_nospan")
        a("s_waitcnt lgkmcnt(0)")
        a("s_not_b32 s88, s88")
        a("v_mov_b32 v2, s88"); a("v_mov_b32 v3, 8")
        a("s_mov_b64 exec, 1")
        a(f"global_atomic_umax v3, v2, s[{S_DBG}:{S_DBG+1}]")
        a("s_mov_b64 exec, -1")
        a.label("L_nospan")
    a("s_cmp_lt_u32 s2, 32")
    a("s_cbranch_scc1 L_prep")
    a(f"s_sub_u32 s{S_M}, s2, 32")
    a(f"s_and_b32 s{S_T0}, s{S_M}, 7")
    a(f"s_lshr_b32 s{S_T1}, s{S_M}, 3")
    if "map2x14" not in a.exp:
        a(f"s_mul_i32 s{S_T2}, s{S_T1}, 37")
        a(f"s_lshr_b32 s{S_T2}, s{S_T2}, 8")
        a(f"s_mul_i32 s{S_T3}, s{S_T2}, 7")
        a(f"s_sub_u32 s{S_CT}, s{S_T1}, s{S_T3}")
        a(f"s_and_b32 s{S_PAR}, s{S_T0}, 1")
        a(f"s_lshr_b32 s{S_T0}, s{S_T0}, 1")
        a(f"s_lshl_b32 s{S_T0}, s{S_T0}, 2")
        a(f"s_add_u32 s{S_RT}, s{S_T0}, s{S_T2}")
        a(f"s_mul_i32 s{S_T0}, s{S_PAR}, 7")
        a(f"s_add_u32 s{S_FC}, s{S_T0}, s{S_CT}")
    else:
        a(f"s_mul_i32 s{S_T2}, s{S_T1}, 37")
        a(f"s_lshr_b32 s{S_T2}, s{S_T2}, 9")
        a(f"s_mul_i32 s{S_T3}, s{S_T2}, 14")
        a(f"s_sub_u32 s{S_FC}, s{S_T1}, s{S_T3}")
        a(f"s_lshl_b32 s{S_T0}, s{S_T0}, 1")
        a(f"s_add_u32 s{S_RT}, s{S_T0}, s{S_T2}")
        a(f"s_cmp_ge_u32 s{S_FC}, 7")
        a(f"s_cselect_b32 s{S_PAR}, 1, 0")
        a(f"s_mul_i32 s{S_T0}, s{S_PAR}, 7")
        a(f"s_sub_u32 s{S_CT}, s{S_FC}, s{S_T0}")
    a(f"s_lshl_b32 s{S_RB}, s{S_RT}, 1")
    a(f"s_add_u32 s{S_RB}, s{S_RB}, s{S_PAR}")
    a(f"s_cmp_lt_u32 s{S_WAVE}, 4")
    a("s_cbranch_scc1 L_cwave")

def w_tr_lane_consts(a, vbase, vt1, t0, t1):
    a(f"v_bfe_u32 v{t0}, v0, 2, 2")
    a(f"v_bfe_u32 v{t1}, v0, 1, 1")
    a(f"v_lshlrev_b32 v{vt1}, 1, v{t0}")
    a(f"v_xor_b32 v{vt1}, v{vt1}, v{t1}")
    a(f"v_bfe_u32 v{t1}, v0, 4, 1")
    a(f"v_lshlrev_b32 v{vbase}, 3, v{t1}")
    a(f"v_xor_b32 v{vt1}, v{vt1}, v{vbase}")
    a(f"v_mul_u32_u24 v{vbase}, {UR-GR}, v{t1}")
    a(f"v_lshrrev_b32 v{t1}, 5, v0")
    a(f"v_lshl_add_u32 v{t0}, v{t1}, 3, v{t0}")
    a(f"v_lshl_add_u32 v{vbase}, v{t0}, 8, v{vbase}")
    a(f"v_and_b32 v{t0}, 1, v0")
    a(f"v_lshl_add_u32 v{vbase}, v{t0}, 3, v{vbase}")
    a(f"v_add_u32 v{vbase}, {GR}, v{vbase}")

def x_frag_addrs(a, vdst, srowbase, t0, t1, t2):
    a(f"v_and_b32 v{t0}, 31, v0")
    a(f"v_bfe_u32 v{t1}, v0, 1, 3")
    a(f"v_add_u32 v{t0}, s{srowbase}, v{t0}")
    a(f"v_lshlrev_b32 v{t0}, 7, v{t0}")
    a(f"v_lshrrev_b32 v{t2}, 5, v0")
    a(f"v_xor_b32 v{t1}, v{t1}, v{t2}")
    for ks in range(4):
        a(f"v_xor_b32 v{t2}, {2*ks}, v{t1}")
        a(f"v_lshl_add_u32 v{vdst+ks}, v{t2}, 4, v{t0}")

def nonce_check(a, vnon, t0):
    a.nonce_from(vnon)

def h_wave(a):
    vnon, vF0a, vF0d = 16, 22, 23
    vKA_, vKB_ = 32, 48
    t0, t1, t2, t3 = 64, 65, 66, 67
    w = S_A0
    sCH, sRH = 100, 101
    a(f"s_sub_u32 s{w}, s{S_WAVE}, 4")
    a(f"s_cmp_ge_u32 s{w}, 2")
    a("s_cbranch_scc1 L_side")
    def common_setup():
        a.srd(R_WS, S_WS, WS_BYTES); a.srd(R_E, S_SK, XB)
        a(f"s_lshr_b32 s{S_T1}, s{w}, 1")
        a(f"s_lshl_b32 s{sCH}, s{S_M}, 1")
        a(f"s_add_u32 s{sCH}, s{sCH}, s{S_T1}")
        a(f"s_and_b32 s{sRH}, s{w}, 1")
        a(f"s_lshr_b32 s{S_T1}, s{sCH}, 4")
        a(f"s_lshl_b32 s{S_T1}, s{S_T1}, 7")
        a(f"s_add_u32 s{S_T1}, s{S_T1}, {F0_OFF}")
        a(f"v_and_b32 v{t0}, 31, v0")
        a(f"v_lshlrev_b32 v{t0}, 2, v{t0}")
        a(f"v_add_u32 v{vF0a}, s{S_T1}, v{t0}")
    def nonce_load(vm):
        a(f"v_mov_b32 v{t0}, {EP_OFF}")
        a(f"buffer_load_dword v{vnon}, v{t0}, s[{R_WS}:{R_WS+3}], 0 offen sc1"); vm.issue("non")
    def k_loads(vm):
        a(f"s_lshl_b32 s{S_T1}, s{sCH}, 12")
        a(f"v_lshlrev_b32 v{t0}, 4, v0")
        a(f"v_add_u32 v{t1}, 4, v{t0}")
        for i in range(4):
            a(f"buffer_load_dwordx4 {vr(vKA_+4*i)}, v{t0}, s[{R_E}:{R_E+3}], s{S_T1} offen offset:{1024*i}"); vm.issue("K")
            a(f"buffer_load_dwordx4 {vr(vKB_+4*i)}, v{t1}, s[{R_E}:{R_E+3}], s{S_T1} offen offset:{1024*i}"); vm.issue("K")
    def f0_load(vm):
        a(f"buffer_load_dword v{vF0d}, v{vF0a}, s[{R_WS}:{R_WS+3}], 0 offen sc1"); vm.issue("f0")

    vm = VM(a)
    if "noprio" not in a.exp: a("s_setprio 2")
    vXe, vXo, vG, vU = 4, 5, 6, 7
    a(f"v_lshrrev_b32 v{t0}, 3, v0")
    a(f"v_mul_u32_u24 v{t0}, 896, v{t0}")
    a(f"v_lshrrev_b32 v{t1}, 4, v0")
    a(f"v_and_b32 v{t2}, 7, v0")
    a(f"v_xor_b32 v{t2}, v{t2}, v{t1}")
    a(f"v_lshl_add_u32 v{vXe}, v{t2}, 4, v{t0}")
    a(f"v_xor_b32 v{t2}, 4, v{t2}")
    a(f"v_lshl_add_u32 v{vXo}, v{t2}, 4, v{t0}")
    a(f"v_mul_u32_u24 v{t0}, 3584, v{t1}")
    a(f"v_and_b32 v{t2}, 15, v0")
    a(f"v_lshlrev_b32 v{t3}, 1, v{t1}")
    a(f"v_xor_b32 v{t2}, v{t2}, v{t3}")
    a(f"v_lshl_add_u32 v{vG}, v{t2}, 4, v{t0}")
    a(f"v_xor_b32 v{t2}, 8, v{t2}")
    a(f"v_lshl_add_u32 v{vU}, v{t2}, 4, v{t0}")
    sXs, sXd, sWs, sGd, sUd = S_A1, S_A2, S_A3, S_A4, S_A5
    a(f"s_lshl_b32 s{S_T0}, s{S_RT}, 7")
    a(f"s_lshl_b32 s{S_T1}, s{w}, 6")
    a(f"s_add_u32 s{S_T0}, s{S_T0}, s{S_T1}")
    a(f"s_mul_i32 s{sXs}, s{S_T0}, 896")
    a(f"s_lshl_b32 s{sXd}, s{w}, 13")
    a(f"s_mul_i32 s{S_T0}, s{w}, {32*3584}")
    a(f"s_lshl_b32 s{S_T1}, s{S_FC}, 8")
    a(f"s_add_u32 s{sWs}, s{S_T0}, s{S_T1}")
    a(f"s_add_u32 s{sGd}, s{sXd}, {GR}")
    a(f"s_add_u32 s{sUd}, s{sXd}, {UR}")
    a("s_waitcnt lgkmcnt(0)")
    a.srd(R_A, S_X, XB); a.srd(R_B, S_WG, WB); a.srd(R_C, S_WU, WB)
    def issue_stage(st, lo=0, hi=8):
        slot = st % 3
        for i in range(lo, hi):
            for (dst, voff, srd, src, step, base) in ((sXd, vXe if i % 2 == 0 else vXo, R_A, sXs, 8*896, st*128),
                                                      (sGd, vG, R_B, sWs, 4*3584, 64*st*3584), (sUd, vU, R_C, sWs, 4*3584, 64*st*3584)):
                a(f"s_add_u32 m0, s{dst}, {slot*SLOT + i*1024}")
                a(f"s_add_u32 s{S_T0}, s{src}, {base + i*step}")
                a(f"buffer_load_dwordx4 v{voff}, s[{srd}:{srd+3}], s{S_T0} offen lds")
                vm.issue(("st", st))
    issue_stage(0); issue_stage(1, 0, 5)
    a.stamp(0)
    common_setup()
    vCA, vSA, vCS, vST = 10, 11, 72, 80
    vh, vl, e0 = 68, 69, 88
    a(f"v_bfe_u32 v{t0}, v0, 4, 1")
    a(f"v_mul_u32_u24 v{t0}, 1792, v{t0}")
    a(f"v_and_b32 v{t1}, 15, v0")
    a(f"v_add_u32 v{t0}, v{t0}, v{t1}")
    a(f"s_lshl_b32 s{S_T1}, s{S_FC}, 7")
    a(f"s_lshl_b32 s{S_T2}, s{w}, 6")
    a(f"s_add_u32 s{S_T1}, s{S_T1}, s{S_T2}")
    a(f"v_add_u32 v{t0}, s{S_T1}, v{t0}")
    a(f"v_lshlrev_b32 v{t0}, 3, v{t0}")
    a(f"v_add_u32 v{vCA}, {CS_OFF}, v{t0}")
    a(f"s_lshl_b32 s{S_T1}, s{S_RT}, 7")
    a(f"s_add_u32 s{S_T1}, s{S_T1}, s{S_T2}")
    a(f"v_and_b32 v{t0}, 31, v0")
    a(f"v_add_u32 v{t0}, s{S_T1}, v{t0}")
    a(f"v_lshlrev_b32 v{t0}, 4, v{t0}")
    a(f"v_add_u32 v{vSA}, {SG_OFF}, v{t0}")
    def cs_load():
        for e in range(4):
            a(f"buffer_load_dwordx2 {vr(vCS+2*e, 2)}, v{vCA}, s[{R_WS}:{R_WS+3}], 0 offen offset:{128*e} sc1"); vm.issue("cs")
    def sg_load():
        for e in range(2):
            a(f"buffer_load_dwordx4 {vr(vST+4*e)}, v{vSA}, s[{R_WS}:{R_WS+3}], 0 offen offset:{512*e} sc1"); vm.issue("sg")
    def tag_check(regs, reload):
        L, Dn = a.uid("L_tag"), a.uid("L_tagd")
        a(f"s_mov_b32 s{S_BND}, {a.spin}")
        a.label(L)
        a(f"v_cmp_ne_u32 vcc, s{S_NONCE}, v{regs[0]}")
        for r in regs[1:]:
            a(f"v_cmp_ne_u32 s[{S_EX}:{S_EX+1}], s{S_NONCE}, v{r}")
            a("s_nop 1")
            a(f"s_or_b64 vcc, vcc, s[{S_EX}:{S_EX+1}]")
        a(f"s_cbranch_vccz {Dn}")
        keep = list(vm.q); reload()
        a("s_waitcnt vmcnt(0)")
        vm.q = keep
        a(f"s_sub_u32 s{S_BND}, s{S_BND}, 1")
        a(f"s_cmp_lg_u32 s{S_BND}, 0")
        a(f"s_cbranch_scc1 {L}")
        a.label(Dn)
    def split(vsrc, neg):
        sg = "-" if neg else ""
        a(f"v_cvt_pk_bf16_f32 v{vh}, {sg}v{vsrc}, {sg}v{vsrc}")
        a(f"v_and_b32 v{t2}, 0xffff0000, v{vh}")
        a(f"v_sub_f32_e64 v{t2}, {sg}v{vsrc}, v{t2}")
        a(f"v_cvt_pk_bf16_f32 v{vl}, v{t2}, v{t2}")
    for st in range(7):
        vm.wait(("st", st))
        if a.stop == "p1": a.stamp(3 + st)
        a("s_barrier")
        if st == 0: issue_stage(1, 5, 8)
        if st == 1: nonce_load(vm)
        if st == 3:
            assert not vm.has("non")
            nonce_check(a, vnon, t0)
        if st <= 4: issue_stage(st + 2)
        if st == 2:
            a(f"v_mov_b32 v{t0}, {CNT_L + 24}")
            a(f"v_mov_b32 v{t1}, 1")
            a("s_mov_b64 exec, 1")
            a(f"ds_add_u32 v{t0}, v{t1}")
            a("s_mov_b64 exec, -1")
        if st == 5:
            sg_load(); cs_load()
        if st == 6:
            vm.wait("cs")
            tag_check([vST + 1, vST + 3, vST + 5, vST + 7], sg_load)
            a(f"v_and_b32 v{t1}, 31, v0")
            a(f"s_lshl_b32 s{S_T1}, s{w}, 9")
            a(f"v_lshl_add_u32 v{t3}, v{t1}, 3, s{S_T1}")
            a(f"v_add_u32 v98, {STATS_L}, v{t3}")
            a(f"v_add_u32 v99, {XEXT}, v{t3}")
            for e in range(2):
                g = vST + 4*e
                a(f"v_mov_b32 v{g+1}, v{g+2}")
                a(f"ds_write_b64 v98, {vr(g, 2)} offset:{256*e}")
                split(g, True)
                f0 = e0 + 2*e
                a(f"v_and_b32 v{f0+1}, 0xffff, v{vh}")
                a(f"v_lshlrev_b32 v{t1}, 16, v{vl}")
                a(f"v_or_b32 v{f0}, v{t1}, v{f0+1}")
                a(f"ds_write_b64 v99, {vr(f0, 2)} offset:{256*e}")
            tag_check([vCS + 1, vCS + 3, vCS + 5, vCS + 7], cs_load)
            a(f"v_and_b32 v{t1}, 31, v0")
            a(f"s_lshl_b32 s{S_T1}, s{w}, 10")
            a(f"v_lshl_add_u32 v{t3}, v{t1}, 3, s{S_T1}")
            a(f"v_add_u32 v99, {WEXT}, v{t3}")
            for e in range(4):
                f0 = e0 + 4 + 2*(e & 1)
                split(vCS + 2*e, False)
                a(f"v_mov_b32 v{f0}, v{vh}")
                a(f"v_and_b32 v{f0+1}, 0xffff, v{vl}")
                a(f"ds_write_b64 v99, {vr(f0, 2)} offset:{256*e}")
            a(f"v_mov_b32 v{t1}, 0")
            a(f"v_mov_b32 v{t2}, {FAST_L}")
            a(f"ds_write_b32 v{t2}, v{t1}")
            a("s_waitcnt lgkmcnt(0)")
    a("s_branch L_htail")

    a.label("L_side")
    if "icpf" in a.exp:
        a("s_getpc_b64 s[90:91]")
        a.label("L_pc0")
        a(f"s_sub_u32 s90, s90, L_pc0-{NAME}")
        a("s_subb_u32 s91, s91, 0")
        a(f"s_lshr_b32 s{S_T0}, s{S_M}, 3")
        a(f"s_lshl_b32 s{S_T0}, s{S_T0}, 1")
        a(f"s_and_b32 s{S_T1}, s{S_WAVE}, 1")
        a(f"s_add_u32 s{S_T0}, s{S_T0}, s{S_T1}")
        a(f"s_lshl_b32 s{S_T0}, s{S_T0}, 10")
        a(f"v_lshlrev_b32 v2, 4, v0")
        a(f"v_add_u32 v2, s{S_T0}, v2")
        a(f"v_min_u32 v2, L_end-{NAME}-16, v2")
        a("global_load_dwordx4 v[196:199], v2, s[90:91]")
    if "noprio" not in a.exp: a("s_setprio 2")
    vm = VM(a)
    vCA, vSA, vUo, vCS, vST = 4, 8, 10, 72, 80
    vh, vl, e0 = 68, 69, 88
    sW = S_A1
    a(f"s_sub_u32 s{sW}, s{w}, 2")
    sTB, sCG = S_A2, S_A3
    a(f"s_mul_i32 s{sTB}, s{S_M}, 9363")
    a(f"s_lshr_b32 s{sTB}, s{sTB}, 16")
    a(f"s_mul_i32 s{S_T1}, s{sTB}, 7")
    a(f"s_sub_u32 s{sCG}, s{S_M}, s{S_T1}")
    KR, VR, WR, KF, WF, AC = 100, 128, 144, 160, 174, 182
    vKo, vKv, vKw, vT = 186, 189, 190, 191
    a(f"s_lshl_b32 s{S_T0}, s{sTB}, 6")
    a(f"s_lshl_b32 s{S_T1}, s{sW}, 5")
    a(f"s_add_u32 s{S_T0}, s{S_T0}, s{S_T1}")
    a(f"v_lshrrev_b32 v{t0}, 3, v0")
    a(f"v_lshl_add_u32 v{t1}, v{t0}, 2, s{S_T0}")
    a(f"v_and_b32 v{t2}, 7, v0")
    a(f"s_lshl_b32 s{S_T1}, s{sCG}, 7")
    a(f"v_lshl_add_u32 v{t3}, v{t2}, 4, s{S_T1}")
    a(f"v_mov_b32 v{vT}, 896")
    a(f"v_mad_u32_u24 v{vKv}, v{t1}, v{vT}, v{t3}")
    for i in range(3):
        a(f"v_cmp_gt_u32 vcc, {3-i}, v{t1}")
        a(f"v_subrev_u32 v{vKo+i}, {(3-i)*896}, v{vKv}")
        a(f"v_mov_b32 v{vT}, 0x40000000")
        a(f"v_cndmask_b32 v{vKo+i}, v{vKo+i}, v{vT}, vcc")
    a(f"s_lshl_b32 s{S_T1}, s{sCG}, 9")
    a(f"v_lshl_add_u32 v{vKw}, v{t2}, 6, s{S_T1}")
    a(f"v_lshrrev_b32 v{t1}, 1, v{t0}")
    a(f"s_lshl_b32 s{S_T1}, s{sW}, 2")
    a(f"v_add_u32 v{t1}, s{S_T1}, v{t1}")
    a(f"v_xor_b32 v{t1}, v{t1}, v{t2}")
    a(f"v_lshlrev_b32 v{t1}, 4, v{t1}")
    a(f"v_lshl_add_u32 v{t1}, v{t2}, 10, v{t1}")
    a(f"v_and_b32 v{t0}, 1, v{t0}")
    a(f"v_sub_u32 v{t0}, 1, v{t0}")
    a(f"v_lshl_add_u32 v{t1}, v{t0}, 3, v{t1}")
    a(f"v_add_u32 v{vT}, {EXT}, v{t1}")
    a("s_waitcnt lgkmcnt(0)")
    a.srd(R_A, S_X, XB); a.srd(R_B, S_K, XB); a.srd(R_C, S_V, XB); a.srd(92, S_SH, D*4*2)
    def kv_loads():
        for i in range(3):
            a(f"buffer_load_dwordx4 {vr(KR+4*i)}, v{vKo+i}, s[{R_B}:{R_B+3}], 0 offen"); vm.issue("kvl")
        for i in range(4):
            a(f"buffer_load_dwordx4 {vr(KR+12+4*i)}, v{vKv}, s[{R_B}:{R_B+3}], 0 offen offset:{896*i}"); vm.issue("kvl")
        for i in range(4):
            a(f"buffer_load_dwordx4 {vr(VR+4*i)}, v{vKv}, s[{R_C}:{R_C+3}], 0 offen offset:{896*i}"); vm.issue("kvl")
        for i in range(4):
            a(f"buffer_load_dwordx4 {vr(WR+4*i)}, v{vKw}, s[92:95], 0 offen offset:{16*i}"); vm.issue("kvl")
    a.stamp(0)
    common_setup()
    a(f"v_mov_b32 v{t0}, {CNT_L}")
    for r in range(4): a(f"v_mov_b32 v{e0+r}, 0")
    a(f"ds_write_b128 v{t0}, {vr(e0)}")
    a(f"ds_write_b128 v{t0}, {vr(e0)} offset:16")
    a(f"v_mov_b32 v{t0}, {ZEXT}")
    a(f"ds_write_b64 v{t0}, {vr(e0, 2)}")
    vF0w = 9
    a(f"s_lshl_b32 s{S_T1}, s{sCG}, 2")
    a(f"s_lshl_b32 s{S_T2}, s{sW}, 1")
    a(f"s_add_u32 s{S_T1}, s{S_T1}, s{S_T2}")
    a(f"v_add_u32 v{t0}, s{S_T1}, v0")
    a(f"v_lshlrev_b32 v{t0}, 5, v{t0}")
    a(f"v_add_u32 v{t0}, s{sTB}, v{t0}")
    a(f"v_lshlrev_b32 v{t0}, 2, v{t0}")
    a(f"v_add_u32 v{vF0w}, {F0_OFF}, v{t0}")
    a(f"s_lshl_b32 s{S_T1}, s{sCG}, 6")
    a(f"s_lshl_b32 s{S_T0}, s{sW}, 5")
    a(f"s_add_u32 s{S_T1}, s{S_T1}, s{S_T0}")
    a(f"v_lshrrev_b32 v{t0}, 3, v0")
    a(f"v_add_u32 v{t0}, s{S_T1}, v{t0}")
    a(f"v_lshlrev_b32 v{t0}, 12, v{t0}")
    a(f"s_lshl_b32 s{S_T1}, s{sTB}, 7")
    a(f"s_add_u32 s{S_T1}, s{S_T1}, {UT_OFF}")
    a(f"v_add_u32 v{t0}, s{S_T1}, v{t0}")
    a(f"v_and_b32 v{t1}, 7, v0")
    a(f"s_lshl_b32 s{S_T1}, s{sW}, 2")
    a(f"v_xor_b32 v{t1}, s{S_T1}, v{t1}")
    for i in range(4):
        a(f"v_xor_b32 v{t2}, {i}, v{t1}")
        a(f"v_lshl_add_u32 v{vUo+i}, v{t2}, 4, v{t0}")
        if i: a(f"v_add_u32 v{vUo+i}, {8*4096*i}, v{vUo+i}")
    def kv_valu(j):
        for c in range(2):
            ch = 2*j + c
            a(f"v_lshlrev_b32 v{WF+4*c}, 16, v{WR+2*ch}"); a(f"v_and_b32 v{WF+4*c+1}, 0xffff0000, v{WR+2*ch}")
            a(f"v_lshlrev_b32 v{WF+4*c+2}, 16, v{WR+2*ch+1}"); a(f"v_and_b32 v{WF+4*c+3}, 0xffff0000, v{WR+2*ch+1}")
        for i in range(7):
            a(f"v_lshlrev_b32 v{KF+i}, 16, v{KR+4*i+j}"); a(f"v_and_b32 v{KF+7+i}, 0xffff0000, v{KR+4*i+j}")
        for c in range(2):
            kf, wf = KF + 7*c, WF + 4*c
            for t in range(4): a(f"v_mul_f32 v{AC+t}, v{wf}, v{kf+3+t}")
            for tap in range(1, 4):
                for t in range(4): a(f"v_fmac_f32 v{AC+t}, v{wf+tap}, v{kf+3+t-tap}")
            for t in range(4):
                a(f"v_and_b32 v{kf+t}, 0xffff0000, v{VR+4*t+j}" if c else f"v_lshlrev_b32 v{kf+t}, 16, v{VR+4*t+j}")
            for t in range(4): a(f"v_mul_f32 v{AC+t}, v{AC+t}, v{kf+t}")
            o = 70
            a(f"v_cvt_pk_bf16_f32 v{o}, v{AC+3}, v{AC+2}")
            a(f"v_cvt_pk_bf16_f32 v{o+1}, v{AC+1}, v{AC}")
            a(f"ds_write_b64 v{vT}, {vr(o, 2)} offset:{128*(2*j+c)}")
    for st in range(7):
        if a.stop == "p1": a.stamp(3 + st)
        a("s_barrier")
        if st == 1:
            nonce_load(vm)
        if st == 2:
            lds_wait(a, CNT_L + 24, t0, t1, 2, 1)
            kv_loads()
        if st == 3:
            vm.wait("non"); nonce_check(a, vnon, t0)
            a(f"v_mov_b32 v{t0}, s{S_NONCE}")
            a(f"v_mov_b32 v{t1}, {NONCE_L}")
            a(f"ds_write_b32 v{t1}, v{t0}")
            Lns = a.uid("L_nosg")
            a(f"s_cmp_lg_u32 s{sW}, 0")
            a(f"s_cbranch_scc1 {Lns}")
            a(f"v_lshlrev_b32 v{t0}, 3, v0")
            a(f"v_add_u32 v{t0}, {STG_L}, v{t0}")
            a(f"ds_read_b64 {vr(t2, 2)}, v{t0}")
            a(f"v_and_b32 v{t0}, 3, v0")
            a(f"v_lshrrev_b32 v{t1}, 2, v0")
            a(f"v_mul_u32_u24 v{t1}, 56, v{t1}")
            a(f"v_add_u32 v{t0}, v{t0}, v{t1}")
            a(f"s_lshl_b32 s{S_T1}, s{S_FC}, 2")
            a(f"v_add_u32 v{t0}, s{S_T1}, v{t0}")
            a(f"v_cmp_gt_u32 vcc, 128, v{t0}")
            a(f"s_lshl_b32 s{S_T1}, s{S_RT}, 7")
            a(f"v_add_u32 v{t0}, s{S_T1}, v{t0}")
            a(f"v_lshlrev_b32 v{t0}, 4, v{t0}")
            a(f"v_add_u32 v{t0}, {SG_OFF}, v{t0}")
            a("s_and_b64 vcc, vcc, 0xfff")
            a("s_waitcnt lgkmcnt(0)")
            a(f"v_mov_b32 v{vST}, v{t2}")
            a(f"v_mov_b32 v{vST+1}, s{S_NONCE}")
            a(f"v_mov_b32 v{vST+2}, v{t3}")
            a(f"v_mov_b32 v{vST+3}, s{S_NONCE}")
            a("s_mov_b64 exec, vcc")
            a(f"buffer_store_dwordx4 {vr(vST)}, v{t0}, s[{R_WS}:{R_WS+3}], 0 offen sc1")
            if "fast" in a.exp:
                a(f"s_getreg_b32 s{S_T2}, hwreg(HW_REG_XCC_ID, 0, 4)")
                a(f"s_and_b32 s{S_T0}, s{S_M}, 7")
                a(f"s_mul_i32 s{S_T0}, s{S_T0}, 28")
                a(f"s_lshr_b32 s{S_T1}, s{S_M}, 3")
                a(f"s_add_u32 s{S_T0}, s{S_T0}, s{S_T1}")
                a(f"s_lshl_b32 s{S_T0}, s{S_T0}, 3")
                a(f"s_add_u32 s{S_T0}, s{S_T0}, {XG_OFF}")
                a("s_mov_b64 exec, 1")
                a(f"v_mov_b32 v{t2}, s{S_T2}")
                a(f"v_mov_b32 v{t3}, s{S_NONCE}")
                a(f"v_mov_b32 v{t0}, 0")
                a(f"buffer_store_dwordx2 {vr(t2, 2)}, v{t0}, s[{R_WS}:{R_WS+3}], s{S_T0} offen sc1")
                a("s_mov_b64 exec, -1")
            a("s_mov_b64 exec, -1")
            a.label(Lns)
            vm.wait("kvl"); kv_valu(0); kv_valu(1)
        if st == 4:
            kv_valu(2); kv_valu(3); a("s_waitcnt lgkmcnt(0)")
        if st == 5:
            a(f"s_lshl_b32 s{S_T1}, s{sW}, 12")
            a(f"s_add_u32 s{S_T1}, s{S_T1}, {EXT}")
            a(f"v_lshlrev_b32 v{t0}, 4, v0")
            a(f"v_add_u32 v{t0}, s{S_T1}, v{t0}")
            for i in range(4): a(f"ds_read_b128 {vr(100+4*i)}, v{t0} offset:{1024*i}")
            for i in range(4):
                a(f"s_waitcnt lgkmcnt({3-i})")
                a(f"buffer_store_dwordx4 {vr(100+4*i)}, v{vUo+i}, s[{R_WS}:{R_WS+3}], 0 offen sc1"); vm.issue("ut")
            a(f"s_lshl_b32 s{S_T1}, s{S_M}, 1")
            a(f"s_add_u32 s{S_T1}, s{S_T1}, s{sW}")
            a(f"s_lshl_b32 s{S_T1}, s{S_T1}, 12")
            a(f"v_lshlrev_b32 v{t0}, 4, v0")
            a(f"v_add_u32 v{t1}, 4, v{t0}")
            for i in range(4):
                a(f"buffer_load_dwordx4 {vr(vKA_+4*i)}, v{t0}, s[{R_E}:{R_E+3}], s{S_T1} offen offset:{1024*i}"); vm.issue("K")
                a(f"buffer_load_dwordx4 {vr(vKB_+4*i)}, v{t1}, s[{R_E}:{R_E+3}], s{S_T1} offen offset:{1024*i}"); vm.issue("K")
        if st == 6:
            vm.wait("ut")
            a(f"v_mov_b32 v{t0}, s{S_NONCE}")
            a("s_mov_b64 exec, 3")
            a(f"buffer_store_dword v{t0}, v{vF0w}, s[{R_WS}:{R_WS+3}], 0 offen sc1"); vm.issue("sig")
            a("s_mov_b64 exec, -1")
            vm.wait("K")
            sKC_, sUB_ = S_T2, S_T3
            a(f"s_mul_i32 s{sKC_}, s{sW}, {KCH}")
            a(f"s_add_u32 s{sKC_}, s{sKC_}, {CV}")
            a(f"s_mul_i32 s{sUB_}, s{sW}, {UCH}")
            a(f"s_add_u32 s{sUB_}, s{sUB_}, {UB0}")
            a(f"v_lshlrev_b32 v{t3}, 4, v0")
            a(f"v_add_u32 v{t1}, s{sKC_}, v{t3}")
            for i in range(4):
                a(f"ds_write_b128 v{t1}, {vr(vKA_+4*i)} offset:{32 + 1024*i}")
            a(f"v_lshlrev_b32 v{t2}, 16, v{vKA_}")
            for i in range(4):
                for j in range(4):
                    a(f"v_alignbit_b32 v{vKB_+4*i+j}, v{vKB_+4*i+j}, v{vKA_+4*i+j}, 16")
            for i in range(4):
                a(f"ds_write_b128 v{t1}, {vr(vKB_+4*i)} offset:{4160 + 32 + 1024*i}")
            a(f"v_readfirstlane_b32 s{S_T1}, v{t2}")
            a(f"v_lshlrev_b32 v{t1}, 2, v0")
            a(f"v_add_u32 v{t1}, s{sKC_}, v{t1}")
            a("v_cmp_eq_u32 vcc, 7, v0")
            a(f"v_mov_b32 v{t2}, s{S_T1}")
            a(f"v_mov_b32 v{e0}, 0")
            a(f"v_cndmask_b32 v{t2}, 0, v{t2}, vcc")
            a("s_mov_b64 exec, 0xff")
            a(f"ds_write_b32 v{t1}, v{e0}")
            a(f"ds_write_b32 v{t1}, v{t2} offset:4160")
            a("s_mov_b64 exec, -1")
            a(f"v_mov_b32 v{e0+1}, 0")
            a(f"v_lshlrev_b32 v{t1}, 3, v0")
            a(f"v_add_u32 v{t2}, s{sUB_}, v{t1}")
            a(f"ds_write_b64 v{t2}, {vr(e0, 2)}")
            a("s_waitcnt lgkmcnt(0)")
    a.label("L_htail")
    a.stamp(1)
    a("s_barrier")
    a.stamp(2)
    if a.stop == "p1":
        a("s_waitcnt vmcnt(0)"); a("s_barrier"); a.stamps_out(10); a("s_endpgm"); return
    if "noprio" not in a.exp: a("s_setprio 1")
    sUB, sKC = S_A2, S_A1
    a(f"s_lshr_b32 s{S_T0}, s{w}, 1")
    a(f"s_mul_i32 s{sUB}, s{S_T0}, {UCH}")
    a(f"s_add_u32 s{sUB}, s{sUB}, {UB0}")
    a(f"s_mul_i32 s{sKC}, s{S_T0}, {KCH}")
    a(f"s_add_u32 s{sKC}, s{sKC}, {CV}")
    a.poll(vF0a, t1, 64, sleep=16)
    a(f"s_lshl_b32 s{S_T1}, s{sCH}, 12")
    a(f"s_add_u32 s{S_T1}, s{S_T1}, {UT_OFF}")
    a(f"v_lshlrev_b32 v{t0}, 4, v0")
    for i in range(4):
        a(f"s_add_u32 m0, s{sUB}, {512 + 1024*i}")
        a(f"s_add_u32 s{S_T2}, s{S_T1}, {1024*i}")
        a(f"buffer_load_dwordx4 v{t0}, s[{R_WS}:{R_WS+3}], s{S_T2} offen sc1 lds")
    a.stamp(3)
    if "noconv" not in a.exp: conv(a, w, sCH, sRH, sUB, sKC)
    a.stamp(5)
    final_h(a, w)

def lds_pair_sync(a, vaddr, vone, vtmp, target):
    L, Dn = a.uid("L_ps"), a.uid("L_psd")
    a("s_mov_b64 exec, 1")
    a(f"ds_add_u32 v{vaddr}, v{vone}")
    a("s_mov_b64 exec, -1")
    a(f"s_mov_b32 s{S_BND}, {a.spin}")
    a.label(L)
    a(f"ds_read_b32 v{vtmp}, v{vaddr}")
    a("s_waitcnt lgkmcnt(0)")
    a(f"v_readfirstlane_b32 s{S_T0}, v{vtmp}")
    a("s_nop 0")
    a(f"s_cmp_ge_u32 s{S_T0}, {target}")
    a(f"s_cbranch_scc1 {Dn}")
    a(f"s_sub_u32 s{S_BND}, s{S_BND}, 1")
    a(f"s_cmp_lg_u32 s{S_BND}, 0")
    a(f"s_cbranch_scc1 {L}")
    a.label(Dn)

def conv(a, w, sCH, sRH, sUB, sKC):
    t0, t1, t2, t3 = 64, 65, 66, 67
    a(f"s_lshl_b32 s{S_T0}, s{S_M}, 2")
    a(f"s_load_dword s{S_A4}, s[{S_SD}:{S_SD+1}], s{S_T0}")
    vKA, vUB = 8, 12
    a(f"v_and_b32 v{t0}, 15, v0")
    a(f"v_lshrrev_b32 v{t1}, 5, v0")
    a(f"v_bfe_u32 v{t2}, v0, 4, 1")
    a(f"v_lshlrev_b32 v{t3}, 4, v{t1}")
    a(f"v_add_u32 v{t3}, v{t3}, v{t0}")
    a(f"v_add_u32 v{t3}, 9, v{t3}")
    a(f"v_lshlrev_b32 v{vUB}, 3, v{t2}")
    a(f"v_sub_u32 v{t3}, v{t3}, v{vUB}")
    a(f"v_and_b32 v{vUB}, 1, v{t3}")
    a(f"v_mul_u32_u24 v{vUB}, 4158, v{vUB}")
    a(f"v_lshl_add_u32 v{t3}, v{t3}, 1, v{vUB}")
    a(f"s_lshl_b32 s{S_T1}, s{sRH}, 8")
    a(f"s_add_u32 s{S_T2}, s{sKC}, s{S_T1}")
    a(f"v_add_u32 v{vKA}, s{S_T2}, v{t3}")
    for i in range(1, 4): a(f"v_add_u32 v{vKA+i}, {1024*i}, v{vKA}")
    a(f"v_sub_u32 v{t3}, v{t0}, v{t1}")
    a(f"v_lshlrev_b32 v{t3}, 5, v{t3}")
    a(f"v_lshl_add_u32 v{t3}, v{t2}, 4, v{t3}")
    a(f"v_add_u32 v{t3}, {64 + 256}, v{t3}")
    a(f"s_sub_u32 s{S_T2}, s{sUB}, s{S_T1}")
    a(f"v_add_u32 v{vUB}, s{S_T2}, v{t3}")
    vUE, vYO, vXA, vCN, vOne = 13, 14, 15, 16, 17
    a(f"v_lshlrev_b32 v{t3}, 5, v{t0}")
    a(f"v_lshl_add_u32 v{t3}, v{t1}, 4, v{t3}")
    a(f"v_lshlrev_b32 v{vUE}, 3, v{t2}")
    a(f"v_sub_u32 v{t3}, v{t3}, v{vUE}")
    a(f"v_add_u32 v{t3}, 520, v{t3}")
    a(f"s_lshl_b32 s{S_T1}, s{sRH}, 11")
    a(f"s_add_u32 s{S_T2}, s{sUB}, s{S_T1}")
    a(f"v_add_u32 v{vUE}, s{S_T2}, v{t3}")
    a(f"v_lshrrev_b32 v{t3}, 4, v0")
    a(f"v_lshlrev_b32 v{t3}, 3, v{t3}")
    a(f"v_lshl_add_u32 v{vYO}, v{t0}, 5, v{t3}")
    a(f"v_lshlrev_b32 v{t3}, 4, v0")
    a(f"v_add_u32 v{vXA}, s{sKC}, v{t3}")
    a(f"s_lshr_b32 s{S_T1}, s{w}, 1")
    a(f"s_lshl_b32 s{S_T1}, s{S_T1}, 2")
    a(f"s_add_u32 s{S_T1}, s{S_T1}, {CNT_L}")
    a(f"v_mov_b32 v{vCN}, s{S_T1}")
    a(f"v_mov_b32 v{vOne}, 1")
    a("s_waitcnt vmcnt(0) lgkmcnt(0)")
    a.stamp(4)
    ACC = 224
    AS, BS = (96, 160), (128, 192)
    def loads(rr):
        s = rr & 1; L = []
        for x in range(8):
            L.append(f"ds_read_b128 {vr(BS[s]+4*x)}, v{vUB} offset:{512*x + 64*(3-rr)}")
            o = 128*(x & 1) + 16*rr
            L.append(f"ds_read2_b32 {vr(AS[s]+4*x, 2)}, v{vKA+(x>>1)} offset0:{o} offset1:{o+1}")
            L.append(f"ds_read2_b32 {vr(AS[s]+4*x+2, 2)}, v{vKA+(x>>1)} offset0:{o+2} offset1:{o+3}")
        return L
    for l in loads(0): a(l)
    for rr in range(4):
        a("s_waitcnt lgkmcnt(0)")
        nxt = loads(rr + 1) if rr < 3 else []
        s = rr & 1; k = 0
        for x in range(8):
            for c in range(x, 8):
                cin = "0" if (rr == 0 and x == 0) else vr(ACC+4*c)
                a(f"v_mfma_f32_16x16x32_bf16 {vr(ACC+4*c)}, {vr(AS[s]+4*x)}, {vr(BS[s]+4*(c-x))}, {cin}")
                if nxt and k < len(nxt): a(nxt[k]); k += 1
        while nxt and k < len(nxt): a(nxt[k]); k += 1
    a.stamp(9)
    lds_pair_sync(a, vCN, vOne, t0, 2)
    Lr1, Lrd = a.uid("L_r1"), a.uid("L_rd")
    a(f"s_cmp_eq_u32 s{sRH}, 1")
    a(f"s_cbranch_scc1 {Lr1}")
    for c in range(4): a(f"ds_write_b128 v{vXA}, {vr(ACC+16+4*c)} offset:{1024*c}")
    a(f"s_branch {Lrd}")
    a.label(Lr1)
    for c in range(4):
        a(f"ds_write_b128 v{vXA}, {vr(ACC+4*c)} offset:{4096 + 1024*c}")
    a("s_waitcnt lgkmcnt(0)")
    for c in range(16): a(f"v_mov_b32 v{ACC+c}, v{ACC+16+c}")
    a.label(Lrd)
    a("s_waitcnt lgkmcnt(0)")
    lds_pair_sync(a, vCN, vOne, t0, 4)
    a(f"s_xor_b32 s{S_T1}, s{sRH}, 1")
    a(f"s_lshl_b32 s{S_T1}, s{S_T1}, 12")
    a(f"v_add_u32 v{vXA}, s{S_T1}, v{vXA}")
    for c in range(4): a(f"ds_read_b128 {vr(128+4*c)}, v{vXA} offset:{1024*c}")
    for c in range(4): a(f"ds_read_b64 {vr(96+2*c, 2)}, v{vUE} offset:{512*c}")
    a(f"s_lshr_b32 s{S_T1}, s{w}, 1")
    a(f"s_lshl_b32 s{S_T1}, s{S_T1}, 4")
    a(f"s_lshr_b32 s{S_A4}, s{S_A4}, s{S_T1}")
    a(f"s_lshl_b32 s{S_A4}, s{S_A4}, 16")
    a(f"s_lshl_b32 s{S_T1}, s{sCH}, 12")
    a(f"s_lshl_b32 s{S_T2}, s{sRH}, 11")
    a(f"s_add_u32 s{S_T1}, s{S_T1}, s{S_T2}")
    a(f"s_add_u32 s{S_T1}, s{S_T1}, {YT_OFF}")
    a("s_waitcnt lgkmcnt(0)")
    for c in range(4):
        d0, d1 = 96 + 2*c, 97 + 2*c
        u = 144
        a(f"v_and_b32 v{u}, 0xffff0000, v{d1}")
        a(f"v_lshlrev_b32 v{u+1}, 16, v{d1}")
        a(f"v_and_b32 v{u+2}, 0xffff0000, v{d0}")
        a(f"v_lshlrev_b32 v{u+3}, 16, v{d0}")
        for i in range(4): a(f"v_add_f32 v{ACC+4*c+i}, v{ACC+4*c+i}, v{128+4*c+i}")
        for i in range(4): a(f"v_fmac_f32 v{ACC+4*c+i}, s{S_A4}, v{u+i}")
        o = 148 + 2*c
        a(f"v_cvt_pk_bf16_f32 v{o}, v{ACC+4*c}, v{ACC+4*c+1}")
        a(f"v_cvt_pk_bf16_f32 v{o+1}, v{ACC+4*c+2}, v{ACC+4*c+3}")
        a(f"buffer_store_dwordx2 {vr(o, 2)}, v{vYO}, s[{R_WS}:{R_WS+3}], s{S_T1} offen offset:{512*c} sc1")
    a(f"s_lshr_b32 s{S_T1}, s{sCH}, 6")
    a(f"s_lshl_b32 s{S_T1}, s{S_T1}, 1")
    a(f"s_add_u32 s{S_T1}, s{S_T1}, s{sRH}")
    a(f"s_lshl_b32 s{S_T1}, s{S_T1}, 6")
    a(f"s_and_b32 s{S_T2}, s{sCH}, 63")
    a(f"s_add_u32 s{S_T1}, s{S_T1}, s{S_T2}")
    a(f"s_lshl_b32 s{S_T1}, s{S_T1}, 2")
    a(f"s_add_u32 s{S_T1}, s{S_T1}, {F2_OFF}")
    if a.prof: a(f"s_mov_b32 s{S_A5}, s{S_T1}"); a.stamp(1); a(f"s_mov_b32 s{S_T1}, s{S_A5}")
    a("s_waitcnt vmcnt(0)")
    a.signal(S_T1, t0, t1)

def lds_wait(a, addr, vaddr, vtmp, target, sleep):
    L, Dn = a.uid("L_lw"), a.uid("L_lwd")
    a(f"v_mov_b32 v{vaddr}, {addr}")
    a(f"s_mov_b32 s{S_BND}, {a.spin}")
    a.label(L)
    a(f"ds_read_b32 v{vtmp}, v{vaddr}")
    a("s_waitcnt lgkmcnt(0)")
    a(f"v_readfirstlane_b32 s{S_T3}, v{vtmp}")
    a("s_nop 0")
    a(f"s_cmp_ge_u32 s{S_T3}, {target}")
    a(f"s_cbranch_scc1 {Dn}")
    a(f"s_sleep {sleep}")
    a(f"s_sub_u32 s{S_BND}, s{S_BND}, 1")
    a(f"s_cmp_lg_u32 s{S_BND}, 0")
    a(f"s_cbranch_scc1 {L}")
    a.label(Dn)

def final_h(a, w):
    t0, t1, t2, t3 = 64, 65, 66, 67
    vXo = 8
    BASE = 16
    RS2 = 32
    XD = 36
    YD = 44
    ST = 52
    if "noprio" not in a.exp: a("s_setprio 0")
    a(f"v_lshrrev_b32 v{t0}, 3, v0")
    a(f"v_mul_u32_u24 v{t0}, 896, v{t0}")
    a(f"v_and_b32 v{t1}, 7, v0")
    a(f"v_lshl_add_u32 v{vXo}, v{t1}, 4, v{t0}")
    sXO = S_A1
    a(f"s_lshl_b32 s{S_T0}, s{S_RB}, 6")
    a(f"s_lshl_b32 s{S_T1}, s{w}, 4")
    a(f"s_add_u32 s{S_T0}, s{S_T0}, s{S_T1}")
    a(f"s_mul_i32 s{sXO}, s{S_T0}, 896")
    a(f"s_lshl_b32 s{S_T1}, s{S_CT}, 7")
    a(f"s_add_u32 s{sXO}, s{sXO}, s{S_T1}")
    a(f"s_add_u32 s{S_T2}, s{sXO}, {8*896}")
    a(f"buffer_load_dwordx4 {vr(XD)}, v{vXo}, s[{R_A}:{R_A+3}], s{sXO} offen")
    a(f"buffer_load_dwordx4 {vr(XD+4)}, v{vXo}, s[{R_A}:{R_A+3}], s{S_T2} offen")
    a(f"s_lshl_b32 s{S_T1}, s{S_PAR}, 6")
    a(f"s_lshl_b32 s{S_T2}, s{w}, 4")
    a(f"s_add_u32 s{S_T1}, s{S_T1}, s{S_T2}")
    a(f"v_lshrrev_b32 v{t0}, 3, v0")
    a(f"v_add_u32 v{t0}, s{S_T1}, v{t0}")
    a(f"v_lshlrev_b32 v{t0}, 3, v{t0}")
    a(f"v_add_u32 v{t0}, {STATS_L}, v{t0}")
    a(f"ds_read_b64 {vr(ST, 2)}, v{t0}")
    a(f"ds_read_b64 {vr(ST+2, 2)}, v{t0} offset:64")
    lds_wait(a, CNT_L + 12, t0, t1, 4, 4)
    a(f"s_lshl_b32 s{S_T1}, s{S_CT}, 9")
    a(f"s_lshr_b32 s{S_T2}, s{S_RB}, 4")
    a(f"s_lshl_b32 s{S_T2}, s{S_T2}, 8")
    a(f"s_add_u32 s{S_T1}, s{S_T1}, s{S_T2}")
    a(f"s_lshl_b32 s{S_T2}, s{w}, 6")
    a(f"s_add_u32 s{S_T1}, s{S_T1}, s{S_T2}")
    a(f"s_add_u32 s{S_T1}, s{S_T1}, {F2_OFF}")
    a(f"v_and_b32 v{t0}, 15, v0")
    a(f"v_lshlrev_b32 v{t0}, 2, v{t0}")
    a(f"v_add_u32 v{t0}, s{S_T1}, v{t0}")
    if "noconv" not in a.exp and "nopoll2" not in a.exp: a.poll(t0, t1, 16, sleep=8)
    a.stamp(6)
    a(f"s_lshl_b32 s{S_T1}, s{S_CT}, 6")
    a(f"s_lshl_b32 s{S_T2}, s{w}, 4")
    a(f"s_add_u32 s{S_T1}, s{S_T1}, s{S_T2}")
    a(f"s_lshl_b32 s{S_T1}, s{S_T1}, 12")
    a(f"s_lshl_b32 s{S_T2}, s{S_RB}, 7")
    a(f"s_add_u32 s{S_T1}, s{S_T1}, s{S_T2}")
    a(f"s_add_u32 s{S_T1}, s{S_T1}, {YT_OFF}")
    a(f"s_add_u32 s{S_T2}, s{S_T1}, {8*4096}")
    a(f"v_lshrrev_b32 v{t0}, 3, v0")
    a(f"v_lshlrev_b32 v{t0}, 12, v{t0}")
    a(f"v_and_b32 v{t1}, 7, v0")
    a(f"v_lshl_add_u32 v{t0}, v{t1}, 4, v{t0}")
    a(f"buffer_load_dwordx4 {vr(YD)}, v{t0}, s[{R_WS}:{R_WS+3}], s{S_T1} offen sc1")
    a(f"buffer_load_dwordx4 {vr(YD+4)}, v{t0}, s[{R_WS}:{R_WS+3}], s{S_T2} offen sc1")
    a(f"v_lshrrev_b32 v{t0}, 3, v0")
    a(f"v_lshlrev_b32 v{t0}, 7, v{t0}")
    a(f"s_lshl_b32 s{S_T1}, s{w}, 1")
    a(f"v_xor_b32 v{t1}, s{S_T1}, v{t1}")
    a(f"v_lshl_add_u32 v{t2}, v{t1}, 4, v{t0}")
    a(f"v_xor_b32 v{t1}, 1, v{t1}")
    a(f"v_lshl_add_u32 v{t3}, v{t1}, 4, v{t0}")
    a(f"s_lshl_b32 s{S_T1}, s{w}, 11")
    a(f"s_add_u32 s{S_T1}, s{S_T1}, {EXT}")
    a(f"v_add_u32 v{t2}, s{S_T1}, v{t2}")
    a(f"v_add_u32 v{t3}, s{S_T1}, v{t3}")
    a("s_waitcnt vmcnt(0)")
    a(f"ds_write_b128 v{t2}, {vr(YD)}")
    a(f"ds_write_b128 v{t3}, {vr(YD+4)} offset:1024")
    a(f"v_mov_b32 v{t0}, {CNT_L + 8}")
    a(f"v_mov_b32 v{t1}, 1")
    a("s_waitcnt lgkmcnt(0)")
    lds_pair_sync(a, t0, t1, t2, 4)
    a(f"v_and_b32 v{t1}, 7, v0")
    a(f"s_lshl_b32 s{S_T1}, s{w}, 1")
    a(f"v_xor_b32 v{t2}, s{S_T1}, v{t1}")
    a(f"v_lshlrev_b32 v{t1}, 10, v{t1}")
    a(f"v_lshrrev_b32 v{t0}, 3, v0")
    a(f"v_lshl_add_u32 v{t1}, v{t0}, 1, v{t1}")
    a(f"v_add_u32 v{t1}, {EXT}, v{t1}")
    a(f"v_lshl_add_u32 v{t0}, v{t2}, 4, v{t1}")
    a(f"v_xor_b32 v{t2}, 1, v{t2}")
    a(f"v_lshl_add_u32 v{t2}, v{t2}, 4, v{t1}")
    YG = 96
    for q in range(2):
        for e in range(8):
            a(f"ds_read_u16 v{YG+8*q+e}, v{(t0, t2)[q]} offset:{128*e}")
    a("s_waitcnt lgkmcnt(0)")
    for q in range(2):
        mean, rstd = ST + 2*q, ST + 2*q + 1
        a(f"v_mul_f32 v{RS2+q}, v{rstd}, v{rstd}")
        for e in range(8):
            xs = XD + 4*q + (e >> 1)
            if e & 1: a(f"v_and_b32 v{t0}, 0xffff0000, v{xs}")
            else:     a(f"v_lshlrev_b32 v{t0}, 16, v{xs}")
            a(f"v_lshlrev_b32 v{t2}, 16, v{YG+8*q+e}")
            a(f"v_sub_f32 v{t3}, v{t0}, v{mean}")
            a(f"v_mul_f32 v{t3}, v{t3}, v{rstd}")
            a(f"v_fma_f32 v{BASE+8*q+e}, v{t3}, v{t2}, v{t0}")
    vF0, vF1 = 12, 13
    a(f"v_lshrrev_b32 v{t0}, 3, v0")
    a(f"s_lshl_b32 s{S_T1}, s{w}, 4")
    a(f"v_add_u32 v{t0}, s{S_T1}, v{t0}")
    a(f"v_mul_u32_u24 v{t0}, {PROW}, v{t0}")
    a(f"v_and_b32 v{t1}, 7, v0")
    a(f"v_lshl_add_u32 v{vF0}, v{t1}, 5, v{t0}")
    a(f"v_add_u32 v{vF1}, {2*RING}, v{vF0}")
    a.srd(R_B, S_OUT, XB)
    a.stamp(7)
    a("s_barrier")
    P = 128
    for q in range(2):
        for kq in range(4):
            base = vF0 if kq < 2 else vF1
            for hh in range(2):
                a(f"ds_read_b128 {vr(P+32*q+8*kq+4*hh)}, v{base} offset:{(kq & 1)*RING + q*8*PROW + 16*hh}")
    for q in range(2):
        a(f"s_waitcnt lgkmcnt({8 if q == 0 else 0})")
        p = P + 32*q
        for e in range(8):
            a(f"v_add_f32 v{p+e}, v{p+e}, v{p+8+e}")
            a(f"v_add_f32 v{p+16+e}, v{p+16+e}, v{p+24+e}")
        for e in range(8):
            a(f"v_add_f32 v{p+e}, v{p+e}, v{p+16+e}")
        for e in range(8):
            a(f"v_fmac_f32 v{BASE+8*q+e}, v{RS2+q}, v{p+e}")
        for e in range(4):
            a(f"v_cvt_pk_bf16_f32 v{XD+4*q+e}, v{BASE+8*q+2*e}, v{BASE+8*q+2*e+1}")
        so = sXO
        if q == 1:
            a(f"s_add_u32 s{S_T2}, s{sXO}, {8*896}"); so = S_T2
        a(f"buffer_store_dwordx4 {vr(XD+4*q)}, v{vXo}, s[{R_B}:{R_B+3}], s{so} offen" + (" sc1" if "outsc1" in a.exp else " nt" if "outnt" in a.exp else ""))
    a.stamp(8)
    if "span" in a.exp:
        a("s_waitcnt vmcnt(0)")
        a(f"s_cmp_lg_u32 s{S_WAVE}, 4")
        a("s_cbranch_scc1 L_hout")
        a("s_memrealtime s[88:89]")
        a("s_waitcnt lgkmcnt(0)")
        a("v_mov_b32 v2, s88"); a("v_mov_b32 v3, 12")
        a("s_mov_b64 exec, 1")
        a(f"global_atomic_umax v3, v2, s[{S_DBG}:{S_DBG+1}]")
        a("s_mov_b64 exec, -1")
    a.label("L_hout")
    a.stamps_out(10)
    a("s_endpgm")

def row_stats(a, part):
    t0, t1 = 4, 5
    XD, SS = 24, 36
    if part == 1: return row_stats2(a, XD, SS)
    a.srd(R_B, S_X, XB)
    a(f"s_lshl_b32 s{S_T0}, s{S_FC}, 2")
    a(f"s_add_u32 s{S_T0}, s{S_T0}, s{S_WAVE}")
    a(f"s_lshl_b32 s{S_T1}, s{S_RT}, 7")
    a(f"s_add_u32 s{S_T1}, s{S_T1}, s{S_T0}")
    a(f"s_mul_i32 s{S_T1}, s{S_T1}, 896")
    a(f"v_mov_b32 v{t1}, 0x40000000")
    a("v_cmp_gt_u32 vcc, 56, v0")
    a(f"s_add_u32 s{S_T2}, s{S_T1}, {56*896}")
    a(f"s_add_u32 s{S_T3}, s{S_T1}, {112*896}")
    a(f"v_cndmask_b32 v{t0}, v{t1}, v17, vcc")
    a(f"buffer_load_dwordx4 {vr(XD)}, v{t0}, s[{R_B}:{R_B+3}], s{S_T1} offen")
    a(f"buffer_load_dwordx4 {vr(XD+4)}, v{t0}, s[{R_B}:{R_B+3}], s{S_T2} offen")
    a(f"s_cmp_lt_u32 s{S_T0}, 16")
    a(f"s_cselect_b32 s{S_T3}, s{S_T3}, s{S_T2}")
    a(f"buffer_load_dwordx4 {vr(XD+8)}, v{t0}, s[{R_B}:{R_B+3}], s{S_T3} offen")

def row_stats2(a, XD, SS):
    L = []
    lo, hi, M = 42, 43, 44
    L.append("s_waitcnt vmcnt(0)")
    for j in range(3):
        for q in range(4):
            d = XD + 4*j + q
            L += [f"v_lshlrev_b32 v{lo}, 16, v{d}", f"v_and_b32 v{hi}, 0xffff0000, v{d}"]
            if q == 0: L += [f"v_add_f32 v{SS+j}, v{lo}, v{hi}", f"v_mul_f32 v{SS+3+j}, v{lo}, v{lo}"]
            else:      L += [f"v_add_f32 v{SS+j}, v{SS+j}, v{lo}", f"v_fmac_f32 v{SS+3+j}, v{lo}, v{lo}", f"v_add_f32 v{SS+j}, v{SS+j}, v{hi}"]
            L.append(f"v_fmac_f32 v{SS+3+j}, v{hi}, v{hi}")
    L += ["s_nop 0"]
    for mod in ("row_shr:1 row_mask:0xf", "row_shr:2 row_mask:0xf", "row_shr:4 row_mask:0xf", "row_shr:8 row_mask:0xf",
                "row_bcast:15 row_mask:0xa", "row_bcast:31 row_mask:0xc"):
        L += [f"v_add_f32_dpp v{SS+r}, v{SS+r}, v{SS+r} {mod} bank_mask:0xf" for r in range(6)]
    for j in range(3):
        m, q = M + 2*j, SS + 3 + j
        L += [f"v_mul_f32 v{m}, {1.0/448.0!r}, v{SS+j}",
              f"v_mul_f32 v{q}, {1.0/448.0!r}, v{q}",
              f"v_fma_f32 v{q}, -v{m}, v{m}, v{q}",
              f"v_max_f32 v{q}, 0, v{q}",
              f"v_add_f32 v{q}, 0x3727c5ac, v{q}",
              f"v_rsq_f32 v{m+1}, v{q}"]
    L += ["s_mov_b32 exec_lo, 0", "s_mov_b32 exec_hi, 0x80000000"]
    L += [f"ds_write_b64 v50, {vr(M+2*j, 2)} offset:{32*j}" for j in range(3)]
    L += ["s_mov_b64 exec, -1"]
    return L

def c_wave(a):
    a.label("L_cwave")
    vX, vW = 8, 12
    t0, t1, t2, t3 = 4, 5, 6, 7
    AS, BS, ACC = (64, 80), (96, 104), 128
    sWR, sWF = S_A0, S_A1
    a(f"v_lshlrev_b32 v17, 4, v0")
    a("s_waitcnt lgkmcnt(0)")
    row_stats(a, 0)
    a(f"s_lshr_b32 s{sWR}, s{S_WAVE}, 1")
    a(f"s_and_b32 s{sWF}, s{S_WAVE}, 1")
    a(f"s_lshl_b32 s{S_T1}, s{sWR}, 6")
    x_frag_addrs(a, vX, S_T1, t0, t1, t2)
    w_tr_lane_consts(a, t3, 16, t0, t1)
    a(f"s_lshl_b32 s{S_T1}, s{sWF}, 3")
    a(f"v_xor_b32 v16, s{S_T1}, v16")
    for m in range(4):
        a(f"v_xor_b32 v{t0}, {2*m}, v16")
        a(f"v_lshl_add_u32 v{vW+m}, v{t0}, 4, v{t3}")
    a.srd(R_WS, S_WS, WS_BYTES); a.srd(R_A, S_WD, WB)
    a.stamp(0)
    def reads(t):
        s = t & 1
        if t == 28:
            L = []
            for n in range(2): L += [f"ds_read_b64 {vr(BS[s]+4*n, 2)}, v{(18, 20)[n]}", f"v_mov_b32 v{BS[s]+4*n+2}, 0", f"v_mov_b32 v{BS[s]+4*n+3}, 0"]
            for m in range(4): L += [f"ds_read_b64 {vr(AS[s]+4*m, 2)}, v19 offset:{256*m}", f"v_mov_b32 v{AS[s]+4*m+2}, 0", f"v_mov_b32 v{AS[s]+4*m+3}, 0"]
            return L
        st, ks = t >> 2, t & 3
        so = (st % 3) * SLOT
        def wr(m): return [f"ds_read_b64_tr_b16 {vr(AS[s]+4*m+2*h, 2)}, v{vW+m} offset:{so + (16*ks + 4*h)*256}" for h in range(2)]
        return ([f"ds_read_b128 {vr(BS[s])}, v{vX+ks} offset:{so}"] + wr(0) +
                [f"ds_read_b128 {vr(BS[s]+4)}, v{vX+ks} offset:{so + 4096}"] + wr(1) + wr(2) + wr(3))
    a(f"v_lshlrev_b32 v{t0}, 3, v0")
    a("v_cmp_gt_u32 vcc, 32, v0")
    a(f"s_lshl_b32 s{S_T1}, s{sWR}, 9")
    a(f"s_add_u32 s{S_T1}, s{S_T1}, {XEXT}")
    a(f"v_add_u32 v18, s{S_T1}, v{t0}")
    a(f"v_add_u32 v20, 256, v18")
    a(f"v_mov_b32 v{t1}, {ZEXT}")
    a(f"v_cndmask_b32 v18, v{t1}, v18, vcc")
    a(f"v_cndmask_b32 v20, v{t1}, v20, vcc")
    a(f"v_and_b32 v{t0}, 0xff, v{t0}")
    a(f"s_lshl_b32 s{S_T1}, s{sWF}, 10")
    a(f"s_add_u32 s{S_T1}, s{S_T1}, {WEXT}")
    a(f"v_add_u32 v19, s{S_T1}, v{t0}")
    a(f"s_lshl_b32 s{S_T0}, s{S_WAVE}, 3")
    a(f"s_add_u32 s{S_T0}, s{S_T0}, {STG_L}")
    a(f"v_mov_b32 v50, s{S_T0}")
    stat_ops = row_stats(a, 1)
    a("s_barrier")
    a.stamp(1)
    if "nomma" not in a.exp:
        for l in reads(0): a(l)
    for t in range(29):
        s = t & 1
        a("s_waitcnt lgkmcnt(0)")
        if t < 28 and (t & 3) == 3:
            if a.stop == "p1": a.stamp(5 + (t >> 2))
            a("s_barrier")
        nxt = reads(t + 1) if t < 28 else []
        if "nomma" in a.exp: continue
        k = 0
        for m in range(4):
            for n in range(2):
                d = ACC + (2*m + n)*16
                cin = "0" if t == 0 else vr(d, 16)
                a(f"v_mfma_f32_32x32x16_bf16 {vr(d,16)}, {vr(AS[s]+4*m)}, {vr(BS[s]+4*n)}, {cin}")
                for _ in range(2):
                    if k < len(nxt): a(nxt[k]); k += 1
                if 4 <= t < 11 and stat_ops:
                    n_ = 3
                    if stat_ops[0].startswith("s_mov_b32 exec_lo"): n_ = len(stat_ops)
                    cut = []
                    while stat_ops and len(cut) < n_:
                        if stat_ops[0].startswith("s_mov_b32 exec_lo") and cut: break
                        cut.append(stat_ops.pop(0))
                    for l in cut: a(l)
                    if n_ > 3: a("s_nop 3")
        while k < len(nxt): a(nxt[k]); k += 1
    assert not stat_ops
    a.stamp(2)
    a(f"v_mov_b32 v{t0}, {NONCE_L}")
    a(f"ds_read_b64 v[20:21], v{t0}")
    vm = VM(a)
    sH = S_A2
    a(f"s_lshl_b32 s{S_T0}, s{S_RT}, 2")
    a(f"s_lshl_b32 s{S_T1}, s{sWR}, 1")
    a(f"s_add_u32 s{S_T0}, s{S_T0}, s{S_T1}")
    a(f"s_mul_i32 s{S_T0}, s{S_T0}, 112")
    a(f"s_lshl_b32 s{S_T1}, s{S_FC}, 3")
    a(f"s_add_u32 s{S_T0}, s{S_T0}, s{S_T1}")
    a(f"s_lshl_b32 s{S_T1}, s{sWF}, 2")
    a(f"s_add_u32 s{S_T0}, s{S_T0}, s{S_T1}")
    a(f"s_lshl_b32 s{sH}, s{S_T0}, 10")
    if H_OFF: a(f"s_add_u32 s{sH}, s{sH}, {H_OFF}")
    sFast = 99
    a("s_waitcnt lgkmcnt(0)")
    a(f"v_readfirstlane_b32 s{S_NONCE}, v20")
    a(f"v_readfirstlane_b32 s{sFast}, v21")
    sKQ = S_WAVE
    vWd, vA0, vA1, vFl = 21, 22, 23, 16
    a(f"v_lshrrev_b32 v{t0}, 3, v0")
    a(f"v_and_b32 v{t1}, 7, v0")
    a(f"v_bfe_u32 v{t2}, v0, 4, 1")
    a(f"v_lshlrev_b32 v{t2}, 2, v{t2}")
    a(f"v_xor_b32 v{t1}, v{t1}, v{t2}")
    a(f"v_mul_u32_u24 v{t0}, 896, v{t0}")
    a(f"v_lshl_add_u32 v{vWd}, v{t1}, 4, v{t0}")
    sWdS, sRing = S_A3, S_A4
    a(f"s_mul_i32 s{sWdS}, s{sKQ}, {448*896}")
    a(f"s_lshl_b32 s{S_T0}, s{S_CT}, 7")
    a(f"s_add_u32 s{sWdS}, s{sWdS}, s{S_T0}")
    a(f"s_mul_i32 s{sRing}, s{sKQ}, {RING}")
    NPARK = 28 - NSLOT
    def wd_dma(ks, slot):
        for hh in range(2):
            a(f"s_add_u32 m0, s{sRing}, {slot*2048 + hh*1024}")
            a(f"s_add_u32 s{S_T1}, s{sWdS}, {(16*ks + 8*hh)*896}")
            a(f"buffer_load_dwordx4 v{vWd}, s[{R_A}:{R_A+3}], s{S_T1} offen lds")
            vm.issue(("wd", ks))
    def either(plain, wt):
        if "fast" not in a.exp: a(wt); return
        L1, L2 = a.uid("L_wt"), a.uid("L_st")
        a(f"s_cmp_eq_u32 s{sFast}, 0")
        a(f"s_cbranch_scc1 {L1}")
        a(plain); a(f"s_branch {L2}")
        a.label(L1); a(wt); a.label(L2)
    r1 = list(range(NSLOT, 28)) if a.stop != "p1" else []
    for m in range(4):
        for n in range(2):
            d = ACC + (2*m + n)*16
            o = 24 + 4*((2*m + n) & 3)
            for i in range(8): a(f"v_max_f32 v{d+i}, 0, v{d+i}")
            for i in range(8): a(f"v_mul_f32 v{d+i}, v{d+i}, v{d+8+i}")
            for i in range(4): a(f"v_cvt_pk_bf16_f32 v{o+i}, v{d+2*i}, v{d+2*i+1}")
            a(f"s_add_u32 s{S_T0}, s{sH}, {(n*112 + m)*1024}")
            st_ = f"buffer_store_dwordx4 {vr(o)}, v17, s[{R_WS}:{R_WS+3}], s{S_T0} offen"
            either(st_, st_ + " sc1")
            vm.issue("h")
            if 2*m + n >= 2:
                for _ in range(2):
                    if r1: ks = r1.pop(0); wd_dma(ks, ks - NSLOT)
    a.stamp(3)
    while r1: ks = r1.pop(0); wd_dma(ks, ks - NSLOT)
    a(f"s_lshl_b32 s{S_T0}, s{S_RT}, 1")
    a(f"s_add_u32 s{S_T0}, s{S_T0}, s{sWR}")
    a(f"s_mul_i32 s{S_T0}, s{S_T0}, 28")
    a(f"s_lshl_b32 s{S_T1}, s{S_FC}, 1")
    a(f"s_add_u32 s{S_T0}, s{S_T0}, s{S_T1}")
    a(f"s_add_u32 s{S_T0}, s{S_T0}, s{sWF}")
    a(f"s_lshl_b32 s{S_T0}, s{S_T0}, 7")
    a(f"s_add_u32 s{S_T1}, s{S_T0}, {F1_OFF}")
    vm.wait("h")
    a(f"v_mov_b32 v{t0}, s{S_NONCE}")
    a(f"v_mov_b32 v{t1}, 0")
    a("s_mov_b64 exec, 1")
    st_ = f"buffer_store_dword v{t0}, v{t1}, s[{R_WS}:{R_WS+3}], s{S_T1} offen"
    either(st_, st_ + " sc1")
    vm.issue("sig")
    a("s_mov_b64 exec, -1")
    a.stamp(4)
    if a.stop == "p1":
        a("s_barrier"); a.stamps_out(12); a("s_endpgm"); return
    a(f"v_bfe_u32 v{t0}, v0, 2, 2")
    a(f"v_lshrrev_b32 v{t1}, 5, v0")
    a(f"v_lshl_add_u32 v{t1}, v{t1}, 2, v{t0}")
    a(f"v_lshlrev_b32 v{t1}, 7, v{t1}")
    a(f"v_and_b32 v{t2}, 1, v0")
    a(f"v_lshl_add_u32 v{t1}, v{t2}, 3, v{t1}")
    a(f"v_add_u32 v{t1}, s{sRing}, v{t1}")
    a(f"v_bfe_u32 v{t2}, v0, 4, 1")
    a(f"v_bfe_u32 v{t3}, v0, 1, 1")
    a(f"v_lshl_add_u32 v{t2}, v{t2}, 1, v{t3}")
    a(f"v_bfe_u32 v{t3}, v0, 3, 1")
    a(f"v_lshl_add_u32 v{t2}, v{t3}, 2, v{t2}")
    a(f"v_lshl_add_u32 v{vA0}, v{t2}, 4, v{t1}")
    a(f"v_xor_b32 v{t2}, 4, v{t2}")
    a(f"v_lshl_add_u32 v{vA1}, v{t2}, 4, v{t1}")
    HB, A3, PK, ACC3 = 40, (24, 32), 88, 192
    def tr3(slot, dst):
        return [f"ds_read_b64_tr_b16 {vr(dst+4*m+2*h, 2)}, v{(vA0, vA1)[m]} offset:{slot*2048 + 1024*h}" for m in range(2) for h in range(2)]
    vm.wait(("wd", 27))
    for j in range(NPARK):
        for l in tr3(j, PK + 8*j): a(l)
        if j % 3 == 2: a("s_waitcnt lgkmcnt(4)")
    a("s_waitcnt lgkmcnt(0)")
    NR2 = 8
    for ks in range(NR2): wd_dma(ks, ks)
    a(f"s_mul_i32 s{S_T0}, s{S_RB}, 28")
    a(f"s_mul_i32 s{S_T1}, s{sKQ}, 7")
    a(f"s_add_u32 s{S_T0}, s{S_T0}, s{S_T1}")
    a(f"s_lshl_b32 s{S_T0}, s{S_T0}, 7")
    a(f"s_add_u32 s{S_T0}, s{S_T0}, {F1_OFF}")
    a(f"v_lshlrev_b32 v{vFl}, 7, v0")
    a(f"v_add_u32 v{vFl}, s{S_T0}, v{vFl}")
    a.poll(vFl, t0, 7)
    vm.reset()
    a.stamp(5)
    sHr = S_A2
    a(f"s_mul_i32 s{sHr}, s{S_RB}, {2*112}")
    a(f"s_mul_i32 s{S_T0}, s{sKQ}, 28")
    a(f"s_add_u32 s{sHr}, s{sHr}, s{S_T0}")
    a(f"s_lshl_b32 s{sHr}, s{sHr}, 10")
    if H_OFF: a(f"s_add_u32 s{sHr}, s{sHr}, {H_OFF}")
    kof = lambda t: (NSLOT + t) if t < NPARK else (t - NPARK)
    def h_load(t):
        for n in range(2):
            a(f"s_add_u32 s{S_T0}, s{sHr}, {(n*112 + kof(t))*1024}")
            a(f"buffer_load_dwordx4 {vr(HB + 8*(t % HD) + 4*n)}, v17, s[{R_WS}:{R_WS+3}], s{S_T0} offen sc1")
            vm.issue(("h", t))
    for t in range(HD): h_load(t)
    for t in range(28):
        s = t & 1
        vm.wait(("h", t))
        nxt = []
        if NPARK <= t + 1 < 28:
            if vm.has(("wd", kof(t + 1))): vm.wait(("wd", kof(t + 1)))
            nxt = tr3(kof(t + 1), A3[(t + 1) & 1])
        if t >= NPARK: a("s_waitcnt lgkmcnt(0)" if not nxt or True else "")
        src = (PK + 8*t) if t < NPARK else A3[s]
        k = 0
        for m in range(2):
            for n in range(2):
                d = ACC3 + (2*m + n)*16
                cin = "0" if t == 0 else vr(d, 16)
                a(f"v_mfma_f32_32x32x16_bf16 {vr(d,16)}, {vr(src+4*m)}, {vr(HB + 8*(t % HD) + 4*n)}, {cin}")
                if k < len(nxt): a(nxt[k]); k += 1
        if t == 4:
            a(f"v_mov_b32 v{t0}, {CNT_L + 12}")
            a(f"v_mov_b32 v{t1}, 1")
            a("s_mov_b64 exec, 1")
            a(f"ds_add_u32 v{t0}, v{t1}")
            a("s_mov_b64 exec, -1")
        if NR2 + t < NSLOT: wd_dma(NR2 + t, NR2 + t)
        if t + HD < 28: h_load(t + HD)
        if "p3st" in a.exp and t in (0, 6, 13, 20): a.stamp(8 + (0, 6, 13, 20).index(t))
    a.stamp(6)
    a(f"v_and_b32 v{t0}, 31, v0")
    a(f"v_mul_u32_u24 v{t0}, {PROW}, v{t0}")
    a(f"v_lshrrev_b32 v{t1}, 5, v0")
    a(f"v_lshl_add_u32 v{t0}, v{t1}, 4, v{t0}")
    a(f"v_add_u32 v{t0}, s{sRing}, v{t0}")
    a("s_nop 7")
    for m in range(2):
        for n in range(2):
            d = ACC3 + (2*m + n)*16
            for j in range(4):
                a(f"ds_write_b128 v{t0}, {vr(d+4*j)} offset:{n*32*PROW + m*128 + j*32}")
    a("s_waitcnt lgkmcnt(0)")
    a("s_barrier")
    a.stamp(7)
    a.label("L_cout")
    a.stamps_out(12 if "p3st" in a.exp else 8)
    a("s_endpgm")

def aux(a):
    a.label("L_prep")
    t0, t1, t2, t3 = 4, 5, 6, 7
    sP = 2
    CSL = 0
    vCo = 14
    a(f"v_lshrrev_b32 v{t0}, 4, v0")
    a(f"v_mul_u32_u24 v{t0}, 3584, v{t0}")
    a(f"v_and_b32 v{t1}, 15, v0")
    a(f"v_lshl_add_u32 v{vCo}, v{t1}, 4, v{t0}")
    a(f"v_lshlrev_b32 v15, 4, v0")
    a("s_waitcnt lgkmcnt(0)")
    a.srd(R_WS, S_WS, WS_BYTES); a.srd(R_A, S_SK, XB); a.srd(R_B, S_WD, WB)
    a.stamp(0)
    CD, CA = 192, 248
    sC = S_A1
    a(f"s_cmp_ge_u32 s{sP}, 28")
    a("s_cbranch_scc1 L_aux_nocs")
    a(f"s_cmp_ge_u32 s{sP}, 14")
    a("s_cbranch_scc1 L_aux_up")
    a.srd(R_E, S_WG, WB)
    a(f"s_mov_b32 s{sC}, s{sP}")
    a("s_branch L_aux_cs")
    a.label("L_aux_up")
    a.srd(R_E, S_WU, WB)
    a(f"s_sub_u32 s{sC}, s{sP}, 14")
    a.label("L_aux_cs")
    a(f"v_mov_b32 v{t1}, {EP_OFF}")
    a(f"buffer_load_dword v12, v{t1}, s[{R_WS}:{R_WS+3}], 0 offen sc1")
    a(f"s_mul_i32 s{S_T0}, s{S_WAVE}, {4*3584}")
    a(f"s_lshl_b32 s{S_T1}, s{sC}, 8")
    a(f"s_add_u32 s{S_T0}, s{S_T0}, s{S_T1}")
    for i in range(14):
        a(f"buffer_load_dwordx4 {vr(CD+4*i)}, v{vCo}, s[{R_E}:{R_E+3}], s{S_T0} offen")
        if i < 13: a(f"s_add_u32 s{S_T0}, s{S_T0}, {32*3584}")
    sLo, sHi = S_A2, S_A3
    a(f"s_mov_b32 s{sLo}, 0x00003f80")
    a(f"s_mov_b32 s{sHi}, 0x3f800000")
    for i in range(14):
        a(f"s_waitcnt vmcnt({13 - i})")
        for q in range(4):
            c0 = "0" if i == 0 else f"v{CA+2*q}"; c1 = "0" if i == 0 else f"v{CA+2*q+1}"
            a(f"v_dot2_f32_bf16 v{CA+2*q}, v{CD+4*i+q}, s{sLo}, {c0}")
            a(f"v_dot2_f32_bf16 v{CA+2*q+1}, v{CD+4*i+q}, s{sHi}, {c1}")
    a(f"v_lshrrev_b32 v{t0}, 4, v0")
    a(f"s_lshl_b32 s{S_T0}, s{S_WAVE}, 2")
    a(f"v_add_u32 v{t0}, s{S_T0}, v{t0}")
    a(f"v_lshlrev_b32 v{t0}, 9, v{t0}")
    a(f"v_and_b32 v{t1}, 15, v0")
    a(f"v_lshl_add_u32 v{t0}, v{t1}, 5, v{t0}")
    if CSL: a(f"v_add_u32 v{t0}, {CSL}, v{t0}")
    a(f"ds_write_b128 v{t0}, {vr(CA)}")
    a(f"ds_write_b128 v{t0}, {vr(CA+4)} offset:16")
    a("s_waitcnt lgkmcnt(0)")
    a("s_barrier")
    a(f"s_cmp_lg_u32 s{S_WAVE}, 7")
    a("s_cbranch_scc1 L_aux_touch")
    a(f"v_lshlrev_b32 v{t0}, 2, v0")
    if CSL: a(f"v_add_u32 v{t0}, {CSL}, v{t0}")
    for hh in range(2):
        for i in range(32):
            a(f"ds_read_b32 v{CD-64+32*hh+i}, v{t0} offset:{512*i + 256*hh}")
            if i % 8 == 7: a("s_waitcnt lgkmcnt(7)")
    a("s_waitcnt lgkmcnt(0)")
    a.nonce_from(12)
    for hh in range(2):
        b = CD - 64 + 32*hh
        for st in (16, 8, 4, 2, 1):
            for i in range(st): a(f"v_add_f32 v{b+i}, v{b+i}, v{b+i+st}")
        a(f"v_mov_b32 v{b+1}, s{S_NONCE}")
    a(f"s_cmp_ge_u32 s{sP}, 14")
    a(f"s_cselect_b32 s{S_T0}, 1792, 0")
    a(f"s_lshl_b32 s{S_T1}, s{sC}, 7")
    a(f"s_add_u32 s{S_T0}, s{S_T0}, s{S_T1}")
    a(f"s_lshl_b32 s{S_T0}, s{S_T0}, 3")
    a(f"s_add_u32 s{S_T0}, s{S_T0}, {CS_OFF}")
    a(f"v_lshlrev_b32 v{t0}, 3, v0")
    a(f"buffer_store_dwordx2 {vr(CD-64, 2)}, v{t0}, s[{R_WS}:{R_WS+3}], s{S_T0} offen sc1")
    a(f"buffer_store_dwordx2 {vr(CD-32, 2)}, v{t0}, s[{R_WS}:{R_WS+3}], s{S_T0} offen offset:512 sc1")
    a("s_branch L_aux_touch")
    a.label("L_aux_nocs")
    a.label("L_aux_touch")
    a.stamp(1)
    a(f"s_mul_i32 s{S_T0}, s{sP}, 57344")
    a(f"s_lshl_b32 s{S_T1}, s{S_WAVE}, 10")
    a(f"s_add_u32 s{S_T0}, s{S_T0}, s{S_T1}")
    for i in range(7):
        a(f"buffer_load_dwordx4 {vr(16+4*i)}, v15, s[{R_A}:{R_A+3}], s{S_T0} offen")
        a(f"s_add_u32 s{S_T0}, s{S_T0}, 8192")
    a(f"s_mul_i32 s{S_T0}, s{sP}, 50176")
    a(f"s_add_u32 s{S_T0}, s{S_T0}, s{S_T1}")
    for i in range(7):
        a(f"buffer_load_dwordx4 {vr(48+4*i)}, v15, s[{R_B}:{R_B+3}], s{S_T0} offen")
        a(f"s_add_u32 s{S_T0}, s{S_T0}, 8192")
    a.stamp(2)
    a("s_waitcnt vmcnt(0)")
    a.stamp(3)
    a(f"s_cmp_lg_u32 s{sP}, 28")
    a("s_cbranch_scc1 L_aux_end")
    a(f"s_cmp_lg_u32 s{S_WAVE}, 0")
    a("s_cbranch_scc1 L_aux_end")
    a(f"v_mov_b32 v{t1}, {EP_OFF}")
    a(f"buffer_load_dword v{t2}, v{t1}, s[{R_WS}:{R_WS+3}], 0 offen sc1")
    a("s_waitcnt vmcnt(0)")
    a.nonce_from(t2)
    a(f"v_lshlrev_b32 v{t0}, 2, v0")
    a(f"v_add_u32 v{t0}, {F2_OFF}, v{t0}")
    a(f"s_mov_b32 s{S_BND}, {a.spin}")
    a.label("L_aux_ep")
    a("s_sleep 32")
    for i in range(14): a(f"buffer_load_dword v{16+i}, v{t0}, s[{R_WS}:{R_WS+3}], 0 offen offset:{256*i} sc1")
    a("s_waitcnt vmcnt(0)")
    for i in range(14): a(f"v_xor_b32 v{16+i}, s{S_NONCE}, v{16+i}")
    for i in range(1, 14): a(f"v_or_b32 v16, v16, v{16+i}")
    a("v_cmp_ne_u32 vcc, 0, v16")
    a("s_nop 1")
    a("s_cbranch_vccz L_aux_epw")
    a(f"s_sub_u32 s{S_BND}, s{S_BND}, 1")
    a(f"s_cmp_lg_u32 s{S_BND}, 0")
    a("s_cbranch_scc1 L_aux_ep")
    a.label("L_aux_epw")
    a(f"v_mov_b32 v{t2}, s{S_NONCE}")
    a("s_mov_b64 exec, 1")
    a(f"buffer_store_dword v{t2}, v{t1}, s[{R_WS}:{R_WS+3}], 0 offen sc1")
    a("s_mov_b64 exec, -1")
    a("s_waitcnt vmcnt(0)")
    a.label("L_aux_end")
    a.stamps_out(4)
    a("s_endpgm")

HEADER = open(os.path.join(os.path.dirname(os.path.abspath(__file__)), "header.txt")).read()

def build(prof=False, spin=1 << 16, stop=None, exp=()):
    a = Gen(prof=prof, spin=spin, stop=stop, exp=exp)
    entry(a)
    h_wave(a)
    c_wave(a)
    aux(a)
    a.label("L_end")
    a("s_endpgm")
    txt = HEADER + f"; @launch grid=(256,1,1) block=(512,1,1) lds={LDS_BYTES}\n"
    txt += f'.amdgcn_target "amdgcn-amd-amdhsa--gfx950"\n.text\n.globl {NAME}\n.p2align 8\n.type {NAME},@function\n{NAME}:\n'
    body = [l for l in a.lines if l is not None]
    txt += "\n".join(("    " + l) if not l.endswith(":") else l for l in body) + "\n"
    txt += (f'.section .rodata,"a"\n.p2align 6\n.amdhsa_kernel {NAME}\n'
            "  .amdhsa_next_free_vgpr 256\n  .amdhsa_next_free_sgpr 102\n  .amdhsa_accum_offset 256\n"
            "  .amdhsa_group_segment_fixed_size 0\n  .amdhsa_kernarg_size 104\n  .amdhsa_user_sgpr_count 2\n"
            "  .amdhsa_user_sgpr_kernarg_segment_ptr 1\n  .amdhsa_system_sgpr_workgroup_id_x 1\n"
            "  .amdhsa_float_denorm_mode_32 3\n"
            ".end_amdhsa_kernel\n")
    return txt

if __name__ == "__main__":
    import argparse
    ap = argparse.ArgumentParser()
    ap.add_argument("-o", default="parallel_sum__ssm_conv_h3__glu_gated_reglu__prompt.s")
    ap.add_argument("--prof", nargs="?", const="rt", default=None)
    ap.add_argument("--spin", type=int, default=1 << 16)
    ap.add_argument("--stop", default=None)
    ap.add_argument("--exp", default="")
    x = ap.parse_args()
    open(x.o, "w").write(build(x.prof, x.spin, x.stop, [e for e in x.exp.split(',') if e]))
    print("wrote", x.o)
```

```python
import sys, os
sys.path.insert(0, os.path.dirname(os.path.abspath(__file__)))
from asmlib import Asm

NAME = "parallel_sum__ssm_conv_h3__glu_gated_reglu__prompt_kernel"
S, D, F = 2048, 448, 1792
XB = S * D * 2
WB = D * F * 2

H_OFF  = 0x000000
UT_OFF = 0x700000
YT_OFF = 0x8C0000
F0_OFF = 0xA80000
F1_OFF = 0xAA0000
F2_OFF = 0xAC0000
EP_OFF = 0xAE0000
SG_OFF = 0xAE8000
XG_OFF = 0xAE0100
CS_OFF = 0xAF0000
PROF_OFF = 0xB00000
WS_BYTES = 0x10000000

XR, GR, UR = 0, 49152, 98304
SLOT = 16384
CV = 122880
KCH = 8320
UB0 = CV + 2 * KCH
UCH = 4608
EXT = 149504
XEXT, WEXT, ZEXT = EXT + 8192, EXT + 9216, EXT + 11264
STATS_L = 161792
NONCE_L = 162816
FAST_L = 162820
STG_L = 162832
CNT_L = 162944
RING = 30720
NSLOT = 15
PROW = 272
LDS_BYTES = 163840
T_TOUCH = 20
HD = 6

S_X, S_K, S_V, S_SH, S_SK, S_SD, S_WG, S_WU, S_WD, S_OUT, S_DBG, S_WS = 4, 6, 8, 10, 12, 14, 18, 20, 22, 24, 26, 28
S_WAVE, S_NONCE = 30, 31
R_A, R_B, R_C, R_WS, R_E = 32, 36, 40, 44, 48
S_RT, S_FC, S_PAR, S_CT, S_RB, S_M = 52, 53, 54, 55, 56, 57
S_T0, S_T1, S_T2, S_T3 = 58, 59, 60, 61
S_A0, S_A1, S_A2, S_A3, S_A4, S_A5 = 62, 63, 64, 65, 66, 67
S_BND = 68
S_EX = 70
S_ST = 72

class VM:
    def __init__(self, a): self.a, self.q = a, []
    def issue(self, tag): self.q.append(tag)
    def wait(self, tag):
        idx = max(i for i, t in enumerate(self.q) if t == tag)
        n = len(self.q) - 1 - idx
        assert n <= 63, (tag, n)
        self.a(f"s_waitcnt vmcnt({n})")
        self.q = self.q[idx + 1:]
    def has(self, tag): return tag in self.q
    def drain(self):
        self.a("s_waitcnt vmcnt(0)"); self.q = []
    def reset(self): self.q = []

class Gen(Asm):
    def __init__(self, prof=False, spin=1 << 16, stop=None, exp=()):
        super().__init__()
        self.exp = set(exp)
        self.prof, self.spin, self.stop = prof, spin, stop
        self.nst = 0
    def srd(self, dst, base, nbytes):
        self(f"s_mov_b32 s{dst}, s{base}")
        self(f"s_and_b32 s{dst+1}, s{base+1}, 0xffff")
        self(f"s_mov_b32 s{dst+2}, {nbytes}")
        self(f"s_mov_b32 s{dst+3}, 0x20000")
    def stamp(self, i):
        if self.prof:
            self(f"{'s_memtime' if self.prof == 'cyc' else 's_memrealtime'} s[{S_ST+2*i}:{S_ST+2*i+1}]")
            self("s_waitcnt lgkmcnt(0)")
    def stamps_out(self, n):
        if not self.prof: return
        self("s_waitcnt vmcnt(0) lgkmcnt(0)")
        self("s_mov_b64 exec, 1")
        self(f"s_lshl_b32 s{S_T0}, s2, 3")
        self(f"s_add_u32 s{S_T0}, s{S_T0}, s{S_WAVE}")
        self(f"s_lshl_b32 s{S_T0}, s{S_T0}, 6")
        self(f"s_add_u32 s{S_T0}, s{S_T0}, {PROF_OFF}")
        self("v_mov_b32 v1, 0")
        for i in range(n):
            self(f"v_mov_b32 v2, s{S_ST+2*i}")
            self(f"buffer_store_dword v2, v1, s[{R_WS}:{R_WS+3}], s{S_T0} offen offset:{4*i}")
            self("s_nop 0")
        self("s_waitcnt vmcnt(0)")
    def poll(self, vaddr, vtmp, nlanes, sleep=1):
        L, Dn = self.uid("L_poll"), self.uid("L_polled")
        if nlanes < 64: self(f"s_mov_b64 exec, {hex((1 << nlanes) - 1)}")
        self(f"s_mov_b32 s{S_BND}, {self.spin}")
        self.label(L)
        self(f"buffer_load_dword v{vtmp}, v{vaddr}, s[{R_WS}:{R_WS+3}], 0 offen sc1")
        self("s_waitcnt vmcnt(0)")
        self(f"v_cmp_ne_u32 vcc, s{S_NONCE}, v{vtmp}")
        self("s_nop 1")
        self(f"s_cbranch_vccz {Dn}")
        self(f"s_sleep {sleep}")
        self(f"s_sub_u32 s{S_BND}, s{S_BND}, 1")
        self(f"s_cmp_lg_u32 s{S_BND}, 0")
        self(f"s_cbranch_scc1 {L}")
        self.label(Dn)
        if nlanes < 64: self("s_mov_b64 exec, -1")
    def signal(self, soff_reg, vtmp, vzero):
        self(f"v_mov_b32 v{vtmp}, s{S_NONCE}")
        self(f"v_mov_b32 v{vzero}, 0")
        self("s_mov_b64 exec, 1")
        self(f"buffer_store_dword v{vtmp}, v{vzero}, s[{R_WS}:{R_WS+3}], s{soff_reg} offen sc1")
        self("s_mov_b64 exec, -1")
    def nonce_from(self, vtmp):
        self(f"v_readfirstlane_b32 s{S_NONCE}, v{vtmp}")
        self("s_nop 3")
        self(f"s_add_u32 s{S_NONCE}, s{S_NONCE}, 1")

def vr(b, n=4): return f"v[{b}:{b+n-1}]"

def entry(a):
    a("s_load_dwordx16 s[4:19], s[0:1], 0")
    a("s_load_dwordx8 s[20:27], s[0:1], 64")
    a("s_load_dwordx2 s[28:29], s[0:1], 96")
    a("s_cmp_ge_u32 s2, 256")
    a("s_cbranch_scc1 L_end")
    a("v_lshrrev_b32 v1, 6, v0")
    a("v_and_b32 v0, 63, v0")
    a(f"v_readfirstlane_b32 s{S_WAVE}, v1")
    if "span" in a.exp:
        a("s_memrealtime s[88:89]")
        a(f"s_cmp_lg_u32 s{S_WAVE}, 3")
        a("s_cbranch_scc1 L_nospan")
        a("s_waitcnt lgkmcnt(0)")
        a("s_not_b32 s88, s88")
        a("v_mov_b32 v2, s88"); a("v_mov_b32 v3, 8")
        a("s_mov_b64 exec, 1")
        a(f"global_atomic_umax v3, v2, s[{S_DBG}:{S_DBG+1}]")
        a("s_mov_b64 exec, -1")
        a.label("L_nospan")
    a("s_cmp_lt_u32 s2, 32")
    a("s_cbranch_scc1 L_prep")
    a(f"s_sub_u32 s{S_M}, s2, 32")
    a(f"s_and_b32 s{S_T0}, s{S_M}, 7")
    a(f"s_lshr_b32 s{S_T1}, s{S_M}, 3")
    if "map2x14" not in a.exp:
        a(f"s_mul_i32 s{S_T2}, s{S_T1}, 37")
        a(f"s_lshr_b32 s{S_T2}, s{S_T2}, 8")
        a(f"s_mul_i32 s{S_T3}, s{S_T2}, 7")
        a(f"s_sub_u32 s{S_CT}, s{S_T1}, s{S_T3}")
        a(f"s_and_b32 s{S_PAR}, s{S_T0}, 1")
        a(f"s_lshr_b32 s{S_T0}, s{S_T0}, 1")
        a(f"s_lshl_b32 s{S_T0}, s{S_T0}, 2")
        a(f"s_add_u32 s{S_RT}, s{S_T0}, s{S_T2}")
        a(f"s_mul_i32 s{S_T0}, s{S_PAR}, 7")
        a(f"s_add_u32 s{S_FC}, s{S_T0}, s{S_CT}")
    else:
        a(f"s_mul_i32 s{S_T2}, s{S_T1}, 37")
        a(f"s_lshr_b32 s{S_T2}, s{S_T2}, 9")
        a(f"s_mul_i32 s{S_T3}, s{S_T2}, 14")
        a(f"s_sub_u32 s{S_FC}, s{S_T1}, s{S_T3}")
        a(f"s_lshl_b32 s{S_T0}, s{S_T0}, 1")
        a(f"s_add_u32 s{S_RT}, s{S_T0}, s{S_T2}")
        a(f"s_cmp_ge_u32 s{S_FC}, 7")
        a(f"s_cselect_b32 s{S_PAR}, 1, 0")
        a(f"s_mul_i32 s{S_T0}, s{S_PAR}, 7")
        a(f"s_sub_u32 s{S_CT}, s{S_FC}, s{S_T0}")
    a(f"s_lshl_b32 s{S_RB}, s{S_RT}, 1")
    a(f"s_add_u32 s{S_RB}, s{S_RB}, s{S_PAR}")
    a(f"s_cmp_lt_u32 s{S_WAVE}, 4")
    a("s_cbranch_scc1 L_cwave")

def w_tr_lane_consts(a, vbase, vt1, t0, t1):
    a(f"v_bfe_u32 v{t0}, v0, 2, 2")
    a(f"v_bfe_u32 v{t1}, v0, 1, 1")
    a(f"v_lshlrev_b32 v{vt1}, 1, v{t0}")
    a(f"v_xor_b32 v{vt1}, v{vt1}, v{t1}")
    a(f"v_bfe_u32 v{t1}, v0, 4, 1")
    a(f"v_lshlrev_b32 v{vbase}, 3, v{t1}")
    a(f"v_xor_b32 v{vt1}, v{vt1}, v{vbase}")
    a(f"v_mul_u32_u24 v{vbase}, {UR-GR}, v{t1}")
    a(f"v_lshrrev_b32 v{t1}, 5, v0")
    a(f"v_lshl_add_u32 v{t0}, v{t1}, 3, v{t0}")
    a(f"v_lshl_add_u32 v{vbase}, v{t0}, 8, v{vbase}")
    a(f"v_and_b32 v{t0}, 1, v0")
    a(f"v_lshl_add_u32 v{vbase}, v{t0}, 3, v{vbase}")
    a(f"v_add_u32 v{vbase}, {GR}, v{vbase}")

def x_frag_addrs(a, vdst, srowbase, t0, t1, t2):
    a(f"v_and_b32 v{t0}, 31, v0")
    a(f"v_bfe_u32 v{t1}, v0, 1, 3")
    a(f"v_add_u32 v{t0}, s{srowbase}, v{t0}")
    a(f"v_lshlrev_b32 v{t0}, 7, v{t0}")
    a(f"v_lshrrev_b32 v{t2}, 5, v0")
    a(f"v_xor_b32 v{t1}, v{t1}, v{t2}")
    for ks in range(4):
        a(f"v_xor_b32 v{t2}, {2*ks}, v{t1}")
        a(f"v_lshl_add_u32 v{vdst+ks}, v{t2}, 4, v{t0}")

def nonce_check(a, vnon, t0):
    a.nonce_from(vnon)

def h_wave(a):
    vnon, vF0a, vF0d = 16, 22, 23
    vKA_, vKB_ = 32, 48
    t0, t1, t2, t3 = 64, 65, 66, 67
    w = S_A0
    sCH, sRH = 100, 101
    a(f"s_sub_u32 s{w}, s{S_WAVE}, 4")
    a(f"s_cmp_ge_u32 s{w}, 2")
    a("s_cbranch_scc1 L_side")
    def common_setup():
        a.srd(R_WS, S_WS, WS_BYTES); a.srd(R_E, S_SK, XB)
        a(f"s_lshr_b32 s{S_T1}, s{w}, 1")
        a(f"s_lshl_b32 s{sCH}, s{S_M}, 1")
        a(f"s_add_u32 s{sCH}, s{sCH}, s{S_T1}")
        a(f"s_and_b32 s{sRH}, s{w}, 1")
        a(f"s_lshr_b32 s{S_T1}, s{sCH}, 4")
        a(f"s_lshl_b32 s{S_T1}, s{S_T1}, 7")
        a(f"s_add_u32 s{S_T1}, s{S_T1}, {F0_OFF}")
        a(f"v_and_b32 v{t0}, 31, v0")
        a(f"v_lshlrev_b32 v{t0}, 2, v{t0}")
        a(f"v_add_u32 v{vF0a}, s{S_T1}, v{t0}")
    def nonce_load(vm):
        a(f"v_mov_b32 v{t0}, {EP_OFF}")
        a(f"buffer_load_dword v{vnon}, v{t0}, s[{R_WS}:{R_WS+3}], 0 offen sc1"); vm.issue("non")
    def k_loads(vm):
        a(f"s_lshl_b32 s{S_T1}, s{sCH}, 12")
        a(f"v_lshlrev_b32 v{t0}, 4, v0")
        a(f"v_add_u32 v{t1}, 4, v{t0}")
        for i in range(4):
            a(f"buffer_load_dwordx4 {vr(vKA_+4*i)}, v{t0}, s[{R_E}:{R_E+3}], s{S_T1} offen offset:{1024*i}"); vm.issue("K")
            a(f"buffer_load_dwordx4 {vr(vKB_+4*i)}, v{t1}, s[{R_E}:{R_E+3}], s{S_T1} offen offset:{1024*i}"); vm.issue("K")
    def f0_load(vm):
        a(f"buffer_load_dword v{vF0d}, v{vF0a}, s[{R_WS}:{R_WS+3}], 0 offen sc1"); vm.issue("f0")

    vm = VM(a)
    if "noprio" not in a.exp: a("s_setprio 2")
    vXe, vXo, vG, vU = 4, 5, 6, 7
    a(f"v_lshrrev_b32 v{t0}, 3, v0")
    a(f"v_mul_u32_u24 v{t0}, 896, v{t0}")
    a(f"v_lshrrev_b32 v{t1}, 4, v0")
    a(f"v_and_b32 v{t2}, 7, v0")
    a(f"v_xor_b32 v{t2}, v{t2}, v{t1}")
    a(f"v_lshl_add_u32 v{vXe}, v{t2}, 4, v{t0}")
    a(f"v_xor_b32 v{t2}, 4, v{t2}")
    a(f"v_lshl_add_u32 v{vXo}, v{t2}, 4, v{t0}")
    a(f"v_mul_u32_u24 v{t0}, 3584, v{t1}")
    a(f"v_and_b32 v{t2}, 15, v0")
    a(f"v_lshlrev_b32 v{t3}, 1, v{t1}")
    a(f"v_xor_b32 v{t2}, v{t2}, v{t3}")
    a(f"v_lshl_add_u32 v{vG}, v{t2}, 4, v{t0}")
    a(f"v_xor_b32 v{t2}, 8, v{t2}")
    a(f"v_lshl_add_u32 v{vU}, v{t2}, 4, v{t0}")
    sXs, sXd, sWs, sGd, sUd = S_A1, S_A2, S_A3, S_A4, S_A5
    a(f"s_lshl_b32 s{S_T0}, s{S_RT}, 7")
    a(f"s_lshl_b32 s{S_T1}, s{w}, 6")
    a(f"s_add_u32 s{S_T0}, s{S_T0}, s{S_T1}")
    a(f"s_mul_i32 s{sXs}, s{S_T0}, 896")
    a(f"s_lshl_b32 s{sXd}, s{w}, 13")
    a(f"s_mul_i32 s{S_T0}, s{w}, {32*3584}")
    a(f"s_lshl_b32 s{S_T1}, s{S_FC}, 8")
    a(f"s_add_u32 s{sWs}, s{S_T0}, s{S_T1}")
    a(f"s_add_u32 s{sGd}, s{sXd}, {GR}")
    a(f"s_add_u32 s{sUd}, s{sXd}, {UR}")
    a("s_waitcnt lgkmcnt(0)")
    a.srd(R_A, S_X, XB); a.srd(R_B, S_WG, WB); a.srd(R_C, S_WU, WB)
    def issue_stage(st, lo=0, hi=8):
        slot = st % 3
        for i in range(lo, hi):
            for (dst, voff, srd, src, step, base) in ((sXd, vXe if i % 2 == 0 else vXo, R_A, sXs, 8*896, st*128),
                                                      (sGd, vG, R_B, sWs, 4*3584, 64*st*3584), (sUd, vU, R_C, sWs, 4*3584, 64*st*3584)):
                a(f"s_add_u32 m0, s{dst}, {slot*SLOT + i*1024}")
                a(f"s_add_u32 s{S_T0}, s{src}, {base + i*step}")
                a(f"buffer_load_dwordx4 v{voff}, s[{srd}:{srd+3}], s{S_T0} offen lds")
                vm.issue(("st", st))
    issue_stage(0); issue_stage(1, 0, 5)
    a.stamp(0)
    common_setup()
    vCA, vSA, vCS, vST = 10, 11, 72, 80
    vh, vl, e0 = 68, 69, 88
    a(f"v_bfe_u32 v{t0}, v0, 4, 1")
    a(f"v_mul_u32_u24 v{t0}, 1792, v{t0}")
    a(f"v_and_b32 v{t1}, 15, v0")
    a(f"v_add_u32 v{t0}, v{t0}, v{t1}")
    a(f"s_lshl_b32 s{S_T1}, s{S_FC}, 7")
    a(f"s_lshl_b32 s{S_T2}, s{w}, 6")
    a(f"s_add_u32 s{S_T1}, s{S_T1}, s{S_T2}")
    a(f"v_add_u32 v{t0}, s{S_T1}, v{t0}")
    a(f"v_lshlrev_b32 v{t0}, 3, v{t0}")
    a(f"v_add_u32 v{vCA}, {CS_OFF}, v{t0}")
    a(f"s_lshl_b32 s{S_T1}, s{S_RT}, 7")
    a(f"s_add_u32 s{S_T1}, s{S_T1}, s{S_T2}")
    a(f"v_and_b32 v{t0}, 31, v0")
    a(f"v_add_u32 v{t0}, s{S_T1}, v{t0}")
    a(f"v_lshlrev_b32 v{t0}, 4, v{t0}")
    a(f"v_add_u32 v{vSA}, {SG_OFF}, v{t0}")
    def cs_load():
        for e in range(4):
            a(f"buffer_load_dwordx2 {vr(vCS+2*e, 2)}, v{vCA}, s[{R_WS}:{R_WS+3}], 0 offen offset:{128*e} sc1"); vm.issue("cs")
    def sg_load():
        for e in range(2):
            a(f"buffer_load_dwordx4 {vr(vST+4*e)}, v{vSA}, s[{R_WS}:{R_WS+3}], 0 offen offset:{512*e} sc1"); vm.issue("sg")
    def tag_check(regs, reload):
        L, Dn = a.uid("L_tag"), a.uid("L_tagd")
        a(f"s_mov_b32 s{S_BND}, {a.spin}")
        a.label(L)
        a(f"v_cmp_ne_u32 vcc, s{S_NONCE}, v{regs[0]}")
        for r in regs[1:]:
            a(f"v_cmp_ne_u32 s[{S_EX}:{S_EX+1}], s{S_NONCE}, v{r}")
            a("s_nop 1")
            a(f"s_or_b64 vcc, vcc, s[{S_EX}:{S_EX+1}]")
        a(f"s_cbranch_vccz {Dn}")
        keep = list(vm.q); reload()
        a("s_waitcnt vmcnt(0)")
        vm.q = keep
        a(f"s_sub_u32 s{S_BND}, s{S_BND}, 1")
        a(f"s_cmp_lg_u32 s{S_BND}, 0")
        a(f"s_cbranch_scc1 {L}")
        a.label(Dn)
    def split(vsrc, neg):
        sg = "-" if neg else ""
        a(f"v_cvt_pk_bf16_f32 v{vh}, {sg}v{vsrc}, {sg}v{vsrc}")
        a(f"v_and_b32 v{t2}, 0xffff0000, v{vh}")
        a(f"v_sub_f32_e64 v{t2}, {sg}v{vsrc}, v{t2}")
        a(f"v_cvt_pk_bf16_f32 v{vl}, v{t2}, v{t2}")
    for st in range(7):
        vm.wait(("st", st))
        if a.stop == "p1": a.stamp(3 + st)
        a("s_barrier")
        if st == 0: issue_stage(1, 5, 8)
        if st == 1: nonce_load(vm)
        if st == 3:
            assert not vm.has("non")
            nonce_check(a, vnon, t0)
        if st <= 4: issue_stage(st + 2)
        if st == 2:
            a(f"v_mov_b32 v{t0}, {CNT_L + 24}")
            a(f"v_mov_b32 v{t1}, 1")
            a("s_mov_b64 exec, 1")
            a(f"ds_add_u32 v{t0}, v{t1}")
            a("s_mov_b64 exec, -1")
        if st == 5:
            sg_load(); cs_load()
        if st == 6:
            vm.wait("cs")
            tag_check([vST + 1, vST + 3, vST + 5, vST + 7], sg_load)
            a(f"v_and_b32 v{t1}, 31, v0")
            a(f"s_lshl_b32 s{S_T1}, s{w}, 9")
            a(f"v_lshl_add_u32 v{t3}, v{t1}, 3, s{S_T1}")
            a(f"v_add_u32 v98, {STATS_L}, v{t3}")
            a(f"v_add_u32 v99, {XEXT}, v{t3}")
            for e in range(2):
                g = vST + 4*e
                a(f"v_mov_b32 v{g+1}, v{g+2}")
                a(f"ds_write_b64 v98, {vr(g, 2)} offset:{256*e}")
                split(g, True)
                f0 = e0 + 2*e
                a(f"v_and_b32 v{f0+1}, 0xffff, v{vh}")
                a(f"v_lshlrev_b32 v{t1}, 16, v{vl}")
                a(f"v_or_b32 v{f0}, v{t1}, v{f0+1}")
                a(f"ds_write_b64 v99, {vr(f0, 2)} offset:{256*e}")
            tag_check([vCS + 1, vCS + 3, vCS + 5, vCS + 7], cs_load)
            a(f"v_and_b32 v{t1}, 31, v0")
            a(f"s_lshl_b32 s{S_T1}, s{w}, 10")
            a(f"v_lshl_add_u32 v{t3}, v{t1}, 3, s{S_T1}")
            a(f"v_add_u32 v99, {WEXT}, v{t3}")
            for e in range(4):
                f0 = e0 + 4 + 2*(e & 1)
                split(vCS + 2*e, False)
                a(f"v_mov_b32 v{f0}, v{vh}")
                a(f"v_and_b32 v{f0+1}, 0xffff, v{vl}")
                a(f"ds_write_b64 v99, {vr(f0, 2)} offset:{256*e}")
            a(f"v_mov_b32 v{t1}, 0")
            a(f"v_mov_b32 v{t2}, {FAST_L}")
            a(f"ds_write_b32 v{t2}, v{t1}")
            a("s_waitcnt lgkmcnt(0)")
    a("s_branch L_htail")

    a.label("L_side")
    if "icpf" in a.exp:
        a("s_getpc_b64 s[90:91]")
        a.label("L_pc0")
        a(f"s_sub_u32 s90, s90, L_pc0-{NAME}")
        a("s_subb_u32 s91, s91, 0")
        a(f"s_lshr_b32 s{S_T0}, s{S_M}, 3")
        a(f"s_lshl_b32 s{S_T0}, s{S_T0}, 1")
        a(f"s_and_b32 s{S_T1}, s{S_WAVE}, 1")
        a(f"s_add_u32 s{S_T0}, s{S_T0}, s{S_T1}")
        a(f"s_lshl_b32 s{S_T0}, s{S_T0}, 10")
        a(f"v_lshlrev_b32 v2, 4, v0")
        a(f"v_add_u32 v2, s{S_T0}, v2")
        a(f"v_min_u32 v2, L_end-{NAME}-16, v2")
        a("global_load_dwordx4 v[196:199], v2, s[90:91]")
    if "noprio" not in a.exp: a("s_setprio 2")
    vm = VM(a)
    vCA, vSA, vUo, vCS, vST = 4, 8, 10, 72, 80
    vh, vl, e0 = 68, 69, 88
    sW = S_A1
    a(f"s_sub_u32 s{sW}, s{w}, 2")
    sTB, sCG = S_A2, S_A3
    a(f"s_mul_i32 s{sTB}, s{S_M}, 9363")
    a(f"s_lshr_b32 s{sTB}, s{sTB}, 16")
    a(f"s_mul_i32 s{S_T1}, s{sTB}, 7")
    a(f"s_sub_u32 s{sCG}, s{S_M}, s{S_T1}")
    KR, VR, WR, KF, WF, AC = 100, 128, 144, 160, 174, 182
    vKo, vKv, vKw, vT = 186, 189, 190, 191
    a(f"s_lshl_b32 s{S_T0}, s{sTB}, 6")
    a(f"s_lshl_b32 s{S_T1}, s{sW}, 5")
    a(f"s_add_u32 s{S_T0}, s{S_T0}, s{S_T1}")
    a(f"v_lshrrev_b32 v{t0}, 3, v0")
    a(f"v_lshl_add_u32 v{t1}, v{t0}, 2, s{S_T0}")
    a(f"v_and_b32 v{t2}, 7, v0")
    a(f"s_lshl_b32 s{S_T1}, s{sCG}, 7")
    a(f"v_lshl_add_u32 v{t3}, v{t2}, 4, s{S_T1}")
    a(f"v_mov_b32 v{vT}, 896")
    a(f"v_mad_u32_u24 v{vKv}, v{t1}, v{vT}, v{t3}")
    for i in range(3):
        a(f"v_cmp_gt_u32 vcc, {3-i}, v{t1}")
        a(f"v_subrev_u32 v{vKo+i}, {(3-i)*896}, v{vKv}")
        a(f"v_mov_b32 v{vT}, 0x40000000")
        a(f"v_cndmask_b32 v{vKo+i}, v{vKo+i}, v{vT}, vcc")
    a(f"s_lshl_b32 s{S_T1}, s{sCG}, 9")
    a(f"v_lshl_add_u32 v{vKw}, v{t2}, 6, s{S_T1}")
    a(f"v_lshrrev_b32 v{t1}, 1, v{t0}")
    a(f"s_lshl_b32 s{S_T1}, s{sW}, 2")
    a(f"v_add_u32 v{t1}, s{S_T1}, v{t1}")
    a(f"v_xor_b32 v{t1}, v{t1}, v{t2}")
    a(f"v_lshlrev_b32 v{t1}, 4, v{t1}")
    a(f"v_lshl_add_u32 v{t1}, v{t2}, 10, v{t1}")
    a(f"v_and_b32 v{t0}, 1, v{t0}")
    a(f"v_sub_u32 v{t0}, 1, v{t0}")
    a(f"v_lshl_add_u32 v{t1}, v{t0}, 3, v{t1}")
    a(f"v_add_u32 v{vT}, {EXT}, v{t1}")
    a("s_waitcnt lgkmcnt(0)")
    a.srd(R_A, S_X, XB); a.srd(R_B, S_K, XB); a.srd(R_C, S_V, XB); a.srd(92, S_SH, D*4*2)
    def kv_loads():
        for i in range(3):
            a(f"buffer_load_dwordx4 {vr(KR+4*i)}, v{vKo+i}, s[{R_B}:{R_B+3}], 0 offen"); vm.issue("kvl")
        for i in range(4):
            a(f"buffer_load_dwordx4 {vr(KR+12+4*i)}, v{vKv}, s[{R_B}:{R_B+3}], 0 offen offset:{896*i}"); vm.issue("kvl")
        for i in range(4):
            a(f"buffer_load_dwordx4 {vr(VR+4*i)}, v{vKv}, s[{R_C}:{R_C+3}], 0 offen offset:{896*i}"); vm.issue("kvl")
        for i in range(4):
            a(f"buffer_load_dwordx4 {vr(WR+4*i)}, v{vKw}, s[92:95], 0 offen offset:{16*i}"); vm.issue("kvl")
    a.stamp(0)
    common_setup()
    a(f"v_mov_b32 v{t0}, {CNT_L}")
    for r in range(4): a(f"v_mov_b32 v{e0+r}, 0")
    a(f"ds_write_b128 v{t0}, {vr(e0)}")
    a(f"ds_write_b128 v{t0}, {vr(e0)} offset:16")
    a(f"v_mov_b32 v{t0}, {ZEXT}")
    a(f"ds_write_b64 v{t0}, {vr(e0, 2)}")
    vF0w = 9
    a(f"s_lshl_b32 s{S_T1}, s{sCG}, 2")
    a(f"s_lshl_b32 s{S_T2}, s{sW}, 1")
    a(f"s_add_u32 s{S_T1}, s{S_T1}, s{S_T2}")
    a(f"v_add_u32 v{t0}, s{S_T1}, v0")
    a(f"v_lshlrev_b32 v{t0}, 5, v{t0}")
    a(f"v_add_u32 v{t0}, s{sTB}, v{t0}")
    a(f"v_lshlrev_b32 v{t0}, 2, v{t0}")
    a(f"v_add_u32 v{vF0w}, {F0_OFF}, v{t0}")
    a(f"s_lshl_b32 s{S_T1}, s{sCG}, 6")
    a(f"s_lshl_b32 s{S_T0}, s{sW}, 5")
    a(f"s_add_u32 s{S_T1}, s{S_T1}, s{S_T0}")
    a(f"v_lshrrev_b32 v{t0}, 3, v0")
    a(f"v_add_u32 v{t0}, s{S_T1}, v{t0}")
    a(f"v_lshlrev_b32 v{t0}, 12, v{t0}")
    a(f"s_lshl_b32 s{S_T1}, s{sTB}, 7")
    a(f"s_add_u32 s{S_T1}, s{S_T1}, {UT_OFF}")
    a(f"v_add_u32 v{t0}, s{S_T1}, v{t0}")
    a(f"v_and_b32 v{t1}, 7, v0")
    a(f"s_lshl_b32 s{S_T1}, s{sW}, 2")
    a(f"v_xor_b32 v{t1}, s{S_T1}, v{t1}")
    for i in range(4):
        a(f"v_xor_b32 v{t2}, {i}, v{t1}")
        a(f"v_lshl_add_u32 v{vUo+i}, v{t2}, 4, v{t0}")
        if i: a(f"v_add_u32 v{vUo+i}, {8*4096*i}, v{vUo+i}")
    def kv_valu(j):
        for c in range(2):
            ch = 2*j + c
            a(f"v_lshlrev_b32 v{WF+4*c}, 16, v{WR+2*ch}"); a(f"v_and_b32 v{WF+4*c+1}, 0xffff0000, v{WR+2*ch}")
            a(f"v_lshlrev_b32 v{WF+4*c+2}, 16, v{WR+2*ch+1}"); a(f"v_and_b32 v{WF+4*c+3}, 0xffff0000, v{WR+2*ch+1}")
        for i in range(7):
            a(f"v_lshlrev_b32 v{KF+i}, 16, v{KR+4*i+j}"); a(f"v_and_b32 v{KF+7+i}, 0xffff0000, v{KR+4*i+j}")
        for c in range(2):
            kf, wf = KF + 7*c, WF + 4*c
            for t in range(4): a(f"v_mul_f32 v{AC+t}, v{wf}, v{kf+3+t}")
            for tap in range(1, 4):
                for t in range(4): a(f"v_fmac_f32 v{AC+t}, v{wf+tap}, v{kf+3+t-tap}")
            for t in range(4):
                a(f"v_and_b32 v{kf+t}, 0xffff0000, v{VR+4*t+j}" if c else f"v_lshlrev_b32 v{kf+t}, 16, v{VR+4*t+j}")
            for t in range(4): a(f"v_mul_f32 v{AC+t}, v{AC+t}, v{kf+t}")
            o = 70
            a(f"v_cvt_pk_bf16_f32 v{o}, v{AC+3}, v{AC+2}")
            a(f"v_cvt_pk_bf16_f32 v{o+1}, v{AC+1}, v{AC}")
            a(f"ds_write_b64 v{vT}, {vr(o, 2)} offset:{128*(2*j+c)}")
    for st in range(7):
        if a.stop == "p1": a.stamp(3 + st)
        a("s_barrier")
        if st == 1:
            nonce_load(vm)
        if st == 2:
            lds_wait(a, CNT_L + 24, t0, t1, 2, 1)
            kv_loads()
        if st == 3:
            vm.wait("non"); nonce_check(a, vnon, t0)
            a(f"v_mov_b32 v{t0}, s{S_NONCE}")
            a(f"v_mov_b32 v{t1}, {NONCE_L}")
            a(f"ds_write_b32 v{t1}, v{t0}")
            Lns = a.uid("L_nosg")
            a(f"s_cmp_lg_u32 s{sW}, 0")
            a(f"s_cbranch_scc1 {Lns}")
            a(f"v_lshlrev_b32 v{t0}, 3, v0")
            a(f"v_add_u32 v{t0}, {STG_L}, v{t0}")
            a(f"ds_read_b64 {vr(t2, 2)}, v{t0}")
            a(f"v_and_b32 v{t0}, 3, v0")
            a(f"v_lshrrev_b32 v{t1}, 2, v0")
            a(f"v_mul_u32_u24 v{t1}, 56, v{t1}")
            a(f"v_add_u32 v{t0}, v{t0}, v{t1}")
            a(f"s_lshl_b32 s{S_T1}, s{S_FC}, 2")
            a(f"v_add_u32 v{t0}, s{S_T1}, v{t0}")
            a(f"v_cmp_gt_u32 vcc, 128, v{t0}")
            a(f"s_lshl_b32 s{S_T1}, s{S_RT}, 7")
            a(f"v_add_u32 v{t0}, s{S_T1}, v{t0}")
            a(f"v_lshlrev_b32 v{t0}, 4, v{t0}")
            a(f"v_add_u32 v{t0}, {SG_OFF}, v{t0}")
            a("s_and_b64 vcc, vcc, 0xfff")
            a("s_waitcnt lgkmcnt(0)")
            a(f"v_mov_b32 v{vST}, v{t2}")
            a(f"v_mov_b32 v{vST+1}, s{S_NONCE}")
            a(f"v_mov_b32 v{vST+2}, v{t3}")
            a(f"v_mov_b32 v{vST+3}, s{S_NONCE}")
            a("s_mov_b64 exec, vcc")
            a(f"buffer_store_dwordx4 {vr(vST)}, v{t0}, s[{R_WS}:{R_WS+3}], 0 offen sc1")
            if "fast" in a.exp:
                a(f"s_getreg_b32 s{S_T2}, hwreg(HW_REG_XCC_ID, 0, 4)")
                a(f"s_and_b32 s{S_T0}, s{S_M}, 7")
                a(f"s_mul_i32 s{S_T0}, s{S_T0}, 28")
                a(f"s_lshr_b32 s{S_T1}, s{S_M}, 3")
                a(f"s_add_u32 s{S_T0}, s{S_T0}, s{S_T1}")
                a(f"s_lshl_b32 s{S_T0}, s{S_T0}, 3")
                a(f"s_add_u32 s{S_T0}, s{S_T0}, {XG_OFF}")
                a("s_mov_b64 exec, 1")
                a(f"v_mov_b32 v{t2}, s{S_T2}")
                a(f"v_mov_b32 v{t3}, s{S_NONCE}")
                a(f"v_mov_b32 v{t0}, 0")
                a(f"buffer_store_dwordx2 {vr(t2, 2)}, v{t0}, s[{R_WS}:{R_WS+3}], s{S_T0} offen sc1")
                a("s_mov_b64 exec, -1")
            a("s_mov_b64 exec, -1")
            a.label(Lns)
            vm.wait("kvl"); kv_valu(0); kv_valu(1)
        if st == 4:
            a(f"s_lshl_b32 s{S_T1}, s{S_M}, 1")
            a(f"s_add_u32 s{S_T1}, s{S_T1}, s{sW}")
            a(f"s_lshl_b32 s{S_T1}, s{S_T1}, 12")
            a(f"v_lshlrev_b32 v{t0}, 4, v0")
            a(f"v_add_u32 v{t1}, 4, v{t0}")
            for i in range(4):
                a(f"buffer_load_dwordx4 {vr(vKA_+4*i)}, v{t0}, s[{R_E}:{R_E+3}], s{S_T1} offen offset:{1024*i}"); vm.issue("K")
                a(f"buffer_load_dwordx4 {vr(vKB_+4*i)}, v{t1}, s[{R_E}:{R_E+3}], s{S_T1} offen offset:{1024*i}"); vm.issue("K")
            kv_valu(2); kv_valu(3); a("s_waitcnt lgkmcnt(0)")
        if st == 5:
            a(f"s_lshl_b32 s{S_T1}, s{sW}, 12")
            a(f"s_add_u32 s{S_T1}, s{S_T1}, {EXT}")
            a(f"v_lshlrev_b32 v{t0}, 4, v0")
            a(f"v_add_u32 v{t0}, s{S_T1}, v{t0}")
            for i in range(4): a(f"ds_read_b128 {vr(100+4*i)}, v{t0} offset:{1024*i}")
            for i in range(4):
                a(f"s_waitcnt lgkmcnt({3-i})")
                a(f"buffer_store_dwordx4 {vr(100+4*i)}, v{vUo+i}, s[{R_WS}:{R_WS+3}], 0 offen sc1"); vm.issue("ut")
        if st == 6:
            vm.drain()
            a(f"v_mov_b32 v{t0}, s{S_NONCE}")
            a("s_mov_b64 exec, 3")
            a(f"buffer_store_dword v{t0}, v{vF0w}, s[{R_WS}:{R_WS+3}], 0 offen sc1"); vm.issue("sig")
            a("s_mov_b64 exec, -1")
            sKC_, sUB_ = S_T2, S_T3
            a(f"s_mul_i32 s{sKC_}, s{sW}, {KCH}")
            a(f"s_add_u32 s{sKC_}, s{sKC_}, {CV}")
            a(f"s_mul_i32 s{sUB_}, s{sW}, {UCH}")
            a(f"s_add_u32 s{sUB_}, s{sUB_}, {UB0}")
            a(f"v_lshlrev_b32 v{t3}, 4, v0")
            a(f"v_add_u32 v{t1}, s{sKC_}, v{t3}")
            for i in range(4):
                a(f"ds_write_b128 v{t1}, {vr(vKA_+4*i)} offset:{32 + 1024*i}")
            a(f"v_lshlrev_b32 v{t2}, 16, v{vKA_}")
            for i in range(4):
                for j in range(4):
                    a(f"v_alignbit_b32 v{vKB_+4*i+j}, v{vKB_+4*i+j}, v{vKA_+4*i+j}, 16")
            for i in range(4):
                a(f"ds_write_b128 v{t1}, {vr(vKB_+4*i)} offset:{4160 + 32 + 1024*i}")
            a(f"v_readfirstlane_b32 s{S_T1}, v{t2}")
            a(f"v_lshlrev_b32 v{t1}, 2, v0")
            a(f"v_add_u32 v{t1}, s{sKC_}, v{t1}")
            a("v_cmp_eq_u32 vcc, 7, v0")
            a(f"v_mov_b32 v{t2}, s{S_T1}")
            a(f"v_mov_b32 v{e0}, 0")
            a(f"v_cndmask_b32 v{t2}, 0, v{t2}, vcc")
            a("s_mov_b64 exec, 0xff")
            a(f"ds_write_b32 v{t1}, v{e0}")
            a(f"ds_write_b32 v{t1}, v{t2} offset:4160")
            a("s_mov_b64 exec, -1")
            a(f"v_mov_b32 v{e0+1}, 0")
            a(f"v_lshlrev_b32 v{t1}, 3, v0")
            a(f"v_add_u32 v{t2}, s{sUB_}, v{t1}")
            a(f"ds_write_b64 v{t2}, {vr(e0, 2)}")
            a("s_waitcnt lgkmcnt(0)")
    a.label("L_htail")
    a.stamp(1)
    a("s_barrier")
    a.stamp(2)
    if a.stop == "p1":
        a("s_waitcnt vmcnt(0)"); a("s_barrier"); a.stamps_out(10); a("s_endpgm"); return
    if "noprio" not in a.exp: a("s_setprio 1")
    sUB, sKC = S_A2, S_A1
    a(f"s_lshr_b32 s{S_T0}, s{w}, 1")
    a(f"s_mul_i32 s{sUB}, s{S_T0}, {UCH}")
    a(f"s_add_u32 s{sUB}, s{sUB}, {UB0}")
    a(f"s_mul_i32 s{sKC}, s{S_T0}, {KCH}")
    a(f"s_add_u32 s{sKC}, s{sKC}, {CV}")
    a.poll(vF0a, t1, 64, sleep=16)
    a(f"s_lshl_b32 s{S_T1}, s{sCH}, 12")
    a(f"s_add_u32 s{S_T1}, s{S_T1}, {UT_OFF}")
    a(f"v_lshlrev_b32 v{t0}, 4, v0")
    for i in range(4):
        a(f"s_add_u32 m0, s{sUB}, {512 + 1024*i}")
        a(f"s_add_u32 s{S_T2}, s{S_T1}, {1024*i}")
        a(f"buffer_load_dwordx4 v{t0}, s[{R_WS}:{R_WS+3}], s{S_T2} offen sc1 lds")
    a.stamp(3)
    if "noconv" not in a.exp: conv(a, w, sCH, sRH, sUB, sKC)
    a.stamp(5)
    final_h(a, w)

def lds_pair_sync(a, vaddr, vone, vtmp, target):
    L, Dn = a.uid("L_ps"), a.uid("L_psd")
    a("s_mov_b64 exec, 1")
    a(f"ds_add_u32 v{vaddr}, v{vone}")
    a("s_mov_b64 exec, -1")
    a(f"s_mov_b32 s{S_BND}, {a.spin}")
    a.label(L)
    a(f"ds_read_b32 v{vtmp}, v{vaddr}")
    a("s_waitcnt lgkmcnt(0)")
    a(f"v_readfirstlane_b32 s{S_T0}, v{vtmp}")
    a("s_nop 0")
    a(f"s_cmp_ge_u32 s{S_T0}, {target}")
    a(f"s_cbranch_scc1 {Dn}")
    a(f"s_sub_u32 s{S_BND}, s{S_BND}, 1")
    a(f"s_cmp_lg_u32 s{S_BND}, 0")
    a(f"s_cbranch_scc1 {L}")
    a.label(Dn)

def conv(a, w, sCH, sRH, sUB, sKC):
    t0, t1, t2, t3 = 64, 65, 66, 67
    a(f"s_lshl_b32 s{S_T0}, s{S_M}, 2")
    a(f"s_load_dword s{S_A4}, s[{S_SD}:{S_SD+1}], s{S_T0}")
    vKA, vUB = 8, 12
    a(f"v_and_b32 v{t0}, 15, v0")
    a(f"v_lshrrev_b32 v{t1}, 5, v0")
    a(f"v_bfe_u32 v{t2}, v0, 4, 1")
    a(f"v_lshlrev_b32 v{t3}, 4, v{t1}")
    a(f"v_add_u32 v{t3}, v{t3}, v{t0}")
    a(f"v_add_u32 v{t3}, 9, v{t3}")
    a(f"v_lshlrev_b32 v{vUB}, 3, v{t2}")
    a(f"v_sub_u32 v{t3}, v{t3}, v{vUB}")
    a(f"v_and_b32 v{vUB}, 1, v{t3}")
    a(f"v_mul_u32_u24 v{vUB}, 4158, v{vUB}")
    a(f"v_lshl_add_u32 v{t3}, v{t3}, 1, v{vUB}")
    a(f"s_lshl_b32 s{S_T1}, s{sRH}, 8")
    a(f"s_add_u32 s{S_T2}, s{sKC}, s{S_T1}")
    a(f"v_add_u32 v{vKA}, s{S_T2}, v{t3}")
    for i in range(1, 4): a(f"v_add_u32 v{vKA+i}, {1024*i}, v{vKA}")
    a(f"v_sub_u32 v{t3}, v{t0}, v{t1}")
    a(f"v_lshlrev_b32 v{t3}, 5, v{t3}")
    a(f"v_lshl_add_u32 v{t3}, v{t2}, 4, v{t3}")
    a(f"v_add_u32 v{t3}, {64 + 256}, v{t3}")
    a(f"s_sub_u32 s{S_T2}, s{sUB}, s{S_T1}")
    a(f"v_add_u32 v{vUB}, s{S_T2}, v{t3}")
    vUE, vYO, vXA, vCN, vOne = 13, 14, 15, 16, 17
    a(f"v_lshlrev_b32 v{t3}, 5, v{t0}")
    a(f"v_lshl_add_u32 v{t3}, v{t1}, 4, v{t3}")
    a(f"v_lshlrev_b32 v{vUE}, 3, v{t2}")
    a(f"v_sub_u32 v{t3}, v{t3}, v{vUE}")
    a(f"v_add_u32 v{t3}, 520, v{t3}")
    a(f"s_lshl_b32 s{S_T1}, s{sRH}, 11")
    a(f"s_add_u32 s{S_T2}, s{sUB}, s{S_T1}")
    a(f"v_add_u32 v{vUE}, s{S_T2}, v{t3}")
    a(f"v_lshrrev_b32 v{t3}, 4, v0")
    a(f"v_lshlrev_b32 v{t3}, 3, v{t3}")
    a(f"v_lshl_add_u32 v{vYO}, v{t0}, 5, v{t3}")
    a(f"v_lshlrev_b32 v{t3}, 4, v0")
    a(f"v_add_u32 v{vXA}, s{sKC}, v{t3}")
    a(f"s_lshr_b32 s{S_T1}, s{w}, 1")
    a(f"s_lshl_b32 s{S_T1}, s{S_T1}, 2")
    a(f"s_add_u32 s{S_T1}, s{S_T1}, {CNT_L}")
    a(f"v_mov_b32 v{vCN}, s{S_T1}")
    a(f"v_mov_b32 v{vOne}, 1")
    a("s_waitcnt vmcnt(0) lgkmcnt(0)")
    a.stamp(4)
    ACC = 224
    AS, BS = (96, 160), (128, 192)
    def loads(rr):
        s = rr & 1; L = []
        for x in range(8):
            L.append(f"ds_read_b128 {vr(BS[s]+4*x)}, v{vUB} offset:{512*x + 64*(3-rr)}")
            o = 128*(x & 1) + 16*rr
            L.append(f"ds_read2_b32 {vr(AS[s]+4*x, 2)}, v{vKA+(x>>1)} offset0:{o} offset1:{o+1}")
            L.append(f"ds_read2_b32 {vr(AS[s]+4*x+2, 2)}, v{vKA+(x>>1)} offset0:{o+2} offset1:{o+3}")
        return L
    for l in loads(0): a(l)
    for rr in range(4):
        a("s_waitcnt lgkmcnt(0)")
        nxt = loads(rr + 1) if rr < 3 else []
        s = rr & 1; k = 0
        for x in range(8):
            for c in range(x, 8):
                cin = "0" if (rr == 0 and x == 0) else vr(ACC+4*c)
                a(f"v_mfma_f32_16x16x32_bf16 {vr(ACC+4*c)}, {vr(AS[s]+4*x)}, {vr(BS[s]+4*(c-x))}, {cin}")
                if nxt and k < len(nxt): a(nxt[k]); k += 1
        while nxt and k < len(nxt): a(nxt[k]); k += 1
    a.stamp(9)
    lds_pair_sync(a, vCN, vOne, t0, 2)
    Lr1, Lrd = a.uid("L_r1"), a.uid("L_rd")
    a(f"s_cmp_eq_u32 s{sRH}, 1")
    a(f"s_cbranch_scc1 {Lr1}")
    for c in range(4): a(f"ds_write_b128 v{vXA}, {vr(ACC+16+4*c)} offset:{1024*c}")
    a(f"s_branch {Lrd}")
    a.label(Lr1)
    for c in range(4):
        a(f"ds_write_b128 v{vXA}, {vr(ACC+4*c)} offset:{4096 + 1024*c}")
    a("s_waitcnt lgkmcnt(0)")
    for c in range(16): a(f"v_mov_b32 v{ACC+c}, v{ACC+16+c}")
    a.label(Lrd)
    a("s_waitcnt lgkmcnt(0)")
    lds_pair_sync(a, vCN, vOne, t0, 4)
    a(f"s_xor_b32 s{S_T1}, s{sRH}, 1")
    a(f"s_lshl_b32 s{S_T1}, s{S_T1}, 12")
    a(f"v_add_u32 v{vXA}, s{S_T1}, v{vXA}")
    for c in range(4): a(f"ds_read_b128 {vr(128+4*c)}, v{vXA} offset:{1024*c}")
    for c in range(4): a(f"ds_read_b64 {vr(96+2*c, 2)}, v{vUE} offset:{512*c}")
    a(f"s_lshr_b32 s{S_T1}, s{w}, 1")
    a(f"s_lshl_b32 s{S_T1}, s{S_T1}, 4")
    a(f"s_lshr_b32 s{S_A4}, s{S_A4}, s{S_T1}")
    a(f"s_lshl_b32 s{S_A4}, s{S_A4}, 16")
    a(f"s_lshl_b32 s{S_T1}, s{sCH}, 12")
    a(f"s_lshl_b32 s{S_T2}, s{sRH}, 11")
    a(f"s_add_u32 s{S_T1}, s{S_T1}, s{S_T2}")
    a(f"s_add_u32 s{S_T1}, s{S_T1}, {YT_OFF}")
    a("s_waitcnt lgkmcnt(0)")
    for c in range(4):
        d0, d1 = 96 + 2*c, 97 + 2*c
        u = 144
        a(f"v_and_b32 v{u}, 0xffff0000, v{d1}")
        a(f"v_lshlrev_b32 v{u+1}, 16, v{d1}")
        a(f"v_and_b32 v{u+2}, 0xffff0000, v{d0}")
        a(f"v_lshlrev_b32 v{u+3}, 16, v{d0}")
        for i in range(4): a(f"v_add_f32 v{ACC+4*c+i}, v{ACC+4*c+i}, v{128+4*c+i}")
        for i in range(4): a(f"v_fmac_f32 v{ACC+4*c+i}, s{S_A4}, v{u+i}")
        o = 148 + 2*c
        a(f"v_cvt_pk_bf16_f32 v{o}, v{ACC+4*c}, v{ACC+4*c+1}")
        a(f"v_cvt_pk_bf16_f32 v{o+1}, v{ACC+4*c+2}, v{ACC+4*c+3}")
        a(f"buffer_store_dwordx2 {vr(o, 2)}, v{vYO}, s[{R_WS}:{R_WS+3}], s{S_T1} offen offset:{512*c} sc1")
    a(f"s_lshr_b32 s{S_T1}, s{sCH}, 6")
    a(f"s_lshl_b32 s{S_T1}, s{S_T1}, 1")
    a(f"s_add_u32 s{S_T1}, s{S_T1}, s{sRH}")
    a(f"s_lshl_b32 s{S_T1}, s{S_T1}, 6")
    a(f"s_and_b32 s{S_T2}, s{sCH}, 63")
    a(f"s_add_u32 s{S_T1}, s{S_T1}, s{S_T2}")
    a(f"s_lshl_b32 s{S_T1}, s{S_T1}, 2")
    a(f"s_add_u32 s{S_T1}, s{S_T1}, {F2_OFF}")
    if a.prof: a(f"s_mov_b32 s{S_A5}, s{S_T1}"); a.stamp(1); a(f"s_mov_b32 s{S_T1}, s{S_A5}")
    a("s_waitcnt vmcnt(0)")
    a.signal(S_T1, t0, t1)

def lds_wait(a, addr, vaddr, vtmp, target, sleep):
    L, Dn = a.uid("L_lw"), a.uid("L_lwd")
    a(f"v_mov_b32 v{vaddr}, {addr}")
    a(f"s_mov_b32 s{S_BND}, {a.spin}")
    a.label(L)
    a(f"ds_read_b32 v{vtmp}, v{vaddr}")
    a("s_waitcnt lgkmcnt(0)")
    a(f"v_readfirstlane_b32 s{S_T3}, v{vtmp}")
    a("s_nop 0")
    a(f"s_cmp_ge_u32 s{S_T3}, {target}")
    a(f"s_cbranch_scc1 {Dn}")
    a(f"s_sleep {sleep}")
    a(f"s_sub_u32 s{S_BND}, s{S_BND}, 1")
    a(f"s_cmp_lg_u32 s{S_BND}, 0")
    a(f"s_cbranch_scc1 {L}")
    a.label(Dn)

def final_h(a, w):
    t0, t1, t2, t3 = 64, 65, 66, 67
    vXo = 8
    BASE = 16
    RS2 = 32
    XD = 36
    YD = 44
    ST = 52
    if "noprio" not in a.exp: a("s_setprio 0")
    a(f"v_lshrrev_b32 v{t0}, 3, v0")
    a(f"v_mul_u32_u24 v{t0}, 896, v{t0}")
    a(f"v_and_b32 v{t1}, 7, v0")
    a(f"v_lshl_add_u32 v{vXo}, v{t1}, 4, v{t0}")
    sXO = S_A1
    a(f"s_lshl_b32 s{S_T0}, s{S_RB}, 6")
    a(f"s_lshl_b32 s{S_T1}, s{w}, 4")
    a(f"s_add_u32 s{S_T0}, s{S_T0}, s{S_T1}")
    a(f"s_mul_i32 s{sXO}, s{S_T0}, 896")
    a(f"s_lshl_b32 s{S_T1}, s{S_CT}, 7")
    a(f"s_add_u32 s{sXO}, s{sXO}, s{S_T1}")
    a(f"s_add_u32 s{S_T2}, s{sXO}, {8*896}")
    a(f"buffer_load_dwordx4 {vr(XD)}, v{vXo}, s[{R_A}:{R_A+3}], s{sXO} offen")
    a(f"buffer_load_dwordx4 {vr(XD+4)}, v{vXo}, s[{R_A}:{R_A+3}], s{S_T2} offen")
    a(f"s_lshl_b32 s{S_T1}, s{S_PAR}, 6")
    a(f"s_lshl_b32 s{S_T2}, s{w}, 4")
    a(f"s_add_u32 s{S_T1}, s{S_T1}, s{S_T2}")
    a(f"v_lshrrev_b32 v{t0}, 3, v0")
    a(f"v_add_u32 v{t0}, s{S_T1}, v{t0}")
    a(f"v_lshlrev_b32 v{t0}, 3, v{t0}")
    a(f"v_add_u32 v{t0}, {STATS_L}, v{t0}")
    a(f"ds_read_b64 {vr(ST, 2)}, v{t0}")
    a(f"ds_read_b64 {vr(ST+2, 2)}, v{t0} offset:64")
    lds_wait(a, CNT_L + 12, t0, t1, 4, 4)
    a(f"s_lshl_b32 s{S_T1}, s{S_CT}, 9")
    a(f"s_lshr_b32 s{S_T2}, s{S_RB}, 4")
    a(f"s_lshl_b32 s{S_T2}, s{S_T2}, 8")
    a(f"s_add_u32 s{S_T1}, s{S_T1}, s{S_T2}")
    a(f"s_lshl_b32 s{S_T2}, s{w}, 6")
    a(f"s_add_u32 s{S_T1}, s{S_T1}, s{S_T2}")
    a(f"s_add_u32 s{S_T1}, s{S_T1}, {F2_OFF}")
    a(f"v_and_b32 v{t0}, 15, v0")
    a(f"v_lshlrev_b32 v{t0}, 2, v{t0}")
    a(f"v_add_u32 v{t0}, s{S_T1}, v{t0}")
    if "noconv" not in a.exp and "nopoll2" not in a.exp: a.poll(t0, t1, 16, sleep=8)
    a.stamp(6)
    a(f"s_lshl_b32 s{S_T1}, s{S_CT}, 6")
    a(f"s_lshl_b32 s{S_T2}, s{w}, 4")
    a(f"s_add_u32 s{S_T1}, s{S_T1}, s{S_T2}")
    a(f"s_lshl_b32 s{S_T1}, s{S_T1}, 12")
    a(f"s_lshl_b32 s{S_T2}, s{S_RB}, 7")
    a(f"s_add_u32 s{S_T1}, s{S_T1}, s{S_T2}")
    a(f"s_add_u32 s{S_T1}, s{S_T1}, {YT_OFF}")
    a(f"s_add_u32 s{S_T2}, s{S_T1}, {8*4096}")
    a(f"v_lshrrev_b32 v{t0}, 3, v0")
    a(f"v_lshlrev_b32 v{t0}, 12, v{t0}")
    a(f"v_and_b32 v{t1}, 7, v0")
    a(f"v_lshl_add_u32 v{t0}, v{t1}, 4, v{t0}")
    a(f"buffer_load_dwordx4 {vr(YD)}, v{t0}, s[{R_WS}:{R_WS+3}], s{S_T1} offen sc1")
    a(f"buffer_load_dwordx4 {vr(YD+4)}, v{t0}, s[{R_WS}:{R_WS+3}], s{S_T2} offen sc1")
    a(f"v_lshrrev_b32 v{t0}, 3, v0")
    a(f"v_lshlrev_b32 v{t0}, 7, v{t0}")
    a(f"s_lshl_b32 s{S_T1}, s{w}, 1")
    a(f"v_xor_b32 v{t1}, s{S_T1}, v{t1}")
    a(f"v_lshl_add_u32 v{t2}, v{t1}, 4, v{t0}")
    a(f"v_xor_b32 v{t1}, 1, v{t1}")
    a(f"v_lshl_add_u32 v{t3}, v{t1}, 4, v{t0}")
    a(f"s_lshl_b32 s{S_T1}, s{w}, 11")
    a(f"s_add_u32 s{S_T1}, s{S_T1}, {EXT}")
    a(f"v_add_u32 v{t2}, s{S_T1}, v{t2}")
    a(f"v_add_u32 v{t3}, s{S_T1}, v{t3}")
    a("s_waitcnt vmcnt(0)")
    a(f"ds_write_b128 v{t2}, {vr(YD)}")
    a(f"ds_write_b128 v{t3}, {vr(YD+4)} offset:1024")
    a(f"v_mov_b32 v{t0}, {CNT_L + 8}")
    a(f"v_mov_b32 v{t1}, 1")
    a("s_waitcnt lgkmcnt(0)")
    lds_pair_sync(a, t0, t1, t2, 4)
    a(f"v_and_b32 v{t1}, 7, v0")
    a(f"s_lshl_b32 s{S_T1}, s{w}, 1")
    a(f"v_xor_b32 v{t2}, s{S_T1}, v{t1}")
    a(f"v_lshlrev_b32 v{t1}, 10, v{t1}")
    a(f"v_lshrrev_b32 v{t0}, 3, v0")
    a(f"v_lshl_add_u32 v{t1}, v{t0}, 1, v{t1}")
    a(f"v_add_u32 v{t1}, {EXT}, v{t1}")
    a(f"v_lshl_add_u32 v{t0}, v{t2}, 4, v{t1}")
    a(f"v_xor_b32 v{t2}, 1, v{t2}")
    a(f"v_lshl_add_u32 v{t2}, v{t2}, 4, v{t1}")
    YG = 96
    for q in range(2):
        for e in range(8):
            a(f"ds_read_u16 v{YG+8*q+e}, v{(t0, t2)[q]} offset:{128*e}")
    a("s_waitcnt lgkmcnt(0)")
    for q in range(2):
        mean, rstd = ST + 2*q, ST + 2*q + 1
        a(f"v_mul_f32 v{RS2+q}, v{rstd}, v{rstd}")
        for e in range(8):
            xs = XD + 4*q + (e >> 1)
            if e & 1: a(f"v_and_b32 v{t0}, 0xffff0000, v{xs}")
            else:     a(f"v_lshlrev_b32 v{t0}, 16, v{xs}")
            a(f"v_lshlrev_b32 v{t2}, 16, v{YG+8*q+e}")
            a(f"v_sub_f32 v{t3}, v{t0}, v{mean}")
            a(f"v_mul_f32 v{t3}, v{t3}, v{rstd}")
            a(f"v_fma_f32 v{BASE+8*q+e}, v{t3}, v{t2}, v{t0}")
    vF0, vF1 = 12, 13
    a(f"v_lshrrev_b32 v{t0}, 3, v0")
    a(f"s_lshl_b32 s{S_T1}, s{w}, 4")
    a(f"v_add_u32 v{t0}, s{S_T1}, v{t0}")
    a(f"v_mul_u32_u24 v{t0}, {PROW}, v{t0}")
    a(f"v_and_b32 v{t1}, 7, v0")
    a(f"v_lshl_add_u32 v{vF0}, v{t1}, 5, v{t0}")
    a(f"v_add_u32 v{vF1}, {2*RING}, v{vF0}")
    a.srd(R_B, S_OUT, XB)
    a.stamp(7)
    a("s_barrier")
    P = 128
    for q in range(2):
        for kq in range(4):
            base = vF0 if kq < 2 else vF1
            for hh in range(2):
                a(f"ds_read_b128 {vr(P+32*q+8*kq+4*hh)}, v{base} offset:{(kq & 1)*RING + q*8*PROW + 16*hh}")
    for q in range(2):
        a(f"s_waitcnt lgkmcnt({8 if q == 0 else 0})")
        p = P + 32*q
        for e in range(8):
            a(f"v_add_f32 v{p+e}, v{p+e}, v{p+8+e}")
            a(f"v_add_f32 v{p+16+e}, v{p+16+e}, v{p+24+e}")
        for e in range(8):
            a(f"v_add_f32 v{p+e}, v{p+e}, v{p+16+e}")
        for e in range(8):
            a(f"v_fmac_f32 v{BASE+8*q+e}, v{RS2+q}, v{p+e}")
        for e in range(4):
            a(f"v_cvt_pk_bf16_f32 v{XD+4*q+e}, v{BASE+8*q+2*e}, v{BASE+8*q+2*e+1}")
        so = sXO
        if q == 1:
            a(f"s_add_u32 s{S_T2}, s{sXO}, {8*896}"); so = S_T2
        a(f"buffer_store_dwordx4 {vr(XD+4*q)}, v{vXo}, s[{R_B}:{R_B+3}], s{so} offen" + (" sc1" if "outsc1" in a.exp else " nt" if "outnt" in a.exp else ""))
    a.stamp(8)
    if "span" in a.exp:
        a("s_waitcnt vmcnt(0)")
        a(f"s_cmp_lg_u32 s{S_WAVE}, 4")
        a("s_cbranch_scc1 L_hout")
        a("s_memrealtime s[88:89]")
        a("s_waitcnt lgkmcnt(0)")
        a("v_mov_b32 v2, s88"); a("v_mov_b32 v3, 12")
        a("s_mov_b64 exec, 1")
        a(f"global_atomic_umax v3, v2, s[{S_DBG}:{S_DBG+1}]")
        a("s_mov_b64 exec, -1")
    a.label("L_hout")
    a.stamps_out(10)
    a("s_endpgm")

def row_stats(a, part):
    t0, t1 = 4, 5
    XD, SS = 24, 36
    if part == 1: return row_stats2(a, XD, SS)
    a.srd(R_B, S_X, XB)
    a(f"s_lshl_b32 s{S_T0}, s{S_FC}, 2")
    a(f"s_add_u32 s{S_T0}, s{S_T0}, s{S_WAVE}")
    a(f"s_lshl_b32 s{S_T1}, s{S_RT}, 7")
    a(f"s_add_u32 s{S_T1}, s{S_T1}, s{S_T0}")
    a(f"s_mul_i32 s{S_T1}, s{S_T1}, 896")
    a(f"v_mov_b32 v{t1}, 0x40000000")
    a("v_cmp_gt_u32 vcc, 56, v0")
    a(f"s_add_u32 s{S_T2}, s{S_T1}, {56*896}")
    a(f"s_add_u32 s{S_T3}, s{S_T1}, {112*896}")
    a(f"v_cndmask_b32 v{t0}, v{t1}, v17, vcc")
    a(f"buffer_load_dwordx4 {vr(XD)}, v{t0}, s[{R_B}:{R_B+3}], s{S_T1} offen")
    a(f"buffer_load_dwordx4 {vr(XD+4)}, v{t0}, s[{R_B}:{R_B+3}], s{S_T2} offen")
    a(f"s_cmp_lt_u32 s{S_T0}, 16")
    a(f"s_cselect_b32 s{S_T3}, s{S_T3}, s{S_T2}")
    a(f"buffer_load_dwordx4 {vr(XD+8)}, v{t0}, s[{R_B}:{R_B+3}], s{S_T3} offen")

def row_stats2(a, XD, SS):
    L = []
    lo, hi, M = 42, 43, 44
    L.append("s_waitcnt vmcnt(0)")
    for j in range(3):
        for q in range(4):
            d = XD + 4*j + q
            L += [f"v_lshlrev_b32 v{lo}, 16, v{d}", f"v_and_b32 v{hi}, 0xffff0000, v{d}"]
            if q == 0: L += [f"v_add_f32 v{SS+j}, v{lo}, v{hi}", f"v_mul_f32 v{SS+3+j}, v{lo}, v{lo}"]
            else:      L += [f"v_add_f32 v{SS+j}, v{SS+j}, v{lo}", f"v_fmac_f32 v{SS+3+j}, v{lo}, v{lo}", f"v_add_f32 v{SS+j}, v{SS+j}, v{hi}"]
            L.append(f"v_fmac_f32 v{SS+3+j}, v{hi}, v{hi}")
    L += ["s_nop 0"]
    for mod in ("row_shr:1 row_mask:0xf", "row_shr:2 row_mask:0xf", "row_shr:4 row_mask:0xf", "row_shr:8 row_mask:0xf",
                "row_bcast:15 row_mask:0xa", "row_bcast:31 row_mask:0xc"):
        L += [f"v_add_f32_dpp v{SS+r}, v{SS+r}, v{SS+r} {mod} bank_mask:0xf" for r in range(6)]
    for j in range(3):
        m, q = M + 2*j, SS + 3 + j
        L += [f"v_mul_f32 v{m}, {1.0/448.0!r}, v{SS+j}",
              f"v_mul_f32 v{q}, {1.0/448.0!r}, v{q}",
              f"v_fma_f32 v{q}, -v{m}, v{m}, v{q}",
              f"v_max_f32 v{q}, 0, v{q}",
              f"v_add_f32 v{q}, 0x3727c5ac, v{q}",
              f"v_rsq_f32 v{m+1}, v{q}"]
    L += ["s_mov_b32 exec_lo, 0", "s_mov_b32 exec_hi, 0x80000000"]
    L += [f"ds_write_b64 v50, {vr(M+2*j, 2)} offset:{32*j}" for j in range(3)]
    L += ["s_mov_b64 exec, -1"]
    return L

def c_wave(a):
    a.label("L_cwave")
    vX, vW = 8, 12
    t0, t1, t2, t3 = 4, 5, 6, 7
    AS, BS, ACC = (64, 80), (96, 104), 128
    sWR, sWF = S_A0, S_A1
    a(f"v_lshlrev_b32 v17, 4, v0")
    a("s_waitcnt lgkmcnt(0)")
    row_stats(a, 0)
    a(f"s_lshr_b32 s{sWR}, s{S_WAVE}, 1")
    a(f"s_and_b32 s{sWF}, s{S_WAVE}, 1")
    a(f"s_lshl_b32 s{S_T1}, s{sWR}, 6")
    x_frag_addrs(a, vX, S_T1, t0, t1, t2)
    w_tr_lane_consts(a, t3, 16, t0, t1)
    a(f"s_lshl_b32 s{S_T1}, s{sWF}, 3")
    a(f"v_xor_b32 v16, s{S_T1}, v16")
    for m in range(4):
        a(f"v_xor_b32 v{t0}, {2*m}, v16")
        a(f"v_lshl_add_u32 v{vW+m}, v{t0}, 4, v{t3}")
    a.srd(R_WS, S_WS, WS_BYTES); a.srd(R_A, S_WD, WB)
    a.stamp(0)
    def reads(t):
        s = t & 1
        if t == 28:
            L = []
            for n in range(2): L += [f"ds_read_b64 {vr(BS[s]+4*n, 2)}, v{(18, 20)[n]}", f"v_mov_b32 v{BS[s]+4*n+2}, 0", f"v_mov_b32 v{BS[s]+4*n+3}, 0"]
            for m in range(4): L += [f"ds_read_b64 {vr(AS[s]+4*m, 2)}, v19 offset:{256*m}", f"v_mov_b32 v{AS[s]+4*m+2}, 0", f"v_mov_b32 v{AS[s]+4*m+3}, 0"]
            return L
        st, ks = t >> 2, t & 3
        so = (st % 3) * SLOT
        def wr(m): return [f"ds_read_b64_tr_b16 {vr(AS[s]+4*m+2*h, 2)}, v{vW+m} offset:{so + (16*ks + 4*h)*256}" for h in range(2)]
        return ([f"ds_read_b128 {vr(BS[s])}, v{vX+ks} offset:{so}"] + wr(0) +
                [f"ds_read_b128 {vr(BS[s]+4)}, v{vX+ks} offset:{so + 4096}"] + wr(1) + wr(2) + wr(3))
    a(f"v_lshlrev_b32 v{t0}, 3, v0")
    a("v_cmp_gt_u32 vcc, 32, v0")
    a(f"s_lshl_b32 s{S_T1}, s{sWR}, 9")
    a(f"s_add_u32 s{S_T1}, s{S_T1}, {XEXT}")
    a(f"v_add_u32 v18, s{S_T1}, v{t0}")
    a(f"v_add_u32 v20, 256, v18")
    a(f"v_mov_b32 v{t1}, {ZEXT}")
    a(f"v_cndmask_b32 v18, v{t1}, v18, vcc")
    a(f"v_cndmask_b32 v20, v{t1}, v20, vcc")
    a(f"v_and_b32 v{t0}, 0xff, v{t0}")
    a(f"s_lshl_b32 s{S_T1}, s{sWF}, 10")
    a(f"s_add_u32 s{S_T1}, s{S_T1}, {WEXT}")
    a(f"v_add_u32 v19, s{S_T1}, v{t0}")
    a(f"s_lshl_b32 s{S_T0}, s{S_WAVE}, 3")
    a(f"s_add_u32 s{S_T0}, s{S_T0}, {STG_L}")
    a(f"v_mov_b32 v50, s{S_T0}")
    stat_ops = row_stats(a, 1)
    a("s_barrier")
    a.stamp(1)
    sTw = S_A5
    a(f"s_lshr_b32 s{sTw}, s{S_M}, 3")
    a(f"s_mul_i32 s{sTw}, s{sTw}, 57344")
    a(f"s_mul_i32 s{S_T0}, s{S_WAVE}, 14336")
    a(f"s_add_u32 s{sTw}, s{sTw}, s{S_T0}")
    touches = list(range(14)) if "l2touch" in a.exp else []
    if "nomma" not in a.exp:
        for l in reads(0): a(l)
    for t in range(29):
        s = t & 1
        a("s_waitcnt lgkmcnt(0)")
        if t < 28 and (t & 3) == 3:
            if a.stop == "p1": a.stamp(5 + (t >> 2))
            a("s_barrier")
        nxt = reads(t + 1) if t < 28 else []
        if "nomma" in a.exp: continue
        k = 0
        for m in range(4):
            for n in range(2):
                d = ACC + (2*m + n)*16
                cin = "0" if t == 0 else vr(d, 16)
                a(f"v_mfma_f32_32x32x16_bf16 {vr(d,16)}, {vr(AS[s]+4*m)}, {vr(BS[s]+4*n)}, {cin}")
                for _ in range(2):
                    if k < len(nxt): a(nxt[k]); k += 1
                if 4 <= t < 11 and stat_ops:
                    n_ = 3
                    if stat_ops[0].startswith("s_mov_b32 exec_lo"): n_ = len(stat_ops)
                    cut = []
                    while stat_ops and len(cut) < n_:
                        if stat_ops[0].startswith("s_mov_b32 exec_lo") and cut: break
                        cut.append(stat_ops.pop(0))
                    for l in cut: a(l)
                    if n_ > 3: a("s_nop 3")
        while k < len(nxt): a(nxt[k]); k += 1
        if t >= T_TOUCH:
            for _ in range(2):
                if touches:
                    i_ = touches.pop(0)
                    a(f"s_add_u32 s{S_T0}, s{sTw}, {1024*i_}")
                    a(f"buffer_load_dwordx4 v[52:55], v17, s[{R_A}:{R_A+3}], s{S_T0} offen")
    assert not stat_ops
    a.stamp(2)
    a(f"v_mov_b32 v{t0}, {NONCE_L}")
    a(f"ds_read_b64 v[20:21], v{t0}")
    vm = VM(a)
    sH = S_A2
    a(f"s_lshl_b32 s{S_T0}, s{S_RT}, 2")
    a(f"s_lshl_b32 s{S_T1}, s{sWR}, 1")
    a(f"s_add_u32 s{S_T0}, s{S_T0}, s{S_T1}")
    a(f"s_mul_i32 s{S_T0}, s{S_T0}, 112")
    a(f"s_lshl_b32 s{S_T1}, s{S_FC}, 3")
    a(f"s_add_u32 s{S_T0}, s{S_T0}, s{S_T1}")
    a(f"s_lshl_b32 s{S_T1}, s{sWF}, 2")
    a(f"s_add_u32 s{S_T0}, s{S_T0}, s{S_T1}")
    a(f"s_lshl_b32 s{sH}, s{S_T0}, 10")
    if H_OFF: a(f"s_add_u32 s{sH}, s{sH}, {H_OFF}")
    sFast = 99
    a("s_waitcnt lgkmcnt(0)")
    a(f"v_readfirstlane_b32 s{S_NONCE}, v20")
    a(f"v_readfirstlane_b32 s{sFast}, v21")
    sKQ = S_WAVE
    vWd, vA0, vA1, vFl = 21, 22, 23, 16
    a(f"v_lshrrev_b32 v{t0}, 3, v0")
    a(f"v_and_b32 v{t1}, 7, v0")
    a(f"v_bfe_u32 v{t2}, v0, 4, 1")
    a(f"v_lshlrev_b32 v{t2}, 2, v{t2}")
    a(f"v_xor_b32 v{t1}, v{t1}, v{t2}")
    a(f"v_mul_u32_u24 v{t0}, 896, v{t0}")
    a(f"v_lshl_add_u32 v{vWd}, v{t1}, 4, v{t0}")
    sWdS, sRing = S_A3, S_A4
    a(f"s_mul_i32 s{sWdS}, s{sKQ}, {448*896}")
    a(f"s_lshl_b32 s{S_T0}, s{S_CT}, 7")
    if "wdsame" in a.exp: a(f"s_mov_b32 s{S_T0}, 0")
    a(f"s_add_u32 s{sWdS}, s{sWdS}, s{S_T0}")
    a(f"s_mul_i32 s{sRing}, s{sKQ}, {RING}")
    NPARK = 28 - NSLOT
    def wd_dma(ks, slot):
        for hh in range(2):
            a(f"s_add_u32 m0, s{sRing}, {slot*2048 + hh*1024}")
            a(f"s_add_u32 s{S_T1}, s{sWdS}, {(16*ks + 8*hh)*896}")
            a(f"buffer_load_dwordx4 v{vWd}, s[{R_A}:{R_A+3}], s{S_T1} offen lds")
            vm.issue(("wd", ks))
    def either(plain, wt):
        if "fast" not in a.exp: a(wt); return
        L1, L2 = a.uid("L_wt"), a.uid("L_st")
        a(f"s_cmp_eq_u32 s{sFast}, 0")
        a(f"s_cbranch_scc1 {L1}")
        a(plain); a(f"s_branch {L2}")
        a.label(L1); a(wt); a.label(L2)
    r1 = list(range(NSLOT, 28)) if a.stop != "p1" else []
    for m in range(4):
        for n in range(2):
            d = ACC + (2*m + n)*16
            o = 24 + 4*((2*m + n) & 3)
            for i in range(8): a(f"v_max_f32 v{d+i}, 0, v{d+i}")
            for i in range(8): a(f"v_mul_f32 v{d+i}, v{d+i}, v{d+8+i}")
            for i in range(4): a(f"v_cvt_pk_bf16_f32 v{o+i}, v{d+2*i}, v{d+2*i+1}")
            a(f"s_add_u32 s{S_T0}, s{sH}, {(n*112 + m)*1024}")
            st_ = f"buffer_store_dwordx4 {vr(o)}, v17, s[{R_WS}:{R_WS+3}], s{S_T0} offen"
            either(st_, st_ + " sc1")
            vm.issue("h")
            if 2*m + n >= 2 and "nointer" not in a.exp:
                for _ in range(2):
                    if r1: ks = r1.pop(0); wd_dma(ks, ks - NSLOT)
    a.stamp(3)
    while r1: ks = r1.pop(0); wd_dma(ks, ks - NSLOT)
    if a.stop != "p1":
        for ks in range(NPARK, NSLOT): wd_dma(ks, ks)
    a(f"s_lshl_b32 s{S_T0}, s{S_RT}, 1")
    a(f"s_add_u32 s{S_T0}, s{S_T0}, s{sWR}")
    a(f"s_mul_i32 s{S_T0}, s{S_T0}, 28")
    a(f"s_lshl_b32 s{S_T1}, s{S_FC}, 1")
    a(f"s_add_u32 s{S_T0}, s{S_T0}, s{S_T1}")
    a(f"s_add_u32 s{S_T0}, s{S_T0}, s{sWF}")
    a(f"s_lshl_b32 s{S_T0}, s{S_T0}, 7")
    a(f"s_add_u32 s{S_T1}, s{S_T0}, {F1_OFF}")
    vm.drain()
    a(f"v_mov_b32 v{t0}, s{S_NONCE}")
    a(f"v_mov_b32 v{t1}, 0")
    a("s_mov_b64 exec, 1")
    st_ = f"buffer_store_dword v{t0}, v{t1}, s[{R_WS}:{R_WS+3}], s{S_T1} offen"
    either(st_, st_ + " sc1")
    vm.issue("sig")
    a("s_mov_b64 exec, -1")
    a.stamp(4)
    if a.stop == "p1":
        a("s_barrier"); a.stamps_out(12); a("s_endpgm"); return
    a(f"v_bfe_u32 v{t0}, v0, 2, 2")
    a(f"v_lshrrev_b32 v{t1}, 5, v0")
    a(f"v_lshl_add_u32 v{t1}, v{t1}, 2, v{t0}")
    a(f"v_lshlrev_b32 v{t1}, 7, v{t1}")
    a(f"v_and_b32 v{t2}, 1, v0")
    a(f"v_lshl_add_u32 v{t1}, v{t2}, 3, v{t1}")
    a(f"v_add_u32 v{t1}, s{sRing}, v{t1}")
    a(f"v_bfe_u32 v{t2}, v0, 4, 1")
    a(f"v_bfe_u32 v{t3}, v0, 1, 1")
    a(f"v_lshl_add_u32 v{t2}, v{t2}, 1, v{t3}")
    a(f"v_bfe_u32 v{t3}, v0, 3, 1")
    a(f"v_lshl_add_u32 v{t2}, v{t3}, 2, v{t2}")
    a(f"v_lshl_add_u32 v{vA0}, v{t2}, 4, v{t1}")
    a(f"v_xor_b32 v{t2}, 4, v{t2}")
    a(f"v_lshl_add_u32 v{vA1}, v{t2}, 4, v{t1}")
    HB, A3, PK, ACC3 = 40, (24, 32), 88, 192
    def tr3(slot, dst):
        return [f"ds_read_b64_tr_b16 {vr(dst+4*m+2*h, 2)}, v{(vA0, vA1)[m]} offset:{slot*2048 + 1024*h}" for m in range(2) for h in range(2)]
    for j in range(NPARK):
        for l in tr3(j, PK + 8*j): a(l)
        if j % 3 == 2: a("s_waitcnt lgkmcnt(4)")
    a("s_waitcnt lgkmcnt(0)")
    a(f"s_mul_i32 s{S_T0}, s{S_RB}, 28")
    a(f"s_mul_i32 s{S_T1}, s{sKQ}, 7")
    a(f"s_add_u32 s{S_T0}, s{S_T0}, s{S_T1}")
    a(f"s_lshl_b32 s{S_T0}, s{S_T0}, 7")
    a(f"s_add_u32 s{S_T0}, s{S_T0}, {F1_OFF}")
    a(f"v_min_u32 v{vFl}, 6, v0")
    a(f"v_lshlrev_b32 v{vFl}, 7, v{vFl}")
    a(f"v_add_u32 v{vFl}, s{S_T0}, v{vFl}")
    NA = 7
    for ks in range(NA): wd_dma(ks, ks)
    a(f"buffer_load_dword v{t2}, v{vFl}, s[{R_WS}:{R_WS+3}], 0 offen sc1"); vm.issue("f1")
    for ks in range(NA, NPARK): wd_dma(ks, ks)
    vm.wait("f1")
    Lf1 = a.uid("L_f1ok")
    a(f"v_cmp_ne_u32 vcc, s{S_NONCE}, v{t2}")
    a("s_nop 1")
    a(f"s_cbranch_vccz {Lf1}")
    a.poll(vFl, t0, 64)
    a.label(Lf1)
    a.stamp(5)
    sHr = S_A2
    a(f"s_mul_i32 s{sHr}, s{S_RB}, {2*112}")
    a(f"s_mul_i32 s{S_T0}, s{sKQ}, 28")
    a(f"s_add_u32 s{sHr}, s{sHr}, s{S_T0}")
    a(f"s_lshl_b32 s{sHr}, s{sHr}, 10")
    if H_OFF: a(f"s_add_u32 s{sHr}, s{sHr}, {H_OFF}")
    kof = lambda t: (NSLOT + t) if t < NPARK else (t - NPARK)
    def h_load(t):
        for n in range(2):
            a(f"s_add_u32 s{S_T0}, s{sHr}, {(n*112 + kof(t))*1024}")
            a(f"buffer_load_dwordx4 {vr(HB + 8*(t % HD) + 4*n)}, v17, s[{R_WS}:{R_WS+3}], s{S_T0} offen sc1")
            vm.issue(("h", t))
    for t in range(HD): h_load(t)
    for t in range(28):
        s = t & 1
        vm.wait(("h", t))
        nxt = []
        if NPARK <= t + 1 < 28:
            if vm.has(("wd", kof(t + 1))): vm.wait(("wd", kof(t + 1)))
            nxt = tr3(kof(t + 1), A3[(t + 1) & 1])
        if t >= NPARK: a("s_waitcnt lgkmcnt(0)" if not nxt or True else "")
        src = (PK + 8*t) if t < NPARK else A3[s]
        k = 0
        for m in range(2):
            for n in range(2):
                d = ACC3 + (2*m + n)*16
                cin = "0" if t == 0 else vr(d, 16)
                a(f"v_mfma_f32_32x32x16_bf16 {vr(d,16)}, {vr(src+4*m)}, {vr(HB + 8*(t % HD) + 4*n)}, {cin}")
                if k < len(nxt): a(nxt[k]); k += 1
        if t == 4:
            a(f"v_mov_b32 v{t0}, {CNT_L + 12}")
            a(f"v_mov_b32 v{t1}, 1")
            a("s_mov_b64 exec, 1")
            a(f"ds_add_u32 v{t0}, v{t1}")
            a("s_mov_b64 exec, -1")
        if t + HD < 28: h_load(t + HD)
        if "p3st" in a.exp and t in (0, 6, 13, 20): a.stamp(8 + (0, 6, 13, 20).index(t))
    a.stamp(6)
    a(f"v_and_b32 v{t0}, 31, v0")
    a(f"v_mul_u32_u24 v{t0}, {PROW}, v{t0}")
    a(f"v_lshrrev_b32 v{t1}, 5, v0")
    a(f"v_lshl_add_u32 v{t0}, v{t1}, 4, v{t0}")
    a(f"v_add_u32 v{t0}, s{sRing}, v{t0}")
    a("s_nop 7")
    for m in range(2):
        for n in range(2):
            d = ACC3 + (2*m + n)*16
            for j in range(4):
                a(f"ds_write_b128 v{t0}, {vr(d+4*j)} offset:{n*32*PROW + m*128 + j*32}")
    a("s_waitcnt lgkmcnt(0)")
    a("s_barrier")
    a.stamp(7)
    a.label("L_cout")
    a.stamps_out(12 if "p3st" in a.exp else 8)
    a("s_endpgm")

def aux(a):
    a.label("L_prep")
    t0, t1, t2, t3 = 4, 5, 6, 7
    sP = 2
    CSL = 0
    vCo = 14
    a(f"v_lshrrev_b32 v{t0}, 4, v0")
    a(f"v_mul_u32_u24 v{t0}, 3584, v{t0}")
    a(f"v_and_b32 v{t1}, 15, v0")
    a(f"v_lshl_add_u32 v{vCo}, v{t1}, 4, v{t0}")
    a(f"v_lshlrev_b32 v15, 4, v0")
    a("s_waitcnt lgkmcnt(0)")
    a.srd(R_WS, S_WS, WS_BYTES); a.srd(R_A, S_SK, XB); a.srd(R_B, S_WD, WB)
    a.stamp(0)
    CD, CA = 192, 248
    sC = S_A1
    a(f"s_cmp_ge_u32 s{sP}, 28")
    a("s_cbranch_scc1 L_aux_nocs")
    a(f"s_cmp_ge_u32 s{sP}, 14")
    a("s_cbranch_scc1 L_aux_up")
    a.srd(R_E, S_WG, WB)
    a(f"s_mov_b32 s{sC}, s{sP}")
    a("s_branch L_aux_cs")
    a.label("L_aux_up")
    a.srd(R_E, S_WU, WB)
    a(f"s_sub_u32 s{sC}, s{sP}, 14")
    a.label("L_aux_cs")
    a(f"v_mov_b32 v{t1}, {EP_OFF}")
    a(f"buffer_load_dword v12, v{t1}, s[{R_WS}:{R_WS+3}], 0 offen sc1")
    a(f"s_mul_i32 s{S_T0}, s{S_WAVE}, {4*3584}")
    a(f"s_lshl_b32 s{S_T1}, s{sC}, 8")
    a(f"s_add_u32 s{S_T0}, s{S_T0}, s{S_T1}")
    for i in range(14):
        a(f"buffer_load_dwordx4 {vr(CD+4*i)}, v{vCo}, s[{R_E}:{R_E+3}], s{S_T0} offen")
        if i < 13: a(f"s_add_u32 s{S_T0}, s{S_T0}, {32*3584}")
    sLo, sHi = S_A2, S_A3
    a(f"s_mov_b32 s{sLo}, 0x00003f80")
    a(f"s_mov_b32 s{sHi}, 0x3f800000")
    for i in range(14):
        a(f"s_waitcnt vmcnt({13 - i})")
        for q in range(4):
            c0 = "0" if i == 0 else f"v{CA+2*q}"; c1 = "0" if i == 0 else f"v{CA+2*q+1}"
            a(f"v_dot2_f32_bf16 v{CA+2*q}, v{CD+4*i+q}, s{sLo}, {c0}")
            a(f"v_dot2_f32_bf16 v{CA+2*q+1}, v{CD+4*i+q}, s{sHi}, {c1}")
    a(f"v_lshrrev_b32 v{t0}, 4, v0")
    a(f"s_lshl_b32 s{S_T0}, s{S_WAVE}, 2")
    a(f"v_add_u32 v{t0}, s{S_T0}, v{t0}")
    a(f"v_lshlrev_b32 v{t0}, 9, v{t0}")
    a(f"v_and_b32 v{t1}, 15, v0")
    a(f"v_lshl_add_u32 v{t0}, v{t1}, 5, v{t0}")
    if CSL: a(f"v_add_u32 v{t0}, {CSL}, v{t0}")
    a(f"ds_write_b128 v{t0}, {vr(CA)}")
    a(f"ds_write_b128 v{t0}, {vr(CA+4)} offset:16")
    a("s_waitcnt lgkmcnt(0)")
    a("s_barrier")
    a(f"s_cmp_lg_u32 s{S_WAVE}, 7")
    a("s_cbranch_scc1 L_aux_touch")
    a(f"v_lshlrev_b32 v{t0}, 2, v0")
    if CSL: a(f"v_add_u32 v{t0}, {CSL}, v{t0}")
    for hh in range(2):
        for i in range(32):
            a(f"ds_read_b32 v{CD-64+32*hh+i}, v{t0} offset:{512*i + 256*hh}")
            if i % 8 == 7: a("s_waitcnt lgkmcnt(7)")
    a("s_waitcnt lgkmcnt(0)")
    a.nonce_from(12)
    for hh in range(2):
        b = CD - 64 + 32*hh
        for st in (16, 8, 4, 2, 1):
            for i in range(st): a(f"v_add_f32 v{b+i}, v{b+i}, v{b+i+st}")
        a(f"v_mov_b32 v{b+1}, s{S_NONCE}")
    a(f"s_cmp_ge_u32 s{sP}, 14")
    a(f"s_cselect_b32 s{S_T0}, 1792, 0")
    a(f"s_lshl_b32 s{S_T1}, s{sC}, 7")
    a(f"s_add_u32 s{S_T0}, s{S_T0}, s{S_T1}")
    a(f"s_lshl_b32 s{S_T0}, s{S_T0}, 3")
    a(f"s_add_u32 s{S_T0}, s{S_T0}, {CS_OFF}")
    a(f"v_lshlrev_b32 v{t0}, 3, v0")
    a(f"buffer_store_dwordx2 {vr(CD-64, 2)}, v{t0}, s[{R_WS}:{R_WS+3}], s{S_T0} offen sc1")
    a(f"buffer_store_dwordx2 {vr(CD-32, 2)}, v{t0}, s[{R_WS}:{R_WS+3}], s{S_T0} offen offset:512 sc1")
    a("s_branch L_aux_touch")
    a.label("L_aux_nocs")
    a.label("L_aux_touch")
    a.stamp(1)
    a(f"s_mul_i32 s{S_T0}, s{sP}, 57344")
    a(f"s_lshl_b32 s{S_T1}, s{S_WAVE}, 10")
    a(f"s_add_u32 s{S_T0}, s{S_T0}, s{S_T1}")
    for i in range(7 if "nosk" not in a.exp else 0):
        a(f"buffer_load_dwordx4 {vr(16+4*i)}, v15, s[{R_A}:{R_A+3}], s{S_T0} offen")
        a(f"s_add_u32 s{S_T0}, s{S_T0}, 8192")
    a(f"s_mul_i32 s{S_T0}, s{sP}, 50176")
    a(f"s_add_u32 s{S_T0}, s{S_T0}, s{S_T1}")
    for i in range(7):
        a(f"buffer_load_dwordx4 {vr(48+4*i)}, v15, s[{R_B}:{R_B+3}], s{S_T0} offen")
        a(f"s_add_u32 s{S_T0}, s{S_T0}, 8192")
    a.stamp(2)
    a("s_waitcnt vmcnt(0)")
    a.stamp(3)
    a(f"s_cmp_lg_u32 s{sP}, 28")
    a("s_cbranch_scc1 L_aux_end")
    a(f"s_cmp_lg_u32 s{S_WAVE}, 0")
    a("s_cbranch_scc1 L_aux_end")
    a(f"v_mov_b32 v{t1}, {EP_OFF}")
    a(f"buffer_load_dword v{t2}, v{t1}, s[{R_WS}:{R_WS+3}], 0 offen sc1")
    a("s_waitcnt vmcnt(0)")
    a.nonce_from(t2)
    a(f"v_lshlrev_b32 v{t0}, 2, v0")
    a(f"v_add_u32 v{t0}, {F2_OFF}, v{t0}")
    a(f"s_mov_b32 s{S_BND}, {a.spin}")
    a.label("L_aux_ep")
    a("s_sleep 32")
    for i in range(14): a(f"buffer_load_dword v{16+i}, v{t0}, s[{R_WS}:{R_WS+3}], 0 offen offset:{256*i} sc1")
    a("s_waitcnt vmcnt(0)")
    for i in range(14): a(f"v_xor_b32 v{16+i}, s{S_NONCE}, v{16+i}")
    for i in range(1, 14): a(f"v_or_b32 v16, v16, v{16+i}")
    a("v_cmp_ne_u32 vcc, 0, v16")
    a("s_nop 1")
    a("s_cbranch_vccz L_aux_epw")
    a(f"s_sub_u32 s{S_BND}, s{S_BND}, 1")
    a(f"s_cmp_lg_u32 s{S_BND}, 0")
    a("s_cbranch_scc1 L_aux_ep")
    a.label("L_aux_epw")
    a(f"v_mov_b32 v{t2}, s{S_NONCE}")
    a("s_mov_b64 exec, 1")
    a(f"buffer_store_dword v{t2}, v{t1}, s[{R_WS}:{R_WS+3}], 0 offen sc1")
    a("s_mov_b64 exec, -1")
    a("s_waitcnt vmcnt(0)")
    a.label("L_aux_end")
    a.stamps_out(4)
    a("s_endpgm")

HEADER = open(os.path.join(os.path.dirname(os.path.abspath(__file__)), "header.txt")).read()

def build(prof=False, spin=1 << 16, stop=None, exp=()):
    a = Gen(prof=prof, spin=spin, stop=stop, exp=exp)
    entry(a)
    h_wave(a)
    c_wave(a)
    aux(a)
    a.label("L_end")
    a("s_endpgm")
    txt = HEADER + f"; @launch grid=(256,1,1) block=(512,1,1) lds={LDS_BYTES}\n"
    txt += f'.amdgcn_target "amdgcn-amd-amdhsa--gfx950"\n.text\n.globl {NAME}\n.p2align 8\n.type {NAME},@function\n{NAME}:\n'
    body = [l for l in a.lines if l is not None]
    txt += "\n".join(("    " + l) if not l.endswith(":") else l for l in body) + "\n"
    txt += (f'.section .rodata,"a"\n.p2align 6\n.amdhsa_kernel {NAME}\n'
            "  .amdhsa_next_free_vgpr 256\n  .amdhsa_next_free_sgpr 102\n  .amdhsa_accum_offset 256\n"
            "  .amdhsa_group_segment_fixed_size 0\n  .amdhsa_kernarg_size 104\n  .amdhsa_user_sgpr_count 2\n"
            "  .amdhsa_user_sgpr_kernarg_segment_ptr 1\n  .amdhsa_system_sgpr_workgroup_id_x 1\n"
            "  .amdhsa_float_denorm_mode_32 3\n"
            ".end_amdhsa_kernel\n")
    return txt

if __name__ == "__main__":
    import argparse
    ap = argparse.ArgumentParser()
    ap.add_argument("-o", default="parallel_sum__ssm_conv_h3__glu_gated_reglu__prompt.s")
    ap.add_argument("--prof", nargs="?", const="rt", default=None)
    ap.add_argument("--spin", type=int, default=1 << 16)
    ap.add_argument("--stop", default=None)
    ap.add_argument("--exp", default="")
    x = ap.parse_args()
    open(x.o, "w").write(build(x.prof, x.spin, x.stop, [e for e in x.exp.split(',') if e]))
    print("wrote", x.o)
```
